```python
import torch

def _softmax(x, axis=-1):
    return torch.softmax(x, dim=axis)

def _gelu(x):
    return torch.nn.functional.gelu(x, approximate='tanh')

def _silu(x):
    return torch.nn.functional.silu(x)

def _sigmoid(x):
    return torch.sigmoid(x)

def _layernorm(x, axis=-1, eps=1e-05):
    m = x.mean(dim=axis, keepdim=True)
    v = x.var(dim=axis, keepdim=True, unbiased=False)
    return (x - m) / torch.sqrt(v + eps)

def _scatter_add(tgt, idx, src, axis=0):
    return tgt.clone().index_add_(axis, idx, src)

def _segment_sum(src, seg, n):
    out = torch.zeros((n,) + src.shape[1:], dtype=src.dtype)
    return out.index_add_(0, seg, src)

def _pad(x, pw):
    flat = tuple((v for pair in reversed(pw) for v in pair))
    return torch.nn.functional.pad(x, flat)
kernel_name = 'gated_mix__memory_aug_recurrent_mem_tr__glu_gated_swiglu__prompt'

def setup_inputs():

    _w = lambda a: (lambda t: t.to(torch.bfloat16) if t.is_floating_point() else t)(torch.as_tensor(a))

    def _A_setup():
        B, S, Dm = (1, 2048, 512)
        H, Dh = (32, 128)
        M, seg = (8, 32)
        seg = min(seg, S)
        S = S // seg * seg
        return {'x': _w((lambda *s: torch.randn(*s, dtype=torch.bfloat16) * 0.05)(B, S, Dm)), 'mem0': _w((lambda *s: torch.randn(*s, dtype=torch.bfloat16) * 0.4)(B, M, Dm)), 'Wq': _w((lambda *s: torch.randn(*s, dtype=torch.bfloat16) * 6.4)(Dm, H, Dh) * Dm ** (-0.5)), 'Wk': _w((lambda *s: torch.randn(*s, dtype=torch.bfloat16) * 6.4)(Dm, H, Dh) * Dm ** (-0.5)), 'Wv': _w((lambda *s: torch.randn(*s, dtype=torch.bfloat16) * 0.4)(Dm, H, Dh) * Dm ** (-0.5)), 'Wo': _w((lambda *s: torch.randn(*s, dtype=torch.bfloat16) * 0.4)(H, Dh, Dm) * (H * Dh) ** (-0.5)), 'seg_len': seg}
    _A_in = _A_setup()

    def _B_setup():
        B, S, D, F = (1, 2048, 512, 1792)
        return {'x': _w((lambda *s: torch.randn(*s, dtype=torch.bfloat16) * 0.05)(B, S, D)), 'w1': _w((lambda *s: torch.randn(*s, dtype=torch.bfloat16) * 0.8)(D, F) * (2.0 / D) ** 0.5), 'w3': _w((lambda *s: torch.randn(*s, dtype=torch.bfloat16) * 0.8)(D, F) * (2.0 / D) ** 0.5), 'w2': _w((lambda *s: torch.randn(*s, dtype=torch.bfloat16) * 0.8)(F, D) * (2.0 / F) ** 0.5)}
    _B_in = _B_setup()
    return {'A_x': _A_in['x'], 'A_mem0': _A_in['mem0'], 'A_Wq': _A_in['Wq'], 'A_Wk': _A_in['Wk'], 'A_Wv': _A_in['Wv'], 'A_Wo': _A_in['Wo'], 'A_seg_len': _A_in['seg_len'], 'B_x': _B_in['x'], 'B_w1': _B_in['w1'], 'B_w3': _B_in['w3'], 'B_w2': _B_in['w2'], 'gate_w': _w((lambda *s: torch.randn(*s, dtype=torch.bfloat16) * 0.05)(512) * 16.0)}

def reference(A_x, A_mem0, A_Wq, A_Wk, A_Wv, A_Wo, A_seg_len, B_x, B_w1, B_w3, B_w2, gate_w):

    def _A_ref(x, mem0, Wq, Wk, Wv, Wo, seg_len):
        B, S, Dm = x.shape
        H, Dh = (Wq.shape[1], Wq.shape[2])
        M = mem0.shape[1]
        scale = Dh ** (-0.5)
        n_seg = S // seg_len
        L = M + seg_len
        idx = torch.arange(L)
        mask = (idx[:, None] < M) | (idx[:, None] >= idx[None, :])
        mem = mem0
        outs = []
        for s in range(n_seg):
            xs = x[:, s * seg_len:(s + 1) * seg_len, :].clone()
            h = torch.concatenate([mem, xs], axis=1)
            q = torch.einsum('btd,dhe->bhte', h, Wq)
            k = torch.einsum('btd,dhe->bhte', h, Wk)
            v = torch.einsum('btd,dhe->bhte', h, Wv)
            scores = torch.einsum('bhqe,bhke->bhqk', q, k) * scale
            scores = torch.where(mask[None, None], scores, -1000000000.0)
            p = _softmax(scores, axis=-1)
            o = torch.einsum('bhqk,bhke->bhqe', p, v)
            o = torch.einsum('bhte,hed->btd', o, Wo)
            mem = o[:, :M, :].clone()
            outs.append(o[:, M:, :])
        return torch.concatenate(outs, axis=1)

    def _B_ref(x, w1, w3, w2):
        gate = torch.einsum('bsd,df->bsf', x, w1)
        up = torch.einsum('bsd,df->bsf', x, w3)
        h = _silu(gate) * up
        out = torch.einsum('bsf,fd->bsd', h, w2)
        return out
    x = A_x
    g = _sigmoid((x * gate_w).sum(-1, keepdims=True))
    a = _A_ref(x, A_mem0, A_Wq, A_Wk, A_Wv, A_Wo, A_seg_len)
    b = _B_ref(x, B_w1, B_w3, B_w2)
    return g * a + (1 - g) * b
```

```python
import re

def R(prefix, lo, n=1):
    return f"{prefix}{lo}" if n == 1 else f"{prefix}[{lo}:{lo+n-1}]"
def v(lo, n=1): return R("v", lo, n)
def a(lo, n=1): return R("a", lo, n)
def s(lo, n=1): return R("s", lo, n)

_reg_re = re.compile(r"^(-|abs\()?([vas])(\d+)\)?$")
_rng_re = re.compile(r"^(-)?([vas])\[(\d+):(\d+)\]$")

def regs_of(op):
    op = op.strip()
    m = _rng_re.match(op)
    if m:
        return [(m.group(2), i) for i in range(int(m.group(3)), int(m.group(4)) + 1)]
    m = _reg_re.match(op)
    if m:
        return [(m.group(2), int(m.group(3)))]
    if op == "vcc": return [("s", "vcc")]
    if op == "exec": return [("s", "exec")]
    if op == "m0": return [("s", "m0")]
    return []

TRANS = ("v_exp_f32", "v_log_f32", "v_rcp_f32", "v_rsq_f32", "v_sqrt_f32", "v_sin_f32", "v_cos_f32")

class Ins:
    __slots__ = ("text", "mn", "kind", "wr", "rd", "states", "passes", "srcc", "dpp", "wide_store", "addr_s", "real", "region")
    pass

def parse(text):
    t = text.split(";")[0].strip()
    ins = Ins(); ins.text = text; ins.wr = []; ins.rd = []; ins.states = 1; ins.passes = 0
    ins.srcc = []; ins.dpp = False; ins.wide_store = False; ins.addr_s = []
    if not t or t.endswith(":") or t.startswith("."):
        ins.mn = ""; ins.kind = "none"; ins.states = 0
        return ins
    parts = t.split(None, 1)
    mn = parts[0]; ins.mn = mn
    rest = parts[1] if len(parts) > 1 else ""
    ops = [o.strip() for o in rest.split(",")] if rest else []
    clean = []
    for o in ops:
        toks = o.split()
        clean.append(toks[0] if toks else "")
    mods = rest
    ops = clean
    if mn == "s_nop":
        ins.kind = "nop"; ins.states = int(ops[0], 0) + 1
        return ins
    if mn.startswith("v_mfma") or mn.startswith("v_smfmac"):
        ins.kind = "mfma"
        ins.passes = 8 if "32x32" in mn else (2 if "4x4" in mn else 4)
        ins.wr = regs_of(ops[0])
        ins.rd = regs_of(ops[1]) + regs_of(ops[2])
        if mn.startswith("v_smfmac"):
            ins.srcc = regs_of(ops[0]); ins.rd += regs_of(ops[3])
        else:
            ins.srcc = regs_of(ops[3])
        return ins
    if mn.startswith("v_"):
        ins.kind = "valu"
        if mn in TRANS or mn.replace("_e32", "").replace("_e64", "") in TRANS: ins.kind = "trans"
        ins.dpp = ("_dpp" in mn) or ("row_" in mods) or ("quad_perm" in mods)
        if mn.startswith("v_cmp"):
            ins.wr = regs_of(ops[0]); ins.rd = sum((regs_of(o) for o in ops[1:]), [])
            if mn.startswith("v_cmpx"): ins.wr += [("s", "exec")]
        elif mn.startswith("v_permlane"):
            ins.kind = "permlane"
            ins.wr = regs_of(ops[0]) + regs_of(ops[1]); ins.rd = list(ins.wr)
        elif mn.startswith("v_readfirstlane") or mn.startswith("v_readlane"):
            ins.kind = "readlane"
            ins.wr = regs_of(ops[0]); ins.rd = sum((regs_of(o) for o in ops[1:]), [])
        elif mn.startswith("v_add_co") or mn.startswith("v_addc_co") or mn.startswith("v_sub_co"):
            ins.wr = regs_of(ops[0]) + regs_of(ops[1]); ins.rd = sum((regs_of(o) for o in ops[2:]), [])
        else:
            ins.wr = regs_of(ops[0]); ins.rd = sum((regs_of(o) for o in ops[1:]), [])
            if mn.startswith(("v_fmac", "v_dot2c", "v_pk_fmac")) or ins.dpp: ins.rd += ins.wr
            if mn.startswith("v_cndmask") and len(ops) == 3: ins.rd += [("s", "vcc")]
        return ins
    if mn.startswith("ds_"):
        ins.kind = "ds"
        if mn.startswith("ds_read") or mn.startswith("ds_bpermute") or mn.startswith("ds_swizzle"):
            ins.wr = regs_of(ops[0]); ins.rd = sum((regs_of(o) for o in ops[1:]), [])
        else:
            ins.rd = sum((regs_of(o) for o in ops), [])
        return ins
    if mn.startswith(("global_", "buffer_", "flat_")):
        ins.kind = "vmem"
        allr = [regs_of(o) for o in ops]
        is_lds = ("_lds_" in mn) or re.search(r"\blds\b", mods)
        if "store" in mn:
            ins.rd = sum(allr, [])
            ins.wide_store = ("x3" in mn) or ("x4" in mn)
        elif "atomic" in mn:
            if "sc0" in mods: ins.wr = allr[0]; ins.rd = sum(allr[1:], [])
            else: ins.rd = sum(allr, [])
        elif mn in ("buffer_inv", "buffer_wbl2"):
            pass
        elif is_lds:
            ins.rd = sum(allr, []) + [("s", "m0")]
        else:
            ins.wr = allr[0]; ins.rd = sum(allr[1:], [])
        return ins
    if mn.startswith("s_"):
        ins.kind = "salu"
        if mn.startswith(("s_cmp", "s_cbranch", "s_branch", "s_waitcnt", "s_barrier", "s_endpgm", "s_bitcmp", "s_setprio", "s_sleep")):
            ins.rd = sum((regs_of(o) for o in ops), [])
            if mn == "s_cbranch_vccnz" or mn == "s_cbranch_vccz": ins.rd += [("s", "vcc")]
        else:
            ins.wr = regs_of(ops[0]) if ops else []
            ins.rd = sum((regs_of(o) for o in ops[1:]), [])
            if "saveexec" in mn: ins.wr += [("s", "exec")]
        return ins
    ins.kind = "other"
    return ins

def isv(r): return r[0] in ("v", "a")

def required(prod, cons):
    need = 0
    pw = set(prod.wr); cr = set(cons.rd); cw = set(cons.wr)
    pv = {r for r in pw if isv(r)}
    valu_like = ("valu", "trans", "permlane", "readlane")
    if prod.kind in valu_like:
        if cons.kind == "mfma" and pv & (cr | set(cons.srcc)): need = max(need, 2)
        if cons.kind in valu_like and cons.dpp and pv & cr: need = max(need, 2)
        if cons.kind == "permlane" and pv & cr: need = max(need, 2)
        if cons.kind == "readlane" and pv & cr: need = max(need, 1)
        if prod.kind == "trans" and cons.kind in ("valu", "permlane", "readlane", "mfma") and pv & cr: need = max(need, 1 if cons.kind != "mfma" else 2)
        ps = {r for r in pw if r[0] == "s"}
        if ps:
            if cons.kind == "vmem" and ps & cr: need = max(need, 5)
            if cons.kind in valu_like and ps & cr: need = max(need, 2)
            if cons.kind == "readlane" and ps & cr: need = max(need, 4)
            if ("s", "exec") in ps and cons.kind == "mfma": need = max(need, 4)
            if ("s", "exec") in ps and cons.dpp: need = max(need, 5)
            if cons.kind == "salu" and (ps & cr): need = max(need, 1)
    if prod.kind == "mfma":
        n = {2: 5, 4: 8, 8: 12, 16: 20}[prod.passes]
        if cons.kind == "mfma":
            if pw & cr: need = max(need, n)
            c = set(cons.srcc)
            if pw & c:
                if pw == c and cons.passes == prod.passes: need = max(need, 2 if prod.passes == 2 else 0)
                else: need = max(need, {2: 4, 4: 6, 8: 10, 16: 18}[prod.passes])
            if (pw & cw) and not (pw & c): need = max(need, n)
        elif cons.kind in valu_like or cons.kind in ("ds", "vmem"):
            if pw & (cr | cw): need = max(need, n)
        if cons.kind in valu_like and set(prod.srcc) & cw:
            need = max(need, {2: 1, 4: 3, 8: 7, 16: 15}[prod.passes])
    if prod.kind == "vmem" and prod.wide_store:
        data = {r for r in prod.rd if isv(r)}
        if data & cw: need = max(need, 2)
    if prod.kind == "salu":
        if ("s", "m0") in pw and cons.kind == "vmem" and ("s", "m0") in cr: need = max(need, 1)
        if ("s", "exec") in pw and cons.kind == "permlane": need = max(need, 0)
    return need

class Asm:
    def __init__(self, auto_nop=True):
        self.out = []
        self.hist = []
        self.auto_nop = auto_nop
        self.nops = 0
        self.uid = 0
        self.region = 0
        self.cond = False
    def label(self, base):
        self.uid += 1
        return f"{base}_{self.uid}"
    def raw(self, text):
        for line in text.split("\n"):
            self.out.append(line)
    def __call__(self, text):
        for line in text.split("\n"):
            if line.strip(): self.emit(line)
    def emit(self, line):
        ins = parse(line)
        ins.real = ins.states; ins.region = self.region if self.cond else -1
        if ins.kind == "none":
            self.out.append(line.strip() if line.strip().endswith(":") else line)
            return
        need = 0
        win = self.hist[-40:]
        for pi in range(len(win)-1, -1, -1):
            p = win[pi]
            r = required(p, ins)
            if r <= 0: continue
            t_plain = 0; t_sim = 0
            lastM_t = 0 if p.kind == "mfma" else None
            lastM_p = p.passes if p.kind == "mfma" else 0
            prev_states = 1
            seq = win[pi+1:] + [ins]
            for x in seq:
                inreg = (x is ins) or (x.region == -1) or (self.cond and x.region == self.region)
                if not inreg: continue
                t_plain += prev_states
                t_sim += prev_states
                if x.kind == "mfma" and lastM_t is not None:
                    t_sim = max(t_sim, lastM_t + lastM_p)
                if x.kind == "mfma":
                    lastM_t = t_sim; lastM_p = x.passes
                prev_states = x.real if x is not ins else 1
            have = max(t_plain - 1, t_sim - 1 - 1)
            if have < r: need = max(need, r - have)
        if need > 0:
            if not self.auto_nop: raise RuntimeError(f"hazard: {line} needs {need} more wait states")
            k = need
            while k > 0:
                n = min(k, 16)
                nop = parse(f"s_nop {n-1}")
                self.out.append(f"  s_nop {n-1}")
                nop.real = nop.states; nop.region = self.region if self.cond else -1
                if self.cond: nop.states = 0
                self.hist.append(nop); self.nops += n
                k -= n
        self.out.append("  " + line.strip())
        ins.real = ins.states; ins.region = self.region if self.cond else -1
        if self.cond: ins.states = 0
        self.hist.append(ins)
        if len(self.hist) > 400: self.hist = self.hist[-200:]
    def cbegin(self):
        self.region += 1; self.cond = True
    def cend(self):
        self.cond = False
    def comment(self, t):
        self.out.append(f"  ; {t}")
    def text(self):
        return "\n".join(self.out) + "\n"

KD = """.section .rodata,"a"
.p2align 6
.amdhsa_kernel {name}
  .amdhsa_next_free_vgpr {vgpr}
  .amdhsa_next_free_sgpr {sgpr}
  .amdhsa_accum_offset {acc}
  .amdhsa_group_segment_fixed_size 0
  .amdhsa_kernarg_size {karg}
  .amdhsa_user_sgpr_count 2
  .amdhsa_user_sgpr_kernarg_segment_ptr 1
  .amdhsa_system_sgpr_workgroup_id_x 1
.end_amdhsa_kernel
"""
def kd(name, vgpr=512, sgpr=102, acc=256, karg=120):
    return KD.format(name=name, vgpr=vgpr, sgpr=sgpr, acc=acc, karg=karg)
def kstart(name):
    return f".text\n.globl {name}\n.p2align 8\n.type {name},@function\n{name}:\n"
```

```python
from asmlib import *
from layout import *
import struct
def f2u(x): return struct.unpack("<I", struct.pack("<f", x))[0]
SCALE_LOG2E = (128.0 ** -0.5) * 1.4426950408889634

vL16,vIDX,vW16,vLH,vVXA,vPF,vZP,vZP1,vPP,vPG,vMP,vMQW,vMQR0,vMQR1,vOW,vOR,vWO0,vWO1,vPM,vZ = range(20)
X0=20
S0=24; S1=28; SM=120
MA=32
KXR=64
AQK=96
AV=112
T0=124
WV=128
def WQ(t,b): return a(0+(t*8+b)*8, 8)
def WK(t,b): return a(128+(t*8+b)*8, 8)
def WVf(t,b): return v(WV+(t*8+b)*8, 8)
def ma(b): return v(MA+4*b,4)
sWS=4; sDBG=6; sWAVE=8; sRANK=9; sSTEP=10; sT0=12
sMRD=20
sMEMn=24; sMEMc=26; sPc=28; sPc2=30; sKX=32; sVX=34; sKM=36; sVM=38; sSC=40
sSPIN=42; sPH=43; sW=44; sMASK=46; sPFK=48; sOFF=50
sIN=60
sTS=70

def smf(acc, A_, B_): return f"v_smfmac_f32_16x16x64_bf16 {v(acc,4)}, {A_}, {B_}, {v(vIDX)}"

def gen_startup_dma(A, chunk):
    slot = chunk % 4
    if chunk < 12:
        mat = chunk // 4; qq = chunk % 4
        wreg = [62, 64, 66][mat]
        A(f"s_lshl_b32 {s(sT0)}, {s(sRANK)}, 8")
        A(f"s_add_u32 {s(sW)}, {s(wreg)}, {s(sT0)}")
        A(f"s_addc_u32 {s(sW+1)}, {s(wreg+1)}, 0")
        A(f"s_add_u32 {s(sW)}, {s(sW)}, {qq*128*8192}")
        A(f"s_addc_u32 {s(sW+1)}, {s(sW+1)}, 0")
        for i in range(8):
            A(f"s_add_u32 m0, {s(sT0+1)}, {slot*32768 + i*1024}")
            A(f"global_load_lds_dwordx4 {v(22 + (i>>2))}, {s(sW,2)}")
            if i < 7:
                A(f"s_add_u32 {s(sW)}, {s(sW)}, {4*8192}")
                A(f"s_addc_u32 {s(sW+1)}, {s(sW+1)}, 0")
    else:
        qq = chunk - 12
        A(f"s_lshl_b32 {s(sT0)}, {s(sRANK)}, 17")
        A(f"s_add_u32 {s(sW)}, {s(68)}, {s(sT0)}")
        A(f"s_addc_u32 {s(sW+1)}, {s(69)}, 0")
        A(f"s_lshl_b32 {s(sT0)}, {s(sWAVE)}, 13")
        A(f"s_add_u32 {s(sT0)}, {s(sT0)}, {qq*32*1024}")
        A(f"s_add_u32 {s(sW)}, {s(sW)}, {s(sT0)}")
        A(f"s_addc_u32 {s(sW+1)}, {s(sW+1)}, 0")
        for i in range(8):
            f = (4*((i>>2)&1) + 2*(i&1))*16
            A(f"v_xor_b32 {v(25)}, {f}, {v(24)}")
            A(f"s_add_u32 m0, {s(sT0+1)}, {slot*32768 + i*1024}")
            A(f"global_load_lds_dwordx4 {v(25)}, {s(sW,2)}")
            if i < 7:
                A(f"s_add_u32 {s(sW)}, {s(sW)}, 1024")
                A(f"s_addc_u32 {s(sW+1)}, {s(sW+1)}, 0")

def gen_startup(A, w):
    for c in range(4): gen_startup_dma(A, c)
    for c in range(16):
        slot = c % 4
        left = min(3, 15 - c)
        A(f"s_waitcnt vmcnt({8*left})")
        A("s_barrier")
        if c < 12:
            mat = c // 4; qq = c % 4
            A(f"v_add_u32 {v(29)}, {slot*32768}, {v(26)}")
            A(f"v_add_u32 {v(30)}, {slot*32768}, {v(27)}")
            for bl in range(2):
                bp = (2*qq + bl - 2*w) % 8
                for t in range(2):
                    for x in range(4):
                        off = (64*bl + 32*(x&1) + 8*(x>>1))*256
                        if mat == 0: dst = a(0+(t*8+bp)*8 + 2*x, 2)
                        elif mat == 1: dst = a(128+(t*8+bp)*8 + 2*x, 2)
                        else: dst = v(WV+(t*8+bp)*8 + 2*x, 2)
                        A(f"ds_read_b64_tr_b16 {dst}, {v(29+t)} offset:{off}")
            A("s_waitcnt lgkmcnt(0)")
            A("s_barrier")
        else:
            A(f"v_add_u32 {v(29)}, {slot*32768}, {v(28)}")
            for j in range(8):
                A(f"v_xor_b32 {v(30)}, {2*j*16}, {v(29)}")
                for xl in range(2):
                    A(f"ds_read_b64_tr_b16 {v(32+4*j+2*xl,2)}, {v(30)} offset:{2*xl*1024}")
            A("s_waitcnt lgkmcnt(0)")
            A("s_barrier")
            for j in range(8):
                base = slot*32768 + j*1024
                if base < 65536: A(f"ds_write_b128 {v(vWO0)}, {v(32+4*j,4)} offset:{base}")
                else: A(f"ds_write_b128 {v(vWO1)}, {v(32+4*j,4)} offset:{base-65536}")
        if c + 4 < 16: gen_startup_dma(A, c + 4)
    A("s_waitcnt lgkmcnt(0)")

def gen_persistent(A, lane):
    A(f"v_lshlrev_b32 {v(vL16)}, 4, {v(lane)}")
    A(f"v_and_b32 {v(20)}, 15, {v(lane)}")
    A(f"v_lshrrev_b32 {v(21)}, 4, {v(lane)}")
    A(f"v_bfe_u32 {v(22)}, {v(20)}, 1, 1")
    A(f"v_mov_b32 {v(vIDX)}, 0x44444444")
    A(f"v_mov_b32 {v(23)}, 0xeeeeeeee")
    A(f"v_cmp_eq_u32 vcc, 1, {v(22)}")
    A(f"v_cndmask_b32 {v(vIDX)}, {v(vIDX)}, {v(23)}, vcc")
    A(f"s_lshl_b32 {s(sT0)}, {s(sWAVE)}, 11")
    A(f"v_add_u32 {v(vW16)}, {s(sT0)}, {v(vL16)}")
    A(f"v_add_u32 {v(vLH)}, {L_MEMB}, {v(vL16)}")
    A(f"v_add_u32 {v(vVXA)}, {L_VXB}, {v(vW16)}")
    for p in (1,2,3):
        A(f"s_add_u32 {s(sT0)}, {s(sWAVE)}, {p}")
        A(f"s_and_b32 {s(sT0)}, {s(sT0)}, 3")
        A(f"s_lshl_b32 {s(sOFF+p)}, {s(sT0)}, 11")
    A(f"s_lshl_b32 {s(sOFF)}, {s(sWAVE)}, 11")
    A(f"v_mov_b32 {v(vZP)}, 0")
    A(f"v_mov_b32 {v(vZP1)}, 0")
    A(f"v_mov_b32 {v(vPF)}, 0")
    A(f"v_lshrrev_b32 {v(24)}, 2, {v(20)}")
    A(f"s_lshl_b32 {s(sT0)}, {s(sWAVE)}, 3")
    A(f"v_add_u32 {v(24)}, {s(sT0)}, {v(24)}")
    A(f"v_lshlrev_b32 {v(24)}, 13, {v(24)}")
    A(f"v_lshrrev_b32 {v(25)}, 1, {v(21)}")
    A(f"v_lshl_add_u32 {v(24)}, {v(25)}, 12, {v(24)}")
    A(f"v_and_b32 {v(25)}, 1, {v(21)}")
    A(f"v_and_b32 {v(26)}, 3, {v(20)}")
    A(f"v_lshl_add_u32 {v(25)}, {v(25)}, 2, {v(26)}")
    A(f"v_lshl_add_u32 {v(24)}, {v(25)}, 4, {v(24)}")
    A(f"s_lshl_b32 {s(sT0)}, {s(sRANK)}, 7")
    A(f"v_add_u32 {v(vPP)}, {s(sT0)}, {v(24)}")
    A(f"s_lshl_b32 {s(sT0)}, {s(sRANK)}, 13")
    A(f"s_lshl_b32 {s(sT0+1)}, {s(sWAVE)}, 12")
    A(f"s_add_u32 {s(sT0)}, {s(sT0)}, {s(sT0+1)}")
    A(f"v_add_u32 {v(vPG)}, {s(sT0)}, {v(vL16)}")
    A(f"v_bfe_u32 {v(24)}, {v(20)}, 2, 1")
    A(f"s_lshl_b32 {s(sT0)}, {s(sWAVE)}, 1")
    A(f"v_add_u32 {v(24)}, {s(sT0)}, {v(24)}")
    A(f"v_lshlrev_b32 {v(24)}, 2, {v(24)}")
    A(f"v_bfe_u32 {v(25)}, {v(20)}, 1, 1")
    A(f"v_lshl_add_u32 {v(24)}, {v(25)}, 1, {v(24)}")
    A(f"v_lshrrev_b32 {v(25)}, 1, {v(21)}")
    A(f"v_add_u32 {v(24)}, {v(24)}, {v(25)}")
    A(f"v_lshlrev_b32 {v(24)}, 4, {v(24)}")
    A(f"v_and_b32 {v(25)}, 1, {v(20)}")
    A(f"v_and_b32 {v(26)}, 1, {v(21)}")
    A(f"v_lshl_add_u32 {v(25)}, {v(25)}, 1, {v(26)}")
    A(f"v_lshl_add_u32 {v(24)}, {v(25)}, 2, {v(24)}")
    A(f"s_lshl_b32 {s(sT0)}, {s(sRANK)}, 8")
    A(f"v_add_u32 {v(vMP)}, {s(sT0)}, {v(24)}")
    A(f"v_lshlrev_b32 {v(24)}, 1, {v(20)}")
    A(f"v_lshrrev_b32 {v(25)}, 1, {v(21)}")
    A(f"v_lshlrev_b32 {v(25)}, 3, {v(25)}")
    A(f"v_xor_b32 {v(24)}, {v(24)}, {v(25)}")
    A(f"v_lshl_add_u32 {v(24)}, {v(21)}, 5, {v(24)}")
    A(f"v_lshlrev_b32 {v(24)}, 2, {v(24)}")
    A(f"s_lshl_b32 {s(sT0)}, {s(sWAVE)}, 10")
    A(f"s_add_u32 {s(sT0)}, {s(sT0)}, {L_MQK}")
    A(f"v_add_u32 {v(vMQW)}, {s(sT0)}, {v(24)}")
    A(f"v_bfe_u32 {v(24)}, {v(lane)}, 2, 2")
    A(f"v_and_b32 {v(25)}, 3, {v(lane)}")
    A(f"v_lshlrev_b32 {v(24)}, 1, {v(24)}")
    A(f"v_and_b32 {v(26)}, 1, {v(21)}")
    A(f"v_lshl_add_u32 {v(24)}, {v(26)}, 4, {v(24)}")
    A(f"v_lshrrev_b32 {v(26)}, 1, {v(25)}")
    A(f"v_lshlrev_b32 {v(26)}, 3, {v(26)}")
    A(f"v_xor_b32 {v(24)}, {v(24)}, {v(26)}")
    A(f"v_lshl_add_u32 {v(24)}, {v(25)}, 5, {v(24)}")
    A(f"v_lshrrev_b32 {v(26)}, 1, {v(21)}")
    A(f"v_lshl_add_u32 {v(24)}, {v(26)}, 7, {v(24)}")
    A(f"v_lshlrev_b32 {v(24)}, 2, {v(24)}")
    A(f"v_add_u32 {v(vMQR0)}, {L_MQK}, {v(24)}")
    A(f"v_xor_b32 {v(vMQR1)}, 32, {v(vMQR0)}")
    A(f"v_lshrrev_b32 {v(24)}, 2, {v(20)}")
    A(f"v_and_b32 {v(25)}, 1, {v(20)}")
    A(f"v_lshl_add_u32 {v(24)}, {v(24)}, 1, {v(25)}")
    A(f"v_mul_u32_u24 {v(24)}, 272, {v(24)}")
    A(f"v_lshl_add_u32 {v(24)}, {v(21)}, 3, {v(24)}")
    A(f"s_lshl_b32 {s(sT0)}, {s(sWAVE)}, 6")
    A(f"s_add_u32 {s(sT0)}, {s(sT0)}, {L_OB}")
    A(f"v_add_u32 {v(24)}, {s(sT0)}, {v(24)}")
    A(f"v_lshlrev_b32 {v(25)}, 3, {v(lane)}")
    A(f"v_add_u32 {v(25)}, {L_MQK}, {v(25)}")
    A(f"v_and_b32 {v(26)}, 2, {v(20)}")
    A(f"v_cmp_eq_u32 vcc, 2, {v(26)}")
    A(f"v_cndmask_b32 {v(vOW)}, {v(25)}, {v(24)}, vcc")
    A(f"v_lshrrev_b32 {v(24)}, 2, {v(20)}")
    A(f"v_and_b32 {v(25)}, 1, {v(20)}")
    A(f"v_lshl_add_u32 {v(24)}, {v(24)}, 1, {v(25)}")
    A(f"v_mul_u32_u24 {v(24)}, 272, {v(24)}")
    A(f"v_lshl_add_u32 {v(24)}, {v(21)}, 5, {v(24)}")
    A(f"v_bfe_u32 {v(25)}, {v(20)}, 1, 1")
    A(f"v_lshl_add_u32 {v(24)}, {v(25)}, 4, {v(24)}")
    A(f"v_add_u32 {v(vOR)}, {L_OB}, {v(24)}")
    A(f"s_lshl_b32 {s(sT0)}, {s(sWAVE)}, 13")
    A(f"v_add_u32 {v(vWO0)}, {s(sT0)}, {v(vL16)}")
    A(f"v_add_u32 {v(vWO1)}, 65536, {v(vWO0)}")
    A(f"v_mov_b32 {v(vZ)}, 0")
    A(f"v_mov_b32 {v(vPM)}, 0")
    A(f"s_mov_b32 {s(sMASK)}, 0")
    A(f"s_mov_b32 {s(sMASK+1)}, -1")
    A(f"s_mov_b32 {s(sSC)}, {f2u(SCALE_LOG2E):#x}")
    A(f"s_mov_b32 {s(sSC+1)}, {f2u(-SCALE_LOG2E):#x}")

def gen_init_comm(A, lane, st):
    A(f"s_add_u32 {s(sMEMc)}, {s(sWS)}, {WS_MEM}")
    A(f"s_addc_u32 {s(sMEMc+1)}, {s(sWS+1)}, 0")
    A(f"s_add_u32 {s(sPc)}, {s(sWS)}, {WS_P}")
    A(f"s_addc_u32 {s(sPc+1)}, {s(sWS+1)}, 0")
    A(f"s_add_u32 {s(sPc2)}, {s(sPc)}, 32768")
    A(f"s_addc_u32 {s(sPc2+1)}, {s(sPc+1)}, 0")
    for r in range(4): A(f"v_mov_b32 {v(32+r)}, -1")
    A(f"s_lshl_b32 {s(sT0)}, {s(sRANK)}, 13")
    A(f"v_add_u32 {v(24)}, {s(sT0)}, {v(vW16)}")
    A(f"global_store_dwordx4 {v(24)}, {v(32,4)}, {s(sPc,2)} {st}")
    A(f"global_store_dwordx4 {v(24)}, {v(32,4)}, {s(sPc,2)} offset:1024 {st}")
    skip = A.label("L_nomem0")
    A(f"s_cmp_lg_u32 {s(sWAVE)}, 0")
    A(f"s_cbranch_scc1 {skip}")
    A(f"v_lshrrev_b32 {v(24)}, 2, {v(lane)}")
    A(f"v_and_b32 {v(25)}, 3, {v(lane)}")
    A(f"v_lshrrev_b32 {v(26)}, 2, {v(24)}")
    A(f"v_and_b32 {v(27)}, 1, {v(24)}")
    A(f"v_lshl_add_u32 {v(26)}, {v(26)}, 1, {v(27)}")
    A(f"v_bfe_u32 {v(27)}, {v(24)}, 1, 1")
    A(f"v_lshlrev_b32 {v(27)}, 3, {v(27)}")
    A(f"v_lshl_add_u32 {v(27)}, {v(25)}, 1, {v(27)}")
    A(f"s_lshr_b32 {s(sT0)}, {s(sRANK)}, 2")
    A(f"s_lshl_b32 {s(sT0)}, {s(sT0)}, 6")
    A(f"s_and_b32 {s(sT0+1)}, {s(sRANK)}, 3")
    A(f"s_lshl_b32 {s(sT0+1)}, {s(sT0+1)}, 2")
    A(f"s_add_u32 {s(sT0)}, {s(sT0)}, {s(sT0+1)}")
    A(f"v_and_b32 {v(28)}, 3, {v(27)}")
    A(f"v_lshlrev_b32 {v(28)}, 4, {v(28)}")
    A(f"v_lshrrev_b32 {v(29)}, 2, {v(27)}")
    A(f"v_add_u32 {v(28)}, {v(28)}, {v(29)}")
    A(f"v_add_u32 {v(28)}, {s(sT0)}, {v(28)}")
    A(f"v_lshl_add_u32 {v(28)}, {v(26)}, 9, {v(28)}")
    A(f"v_lshlrev_b32 {v(28)}, 1, {v(28)}")
    A(f"global_load_ushort {v(29)}, {v(28)}, {s(60,2)}")
    A(f"global_load_ushort {v(30)}, {v(28)}, {s(60,2)} offset:32")
    A(f"v_lshlrev_b32 {v(24)}, 2, {v(lane)}")
    A(f"s_lshl_b32 {s(sT0)}, {s(sRANK)}, 8")
    A(f"v_add_u32 {v(24)}, {s(sT0)}, {v(24)}")
    A(f"s_waitcnt vmcnt(0)")
    A(f"v_lshl_or_b32 {v(29)}, {v(30)}, 16, {v(29)}")
    A(f"global_store_dword {v(24)}, {v(29)}, {s(sMEMc,2)} {st}")
    A(f"v_add_u32 {v(24)}, 8192, {v(24)}")
    A(f"global_store_dword {v(24)}, {v(32)}, {s(sMEMc,2)} {st}")
    A(f"{skip}:")
    A("s_waitcnt vmcnt(0)")
    A("s_barrier")
    skip2 = A.label("L_noarr")
    A(f"s_cmp_lg_u32 {s(sWAVE)}, 0")
    A(f"s_cbranch_scc1 {skip2}")
    A(f"v_mov_b32 {v(24)}, 4")
    A(f"v_mov_b32 {v(25)}, 1")
    A(f"s_mov_b64 exec, 1")
    A(f"global_atomic_add {v(24)}, {v(25)}, {s(sDBG,2)}")
    A(f"s_mov_b64 exec, -1")
    A(f"{skip2}:")

def gen_weights(A, lane):
    A(f"v_and_b32 {v(20)}, 15, {v(lane)}")
    A(f"v_lshrrev_b32 {v(21)}, 4, {v(lane)}")
    A(f"v_lshlrev_b32 {v(24)}, 1, {v(21)}")
    A(f"v_xor_b32 {v(24)}, {v(24)}, {v(20)}")
    A(f"v_lshlrev_b32 {v(24)}, 4, {v(24)}")
    A(f"s_lshl_b32 {s(sT0)}, {s(sWAVE)}, 5")
    A(f"v_add_u32 {v(25)}, {s(sT0)}, {v(21)}")
    A(f"v_lshlrev_b32 {v(25)}, 13, {v(25)}")
    A(f"v_mov_b32 {v(30)}, {v(21)}")
    A(f"v_add_u32 {v(22)}, {v(25)}, {v(24)}")
    A(f"v_xor_b32 {v(23)}, 128, {v(22)}")
    A(f"s_and_b32 {s(sT0)}, {s(sWAVE)}, 1")
    A(f"s_lshl_b32 {s(sT0)}, {s(sT0)}, 7")
    A(f"v_xor_b32 {v(24)}, {s(sT0)}, {v(vL16)}")
    A(f"v_bfe_u32 {v(32)}, {v(lane)}, 2, 2")
    A(f"v_and_b32 {v(33)}, 3, {v(lane)}")
    A(f"v_and_b32 {v(34)}, 1, {v(32)}")
    A(f"v_lshrrev_b32 {v(35)}, 1, {v(32)}")
    A(f"v_and_b32 {v(36)}, 1, {v(30)}")
    A(f"v_lshrrev_b32 {v(37)}, 1, {v(30)}")
    A(f"v_lshlrev_b32 {v(38)}, 4, {v(34)}")
    A(f"v_lshl_add_u32 {v(38)}, {v(35)}, 1, {v(38)}")
    A(f"v_lshl_add_u32 {v(38)}, {v(37)}, 2, {v(38)}")
    A(f"v_add_u32 {v(38)}, {v(38)}, {v(36)}")
    A(f"v_lshlrev_b32 {v(39)}, 2, {v(34)}")
    A(f"v_lshl_add_u32 {v(39)}, {v(35)}, 1, {v(39)}")
    A(f"v_add_u32 {v(39)}, {v(39)}, {v(36)}")
    A(f"v_lshlrev_b32 {v(39)}, 1, {v(39)}")
    A(f"v_lshrrev_b32 {v(40)}, 1, {v(33)}")
    A(f"s_lshl_b32 {s(sT0)}, {s(sWAVE)}, 2")
    A(f"v_add_u32 {v(40)}, {s(sT0)}, {v(40)}")
    A(f"v_xor_b32 {v(40)}, {v(40)}, {v(39)}")
    A(f"v_lshlrev_b32 {v(40)}, 4, {v(40)}")
    A(f"v_lshl_add_u32 {v(40)}, {v(38)}, 8, {v(40)}")
    A(f"v_and_b32 {v(41)}, 1, {v(33)}")
    A(f"v_lshl_add_u32 {v(26)}, {v(41)}, 3, {v(40)}")
    A(f"v_xor_b32 {v(27)}, 32, {v(26)}")
    A(f"v_lshlrev_b32 {v(38)}, 4, {v(37)}")
    A(f"v_lshl_add_u32 {v(38)}, {v(35)}, 3, {v(38)}")
    A(f"v_lshl_add_u32 {v(38)}, {v(36)}, 2, {v(38)}")
    A(f"v_add_u32 {v(38)}, {v(38)}, {v(34)}")
    A(f"v_lshlrev_b32 {v(39)}, 3, {v(35)}")
    A(f"v_lshl_add_u32 {v(39)}, {v(36)}, 2, {v(39)}")
    A(f"v_lshl_add_u32 {v(39)}, {v(34)}, 1, {v(39)}")
    A(f"v_lshrrev_b32 {v(40)}, 1, {v(33)}")
    A(f"s_lshl_b32 {s(sT0)}, {s(sWAVE)}, 4")
    A(f"v_add_u32 {v(40)}, {s(sT0)}, {v(40)}")
    A(f"v_xor_b32 {v(40)}, {v(40)}, {v(39)}")
    A(f"v_lshlrev_b32 {v(40)}, 4, {v(40)}")
    A(f"v_lshl_add_u32 {v(40)}, {v(38)}, 10, {v(40)}")
    A(f"v_lshl_add_u32 {v(28)}, {v(41)}, 3, {v(40)}")
    A(f"s_lshl_b32 {s(sT0+1)}, {s(sWAVE)}, 13")
    done = A.label("L_wdone")
    labs = [A.label("L_wv") for _ in range(4)]
    for w in range(1,4):
        A(f"s_cmp_eq_u32 {s(sWAVE)}, {w}")
        A(f"s_cbranch_scc1 {labs[w]}")
    for w in range(4):
        A(f"{labs[w]}:")
        gen_startup(A, w)
        A(f"s_branch {done}")
    A(f"{done}:")

def delay(A, n):
    while n > 0:
        k = min(n, 16); A(f"s_nop {k-1}"); n -= k

def gen_chain(A, nsteps=64, stamp=0, smode="", D1=30, D2=10):
    st = smode
    lane = 31
    gen_persistent(A, lane)
    gen_init_comm(A, lane, st)
    gen_weights(A, lane)
    A(f"s_lshl_b32 {s(sT0)}, {s(sRANK)}, 13")
    A(f"s_add_u32 {s(sKX)}, {s(sWS)}, {s(sT0)}")
    A(f"s_addc_u32 {s(sKX+1)}, {s(sWS+1)}, 0")
    A(f"s_add_u32 {s(sVX)}, {s(sKX)}, {WS_VX}")
    A(f"s_addc_u32 {s(sVX+1)}, {s(sKX+1)}, 0")
    A(f"s_and_b32 {s(sT0)}, {s(sWAVE)}, 1")
    A(f"s_lshl_b32 {s(sT0)}, {s(sT0)}, 24")
    A(f"s_add_u32 {s(sPFK)}, {s(sKX)}, {s(sT0)}")
    A(f"s_addc_u32 {s(sPFK+1)}, {s(sKX+1)}, 0")
    A(f"s_add_u32 {s(sPFK)}, {s(sPFK)}, {32*8192}")
    A(f"s_addc_u32 {s(sPFK+1)}, {s(sPFK+1)}, 0")
    A(f"s_lshl_b32 {s(sT0)}, {s(sRANK)}, 12")
    A(f"s_add_u32 {s(sKM)}, {s(sWS)}, {s(sT0)}")
    A(f"s_addc_u32 {s(sKM+1)}, {s(sWS+1)}, 0")
    A(f"s_lshl_b32 {s(sT0+1)}, {s(sWAVE)}, 10")
    A(f"s_add_u32 {s(sVM)}, {s(sKM)}, {s(sT0+1)}")
    A(f"s_addc_u32 {s(sVM+1)}, {s(sKM+1)}, 0")
    A(f"s_add_u32 {s(sVM)}, {s(sVM)}, {WS_VM}")
    A(f"s_addc_u32 {s(sVM+1)}, {s(sVM+1)}, 0")
    A(f"s_add_u32 {s(sKM)}, {s(sKM)}, {WS_KM}")
    A(f"s_addc_u32 {s(sKM+1)}, {s(sKM+1)}, 0")
    def kv_dma():
        A(f"s_lshl_b32 {s(sT0)}, {s(sWAVE)}, 11")
        A(f"s_add_u32 m0, {s(sT0)}, {L_KXB}")
        A(f"global_load_lds_dwordx4 {v(vW16)}, {s(sKX,2)} sc1")
        A(f"global_load_lds_dwordx4 {v(vW16)}, {s(sKX,2)} offset:1024 sc1")
        A(f"s_add_u32 m0, {s(sT0)}, {L_VXB}")
        A(f"global_load_lds_dwordx4 {v(vW16)}, {s(sVX,2)} sc1")
        A(f"global_load_lds_dwordx4 {v(vW16)}, {s(sVX,2)} offset:1024 sc1")
    def kv_adv():
        A(f"s_add_u32 {s(sKX)}, {s(sKX)}, {32*8192}")
        A(f"s_addc_u32 {s(sKX+1)}, {s(sKX+1)}, 0")
        A(f"s_add_u32 {s(sVX)}, {s(sVX)}, {32*8192}")
        A(f"s_addc_u32 {s(sVX+1)}, {s(sVX+1)}, 0")
    kv_dma(); kv_adv()
    A(f"s_mov_b32 {s(sMRD+2)}, 8192")
    A(f"s_mov_b32 {s(sMRD+3)}, 0x20000")
    lw = A.label("L_winit")
    A(f"v_mov_b32 {v(24)}, 4")
    A(f"s_mov_b32 {s(sSPIN)}, 0")
    A(f"{lw}:")
    A(f"global_load_dword {v(25)}, {v(24)}, {s(sDBG,2)} sc1")
    A(f"s_add_u32 {s(sSPIN)}, {s(sSPIN)}, 1")
    A(f"s_cmp_gt_u32 {s(sSPIN)}, 0x100000")
    A(f"s_cbranch_scc1 L_chain_abort")
    A(f"s_waitcnt vmcnt(0)")
    A(f"v_cmp_gt_u32 vcc, 32, {v(25)}")
    A(f"s_cbranch_vccnz {lw}")
    A(f"s_mov_b32 {s(sSTEP)}, 0")
    A(f"s_mov_b32 {s(sSPIN)}, 0")
    if stamp:
        A(f"s_memtime {s(sTS,2)}")
        A("s_waitcnt lgkmcnt(0)")
        for k in range(26): A(f"s_mov_b32 {s(76+k)}, 0")
        A(f"s_mov_b32 {s(sTS+4)}, 0")
        A(f"s_mov_b32 {s(sTS+5)}, 0")
    def ts(k):
        if stamp >= 2 and k < 13: A(f"s_memtime {s(76+2*k,2)}")
    def dump_stamps():
        if stamp >= 2:
            lab = A.label("L_nodump")
            A(f"s_cmp_lg_u32 {s(sSTEP)}, 40")
            A(f"s_cbranch_scc1 {lab}")
            A("s_waitcnt lgkmcnt(0)")
            A(f"s_lshl_b32 {s(sT0)}, {s(sRANK)}, 2")
            A(f"s_add_u32 {s(sT0)}, {s(sT0)}, {s(sWAVE)}")
            A(f"s_lshl_b32 {s(sT0)}, {s(sT0)}, 6")
            A(f"s_add_u32 {s(sT0)}, {s(sT0)}, {WS_END_CHAIN + 0x4000}")
            A(f"v_mov_b32 {v(24)}, {s(sT0)}")
            for k in range(13):
                A(f"v_mov_b32 {v(25)}, {s(76+2*k)}")
                A(f"global_store_dword {v(24)}, {v(25)}, {s(sWS,2)} offset:{4*k}")
            A(f"{lab}:")

    K0,Q0,K1,Q1 = AQK, AQK+4, AQK+8, AQK+12
    V0,V1 = AV, AV+4
    QK = AQK
    PA = KXR
    def step_scalars():
        A(f"s_and_b32 {s(sPH)}, {s(sSTEP)}, 1")
        A(f"s_lshl_b32 {s(sT0+1)}, {s(sPH)}, 13")
        A(f"s_add_u32 {s(sT0+1)}, {s(sT0+1)}, {WS_MEM}")
        A(f"s_add_u32 {s(sMEMc)}, {s(sWS)}, {s(sT0+1)}")
        A(f"s_addc_u32 {s(sMEMc+1)}, {s(sWS+1)}, 0")
        A(f"s_mov_b32 {s(sMRD)}, {s(sMEMc)}")
        A(f"s_and_b32 {s(sMRD+1)}, {s(sMEMc+1)}, 0xffff")
        A(f"s_xor_b32 {s(sT0+1)}, {s(sT0+1)}, 8192")
        A(f"s_add_u32 {s(sMEMn)}, {s(sWS)}, {s(sT0+1)}")
        A(f"s_addc_u32 {s(sMEMn+1)}, {s(sWS+1)}, 0")
    def zero_acc():
        A(f"v_mfma_f32_32x32x8_bf16 {v(AQK,16)}, {v(vZP,2)}, {v(vZP,2)}, 0")
        for r in range(AV, AV+8, 2): A(f"v_pk_mov_b32 {v(r,2)}, 0, 0")
        for p in range(4): A(f"v_add_u32 {v(S0+p)}, {s(sOFF+p)}, {v(vLH)}")
    step_scalars(); zero_acc()
    A("s_barrier")
    A("L_step:")
    ts(12)
    delay(A, D2)
    MR = S0
    A("L_pollm:")
    A(f"global_load_dwordx4 {ma(0)}, {v(vW16)}, {s(sMEMc,2)} sc1")
    A(f"global_load_dwordx4 {ma(1)}, {v(vW16)}, {s(sMEMc,2)} offset:1024 sc1")
    A(f"s_add_u32 {s(sSPIN)}, {s(sSPIN)}, 1")
    A(f"s_cmp_gt_u32 {s(sSPIN)}, 0x400000")
    A(f"s_cbranch_scc1 L_chain_abort")
    A("s_waitcnt vmcnt(0)")
    A(f"v_max3_u32 {v(T0)}, {v(MA)}, {v(MA+1)}, {v(MA+2)}")
    A(f"v_max3_u32 {v(T0+1)}, {v(MA+3)}, {v(MA+4)}, {v(MA+5)}")
    A(f"v_max3_u32 {v(T0)}, {v(T0)}, {v(MA+6)}, {v(MA+7)}")
    A(f"v_max_u32 {v(T0)}, {v(T0)}, {v(T0+1)}")
    A(f"v_cmp_eq_u32 vcc, -1, {v(T0)}")
    A(f"s_cbranch_vccnz L_pollm")
    ts(0)
    retry = []
    A(f"ds_write_b128 {v(MR)}, {ma(0)}")
    A(smf(K0, ma(0), WK(0,0)))
    A(f"ds_write_b128 {v(MR)}, {ma(1)} offset:1024")
    A(smf(Q0, ma(0), WQ(0,0)))
    A(smf(K1, ma(0), WK(1,0)))
    A(smf(Q1, ma(0), WQ(1,0)))
    A("s_waitcnt lgkmcnt(0)")
    A("s_barrier")
    rds = []
    for p in range(3):
        rds.append(f"ds_read_b128 {ma(2*p+2)}, {v(MR+1+p)}")
        rds.append(f"ds_read_b128 {ma(2*p+3)}, {v(MR+1+p)} offset:1024")
    A(rds[0]); A(rds[1])
    own = [(K0,ma(1),WK(0,1)),(Q0,ma(1),WQ(0,1)),(K1,ma(1),WK(1,1)),(Q1,ma(1),WQ(1,1))]
    for i in range(4):
        A(smf(*own[i])); A(rds[i+2])
    kxq = [(t,ks) for ks in range(4) for t in range(2)]
    def kx_read(i):
        t,ks = kxq[i]
        return f"ds_read_b128 {v(KXR+(t*4+ks)*4,4)}, {v(vLH)} offset:{L_KXB-L_MEMB+(t*4+ks)*1024}"
    nk = 0
    A("s_waitcnt lgkmcnt(4)")
    for b in range(2,8):
        if b == 4: A(f"s_waitcnt lgkmcnt({nk})")
        order = ((K0,WK(0,b)),(Q0,WQ(0,b)),(K1,WK(1,b)),(Q1,WQ(1,b)))
        for n,(acc,W) in enumerate(order):
            A(smf(acc, ma(b), W))
            if b >= 4 and b < 7 and nk < 8 and n != 3:
                A(kx_read(nk)); nk += 1
    assert nk == 8
    ts(1)
    vq = [(t,b) for b in range(8) for t in range(2)]
    vi = [0]
    def vph(n=1):
        for _ in range(n):
            if vi[0] < 16:
                t,b = vq[vi[0]]; vi[0] += 1
                A(smf(V0+4*t, ma(b), WVf(t,b)))
    X_ = T0
    vph(1)
    pfl = A.label("L_nopf")
    A(f"s_cmp_lt_u32 {s(sWAVE)}, 2")
    A(f"s_cbranch_scc1 {pfl}")
    A.cbegin()
    A(f"v_lshlrev_b32 {v(vPF)}, 3, {v(vL16)}")
    A(f"global_load_dword {v(vPF)}, {v(vPF)}, {s(sPFK,2)}")
    A.cend()
    A(f"{pfl}:")
    vph(1)
    A(f"v_pk_add_f32 {v(K0,2)}, {v(K0,2)}, {v(K0+2,2)}")
    A(f"v_pk_add_f32 {v(Q0,2)}, {v(Q0,2)}, {v(Q0+2,2)}")
    A(f"v_pk_add_f32 {v(K1,2)}, {v(K1,2)}, {v(K1+2,2)}")
    A(f"v_cvt_pk_bf16_f32 {v(X_)}, {v(K0)}, {v(K0+1)}")
    A(f"v_cvt_pk_bf16_f32 {v(X_+1)}, {v(Q0)}, {v(Q0+1)}")
    A(f"v_pk_add_f32 {v(Q1,2)}, {v(Q1,2)}, {v(Q1+2,2)}")
    A(f"ds_write_b64 {v(vMQW)}, {v(X_,2)}")
    A(f"v_cvt_pk_bf16_f32 {v(X_+2)}, {v(K1)}, {v(K1+1)}")
    A(f"v_cvt_pk_bf16_f32 {v(X_+3)}, {v(Q1)}, {v(Q1+1)}")
    A(f"ds_write_b64 {v(vMQW)}, {v(X_+2,2)} offset:512")
    vph(4)
    A("s_waitcnt lgkmcnt(0)")
    A("s_barrier")
    for ks in range(4):
        A(f"ds_read_b64_tr_b16 {v(QK+4*ks,2)}, {v(vMQR0)} offset:{ks*1024}")
        A(f"ds_read_b64_tr_b16 {v(QK+4*ks+2,2)}, {v(vMQR1)} offset:{ks*1024}")
        if ks in (1,3): vph(1)
    vph(3)
    ts(2)
    FB = [MA, MA+8, MA+16, MA+24, AV, AQK, AQK+8, 120]
    frags = [(j,b) for j in range(8) for b in range(2)]
    def wo_rd(fi, buf):
        j,b = frags[fi]; out = []
        for hx in range(2):
            q = 2*b + hx
            off = q*32768 + j*1024
            reg = vWO0 if off < 65536 else vWO1
            if off >= 65536: off -= 65536
            out.append(f"ds_read_b128 {v(FB[buf]+4*hx,4)}, {v(reg)} offset:{off}")
        return out
    VXO = X0+0
    for ks in range(4):
        if ks == 0: A(f"s_waitcnt lgkmcnt(4)")
        if ks == 2: A(f"s_waitcnt lgkmcnt(0)")
        c0 = "0" if ks == 0 else v(S0,4); c1 = "0" if ks == 0 else v(S1,4); cm = "0" if ks == 0 else v(SM,4)
        A(f"v_mfma_f32_16x16x32_bf16 {v(S0,4)}, {v(KXR+ks*4,4)}, {v(QK+4*ks,4)}, {c0}")
        A(f"v_mfma_f32_16x16x32_bf16 {v(S1,4)}, {v(KXR+16+ks*4,4)}, {v(QK+4*ks,4)}, {c1}")
        A(f"v_mfma_f32_16x16x32_bf16 {v(SM,4)}, {v(QK+4*ks,4)}, {v(QK+4*ks,4)}, {cm}")
        if ks == 2:
            A(f"ds_read_b128 {v(KXR,4)}, {v(vVXA)}")
        if ks == 3:
            A(f"ds_read_b128 {v(KXR+4,4)}, {v(vVXA)} offset:1024")
    VXO = KXR; B1 = KXR+8
    wr = wo_rd(0,0) + wo_rd(1,1) + wo_rd(2,2)
    vph(1); A(wr[0])
    vph(1); A(wr[1])
    kml = [A.label("L_km") for _ in range(3)]
    A(f"s_cmp_lt_u32 {s(sWAVE)}, 2")
    A(f"s_cbranch_scc1 {kml[2]}")
    A.cbegin()
    A(f"s_cmp_eq_u32 {s(sWAVE)}, 2")
    A(f"s_cbranch_scc0 {kml[1]}")
    A(f"global_store_dwordx4 {v(vL16)}, {v(QK,4)}, {s(sKM,2)} sc1")
    A(f"global_store_dwordx4 {v(vL16)}, {v(QK+4,4)}, {s(sKM,2)} offset:1024 sc1")
    A(f"s_branch {kml[2]}")
    A(f"{kml[1]}:")
    A(f"global_store_dwordx4 {v(vL16)}, {v(QK+8,4)}, {s(sKM,2)} offset:2048 sc1")
    A(f"global_store_dwordx4 {v(vL16)}, {v(QK+12,4)}, {s(sKM,2)} offset:3072 sc1")
    A.cend()
    A(f"{kml[2]}:")
    vph(1); A(wr[2])
    ts(3)
    m1,m2 = T0, T0+1
    A(f"v_max3_f32 {v(m1)}, {v(S0)}, {v(S0+1)}, {v(S0+2)}")
    A(f"v_max3_f32 {v(m2)}, {v(S0+3)}, {v(S1)}, {v(S1+1)}")
    vph(1)
    A(f"v_max3_f32 {v(m1)}, {v(m1)}, {v(S1+2)}, {v(S1+3)}")
    A(f"v_max3_f32 {v(m2)}, {v(m2)}, {v(SM)}, {v(SM+1)}")
    vph(1)
    A(f"v_max_f32 {v(m1)}, {v(m1)}, {v(m2)}")
    A(f"v_mov_b32 {v(m2)}, {v(m1)}")
    A(wr[3])
    A(f"v_permlane16_swap_b32 {v(m1)}, {v(m2)}")
    A(f"v_max_f32 {v(m1)}, {v(m1)}, {v(m2)}")
    A(f"v_mov_b32 {v(m2)}, {v(m1)}")
    A(wr[4])
    A(f"v_permlane32_swap_b32 {v(m1)}, {v(m2)}")
    A(f"v_max_f32 {v(m1)}, {v(m1)}, {v(m2)}")
    A(f"v_mul_f32 {v(m1)}, {s(sSC+1)}, {v(m1)}")
    for r in (S0,S0+2,S1,S1+2,SM):
        A(f"v_pk_fma_f32 {v(r,2)}, {v(r,2)}, {s(sSC,2)}, {v(m1,2)} op_sel_hi:[1,0,0]")
    VMa = X0
    for r in (S0,S0+1,S0+2,S0+3): A(f"v_exp_f32 {v(r)}, {v(r)}")
    A(f"v_pk_add_f32 {v(V0,2)}, {v(V0,2)}, {v(V0+2,2)}")
    A(f"v_pk_add_f32 {v(V1,2)}, {v(V1,2)}, {v(V1+2,2)}")
    for r in (S1,S1+1,S1+2,S1+3): A(f"v_exp_f32 {v(r)}, {v(r)}")
    A(f"v_cvt_pk_bf16_f32 {v(B1)}, {v(S0)}, {v(S0+1)}")
    A(f"v_cvt_pk_bf16_f32 {v(B1+1)}, {v(S0+2)}, {v(S0+3)}")
    A(f"v_exp_f32 {v(SM)}, {v(SM)}")
    A(f"v_exp_f32 {v(SM+1)}, {v(SM+1)}")
    A(f"v_cvt_pk_bf16_f32 {v(B1+2)}, {v(S1)}, {v(S1+1)}")
    A(f"v_cvt_pk_bf16_f32 {v(B1+3)}, {v(S1+2)}, {v(S1+3)}")
    A(f"v_cvt_pk_bf16_f32 {v(VMa)}, {v(V0)}, {v(V0+1)}")
    A(f"v_cvt_pk_bf16_f32 {v(VMa+1)}, {v(V1)}, {v(V1+1)}")
    A(f"v_cvt_pk_bf16_f32 {v(vPM)}, {v(SM)}, {v(SM+1)}")
    A(f"v_cvt_pk_bf16_f32 {v(VMa+2)}, {v(V1)}, {v(V1+1)}")
    A(f"v_cvt_pk_bf16_f32 {v(VMa+3)}, {v(V0)}, {v(V0+1)}")
    O0, O1 = KXR+16, KXR+20
    A("s_waitcnt lgkmcnt(5)")
    A(f"v_mfma_f32_16x16x32_bf16 {v(O0,4)}, {v(VXO,4)}, {v(B1,4)}, 0")
    A(f"v_pk_add_f32 {v(S0,2)}, {v(S0,2)}, {v(S0+2,2)}")
    A(f"v_mfma_f32_16x16x32_bf16 {v(O1,4)}, {v(VXO+4,4)}, {v(B1,4)}, 0")
    A(f"v_pk_add_f32 {v(S1,2)}, {v(S1,2)}, {v(S1+2,2)}")
    A(f"v_mfma_f32_16x16x16_bf16 {v(O0,4)}, {v(VMa,2)}, {v(vPM,2)}, {v(O0,4)}")
    A(f"v_pk_add_f32 {v(S0,2)}, {v(S0,2)}, {v(S1,2)}")
    A(f"v_mfma_f32_16x16x16_bf16 {v(O1,4)}, {v(VMa+2,2)}, {v(vPM,2)}, {v(O1,4)}")
    A(f"v_pk_add_f32 {v(S0,2)}, {v(S0,2)}, {v(SM,2)}")
    A(f"v_add_f32 {v(m1)}, {v(S0)}, {v(S0+1)}")
    A(f"v_mov_b32 {v(m2)}, {v(m1)}")
    A(f"global_store_dwordx2 {v(vL16)}, {v(VMa,2)}, {s(sVM,2)} sc1")
    A(f"v_permlane16_swap_b32 {v(m1)}, {v(m2)}")
    A(f"s_cmp_eq_u32 {s(sSTEP)}, {nsteps-1}")
    A(f"s_cbranch_scc1 L_chain_done")
    A(f"v_add_f32 {v(m1)}, {v(m1)}, {v(m2)}")
    A(f"v_mov_b32 {v(m2)}, {v(m1)}")
    A(wr[5])
    A(f"v_permlane32_swap_b32 {v(m1)}, {v(m2)}")
    A(f"v_add_f32 {v(m1)}, {v(m1)}, {v(m2)}")
    A(f"v_rcp_f32 {v(m1)}, {v(m1)}")
    w3 = wo_rd(3,3) + wo_rd(4,4)
    A(w3[0])
    for r in (O0,O0+2,O1,O1+2):
        A(f"v_pk_mul_f32 {v(r,2)}, {v(r,2)}, {v(m1,2)} op_sel_hi:[1,0]")
    OP = S0
    A(f"v_cvt_pk_bf16_f32 {v(OP)}, {v(O0)}, {v(O0+1)}")
    A(f"v_cvt_pk_bf16_f32 {v(OP+1)}, {v(O0+2)}, {v(O0+3)}")
    A(f"v_cvt_pk_bf16_f32 {v(OP+2)}, {v(O1)}, {v(O1+1)}")
    A(f"v_cvt_pk_bf16_f32 {v(OP+3)}, {v(O1+2)}, {v(O1+3)}")
    A(f"ds_write2_b64 {v(vOW)}, {v(OP,2)}, {v(OP+2,2)} offset0:0 offset1:4")
    ts(4)
    A(f"v_mfma_f32_32x32x8_bf16 {v(PA,16)}, {v(vZP,2)}, {v(vZP,2)}, 0")
    A(w3[1]); A(w3[2])
    A(f"v_mfma_f32_32x32x8_bf16 {v(PA+16,16)}, {v(vZP,2)}, {v(vZP,2)}, 0")
    A(w3[3])
    w5 = wo_rd(5,5) + wo_rd(6,6)
    for x in w5: A(x)
    A("s_waitcnt lgkmcnt(7)")
    A("s_barrier")
    OA = S0
    A(f"ds_read_b128 {v(OA,4)}, {v(vOR)}")
    A(f"ds_read_b128 {v(OA+4,4)}, {v(vOR)} offset:128")
    w7 = wo_rd(7,7)
    for x in w7: A(x)
    kv_dma()
    ts(5)
    A("s_waitcnt lgkmcnt(2)")
    issued = [7]; nxt = 8
    PK0 = X0
    for fi in range(16):
        j,b = frags[fi]
        buf = fi % 8
        if fi >= 7 and fi % 2 == 1:
            tgt = min(fi+1, 15)
            later = len(issued) - 1 - issued.index(tgt)
            A(f"s_waitcnt lgkmcnt({min(15,2*later)})")
        A(f"v_smfmac_f32_16x16x64_bf16 {v(PA+4*j,4)}, {v(OA+4*b,4)}, {v(FB[buf],8)}, {v(vIDX)}")
        if nxt < 16:
            for x in wo_rd(nxt, nxt % 8): A(x)
            issued.append(nxt); nxt += 1
        if b == 1 and j >= 1:
            jj = j-1
            dst = (PK0 + jj) if jj < 4 else (PA + jj - 4)
            A(f"v_pk_add_f32 {v(PA+4*jj,2)}, {v(PA+4*jj,2)}, {v(PA+4*jj+2,2)}")
            A(f"v_cvt_pk_bf16_f32 {v(dst)}, {v(PA+4*jj)}, {v(PA+4*jj+1)}")
            if jj == 3:
                A(f"v_bfi_b32 {v(PK0)}, 1, {s(sPH)}, {v(PK0)}")
                A(f"global_store_dwordx4 {v(vPP)}, {v(PK0,4)}, {s(sPc,2)} {st}")
    A(f"v_bfi_b32 {v(PA)}, 1, {s(sPH)}, {v(PA)}")
    A(f"v_pk_add_f32 {v(PA+28,2)}, {v(PA+28,2)}, {v(PA+30,2)}")
    A(f"v_cvt_pk_bf16_f32 {v(PA+3)}, {v(PA+28)}, {v(PA+29)}")
    A(f"global_store_dwordx4 {v(vPP)}, {v(PA,4)}, {s(sPc2,2)} {st}")
    ts(6)
    nored = "L_nored"
    A(f"s_add_u32 {s(sKM)}, {s(sKM)}, {32*4096}")
    A(f"s_addc_u32 {s(sKM+1)}, {s(sKM+1)}, 0")
    A(f"s_add_u32 {s(sVM)}, {s(sVM)}, {32*4096}")
    A(f"s_addc_u32 {s(sVM+1)}, {s(sVM+1)}, 0")
    A(f"s_add_u32 {s(sPFK)}, {s(sPFK)}, {32*8192}")
    A(f"s_addc_u32 {s(sPFK+1)}, {s(sPFK+1)}, 0")
    kv_adv()
    A(f"s_cmp_gt_u32 {s(sWAVE)}, 1")
    A(f"s_cbranch_scc1 L_far")
    RS = MA
    A(f"v_bfe_u32 {v(MA+4)}, {v(vL16)}, 4, 3")
    A(f"v_mov_b32 {v(MA+5)}, 0x3f80")
    A(f"v_mov_b32 {v(MA+6)}, 0x3f800000")
    for d in range(4):
        A(f"v_cmp_eq_u32 vcc, {2*d}, {v(MA+4)}")
        A(f"v_cndmask_b32 {v(RS+d)}, 0, {v(MA+5)}, vcc")
        A(f"v_cmp_eq_u32 vcc, {2*d+1}, {v(MA+4)}")
        A(f"v_cndmask_b32 {v(RS+d)}, {v(RS+d)}, {v(MA+6)}, vcc")
    delay(A, D1)
    G = KXR+4
    RA = KXR+20
    A("L_pollp:")
    for t in range(4):
        A(f"global_load_dwordx4 {v(G+4*t,4)}, {v(vPG)}, {s(sPc,2)} offset:{t*1024} sc1")
    A(f"s_add_u32 {s(sSPIN)}, {s(sSPIN)}, 1")
    A(f"s_cmp_gt_u32 {s(sSPIN)}, 0x400000")
    A(f"s_cbranch_scc1 L_chain_abort")
    A("s_waitcnt vmcnt(2)")
    A(f"v_mfma_f32_16x16x32_bf16 {v(RA,4)}, {v(RS,4)}, {v(G,4)}, 0")
    A(f"v_bitop3_b32 {v(T0)}, {v(G)}, {v(G+4)}, {s(sPH)} bitop3:0x7e")
    A(f"v_mfma_f32_16x16x32_bf16 {v(RA,4)}, {v(RS,4)}, {v(G+4,4)}, {v(RA,4)}")
    A("s_waitcnt vmcnt(0)")
    A(f"v_mfma_f32_16x16x32_bf16 {v(RA,4)}, {v(RS,4)}, {v(G+8,4)}, {v(RA,4)}")
    A(f"v_bitop3_b32 {v(T0+1)}, {v(G+8)}, {v(G+12)}, {s(sPH)} bitop3:0x7e")
    A(f"v_mfma_f32_16x16x32_bf16 {v(RA,4)}, {v(RS,4)}, {v(G+12,4)}, {v(RA,4)}")
    A(f"v_bitop3_b32 {v(T0)}, {v(T0)}, {v(T0+1)}, 1 bitop3:0xa8")
    A(f"v_cmp_ne_u32 vcc, 0, {v(T0)}")
    A("s_cbranch_vccnz L_pollp")
    ts(7)
    for r in range(4):
        A(f"v_add_f32_dpp {v(RA+r)}, {v(RA+r)}, {v(RA+r)} row_ror:8 row_mask:0xf bank_mask:0xf")
    A(f"v_cvt_pk_bf16_f32 {v(T0)}, {v(RA)}, {v(RA+2)}")
    A(f"v_cvt_pk_bf16_f32 {v(T0+1)}, {v(RA+1)}, {v(RA+3)}")
    A(f"v_cndmask_b32 {v(T0)}, {v(T0)}, {v(T0+1)}, {s(sMASK,2)}")
    A(f"global_store_dword {v(vMP)}, {v(T0)}, {s(sMEMn,2)} {st}")
    A(f"v_mov_b32 {v(T0+2)}, -1")
    A(f"global_store_dword {v(vMP)}, {v(T0+2)}, {s(sMEMc,2)} {st}")
    ts(8)
    A(f"s_branch {nored}")
    A("L_far:")
    A("s_waitcnt vmcnt(0)")
    A(f"{nored}:")
    dump_stamps()
    A(f"s_add_u32 {s(sSTEP)}, {s(sSTEP)}, 1")
    step_scalars(); zero_acc()
    A("s_barrier")
    A("s_branch L_step")
    for (b, lr, lb) in retry:
        A(f"{lr}:")
        A(f"s_add_u32 {s(sSPIN)}, {s(sSPIN)}, 1")
        A(f"s_cmp_gt_u32 {s(sSPIN)}, 0x400000")
        A(f"s_cbranch_scc1 L_chain_abort")
        A(f"buffer_load_dwordx4 {ma(b)}, {v(vL16)}, {s(sMRD,4)}, {s(sOFF+b)} offen sc1")
        A("s_waitcnt vmcnt(0)")
        A(f"v_max3_u32 {v(X0)}, {v(MA+4*b)}, {v(MA+4*b+1)}, {v(MA+4*b+2)}")
        A(f"v_max_u32 {v(X0)}, {v(X0)}, {v(MA+4*b+3)}")
        A(f"v_cmp_eq_u32 vcc, -1, {v(X0)}")
        A(f"s_cbranch_vccnz {lr}")
        A(f"s_branch {lb}")
    A("L_chain_abort:")
    A(f"s_mov_b32 {s(sSTEP)}, 0xdead")
    A("L_chain_done:")
    if stamp:
        A(f"s_lshl_b32 {s(sT0)}, {s(sRANK)}, 2")
        A(f"s_add_u32 {s(sT0)}, {s(sT0)}, {s(sWAVE)}")
        A(f"s_lshl_b32 {s(sT0)}, {s(sT0)}, 6")
        A(f"s_add_u32 {s(sT0)}, {s(sT0)}, {WS_END_CHAIN}")
        A(f"v_mov_b32 {v(24)}, {s(sT0)}")
        A(f"s_memtime {s(sTS+2,2)}")
        A("s_waitcnt lgkmcnt(0)")
        A(f"s_sub_u32 {s(sTS+2)}, {s(sTS+2)}, {s(sTS)}")
        A(f"v_mov_b32 {v(25)}, {s(sTS+2)}")
        A(f"global_store_dword {v(24)}, {v(25)}, {s(sWS,2)} offset:40")
        A(f"v_mov_b32 {v(25)}, {s(sSTEP)}")
        A(f"global_store_dword {v(24)}, {v(25)}, {s(sWS,2)} offset:44")
        A(f"v_mov_b32 {v(25)}, {s(sSPIN)}")
        A(f"global_store_dword {v(24)}, {v(25)}, {s(sWS,2)} offset:48")
    A("s_waitcnt vmcnt(0)")

def gen_entry(A):
    A(f"s_load_dwordx2 {s(60,2)}, s[0:1], {KA_MEM0}")
    A(f"s_load_dwordx2 {s(62,2)}, s[0:1], {KA_WQ}")
    A(f"s_load_dwordx2 {s(64,2)}, s[0:1], {KA_WK}")
    A(f"s_load_dwordx2 {s(66,2)}, s[0:1], {KA_WV}")
    A(f"s_load_dwordx2 {s(68,2)}, s[0:1], {KA_WO}")
    A(f"s_load_dwordx2 {s(sDBG,2)}, s[0:1], {KA_DBG}")
    A(f"s_load_dwordx2 {s(sWS,2)}, s[0:1], {KA_WS}")
    A(f"s_getreg_b32 {s(sT0)}, hwreg(HW_REG_XCC_ID, 0, 4)")
    A("v_lshrrev_b32 v1, 6, v0")
    A(f"v_readfirstlane_b32 {s(sWAVE)}, v1")
    A("v_and_b32 v31, 63, v0")
    A("s_waitcnt lgkmcnt(0)")

def gen_standalone(stamp=0, **kw):
    A = Asm()
    name = "chain_kernel"
    A.raw("; @launch kernel=chain_kernel grid=(256,1,1) block=(256,1,1) lds=163840")
    A.raw('.amdgcn_target "amdgcn-amd-amdhsa--gfx950"')
    A.raw(kstart(name))
    gen_entry(A)
    A(f"s_cmp_lg_u32 {s(sT0)}, 0")
    A("s_cbranch_scc1 L_exit")
    A("s_cmp_ge_u32 s2, 256")
    A("s_cbranch_scc1 L_exit")
    A("v_mov_b32 v2, 0")
    A("v_mov_b32 v3, 1")
    A(f"v_mov_b32 v5, {L_MISC}")
    tk = "L_tk"
    A(f"s_cmp_lg_u32 {s(sWAVE)}, 0")
    A(f"s_cbranch_scc1 {tk}")
    A("s_mov_b64 exec, 1")
    A(f"global_atomic_add v4, v2, v3, {s(sDBG,2)} sc0")
    A("s_waitcnt vmcnt(0)")
    A("ds_write_b32 v5, v4")
    A("s_waitcnt lgkmcnt(0)")
    A("s_mov_b64 exec, -1")
    A(f"{tk}:")
    A("s_barrier")
    A("ds_read_b32 v4, v5")
    A("s_waitcnt lgkmcnt(0)")
    A(f"v_readfirstlane_b32 {s(sRANK)}, v4")
    A(f"s_cmp_ge_u32 {s(sRANK)}, 32")
    A("s_cbranch_scc1 L_exit")
    gen_chain(A, 64, stamp, **kw)
    A("L_exit:")
    A("s_endpgm")
    A.raw(kd(name))
    return A

if __name__ == "__main__":
    import sys
    kw = {}
    for x in sys.argv[3:]:
        k,val = x.split("="); kw[k] = int(val)
    A = gen_standalone(stamp=int(sys.argv[2]) if len(sys.argv)>2 else 0, **kw)
    open(sys.argv[1], "w").write(A.text())
    print("nops inserted:", A.nops, "lines", len(A.out))
```

```python
from asmlib import *
from layout import *

wLANE=0
wL16=1
wAR=2
wDM=10
wT=12
wAF=32
wAC=64
wE=96
sWS=4; sDBG=6; sWAVE=8; sT=12
sWB=20
sWB2=22
sLDW=24
sAP=26
sOP=28
sSEG=30; sSEGN=31; sTYPE=32
LDS_A0=0

def load_weights(A, ksteps, ffn=False, sigma=True, lab="w"):
    nch = ksteps // 4
    T = wT
    A(f"v_lshrrev_b32 {v(T)}, 5, {v(wLANE)}")
    A(f"v_and_b32 {v(T+1)}, 31, {v(wLANE)}")
    for par in range(2):
        A(f"v_add_u32 {v(T+2)}, {2*par}, {v(T)}")
        A(f"v_lshlrev_b32 {v(T+2)}, 2, {v(T+2)}")
        A(f"v_xor_b32 {v(T+2)}, {v(T+2)}, {v(T+1)}")
        lo, hi = T+4+2*par, T+5+2*par
        if not ffn:
            A(f"v_lshlrev_b32 {v(T+3)}, 4, {v(T+2)}")
            A(f"v_mov_b32 {v(hi)}, {s(sWB+1)}")
            A(f"v_add_co_u32 {v(lo)}, vcc, {s(sWB)}, {v(T+3)}")
            A(f"v_addc_co_u32 {v(hi)}, vcc, 0, {v(hi)}, vcc")
        else:
            A(f"v_and_b32 {v(T+3)}, 15, {v(T+2)}")
            A(f"v_lshlrev_b32 {v(T+3)}, 4, {v(T+3)}")
            A(f"v_cmp_lt_u32 vcc, 15, {v(T+2)}")
            A(f"v_mov_b32 {v(lo)}, {s(sWB)}")
            A(f"v_mov_b32 {v(hi)}, {s(sWB2)}")
            A(f"v_cndmask_b32 {v(lo)}, {v(lo)}, {v(hi)}, vcc")
            A(f"v_mov_b32 {v(hi)}, {s(sWB+1)}")
            A(f"v_mov_b32 {v(T+8)}, {s(sWB2+1)}")
            A(f"v_cndmask_b32 {v(hi)}, {v(hi)}, {v(T+8)}, vcc")
            A(f"v_add_co_u32 {v(lo)}, vcc, {v(lo)}, {v(T+3)}")
            A(f"v_addc_co_u32 {v(hi)}, vcc, 0, {v(hi)}, vcc")
        A(f"s_lshl_b32 {s(sT)}, {s(sWAVE)}, 4")
        A(f"s_add_u32 {s(sT)}, {s(sT)}, {2*par}")
        A(f"v_add_u32 {v(T+3)}, {s(sT)}, {v(T)}")
        A(f"v_mul_lo_u32 {v(T+3)}, {v(T+3)}, {s(sLDW)}")
        A(f"v_add_co_u32 {v(lo)}, vcc, {v(lo)}, {v(T+3)}")
        A(f"v_addc_co_u32 {v(hi)}, vcc, 0, {v(hi)}, vcc")
    A(f"s_lshl_b32 {s(sT+2)}, {s(sLDW)}, 2")
    A(f"s_mul_i32 {s(sT+3)}, {s(sLDW)}, 48")
    A(f"s_lshl_b32 {s(sT+1)}, {s(sWAVE)}, 13")
    def dma(c):
        slot = c % 4
        for i in range(8):
            lo = T+4+2*(i&1)
            A(f"s_add_u32 m0, {s(sT+1)}, {slot*32768 + i*1024}")
            A(f"global_load_lds_dwordx4 {v(lo,2)}, off")
            A(f"v_add_co_u32 {v(lo)}, vcc, {s(sT+2)}, {v(lo)}")
            A(f"v_addc_co_u32 {v(lo+1)}, vcc, 0, {v(lo+1)}, vcc")
        for par in range(2):
            lo = T+4+2*par
            A(f"v_add_co_u32 {v(lo)}, vcc, {s(sT+3)}, {v(lo)}")
            A(f"v_addc_co_u32 {v(lo+1)}, vcc, 0, {v(lo+1)}, vcc")
    A(f"v_bfe_u32 {v(T+10)}, {v(wLANE)}, 2, 2")
    A(f"v_and_b32 {v(T+11)}, 3, {v(wLANE)}")
    if sigma:
        A(f"v_and_b32 {v(T+12)}, 1, {v(T+11)}")
        A(f"v_lshlrev_b32 {v(T+12)}, 1, {v(T+12)}")
        A(f"v_lshrrev_b32 {v(T+11)}, 1, {v(T+11)}")
        A(f"v_or_b32 {v(T+11)}, {v(T+11)}, {v(T+12)}")
    A(f"v_bfe_u32 {v(T+12)}, {v(wLANE)}, 4, 1")
    A(f"v_lshrrev_b32 {v(T+13)}, 5, {v(wLANE)}")
    A(f"v_lshrrev_b32 {v(T+14)}, 1, {v(T+11)}")
    A(f"v_lshl_add_u32 {v(T+14)}, {v(T+12)}, 1, {v(T+14)}")
    A(f"v_lshl_add_u32 {v(T+13)}, {v(T+13)}, 3, {v(T+10)}")
    for Tt in range(2):
        if not ffn: A(f"s_lshl_b32 {s(sT)}, {s(sWAVE)}, 3"); A(f"s_add_u32 {s(sT)}, {s(sT)}, {4*Tt}")
        else: A(f"s_lshl_b32 {s(sT)}, {s(sWAVE)}, 2"); A(f"s_add_u32 {s(sT)}, {s(sT)}, {16*Tt}")
        A(f"v_add_u32 {v(T+15)}, {s(sT)}, {v(T+14)}")
        A(f"v_lshlrev_b32 {v(T+16)}, 2, {v(T+10)}")
        A(f"v_xor_b32 {v(T+15)}, {v(T+15)}, {v(T+16)}")
        A(f"v_lshlrev_b32 {v(T+15)}, 4, {v(T+15)}")
        A(f"v_lshl_add_u32 {v(T+15)}, {v(T+13)}, 9, {v(T+15)}")
        A(f"v_and_b32 {v(T+16)}, 1, {v(T+11)}")
        A(f"v_lshl_add_u32 {v(T+17+Tt)}, {v(T+16)}, 3, {v(T+15)}")
    for c in range(min(4, nch)): dma(c)
    for c in range(nch):
        slot = c % 4
        left = min(3, nch - 1 - c)
        A(f"s_waitcnt vmcnt({8*left})")
        A("s_barrier")
        for Tt in range(2):
            A(f"v_add_u32 {v(T+19)}, {slot*32768}, {v(T+17+Tt)}")
            for kk in range(4):
                kap = 4*c + kk
                for y in range(2):
                    A(f"ds_read_b64_tr_b16 {a((Tt*32+kap)*4 + 2*y, 2)}, {v(T+19)} offset:{(16*kk + 4*y)*512}")
        A("s_waitcnt lgkmcnt(0)")
        A("s_barrier")
        if c + 4 < nch: dma(c + 4)

def setup_a_addr(A, mode):
    if mode == "f":
        A(f"v_mov_b32 {v(wAR)}, {v(wL16)}")
    else:
        T = wT
        A(f"v_and_b32 {v(T)}, 31, {v(wLANE)}")
        A(f"v_lshrrev_b32 {v(T+1)}, 5, {v(wLANE)}")
        A(f"v_and_b32 {v(T+2)}, 15, {v(wLANE)}")
        for b in range(8):
            A(f"v_add_u32 {v(T+3)}, {2*b}, {v(T+1)}")
            A(f"v_xor_b32 {v(T+3)}, {v(T+3)}, {v(T+2)}")
            A(f"v_lshlrev_b32 {v(T+3)}, 4, {v(T+3)}")
            A(f"v_lshl_add_u32 {v(wAR+b)}, {v(T)}, 10, {v(T+3)}")

def a_read(kap, buf, mode, slot_off):
    dst = v(wAF+4*buf, 4)
    if mode == "f":
        return f"ds_read_b128 {dst}, {v(wAR)} offset:{slot_off + kap*1024}"
    a_, b_ = kap >> 3, kap & 7
    return f"ds_read_b128 {dst}, {v(wAR+b_)} offset:{slot_off + a_*256}"

def mma_chunk(A, ksteps, mode, slot_off, transposed, fillers=None, acc=wAC):
    fillers = list(fillers or [])
    NB = 8
    pre = min(6, ksteps)
    for k in range(pre): A(a_read(k, k % NB, mode, slot_off))
    nread = pre
    for k in range(ksteps):
        outstanding = nread - 1 - k
        A(f"s_waitcnt lgkmcnt({min(outstanding,15)})")
        for Tt in range(2):
            d = v(acc+16*Tt, 16); c = "0" if k == 0 else d
            w_ = a((Tt*32+k)*4, 4); x_ = v(wAF+4*(k % NB), 4)
            if transposed: A(f"v_mfma_f32_32x32x16_bf16 {d}, {w_}, {x_}, {c}")
            else: A(f"v_mfma_f32_32x32x16_bf16 {d}, {x_}, {w_}, {c}")
            if Tt == 0 and nread < ksteps:
                A(a_read(nread, nread % NB, mode, slot_off)); nread += 1
            for _ in range(2):
                if fillers: A(fillers.pop(0))
    for f in fillers: A(f)
```

```python
WS_KX   = 0x0000000
WS_VX   = 0x1000000
WS_Q    = 0x2000000
WS_KM   = 0x3000000
WS_VM   = 0x3800000
WS_MEM  = 0x4000000
WS_P    = 0x4010000
WS_END_CHAIN = 0x4090000
KA_X=0; KA_MEM0=8; KA_WQ=16; KA_WK=24; KA_WV=32; KA_WO=40; KA_SEG=48; KA_BX=56
KA_W1=64; KA_W3=72; KA_W2=80; KA_GW=88; KA_OUT=96; KA_DBG=104; KA_WS=112
L_WO=0; L_MEMB=131072; L_KXB=139264; L_VXB=147456; L_MQK=155648; L_OB=159744; L_MISC=161920
LDS_TOTAL=163840
WS_H    = 0x5000000
WS_PB   = 0x6000000
WS_PA   = 0x7000000
WS_FLAGS= 0x9000000
```

```python
from asmlib import *
from layout import *
from engine import *
import struct
def f2u(x): return struct.unpack("<I", struct.pack("<f", x))[0]
LOG2E = 1.4426950408889634
sIN = 60

def load_ptrs(A):
    for reg,off in ((60,KA_X),(62,KA_WQ),(64,KA_WK),(66,KA_WV),(68,KA_WO),(70,KA_W1),(72,KA_W3),(74,KA_W2),(76,KA_GW),(78,KA_OUT),(sDBG,KA_DBG),(sWS,KA_WS)):
        A(f"s_load_dwordx2 {s(reg,2)}, s[0:1], {off}")
    A("v_lshrrev_b32 v1, 6, v0")
    A(f"v_readfirstlane_b32 {s(sWAVE)}, v1")
    A(f"v_and_b32 {v(wLANE)}, 63, v0")
    A(f"v_lshlrev_b32 {v(wL16)}, 4, {v(wLANE)}")
    A("s_waitcnt lgkmcnt(0)")

def dma_x_setup(A):
    A(f"s_and_b32 {s(sT)}, {s(sWAVE)}, 1")
    A(f"s_lshl_b32 {s(sT)}, {s(sT)}, 7")
    A(f"v_xor_b32 {v(wDM)}, {s(sT)}, {v(wL16)}")

def dma_x(A, slot_reg):
    A(f"s_lshl_b32 {s(sT)}, {s(sWAVE)}, 13")
    A(f"s_add_u32 {s(sT+4)}, {s(sAP)}, {s(sT)}")
    A(f"s_addc_u32 {s(sT+5)}, {s(sAP+1)}, 0")
    A(f"s_add_u32 {s(sT)}, {s(sT)}, {s(slot_reg)}")
    out = []
    for i in range(8):
        A(f"v_xor_b32 {v(wDM+1)}, {i*16}, {v(wDM)}")
        A(f"s_add_u32 m0, {s(sT)}, {i*1024}")
        A(f"global_load_lds_dwordx4 {v(wDM+1)}, {s(sT+4,2)}")
        if i < 7:
            A(f"s_add_u32 {s(sT+4)}, {s(sT+4)}, 1024")
            A(f"s_addc_u32 {s(sT+5)}, {s(sT+5)}, 0")

def dma_lin(A, slot_reg, nfrag=32, mod=""):
    per = nfrag // 4
    A(f"s_mul_i32 {s(sT)}, {s(sWAVE)}, {per*1024}")
    A(f"s_add_u32 {s(sT+4)}, {s(sAP)}, {s(sT)}")
    A(f"s_addc_u32 {s(sT+5)}, {s(sAP+1)}, 0")
    A(f"s_add_u32 {s(sT)}, {s(sT)}, {s(slot_reg)}")
    for i in range(0, per, 4):
        A(f"s_add_u32 m0, {s(sT)}, {i*1024}")
        for j in range(min(4, per-i)):
            A(f"global_load_lds_dwordx4 {v(wL16)}, {s(sT+4,2)} offset:{j*1024} {mod}")
        if i + 4 < per:
            A(f"s_add_u32 {s(sT+4)}, {s(sT+4)}, 4096")
            A(f"s_addc_u32 {s(sT+5)}, {s(sT+5)}, 0")

sSLOT=34; sCNT=35; sSL=36

def epi_kq(A, st=""):
    E = wE
    for Tt in range(2):
        for hf in range(2):
            for d in range(4):
                r = wAC + 16*Tt + 8*hf + 2*d
                A(f"v_cvt_pk_bf16_f32 {v(E+8*Tt+4*hf+d)}, {v(r)}, {v(r+1)}")
            A(f"global_store_dwordx4 {v(E+20)}, {v(E+8*Tt+4*hf,4)}, {s(sOP,2)} offset:{Tt*1024+hf*512} {st}")

def epi_v(A, st=""):
    E = wE
    for Tt in range(2):
        for u in range(2):
            base = wAC + 16*Tt
            regs = [base+4*u, base+4*u+2, base+8+4*u, base+8+4*u+2]
            for d in range(4):
                A(f"v_cvt_pk_bf16_f32 {v(E+8*Tt+4*u+d)}, {v(regs[d])}, {v(regs[d]+1)}")
            A(f"global_store_dwordx4 {v(E+20)}, {v(E+8*Tt+4*u,4)}, {s(sOP,2)} offset:{Tt*2048+u*512} {st}")

def unpack2(A, dlo, dhi, src):
    A(f"v_lshlrev_b32 {v(dlo)}, 16, {v(src)}")
    A(f"v_and_b32 {v(dhi)}, 0xffff0000, {v(src)}")

def epi_ffn(A, st=""):
    E = wE
    G = wAC; U = wAC+16
    t = E+8
    for hf in range(2):
        for d in range(4):
            g = G + 8*hf + 2*d; u = U + 8*hf + 2*d
            A(f"v_cvt_pk_bf16_f32 {v(t)}, {v(g)}, {v(g+1)}")
            A(f"v_cvt_pk_bf16_f32 {v(t+1)}, {v(u)}, {v(u+1)}")
            unpack2(A, t+2, t+3, t)
            unpack2(A, t+6, t+7, t+1)
            A(f"v_pk_mul_f32 {v(t+4,2)}, {v(t+2,2)}, {s(40,2)}")
            A(f"v_exp_f32 {v(t+4)}, {v(t+4)}")
            A(f"v_exp_f32 {v(t+5)}, {v(t+5)}")
            A(f"v_pk_add_f32 {v(t+4,2)}, {v(t+4,2)}, {s(42,2)}")
            A(f"v_rcp_f32 {v(t+4)}, {v(t+4)}")
            A(f"v_rcp_f32 {v(t+5)}, {v(t+5)}")
            A(f"v_pk_mul_f32 {v(t+4,2)}, {v(t+4,2)}, {v(t+2,2)}")
            A(f"v_cvt_pk_bf16_f32 {v(t)}, {v(t+4)}, {v(t+5)}")
            unpack2(A, t+4, t+5, t)
            A(f"v_pk_mul_f32 {v(t+4,2)}, {v(t+4,2)}, {v(t+6,2)}")
            A(f"v_cvt_pk_bf16_f32 {v(E+4*hf+d)}, {v(t+4)}, {v(t+5)}")
        A(f"global_store_dwordx4 {v(wL16)}, {v(E+4*hf,4)}, {s(sOP,2)} offset:{hf*1024} {st}")

def epi_part(A, st=""):
    for Tt in range(2):
        for hq in range(4):
            r = wAC + 16*Tt + 4*hq
            off = Tt*4096 + hq*1024
            if off < 4096: A(f"global_store_dwordx4 {v(wL16)}, {v(r,4)}, {s(sOP,2)} offset:{off} {st}")
            else: A(f"global_store_dwordx4 {v(wDM)}, {v(r,4)}, {s(sOP,2)} offset:{off-4096} {st}")

def seg_loop(A, kind, nseg_reg_init, seg_stride, ksteps=32, st=""):
    mode = "x"
    lab = A.label("L_seg")
    def set_ap():
        A(f"s_lshl_b32 {s(sT)}, {s(sSEG)}, 15")
        A(f"s_add_u32 {s(sAP)}, {s(60)}, {s(sT)}")
        A(f"s_addc_u32 {s(sAP+1)}, {s(61)}, 0")
    A(f"s_mov_b32 {s(sSLOT)}, 0")
    set_ap()
    dma_x(A, sSLOT)
    A(f"{lab}:")
    A("s_waitcnt vmcnt(0)")
    A("s_barrier")
    if kind in ("k","q","v"):
        base = {"k":WS_KX,"q":WS_Q,"v":WS_VX}[kind]
        A(f"s_lshl_b32 {s(sT)}, {s(sSEG)}, 18")
        A(f"s_add_u32 {s(sT)}, {s(sT)}, {s(37)}")
        A(f"s_add_u32 {s(sT)}, {s(sT)}, {base}")
    else:
        A(f"s_mul_i32 {s(sT)}, {s(sSEG)}, {56*2048}")
        A(f"s_add_u32 {s(sT)}, {s(sT)}, {s(37)}")
        A(f"s_add_u32 {s(sT)}, {s(sT)}, {WS_H}")
    A(f"s_add_u32 {s(sOP)}, {s(sWS)}, {s(sT)}")
    A(f"s_addc_u32 {s(sOP+1)}, {s(sWS+1)}, 0")
    nx = A.label("L_nonext")
    A(f"s_add_u32 {s(sSEG)}, {s(sSEG)}, {seg_stride}")
    A(f"s_sub_u32 {s(sCNT)}, {s(sCNT)}, 1")
    A(f"s_xor_b32 {s(sSLOT)}, {s(sSLOT)}, 32768")
    A(f"s_cmp_eq_u32 {s(sCNT)}, 0")
    A(f"s_cbranch_scc1 {nx}")
    A.cbegin()
    set_ap()
    dma_x(A, sSLOT)
    A.cend()
    A(f"{nx}:")
    mma_chunk(A, ksteps, mode, 0, transposed=(kind != "v"))
    for b in range(8): A(f"v_xor_b32 {v(wAR+b)}, 32768, {v(wAR+b)}")
    if kind in ("k","q"): epi_kq(A, st)
    elif kind == "v": epi_v(A, st)
    else: epi_ffn(A, st)
    A(f"s_cmp_lg_u32 {s(sCNT)}, 0")
    A(f"s_cbranch_scc1 {lab}")

def gen_proj_body(A, st=""):
    done = A.label("L_pdone")
    lk, lv, lq, lf = [A.label(x) for x in ("L_pk","L_pv","L_pq","L_pf")]
    A(f"s_cmp_lt_u32 {s(sSL)}, 16"); A(f"s_cbranch_scc1 {lk}")
    A(f"s_cmp_lt_u32 {s(sSL)}, 32"); A(f"s_cbranch_scc1 {lv}")
    A(f"s_cmp_lt_u32 {s(sSL)}, 48"); A(f"s_cbranch_scc1 {lq}")
    A(f"s_branch {lf}")
    for kind,lab,first,ptr in (("k",lk,0,64),("v",lv,16,66),("q",lq,32,62)):
        A(f"{lab}:")
        A(f"s_sub_u32 {s(sT+6)}, {s(sSL)}, {first}")
        A(f"s_lshl_b32 {s(sT)}, {s(sT+6)}, 9")
        A(f"s_add_u32 {s(sWB)}, {s(ptr)}, {s(sT)}")
        A(f"s_addc_u32 {s(sWB+1)}, {s(ptr+1)}, 0")
        A(f"s_mov_b32 {s(sLDW)}, 8192")
        A(f"s_lshr_b32 {s(sT)}, {s(sWAVE)}, 1")
        A(f"s_lshl_b32 {s(sT+1)}, {s(sT+6)}, 1")
        A(f"s_add_u32 {s(sT)}, {s(sT)}, {s(sT+1)}")
        A(f"s_lshl_b32 {s(37)}, {s(sT)}, 13")
        A(f"s_and_b32 {s(sT)}, {s(sWAVE)}, 1")
        A(f"s_lshl_b32 {s(sT)}, {s(sT)}, {11 if kind != 'v' else 12}")
        A(f"s_add_u32 {s(37)}, {s(37)}, {s(sT)}")
        load_weights(A, 32, ffn=False, sigma=(kind != "v"))
        setup_a_addr(A, "x"); dma_x_setup(A)
        T = wT
        if kind != "v":
            A(f"v_bfe_u32 {v(T)}, {v(wLANE)}, 4, 1")
            A(f"v_lshrrev_b32 {v(T+1)}, 5, {v(wLANE)}")
            A(f"v_and_b32 {v(T+2)}, 15, {v(wLANE)}")
            A(f"v_lshl_add_u32 {v(T+1)}, {v(T+1)}, 4, {v(T+2)}")
            A(f"v_lshlrev_b32 {v(T+1)}, 4, {v(T+1)}")
            A(f"v_lshl_add_u32 {v(wE+20)}, {v(T)}, 12, {v(T+1)}")
        else:
            A(f"v_bfe_u32 {v(T)}, {v(wLANE)}, 4, 1")
            A(f"v_lshrrev_b32 {v(T+1)}, 5, {v(wLANE)}")
            A(f"v_and_b32 {v(T+2)}, 15, {v(wLANE)}")
            A(f"v_lshl_add_u32 {v(T+1)}, {v(T+1)}, 4, {v(T+2)}")
            A(f"v_lshlrev_b32 {v(T+1)}, 4, {v(T+1)}")
            A(f"v_lshl_add_u32 {v(wE+20)}, {v(T)}, 10, {v(T+1)}")
        seg_loop(A, kind, None, 4, 32, st)
        A(f"s_branch {done}")
    A(f"{lf}:")
    A(f"s_sub_u32 {s(sT+6)}, {s(sSL)}, 48")
    A(f"s_lshl_b32 {s(sT)}, {s(sT+6)}, 8")
    A(f"s_add_u32 {s(sWB)}, {s(70)}, {s(sT)}")
    A(f"s_addc_u32 {s(sWB+1)}, {s(71)}, 0")
    A(f"s_add_u32 {s(sWB2)}, {s(72)}, {s(sT)}")
    A(f"s_addc_u32 {s(sWB2+1)}, {s(73)}, 0")
    A(f"s_mov_b32 {s(sLDW)}, 3584")
    A(f"s_lshl_b32 {s(sT)}, {s(sT+6)}, 2")
    A(f"s_add_u32 {s(sT)}, {s(sT)}, {s(sWAVE)}")
    A(f"s_lshl_b32 {s(37)}, {s(sT)}, 11")
    A(f"s_mov_b32 {s(40)}, {f2u(-LOG2E):#x}"); A(f"s_mov_b32 {s(41)}, {f2u(-LOG2E):#x}")
    A(f"s_mov_b32 {s(42)}, 1.0"); A(f"s_mov_b32 {s(43)}, 1.0")
    load_weights(A, 32, ffn=True, sigma=True)
    setup_a_addr(A, "x"); dma_x_setup(A)
    seg_loop(A, "ffn", None, 4, 32, st)
    A(f"{done}:")

def gen_proj_kernel(A, name="proj_kernel"):
    A.raw(kstart(name))
    load_ptrs(A)
    A("s_cmp_ge_u32 s2, 248")
    A("s_cbranch_scc1 L_proj_exit")
    A(f"s_lshr_b32 {s(sSL)}, s2, 2")
    A(f"s_and_b32 {s(sSEG)}, s2, 3")
    A(f"s_mov_b32 {s(sCNT)}, 16")
    gen_proj_body(A)
    A("L_proj_exit:")
    A("s_endpgm")

def part_loop(A, ksteps, src, st="", seg_stride=1, pre=None):
    lab = A.label("L_seg")
    def set_ap():
        A(f"s_mul_i32 {s(sT)}, {s(sSEG)}, {56*2048}")
        A(f"s_add_u32 {s(sT)}, {s(sT)}, {s(37)}")
        A(f"s_add_u32 {s(sAP)}, {s(sWS)}, {s(sT)}")
        A(f"s_addc_u32 {s(sAP+1)}, {s(sWS+1)}, 0")
    A(f"s_mov_b32 {s(sSLOT)}, 0")
    set_ap()
    dma_lin(A, sSLOT, ksteps)
    A(f"{lab}:")
    A("s_waitcnt vmcnt(0)")
    A("s_barrier")
    A(f"s_lshl_b32 {s(sT)}, {s(sSEG)}, 16")
    A(f"s_add_u32 {s(sT)}, {s(sT)}, {s(38)}")
    A(f"s_add_u32 {s(sOP)}, {s(sWS)}, {s(sT)}")
    A(f"s_addc_u32 {s(sOP+1)}, {s(sWS+1)}, 0")
    nx = A.label("L_nonext")
    A(f"s_add_u32 {s(sSEG)}, {s(sSEG)}, {seg_stride}")
    A(f"s_sub_u32 {s(sCNT)}, {s(sCNT)}, 1")
    A(f"s_xor_b32 {s(sSLOT)}, {s(sSLOT)}, 32768")
    A(f"s_cmp_eq_u32 {s(sCNT)}, 0")
    A(f"s_cbranch_scc1 {nx}")
    A.cbegin()
    set_ap()
    dma_lin(A, sSLOT, ksteps)
    A.cend()
    A(f"{nx}:")
    mma_chunk(A, ksteps, "f", 0, transposed=True)
    A(f"v_xor_b32 {v(wAR)}, 32768, {v(wAR)}")
    epi_part(A, st)
    A(f"s_cmp_lg_u32 {s(sCNT)}, 0")
    A(f"s_cbranch_scc1 {lab}")

def gen_down_body(A, seg_stride, st=""):
    done = A.label("L_ddone"); l3 = A.label("L_d3")
    A(f"s_lshr_b32 {s(sT+6)}, {s(sSL)}, 1")
    A(f"s_and_b32 {s(sT+7)}, {s(sSL)}, 1")
    A(f"s_lshl_b32 {s(sT)}, {s(sT+6)}, 19")
    A(f"s_lshl_b32 {s(sT+1)}, {s(sT+7)}, 9")
    A(f"s_add_u32 {s(sT)}, {s(sT)}, {s(sT+1)}")
    A(f"s_add_u32 {s(sWB)}, {s(74)}, {s(sT)}")
    A(f"s_addc_u32 {s(sWB+1)}, {s(75)}, 0")
    A(f"s_mov_b32 {s(sLDW)}, 1024")
    A(f"s_lshl_b32 {s(37)}, {s(sT+6)}, 15")
    A(f"s_add_u32 {s(37)}, {s(37)}, {WS_H}")
    A(f"s_lshl_b32 {s(38)}, {s(sT+6)}, 22")
    A(f"s_lshl_b32 {s(sT)}, {s(sT+7)}, 15")
    A(f"s_add_u32 {s(38)}, {s(38)}, {s(sT)}")
    A(f"s_lshl_b32 {s(sT)}, {s(sWAVE)}, 13")
    A(f"s_add_u32 {s(38)}, {s(38)}, {s(sT)}")
    A(f"s_add_u32 {s(38)}, {s(38)}, {WS_PB}")
    A(f"v_add_u32 {v(wDM)}, 4096, {v(wL16)}")
    A(f"s_cmp_eq_u32 {s(sT+6)}, 3")
    A(f"s_cbranch_scc1 {l3}")
    for ksteps,lab in ((32,None),(16,l3)):
        if lab: A(f"{lab}:")
        load_weights(A, ksteps, ffn=False, sigma=True)
        setup_a_addr(A, "f")
        part_loop(A, ksteps, "h", st, seg_stride)
        A(f"s_branch {done}")
    A(f"{done}:")

def gen_down_kernel(A, name="down_kernel"):
    A.raw(kstart(name))
    load_ptrs(A)
    A("s_cmp_ge_u32 s2, 256")
    A("s_cbranch_scc1 L_down_exit")
    A(f"s_lshr_b32 {s(sSL)}, s2, 5")
    A(f"s_and_b32 {s(sSEG)}, s2, 31")
    A(f"s_mov_b32 {s(sCNT)}, 2")
    gen_down_body(A, 32)
    A("L_down_exit:")
    A("s_endpgm")

SCALE_LOG2E = (128.0 ** -0.5) * LOG2E
aQ=96; aKX=128; aKM=160; aVX=176; aVM=208
aS=216
aBI=236
aP=240
aT=252
aO=64
aOW=11
aM=12

def attn_loads(A, mod=""):
    P = 44
    A(f"s_lshl_b32 {s(sT)}, {s(sSEG)}, 5")
    A(f"s_add_u32 {s(sT)}, {s(sT)}, {s(39)}")
    A(f"s_lshl_b32 {s(sT+1)}, {s(sT)}, 13")
    for (base, reg, n) in ((WS_Q,aQ,8),(WS_KX,aKX,8),(WS_VX,aVX,8)):
        A(f"s_add_u32 {s(sT+2)}, {s(sT+1)}, {base}")
        A(f"s_add_u32 {s(P)}, {s(sWS)}, {s(sT+2)}")
        A(f"s_addc_u32 {s(P+1)}, {s(sWS+1)}, 0")
        for i in range(n):
            if i == 4:
                A(f"s_add_u32 {s(P)}, {s(P)}, 4096")
                A(f"s_addc_u32 {s(P+1)}, {s(P+1)}, 0")
            A(f"global_load_dwordx4 {v(reg+4*i,4)}, {v(wL16)}, {s(P,2)} offset:{(i&3)*1024} {mod}")
    A(f"s_lshl_b32 {s(sT+1)}, {s(sT)}, 12")
    A(f"s_add_u32 {s(sT+2)}, {s(sT+1)}, {WS_KM}")
    A(f"s_add_u32 {s(P)}, {s(sWS)}, {s(sT+2)}")
    A(f"s_addc_u32 {s(P+1)}, {s(sWS+1)}, 0")
    for i in range(4):
        A(f"global_load_dwordx4 {v(aKM+4*i,4)}, {v(wL16)}, {s(P,2)} offset:{i*1024} {mod}")
    A(f"s_add_u32 {s(sT+2)}, {s(sT+1)}, {WS_VM}")
    A(f"s_add_u32 {s(P)}, {s(sWS)}, {s(sT+2)}")
    A(f"s_addc_u32 {s(P+1)}, {s(sWS+1)}, 0")
    for i in range(4):
        A(f"global_load_dwordx2 {v(aVM+2*i,2)}, {v(wL16)}, {s(P,2)} offset:{i*1024} {mod}")

def attn_setup(A):
    T = aM
    A(f"v_and_b32 {v(T)}, 15, {v(wLANE)}")
    A(f"v_lshrrev_b32 {v(T+1)}, 4, {v(wLANE)}")
    A(f"v_lshlrev_b32 {v(T+2)}, 2, {v(T+1)}")
    A(f"v_mov_b32 {v(T+4)}, 0xff000000")
    for r in range(4):
        A(f"v_add_u32 {v(T+3)}, {r}, {v(T+2)}")
        A(f"v_cmp_gt_u32 vcc, {v(T+3)}, {v(T)}")
        A(f"v_cndmask_b32 {v(aBI+r)}, 0, {v(T+4)}, vcc")
    A(f"v_mov_b32 {v(aP+2)}, 0"); A(f"v_mov_b32 {v(aP+3)}, 0")
    A(f"v_mov_b32 {v(aP+9)}, 0"); A(f"v_mov_b32 {v(aP+11)}, 0")
    A(f"v_lshrrev_b32 {v(T+2)}, 1, {v(T+1)}")
    A(f"v_lshl_add_u32 {v(T+2)}, {v(T+2)}, 5, {v(T)}")
    A(f"v_lshlrev_b32 {v(T+2)}, 4, {v(T+2)}")
    A(f"v_and_b32 {v(T+3)}, 1, {v(T+1)}")
    A(f"v_lshl_add_u32 {v(T+2)}, {v(T+3)}, 3, {v(T+2)}")
    A(f"s_lshl_b32 {s(sT)}, {s(sWAVE)}, 13")
    A(f"v_add_u32 {v(aOW)}, {s(sT)}, {v(T+2)}")
    A(f"s_mov_b32 {s(40)}, {f2u(SCALE_LOG2E):#x}")
    A(f"s_mov_b32 {s(41)}, {f2u(-SCALE_LOG2E):#x}")

def xlane(A, op, r, t):
    A(f"v_mov_b32 {v(t)}, {v(r)}")
    A(f"v_permlane16_swap_b32 {v(r)}, {v(t)}")
    A(f"{op} {v(r)}, {v(r)}, {v(t)}")
    A(f"v_mov_b32 {v(t)}, {v(r)}")
    A(f"v_permlane32_swap_b32 {v(r)}, {v(t)}")
    A(f"{op} {v(r)}, {v(r)}, {v(t)}")

def attention(A):
    S00,S01,S11,SM0,SM1 = aS, aS+4, aS+8, aS+12, aS+16
    def q(t,ks): return v(aQ+(t*4+ks)*4,4)
    def kx(t,ks): return v(aKX+(t*4+ks)*4,4)
    def km(ks): return v(aKM+4*ks,4)
    for ks in range(4):
        for (S,Aop,Bop,c0) in ((S00,kx(0,ks),q(0,ks),v(aBI,4)),(S01,kx(0,ks),q(1,ks),"0"),(S11,kx(1,ks),q(1,ks),v(aBI,4)),
                               (SM0,km(ks),q(0,ks),"0"),(SM1,km(ks),q(1,ks),"0")):
            c = c0 if ks == 0 else v(S,4)
            A(f"v_mfma_f32_16x16x32_bf16 {v(S,4)}, {Aop}, {Bop}, {c}")
    m0_,m1_,t0,t1 = aM, aM+1, aM+2, aM+3
    l0,l1 = aM+4, aM+5
    A(f"v_max3_f32 {v(m0_)}, {v(S00)}, {v(S00+1)}, {v(S00+2)}")
    A(f"v_max3_f32 {v(m0_)}, {v(m0_)}, {v(S00+3)}, {v(SM0)}")
    A(f"v_max_f32 {v(m0_)}, {v(m0_)}, {v(SM0+1)}")
    A(f"v_max3_f32 {v(m1_)}, {v(S01)}, {v(S01+1)}, {v(S01+2)}")
    A(f"v_max3_f32 {v(m1_)}, {v(m1_)}, {v(S01+3)}, {v(S11)}")
    A(f"v_max3_f32 {v(m1_)}, {v(m1_)}, {v(S11+1)}, {v(S11+2)}")
    A(f"v_max3_f32 {v(m1_)}, {v(m1_)}, {v(S11+3)}, {v(SM1)}")
    A(f"v_max_f32 {v(m1_)}, {v(m1_)}, {v(SM1+1)}")
    xlane(A, "v_max_f32", m0_, t0)
    xlane(A, "v_max_f32", m1_, t1)
    A(f"v_mul_f32 {v(m0_)}, {s(41)}, {v(m0_)}")
    A(f"v_mul_f32 {v(m1_)}, {s(41)}, {v(m1_)}")
    for (S,n,m) in ((S00,4,m0_),(SM0,2,m0_),(S01,4,m1_),(S11,4,m1_),(SM1,2,m1_)):
        for r in range(n):
            A(f"v_fma_f32 {v(S+r)}, {v(S+r)}, {s(40)}, {v(m)}")
            A(f"v_exp_f32 {v(S+r)}, {v(S+r)}")
    A(f"v_cvt_pk_bf16_f32 {v(aP)}, {v(S00)}, {v(S00+1)}")
    A(f"v_cvt_pk_bf16_f32 {v(aP+1)}, {v(S00+2)}, {v(S00+3)}")
    A(f"v_cvt_pk_bf16_f32 {v(aP+4)}, {v(S01)}, {v(S01+1)}")
    A(f"v_cvt_pk_bf16_f32 {v(aP+5)}, {v(S01+2)}, {v(S01+3)}")
    A(f"v_cvt_pk_bf16_f32 {v(aP+6)}, {v(S11)}, {v(S11+1)}")
    A(f"v_cvt_pk_bf16_f32 {v(aP+7)}, {v(S11+2)}, {v(S11+3)}")
    A(f"v_cvt_pk_bf16_f32 {v(aP+8)}, {v(SM0)}, {v(SM0+1)}")
    A(f"v_cvt_pk_bf16_f32 {v(aP+10)}, {v(SM1)}, {v(SM1+1)}")
    A(f"v_add_f32 {v(l0)}, {v(S00)}, {v(S00+1)}")
    for r in (S00+2,S00+3,SM0,SM0+1): A(f"v_add_f32 {v(l0)}, {v(l0)}, {v(r)}")
    A(f"v_add_f32 {v(l1)}, {v(S01)}, {v(S01+1)}")
    for r in (S01+2,S01+3,S11,S11+1,S11+2,S11+3,SM1,SM1+1): A(f"v_add_f32 {v(l1)}, {v(l1)}, {v(r)}")
    xlane(A, "v_add_f32", l0, t0)
    xlane(A, "v_add_f32", l1, t1)
    A(f"v_rcp_f32 {v(l0)}, {v(l0)}")
    A(f"v_rcp_f32 {v(l1)}, {v(l1)}")
    for th in range(2):
        Bx = v(aP+4*th,4); Bm = v(aP+8+2*th,2); l = (l0,l1)[th]
        for tau in range(8):
            vm = v(aVM+2*(tau>>1),2)
            A(f"v_mfma_f32_16x16x32_bf16 {v(aO+4*tau,4)}, {v(aVX+4*tau,4)}, {Bx}, 0")
        for tau in range(8):
            if tau & 1 == 0: a2 = v(aVM+2*(tau>>1),2)
            else: a2 = v(aM+8+2*(tau>>1),2)
            A(f"v_mfma_f32_16x16x16_bf16 {v(aO+4*tau,4)}, {a2}, {Bm}, {v(aO+4*tau,4)}")
        for tau in range(8):
            o = aO+4*tau
            for r in range(4): A(f"v_mul_f32 {v(o+r)}, {v(o+r)}, {v(l)}")
            A(f"v_cvt_pk_bf16_f32 {v(aM+16)}, {v(o)}, {v(o+1)}")
            A(f"v_cvt_pk_bf16_f32 {v(aM+17)}, {v(o+2)}, {v(o+3)}")
            A(f"ds_write_b64 {v(aOW)}, {v(aM+16,2)} offset:{tau*1024 + th*256}")

def attn_fix_vm(A):
    for i in range(4):
        A(f"v_mov_b32 {v(aM+8+2*i)}, {v(aVM+2*i+1)}")
        A(f"v_mov_b32 {v(aM+8+2*i+1)}, {v(aVM+2*i)}")

def gen_attn_body(A, seg_stride, st="", mod=""):
    A(f"s_lshr_b32 {s(sT+6)}, {s(sSL)}, 1")
    A(f"s_and_b32 {s(sT+7)}, {s(sSL)}, 1")
    A(f"s_lshl_b32 {s(sT)}, {s(sT+6)}, 19")
    A(f"s_lshl_b32 {s(sT+1)}, {s(sT+7)}, 9")
    A(f"s_add_u32 {s(sT)}, {s(sT)}, {s(sT+1)}")
    A(f"s_add_u32 {s(sWB)}, {s(68)}, {s(sT)}")
    A(f"s_addc_u32 {s(sWB+1)}, {s(69)}, 0")
    A(f"s_mov_b32 {s(sLDW)}, 1024")
    A(f"s_lshl_b32 {s(39)}, {s(sT+6)}, 2")
    A(f"s_add_u32 {s(39)}, {s(39)}, {s(sWAVE)}")
    A(f"s_lshl_b32 {s(38)}, {s(sT+6)}, 22")
    A(f"s_lshl_b32 {s(sT)}, {s(sT+7)}, 15")
    A(f"s_add_u32 {s(38)}, {s(38)}, {s(sT)}")
    A(f"s_lshl_b32 {s(sT)}, {s(sWAVE)}, 13")
    A(f"s_add_u32 {s(38)}, {s(38)}, {s(sT)}")
    A(f"s_add_u32 {s(38)}, {s(38)}, {WS_PA}")
    load_weights(A, 32, ffn=False, sigma=True)
    setup_a_addr(A, "f")
    A(f"v_add_u32 {v(wDM)}, 4096, {v(wL16)}")
    attn_setup(A)
    lab = A.label("L_aseg")
    A(f"{lab}:")
    attn_loads(A, mod)
    A(f"s_lshl_b32 {s(sT)}, {s(sSEG)}, 16")
    A(f"s_add_u32 {s(sT)}, {s(sT)}, {s(38)}")
    A(f"s_add_u32 {s(sOP)}, {s(sWS)}, {s(sT)}")
    A(f"s_addc_u32 {s(sOP+1)}, {s(sWS+1)}, 0")
    A("s_waitcnt vmcnt(0)")
    attn_fix_vm(A)
    attention(A)
    A("s_waitcnt lgkmcnt(0)")
    A("s_barrier")
    mma_chunk(A, 32, "f", 0, transposed=True)
    A(f"v_xor_b32 {v(wAR)}, 32768, {v(wAR)}")
    A(f"v_xor_b32 {v(aOW)}, 32768, {v(aOW)}")
    epi_part(A, st)
    A(f"s_add_u32 {s(sSEG)}, {s(sSEG)}, {seg_stride}")
    A(f"s_sub_u32 {s(sCNT)}, {s(sCNT)}, 1")
    A(f"s_cmp_lg_u32 {s(sCNT)}, 0")
    A(f"s_cbranch_scc1 {lab}")

def gen_attn_kernel(A, name="attn_kernel"):
    A.raw(kstart(name))
    load_ptrs(A)
    A("s_cmp_ge_u32 s2, 256")
    A("s_cbranch_scc1 L_attn_exit")
    A(f"s_lshr_b32 {s(sSL)}, s2, 4")
    A(f"s_and_b32 {s(sSEG)}, s2, 15")
    A(f"s_mov_b32 {s(sCNT)}, 4")
    gen_attn_body(A, 16)
    A("L_attn_exit:")
    A("s_endpgm")

def gen_final_body(A, mod=""):
    T = 12
    A(f"s_lshl_b32 {s(sT)}, {s(sWAVE)}, 6")
    A(f"v_add_u32 {v(T)}, {s(sT)}, {v(wLANE)}")
    A(f"v_lshrrev_b32 {v(T+1)}, 3, {v(T)}")
    A(f"v_and_b32 {v(T+2)}, 7, {v(T)}")
    A(f"v_lshlrev_b32 {v(T+3)}, 7, {v(T+2)}")
    A(f"v_lshl_add_u32 {v(T+4)}, {v(T+1)}, 10, {v(T+3)}")
    A(f"s_lshl_b32 {s(sT)}, {s(sSEG)}, 15")
    A(f"s_add_u32 {s(44)}, {s(60)}, {s(sT)}")
    A(f"s_addc_u32 {s(45)}, {s(61)}, 0")
    for i in range(8):
        A(f"global_load_dwordx4 {v(32+4*i,4)}, {v(T+4)}, {s(44,2)} offset:{16*i}")
        A(f"global_load_dwordx4 {v(64+4*i,4)}, {v(T+3)}, {s(76,2)} offset:{16*i}")
    A(f"s_lshr_b32 {s(sT)}, {s(sSL)}, 1")
    A(f"s_lshl_b32 {s(sT)}, {s(sT)}, 15")
    A(f"s_and_b32 {s(sT+1)}, {s(sSL)}, 1")
    A(f"s_lshl_b32 {s(sT+1)}, {s(sT+1)}, 12")
    A(f"s_add_u32 {s(sT)}, {s(sT)}, {s(sT+1)}")
    A(f"s_lshl_b32 {s(sT+1)}, {s(sWAVE)}, 13")
    A(f"s_add_u32 {s(sT)}, {s(sT)}, {s(sT+1)}")
    A(f"s_lshl_b32 {s(sT+1)}, {s(sSEG)}, 16")
    A(f"s_add_u32 {s(sT+2)}, {s(sT)}, {s(sT+1)}")
    A("s_waitcnt vmcnt(0)")
    A(f"v_mov_b32 {v(T+5)}, 0")
    for i in range(32):
        x = 32+i; g = 64+i
        A(f"v_lshlrev_b32 {v(T+6)}, 16, {v(x)}")
        A(f"v_and_b32 {v(T+7)}, 0xffff0000, {v(x)}")
        A(f"v_lshlrev_b32 {v(T+8)}, 16, {v(g)}")
        A(f"v_and_b32 {v(T+9)}, 0xffff0000, {v(g)}")
        A(f"v_mul_f32 {v(T+6)}, {v(T+6)}, {v(T+8)}")
        A(f"v_mul_f32 {v(T+7)}, {v(T+7)}, {v(T+9)}")
        A(f"v_cvt_pk_bf16_f32 {v(T+6)}, {v(T+6)}, {v(T+7)}")
        A(f"v_lshlrev_b32 {v(T+7)}, 16, {v(T+6)}")
        A(f"v_and_b32 {v(T+6)}, 0xffff0000, {v(T+6)}")
        A(f"v_add_f32 {v(T+5)}, {v(T+5)}, {v(T+7)}")
        A(f"v_add_f32 {v(T+5)}, {v(T+5)}, {v(T+6)}")
    A(f"v_add_f32_dpp {v(T+5)}, {v(T+5)}, {v(T+5)} quad_perm:[1,0,3,2] row_mask:0xf bank_mask:0xf")
    A(f"v_add_f32_dpp {v(T+5)}, {v(T+5)}, {v(T+5)} quad_perm:[2,3,0,1] row_mask:0xf bank_mask:0xf")
    A(f"v_add_f32_dpp {v(T+5)}, {v(T+5)}, {v(T+5)} row_half_mirror row_mask:0xf bank_mask:0xf")
    A(f"v_cvt_pk_bf16_f32 {v(T+5)}, {v(T+5)}, {v(T+5)}")
    A(f"v_lshlrev_b32 {v(T+5)}, 16, {v(T+5)}")
    A(f"v_mul_f32 {v(T+6)}, {f2u(-LOG2E):#x}, {v(T+5)}")
    A(f"v_exp_f32 {v(T+6)}, {v(T+6)}")
    A(f"v_add_f32 {v(T+6)}, 1.0, {v(T+6)}")
    A(f"v_rcp_f32 {v(T+6)}, {v(T+6)}")
    A(f"v_cvt_pk_bf16_f32 {v(T+6)}, {v(T+6)}, {v(T+6)}")
    A(f"v_lshlrev_b32 {v(T+6)}, 16, {v(T+6)}")
    A(f"v_lshlrev_b32 {v(T+7)}, 2, {v(T+1)}")
    A(f"v_add_u32 {v(T+7)}, 131072, {v(T+7)}")
    A(f"ds_write_b32 {v(T+7)}, {v(T+6)}")
    for p in range(12):
        base = (WS_PA + p*64*65536) if p < 8 else (WS_PB + (p-8)*64*65536)
        A(f"s_add_u32 {s(sT+3)}, {s(sT+2)}, {base}")
        A(f"s_add_u32 {s(44)}, {s(sWS)}, {s(sT+3)}")
        A(f"s_addc_u32 {s(45)}, {s(sWS+1)}, 0")
        for hq in range(4):
            A(f"global_load_dwordx4 {v(32+16*p+4*hq,4)}, {v(wL16)}, {s(44,2)} offset:{hq*1024} {mod}")
    A("s_waitcnt lgkmcnt(0)")
    A("s_barrier")
    A(f"v_and_b32 {v(T+7)}, 31, {v(wLANE)}")
    A(f"v_lshlrev_b32 {v(T+8)}, 2, {v(T+7)}")
    A(f"v_add_u32 {v(T+8)}, 131072, {v(T+8)}")
    A(f"ds_read_b32 {v(T+6)}, {v(T+8)}")
    A("s_waitcnt vmcnt(0) lgkmcnt(0)")
    A(f"v_sub_f32 {v(T+9)}, 1.0, {v(T+6)}")
    A(f"v_cvt_pk_bf16_f32 {v(T+9)}, {v(T+9)}, {v(T+9)}")
    A(f"v_lshlrev_b32 {v(T+9)}, 16, {v(T+9)}")
    for p in range(1,8):
        for r in range(0,16,2): A(f"v_pk_add_f32 {v(32+r,2)}, {v(32+r,2)}, {v(32+16*p+r,2)}")
    for p in range(9,12):
        for r in range(0,16,2): A(f"v_pk_add_f32 {v(160+r,2)}, {v(160+r,2)}, {v(32+16*p+r,2)}")
    for r in range(0,16,2):
        A(f"v_cvt_pk_bf16_f32 {v(T+10)}, {v(32+r)}, {v(32+r+1)}")
        A(f"v_cvt_pk_bf16_f32 {v(T+11)}, {v(160+r)}, {v(160+r+1)}")
        unpack2(A, 48, 49, T+10)
        unpack2(A, 50, 51, T+11)
        A(f"v_mul_f32 {v(48)}, {v(48)}, {v(T+6)}"); A(f"v_mul_f32 {v(49)}, {v(49)}, {v(T+6)}")
        A(f"v_mul_f32 {v(50)}, {v(50)}, {v(T+9)}"); A(f"v_mul_f32 {v(51)}, {v(51)}, {v(T+9)}")
        A(f"v_cvt_pk_bf16_f32 {v(T+10)}, {v(48)}, {v(49)}")
        A(f"v_cvt_pk_bf16_f32 {v(T+11)}, {v(50)}, {v(51)}")
        unpack2(A, 48, 49, T+10)
        unpack2(A, 50, 51, T+11)
        A(f"v_pk_add_f32 {v(48,2)}, {v(48,2)}, {v(50,2)}")
        A(f"v_cvt_pk_bf16_f32 {v(56 + r//2)}, {v(48)}, {v(49)}")
    A(f"s_lshr_b32 {s(sT)}, {s(sSL)}, 1")
    A(f"s_lshl_b32 {s(sT)}, {s(sT)}, 9")
    A(f"s_and_b32 {s(sT+1)}, {s(sSL)}, 1")
    A(f"s_lshl_b32 {s(sT+1)}, {s(sT+1)}, 6")
    A(f"s_add_u32 {s(sT)}, {s(sT)}, {s(sT+1)}")
    A(f"s_lshl_b32 {s(sT+1)}, {s(sWAVE)}, 7")
    A(f"s_add_u32 {s(sT)}, {s(sT)}, {s(sT+1)}")
    A(f"s_lshl_b32 {s(sT+1)}, {s(sSEG)}, 15")
    A(f"s_add_u32 {s(sT)}, {s(sT)}, {s(sT+1)}")
    A(f"s_add_u32 {s(44)}, {s(78)}, {s(sT)}")
    A(f"s_addc_u32 {s(45)}, {s(79)}, 0")
    A(f"v_lshrrev_b32 {v(T+8)}, 5, {v(wLANE)}")
    A(f"v_lshlrev_b32 {v(T+8)}, 4, {v(T+8)}")
    A(f"v_lshl_add_u32 {v(T+8)}, {v(T+7)}, 10, {v(T+8)}")
    A(f"global_store_dwordx4 {v(T+8)}, {v(56,4)}, {s(44,2)}")
    A(f"global_store_dwordx4 {v(T+8)}, {v(60,4)}, {s(44,2)} offset:32")

def gen_final_kernel(A, name="final_kernel"):
    A.raw(kstart(name))
    load_ptrs(A)
    A("s_cmp_ge_u32 s2, 256")
    A("s_cbranch_scc1 L_fin_exit")
    A(f"s_lshr_b32 {s(sSEG)}, s2, 2")
    A(f"s_and_b32 {s(sSL)}, s2, 3")
    gen_final_body(A)
    A("L_fin_exit:")
    A("s_endpgm")

if __name__ == "__main__":
    import sys
    A = Asm()
    names = ["proj_kernel","down_kernel","attn_kernel","final_kernel"]
    for n in names: A.raw(f"; @launch kernel={n} grid=(256,1,1) block=(256,1,1) lds=163840")
    A.raw('.amdgcn_target "amdgcn-amd-amdhsa--gfx950"')
    gen_proj_kernel(A); gen_down_kernel(A); gen_attn_kernel(A); gen_final_kernel(A)
    for n in names: A.raw(kd(n))
    open(sys.argv[1],"w").write(A.text())
    print("nops", A.nops, "lines", len(A.out))
```

```python
import sys
from asmlib import *
import chain4, workers
HDR = open("gated_mix__memory_aug_recurrent_mem_tr__glu_gated_swiglu__prompt.s.ref").read().split("; Override launch geometry")[0]
def build(path):
    A = Asm()
    A.raw(HDR.rstrip("\n"))
    names = ["proj_kernel","chain_kernel","down_kernel","attn_kernel","final_kernel"]
    for n in names: A.raw(f"; @launch kernel={n} grid=(256,1,1) block=(256,1,1) lds=163840")
    A.raw('.amdgcn_target "amdgcn-amd-amdhsa--gfx950"')
    workers.gen_proj_kernel(A)
    A.hist = []
    name = "chain_kernel"
    A.raw(kstart(name))
    c = chain4
    c.gen_entry(A)
    A(f"s_cmp_lg_u32 {s(c.sT0)}, 0")
    A("s_cbranch_scc1 L_exit")
    A("s_cmp_ge_u32 s2, 256")
    A("s_cbranch_scc1 L_exit")
    A("v_mov_b32 v2, 0"); A("v_mov_b32 v3, 1"); A(f"v_mov_b32 v5, {c.L_MISC}")
    A(f"s_cmp_lg_u32 {s(c.sWAVE)}, 0")
    A("s_cbranch_scc1 L_tk")
    A("s_mov_b64 exec, 1")
    A(f"global_atomic_add v4, v2, v3, {s(c.sDBG,2)} sc0")
    A("s_waitcnt vmcnt(0)")
    A("ds_write_b32 v5, v4")
    A("s_waitcnt lgkmcnt(0)")
    A("s_mov_b64 exec, -1")
    A("L_tk:")
    A("s_barrier")
    A("ds_read_b32 v4, v5")
    A("s_waitcnt lgkmcnt(0)")
    A(f"v_readfirstlane_b32 {s(c.sRANK)}, v4")
    A(f"s_cmp_ge_u32 {s(c.sRANK)}, 32")
    A("s_cbranch_scc1 L_exit")
    c.gen_chain(A, 64, 0)
    A("L_exit:")
    A("s_endpgm")
    A.hist = []; workers.gen_down_kernel(A)
    A.hist = []; workers.gen_attn_kernel(A)
    A.hist = []; workers.gen_final_kernel(A)
    for n in names: A.raw(kd(n))
    open(path,"w").write(A.text())
    print("nops", A.nops, "lines", len(A.out), "bytes", len(A.text()))
build(sys.argv[1])
```

```python
import re

def R(prefix, lo, n=1):
    return f"{prefix}{lo}" if n == 1 else f"{prefix}[{lo}:{lo+n-1}]"
def v(lo, n=1): return R("v", lo, n)
def a(lo, n=1): return R("a", lo, n)
def s(lo, n=1): return R("s", lo, n)

_reg_re = re.compile(r"^(-|abs\()?([vas])(\d+)\)?$")
_rng_re = re.compile(r"^(-)?([vas])\[(\d+):(\d+)\]$")

def regs_of(op):
    op = op.strip()
    m = _rng_re.match(op)
    if m:
        return [(m.group(2), i) for i in range(int(m.group(3)), int(m.group(4)) + 1)]
    m = _reg_re.match(op)
    if m:
        return [(m.group(2), int(m.group(3)))]
    if op in ("vcc", "vcc_lo", "vcc_hi"): return [("s", "vcc")]
    if op in ("exec", "exec_lo", "exec_hi"): return [("s", "exec")]
    if op == "m0": return [("s", "m0")]
    return []

TRANS = ("v_exp_f32", "v_log_f32", "v_rcp_f32", "v_rsq_f32", "v_sqrt_f32", "v_sin_f32", "v_cos_f32")

class Ins:
    __slots__ = ("text", "mn", "kind", "wr", "rd", "states", "passes", "srcc", "dpp", "wide_store", "addr_s", "real", "region")
    pass

def parse(text):
    t = text.split(";")[0].strip()
    ins = Ins(); ins.text = text; ins.wr = []; ins.rd = []; ins.states = 1; ins.passes = 0
    ins.srcc = []; ins.dpp = False; ins.wide_store = False; ins.addr_s = []
    if not t or t.endswith(":") or t.startswith("."):
        ins.mn = ""; ins.kind = "none"; ins.states = 0
        return ins
    parts = t.split(None, 1)
    mn = parts[0]; ins.mn = mn
    rest = parts[1] if len(parts) > 1 else ""
    ops = [o.strip() for o in rest.split(",")] if rest else []
    clean = []
    for o in ops:
        toks = o.split()
        clean.append(toks[0] if toks else "")
    mods = rest
    ops = clean
    if mn == "s_nop":
        ins.kind = "nop"; ins.states = int(ops[0], 0) + 1
        return ins
    if mn.startswith("v_mfma") or mn.startswith("v_smfmac"):
        ins.kind = "mfma"
        ins.passes = 8 if "32x32" in mn else (2 if "4x4" in mn else 4)
        ins.wr = regs_of(ops[0])
        ins.rd = regs_of(ops[1]) + regs_of(ops[2])
        if mn.startswith("v_smfmac"):
            ins.srcc = regs_of(ops[0]); ins.rd += regs_of(ops[3])
        else:
            ins.srcc = regs_of(ops[3])
        return ins
    if mn.startswith("v_"):
        ins.kind = "valu"
        if mn in TRANS or mn.replace("_e32", "").replace("_e64", "") in TRANS: ins.kind = "trans"
        ins.dpp = ("_dpp" in mn) or ("row_" in mods) or ("quad_perm" in mods)
        if mn.startswith("v_cmp"):
            ins.wr = regs_of(ops[0]); ins.rd = sum((regs_of(o) for o in ops[1:]), [])
            if mn.startswith("v_cmpx"): ins.wr += [("s", "exec")]
        elif mn.startswith("v_permlane"):
            ins.kind = "permlane"
            ins.wr = regs_of(ops[0]) + regs_of(ops[1]); ins.rd = list(ins.wr)
        elif mn.startswith("v_readfirstlane") or mn.startswith("v_readlane"):
            ins.kind = "readlane"
            ins.wr = regs_of(ops[0]); ins.rd = sum((regs_of(o) for o in ops[1:]), [])
        elif mn.startswith("v_add_co") or mn.startswith("v_addc_co") or mn.startswith("v_sub_co"):
            ins.wr = regs_of(ops[0]) + regs_of(ops[1]); ins.rd = sum((regs_of(o) for o in ops[2:]), [])
        else:
            ins.wr = regs_of(ops[0]); ins.rd = sum((regs_of(o) for o in ops[1:]), [])
            if mn.startswith(("v_fmac", "v_dot2c", "v_pk_fmac")) or ins.dpp: ins.rd += ins.wr
            if mn.startswith("v_cndmask") and len(ops) == 3: ins.rd += [("s", "vcc")]
        return ins
    if mn.startswith("ds_"):
        ins.kind = "ds"
        if mn.startswith("ds_read") or mn.startswith("ds_bpermute") or mn.startswith("ds_swizzle"):
            ins.wr = regs_of(ops[0]); ins.rd = sum((regs_of(o) for o in ops[1:]), [])
        else:
            ins.rd = sum((regs_of(o) for o in ops), [])
        return ins
    if mn.startswith(("global_", "buffer_", "flat_")):
        ins.kind = "vmem"
        allr = [regs_of(o) for o in ops]
        is_lds = ("_lds_" in mn) or re.search(r"\blds\b", mods)
        if "store" in mn:
            ins.rd = sum(allr, [])
            ins.wide_store = ("x3" in mn) or ("x4" in mn)
        elif "atomic" in mn:
            if "sc0" in mods: ins.wr = allr[0]; ins.rd = sum(allr[1:], [])
            else: ins.rd = sum(allr, [])
        elif mn in ("buffer_inv", "buffer_wbl2"):
            pass
        elif is_lds:
            ins.rd = sum(allr, []) + [("s", "m0")]
        else:
            ins.wr = allr[0]; ins.rd = sum(allr[1:], [])
        return ins
    if mn.startswith("s_"):
        ins.kind = "salu"
        if mn.startswith(("s_cmp", "s_cbranch", "s_branch", "s_waitcnt", "s_barrier", "s_endpgm", "s_bitcmp", "s_setprio", "s_sleep")):
            ins.rd = sum((regs_of(o) for o in ops), [])
            if mn == "s_cbranch_vccnz" or mn == "s_cbranch_vccz": ins.rd += [("s", "vcc")]
        else:
            ins.wr = regs_of(ops[0]) if ops else []
            ins.rd = sum((regs_of(o) for o in ops[1:]), [])
            if "saveexec" in mn: ins.wr += [("s", "exec")]
        return ins
    ins.kind = "other"
    return ins

def isv(r): return r[0] in ("v", "a")

def required(prod, cons):
    need = 0
    pw = set(prod.wr); cr = set(cons.rd); cw = set(cons.wr)
    pv = {r for r in pw if isv(r)}
    valu_like = ("valu", "trans", "permlane", "readlane")
    if prod.kind in valu_like:
        if cons.kind == "mfma" and pv & (cr | set(cons.srcc)): need = max(need, 2)
        if cons.kind in valu_like and cons.dpp and pv & cr: need = max(need, 2)
        if cons.kind == "permlane" and pv & cr: need = max(need, 2)
        if cons.kind == "readlane" and pv & cr: need = max(need, 1)
        if prod.kind == "trans" and cons.kind in ("valu", "permlane", "readlane", "mfma") and pv & cr: need = max(need, 1 if cons.kind != "mfma" else 2)
        ps = {r for r in pw if r[0] == "s"}
        if ps:
            if cons.kind == "vmem" and ps & cr: need = max(need, 5)
            if cons.kind in valu_like and ps & cr: need = max(need, 2)
            if cons.kind == "readlane" and ps & cr: need = max(need, 4)
            if ("s", "exec") in ps and cons.kind == "mfma": need = max(need, 4)
            if ("s", "exec") in ps and cons.dpp: need = max(need, 5)
            if cons.kind == "salu" and (ps & cr): need = max(need, 1)
    if prod.kind == "mfma":
        n = {2: 5, 4: 8, 8: 12, 16: 20}[prod.passes]
        if cons.kind == "mfma":
            if pw & cr: need = max(need, n)
            c = set(cons.srcc)
            if pw & c:
                if pw == c and cons.passes == prod.passes: need = max(need, 2 if prod.passes == 2 else 0)
                else: need = max(need, {2: 4, 4: 6, 8: 10, 16: 18}[prod.passes])
            if (pw & cw) and not (pw & c): need = max(need, n)
        elif cons.kind in valu_like or cons.kind in ("ds", "vmem"):
            if pw & (cr | cw): need = max(need, n)
        if cons.kind in valu_like and set(prod.srcc) & cw:
            need = max(need, {2: 1, 4: 3, 8: 7, 16: 15}[prod.passes])
    if prod.kind == "vmem" and prod.wide_store:
        data = {r for r in prod.rd if isv(r)}
        if data & cw: need = max(need, 2)
    if prod.kind == "salu":
        if ("s", "m0") in pw and cons.kind == "vmem" and ("s", "m0") in cr: need = max(need, 1)
        if ("s", "exec") in pw and cons.kind == "mfma": need = max(need, 4)
        if ("s", "exec") in pw and cons.dpp: need = max(need, 2)
    return need

class Asm:
    def __init__(self, auto_nop=True):
        self.out = []
        self.hist = []
        self.auto_nop = auto_nop
        self.nops = 0
        self.uid = 0
        self.region = 0
        self.cond = False
    def label(self, base):
        self.uid += 1
        return f"{base}_{self.uid}"
    def raw(self, text):
        for line in text.split("\n"):
            self.out.append(line)
    def __call__(self, text):
        for line in text.split("\n"):
            if line.strip(): self.emit(line)
    def emit(self, line):
        ins = parse(line)
        ins.real = ins.states; ins.region = self.region if self.cond else -1
        if ins.kind == "none":
            self.out.append(line.strip() if line.strip().endswith(":") else line)
            return
        need = 0
        win = self.hist[-40:]
        for pi in range(len(win)-1, -1, -1):
            p = win[pi]
            r = required(p, ins)
            if r <= 0: continue
            t_plain = 0; t_sim = 0
            lastM_t = 0 if p.kind == "mfma" else None
            lastM_p = p.passes if p.kind == "mfma" else 0
            prev_states = 1
            seq = win[pi+1:] + [ins]
            for x in seq:
                inreg = (x is ins) or (x.region == -1) or (self.cond and x.region == self.region)
                if not inreg: continue
                t_plain += prev_states
                t_sim += prev_states
                if x.kind == "mfma" and lastM_t is not None:
                    t_sim = max(t_sim, lastM_t + lastM_p)
                if x.kind == "mfma":
                    lastM_t = t_sim; lastM_p = x.passes
                prev_states = x.real if x is not ins else 1
            have = max(t_plain - 1, t_sim - 1 - 1)
            if have < r: need = max(need, r - have)
        if need > 0:
            if not self.auto_nop: raise RuntimeError(f"hazard: {line} needs {need} more wait states")
            k = need
            while k > 0:
                n = min(k, 16)
                nop = parse(f"s_nop {n-1}")
                self.out.append(f"  s_nop {n-1}")
                nop.real = nop.states; nop.region = self.region if self.cond else -1
                if self.cond: nop.states = 0
                self.hist.append(nop); self.nops += n
                k -= n
        self.out.append("  " + line.strip())
        ins.real = ins.states; ins.region = self.region if self.cond else -1
        if self.cond: ins.states = 0
        self.hist.append(ins)
        if len(self.hist) > 400: self.hist = self.hist[-200:]
    def cbegin(self):
        self.region += 1; self.cond = True
    def cend(self):
        self.cond = False
    def comment(self, t):
        self.out.append(f"  ; {t}")
    def text(self):
        return "\n".join(self.out) + "\n"

KD = """.section .rodata,"a"
.p2align 6
.amdhsa_kernel {name}
  .amdhsa_next_free_vgpr {vgpr}
  .amdhsa_next_free_sgpr {sgpr}
  .amdhsa_accum_offset {acc}
  .amdhsa_group_segment_fixed_size 0
  .amdhsa_kernarg_size {karg}
  .amdhsa_user_sgpr_count 2
  .amdhsa_user_sgpr_kernarg_segment_ptr 1
  .amdhsa_system_sgpr_workgroup_id_x 1
.end_amdhsa_kernel
"""
def kd(name, vgpr=512, sgpr=102, acc=256, karg=120):
    return KD.format(name=name, vgpr=vgpr, sgpr=sgpr, acc=acc, karg=karg)
def kstart(name):
    return f".text\n.globl {name}\n.p2align 8\n.type {name},@function\n{name}:\n"
```

```python
from asmlib import *
from layout import *
import struct
def f2u(x): return struct.unpack("<I", struct.pack("<f", x))[0]
SCALE_LOG2E = (128.0 ** -0.5) * 1.4426950408889634

vL16,vIDX,vW16,vLH,vVXA,vPF,vZP,vZP1,vPP,vPG,vMP,vMQW,vMQR0,vMQR1,vOW,vOR,vWO0,vWO1,vPM,vZ = range(20)
X0=20
S0=24; S1=28; SM=120
MA=32
KXR=64
AQK=96
AV=112
T0=124
WV=128
def WQ(t,b): return a(0+(t*8+b)*8, 8)
def WK(t,b): return a(128+(t*8+b)*8, 8)
def WVf(t,b): return v(WV+(t*8+b)*8, 8)
def ma(b): return v(MA+4*b,4)
sWS=4; sDBG=6; sWAVE=8; sRANK=9; sSTEP=10; sT0=12
sMRD=20
sMEMn=24; sMEMc=26; sPc=28; sPc2=30; sKX=32; sVX=34; sKM=36; sVM=38; sSC=40
sSPIN=42; sPH=43; sW=44; sMASK=46; sPFK=48; sOFF=50
sIN=60
sTS=70

def smf(acc, A_, B_): return f"v_smfmac_f32_16x16x64_bf16 {v(acc,4)}, {A_}, {B_}, {v(vIDX)}"

def gen_startup_dma(A, chunk):
    slot = chunk % 4
    if chunk < 12:
        mat = chunk // 4; qq = chunk % 4
        wreg = [62, 64, 66][mat]
        A(f"s_lshl_b32 {s(sT0)}, {s(sRANK)}, 8")
        A(f"s_add_u32 {s(sW)}, {s(wreg)}, {s(sT0)}")
        A(f"s_addc_u32 {s(sW+1)}, {s(wreg+1)}, 0")
        A(f"s_add_u32 {s(sW)}, {s(sW)}, {qq*128*8192}")
        A(f"s_addc_u32 {s(sW+1)}, {s(sW+1)}, 0")
        for i in range(8):
            A(f"s_add_u32 m0, {s(sT0+1)}, {slot*32768 + i*1024}")
            A(f"global_load_lds_dwordx4 {v(22 + (i>>2))}, {s(sW,2)}")
            if i < 7:
                A(f"s_add_u32 {s(sW)}, {s(sW)}, {4*8192}")
                A(f"s_addc_u32 {s(sW+1)}, {s(sW+1)}, 0")
    else:
        qq = chunk - 12
        A(f"s_lshl_b32 {s(sT0)}, {s(sRANK)}, 17")
        A(f"s_add_u32 {s(sW)}, {s(68)}, {s(sT0)}")
        A(f"s_addc_u32 {s(sW+1)}, {s(69)}, 0")
        A(f"s_lshl_b32 {s(sT0)}, {s(sWAVE)}, 13")
        A(f"s_add_u32 {s(sT0)}, {s(sT0)}, {qq*32*1024}")
        A(f"s_add_u32 {s(sW)}, {s(sW)}, {s(sT0)}")
        A(f"s_addc_u32 {s(sW+1)}, {s(sW+1)}, 0")
        for i in range(8):
            f = (4*((i>>2)&1) + 2*(i&1))*16
            A(f"v_xor_b32 {v(25)}, {f}, {v(24)}")
            A(f"s_add_u32 m0, {s(sT0+1)}, {slot*32768 + i*1024}")
            A(f"global_load_lds_dwordx4 {v(25)}, {s(sW,2)}")
            if i < 7:
                A(f"s_add_u32 {s(sW)}, {s(sW)}, 1024")
                A(f"s_addc_u32 {s(sW+1)}, {s(sW+1)}, 0")

def gen_startup(A, w):
    for c in range(4): gen_startup_dma(A, c)
    for c in range(16):
        slot = c % 4
        left = min(3, 15 - c)
        A(f"s_waitcnt vmcnt({8*left})")
        A("s_barrier")
        if c < 12:
            mat = c // 4; qq = c % 4
            A(f"v_add_u32 {v(29)}, {slot*32768}, {v(26)}")
            A(f"v_add_u32 {v(30)}, {slot*32768}, {v(27)}")
            for bl in range(2):
                bp = (2*qq + bl - 2*w) % 8
                for t in range(2):
                    for x in range(4):
                        off = (64*bl + 32*(x&1) + 8*(x>>1))*256
                        if mat == 0: dst = a(0+(t*8+bp)*8 + 2*x, 2)
                        elif mat == 1: dst = a(128+(t*8+bp)*8 + 2*x, 2)
                        else: dst = v(WV+(t*8+bp)*8 + 2*x, 2)
                        A(f"ds_read_b64_tr_b16 {dst}, {v(29+t)} offset:{off}")
            A("s_waitcnt lgkmcnt(0)")
            A("s_barrier")
        else:
            A(f"v_add_u32 {v(29)}, {slot*32768}, {v(28)}")
            for j in range(8):
                A(f"v_xor_b32 {v(30)}, {2*j*16}, {v(29)}")
                for xl in range(2):
                    A(f"ds_read_b64_tr_b16 {v(32+4*j+2*xl,2)}, {v(30)} offset:{2*xl*1024}")
            A("s_waitcnt lgkmcnt(0)")
            A("s_barrier")
            for j in range(8):
                base = slot*32768 + j*1024
                if base < 65536: A(f"ds_write_b128 {v(vWO0)}, {v(32+4*j,4)} offset:{base}")
                else: A(f"ds_write_b128 {v(vWO1)}, {v(32+4*j,4)} offset:{base-65536}")
        if c + 4 < 16: gen_startup_dma(A, c + 4)
    A("s_waitcnt lgkmcnt(0)")

sKX2=20; sRLO=22; sRL2=23; sFMK2=11
def gen_persistent(A, lane):
    A(f"v_lshlrev_b32 {v(vL16)}, 4, {v(lane)}")
    A(f"v_and_b32 {v(20)}, 15, {v(lane)}")
    A(f"v_lshrrev_b32 {v(21)}, 4, {v(lane)}")
    A(f"v_bfe_u32 {v(22)}, {v(20)}, 1, 1")
    A(f"v_mov_b32 {v(vIDX)}, 0x44444444")
    A(f"v_mov_b32 {v(23)}, 0xeeeeeeee")
    A(f"v_cmp_eq_u32 vcc, 1, {v(22)}")
    A(f"v_cndmask_b32 {v(vIDX)}, {v(vIDX)}, {v(23)}, vcc")
    A(f"s_lshl_b32 {s(sT0)}, {s(sWAVE)}, 11")
    A(f"v_add_u32 {v(vW16)}, {s(sT0)}, {v(vL16)}")
    A(f"v_add_u32 {v(vLH)}, {L_MEMB}, {v(vL16)}")
    A(f"v_add_u32 {v(vVXA)}, {L_VXB}, {v(vW16)}")
    A(f"v_add_u32 {v(vLH)}, {L_MEMB}, {v(vL16)}")
    for p in (1,2,3):
        A(f"s_add_u32 {s(sT0)}, {s(sWAVE)}, {p}")
        A(f"s_and_b32 {s(sT0)}, {s(sT0)}, 3")
        A(f"s_lshl_b32 {s(sOFF+p)}, {s(sT0)}, 11")
    A(f"s_lshl_b32 {s(sOFF)}, {s(sWAVE)}, 11")
    A(f"v_mov_b32 {v(vZP)}, 0")
    A(f"v_mov_b32 {v(vZP1)}, 0")
    A(f"v_mov_b32 {v(vPF)}, 0")
    A(f"v_lshrrev_b32 {v(24)}, 2, {v(20)}")
    A(f"s_lshl_b32 {s(sT0)}, {s(sWAVE)}, 3")
    A(f"v_add_u32 {v(24)}, {s(sT0)}, {v(24)}")
    A(f"v_lshlrev_b32 {v(24)}, 13, {v(24)}")
    A(f"v_lshrrev_b32 {v(25)}, 1, {v(21)}")
    A(f"v_lshl_add_u32 {v(24)}, {v(25)}, 12, {v(24)}")
    A(f"v_and_b32 {v(25)}, 1, {v(21)}")
    A(f"v_and_b32 {v(26)}, 3, {v(20)}")
    A(f"v_lshl_add_u32 {v(25)}, {v(25)}, 2, {v(26)}")
    A(f"v_lshl_add_u32 {v(24)}, {v(25)}, 4, {v(24)}")
    A(f"s_lshl_b32 {s(sT0)}, {s(sRANK)}, 7")
    A(f"v_add_u32 {v(vPP)}, {s(sT0)}, {v(24)}")
    A(f"s_lshl_b32 {s(sT0)}, {s(sRANK)}, 13")
    A(f"s_lshl_b32 {s(sT0+1)}, {s(sWAVE)}, 12")
    A(f"s_add_u32 {s(sT0)}, {s(sT0)}, {s(sT0+1)}")
    A(f"v_add_u32 {v(vPG)}, {s(sT0)}, {v(vL16)}")
    A(f"v_bfe_u32 {v(24)}, {v(20)}, 2, 1")
    A(f"s_lshl_b32 {s(sT0)}, {s(sWAVE)}, 1")
    A(f"v_add_u32 {v(24)}, {s(sT0)}, {v(24)}")
    A(f"v_lshlrev_b32 {v(24)}, 2, {v(24)}")
    A(f"v_bfe_u32 {v(25)}, {v(20)}, 1, 1")
    A(f"v_lshl_add_u32 {v(24)}, {v(25)}, 1, {v(24)}")
    A(f"v_lshrrev_b32 {v(25)}, 1, {v(21)}")
    A(f"v_add_u32 {v(24)}, {v(24)}, {v(25)}")
    A(f"v_lshlrev_b32 {v(24)}, 4, {v(24)}")
    A(f"v_and_b32 {v(25)}, 1, {v(20)}")
    A(f"v_and_b32 {v(26)}, 1, {v(21)}")
    A(f"v_lshl_add_u32 {v(25)}, {v(25)}, 1, {v(26)}")
    A(f"v_lshl_add_u32 {v(24)}, {v(25)}, 2, {v(24)}")
    A(f"s_lshl_b32 {s(sT0)}, {s(sRANK)}, 8")
    A(f"v_add_u32 {v(vMP)}, {s(sT0)}, {v(24)}")
    A(f"v_lshlrev_b32 {v(24)}, 1, {v(20)}")
    A(f"v_lshrrev_b32 {v(25)}, 1, {v(21)}")
    A(f"v_lshlrev_b32 {v(25)}, 3, {v(25)}")
    A(f"v_xor_b32 {v(24)}, {v(24)}, {v(25)}")
    A(f"v_lshl_add_u32 {v(24)}, {v(21)}, 5, {v(24)}")
    A(f"v_lshlrev_b32 {v(24)}, 2, {v(24)}")
    A(f"s_lshl_b32 {s(sT0)}, {s(sWAVE)}, 10")
    A(f"s_add_u32 {s(sT0)}, {s(sT0)}, {L_MQK}")
    A(f"v_add_u32 {v(vMQW)}, {s(sT0)}, {v(24)}")
    A(f"v_bfe_u32 {v(24)}, {v(lane)}, 2, 2")
    A(f"v_and_b32 {v(25)}, 3, {v(lane)}")
    A(f"v_lshlrev_b32 {v(24)}, 1, {v(24)}")
    A(f"v_and_b32 {v(26)}, 1, {v(21)}")
    A(f"v_lshl_add_u32 {v(24)}, {v(26)}, 4, {v(24)}")
    A(f"v_lshrrev_b32 {v(26)}, 1, {v(25)}")
    A(f"v_lshlrev_b32 {v(26)}, 3, {v(26)}")
    A(f"v_xor_b32 {v(24)}, {v(24)}, {v(26)}")
    A(f"v_lshl_add_u32 {v(24)}, {v(25)}, 5, {v(24)}")
    A(f"v_lshrrev_b32 {v(26)}, 1, {v(21)}")
    A(f"v_lshl_add_u32 {v(24)}, {v(26)}, 7, {v(24)}")
    A(f"v_lshlrev_b32 {v(24)}, 2, {v(24)}")
    A(f"v_add_u32 {v(vMQR0)}, {L_MQK}, {v(24)}")
    A(f"v_xor_b32 {v(vMQR1)}, 32, {v(vMQR0)}")
    A(f"v_lshrrev_b32 {v(24)}, 2, {v(20)}")
    A(f"v_and_b32 {v(25)}, 1, {v(20)}")
    A(f"v_lshl_add_u32 {v(24)}, {v(24)}, 1, {v(25)}")
    A(f"v_mul_u32_u24 {v(24)}, 272, {v(24)}")
    A(f"v_lshl_add_u32 {v(24)}, {v(21)}, 3, {v(24)}")
    A(f"s_lshl_b32 {s(sT0)}, {s(sWAVE)}, 6")
    A(f"s_add_u32 {s(sT0)}, {s(sT0)}, {L_OB}")
    A(f"v_add_u32 {v(24)}, {s(sT0)}, {v(24)}")
    A(f"v_lshlrev_b32 {v(25)}, 3, {v(lane)}")
    A(f"v_add_u32 {v(25)}, {L_MQK}, {v(25)}")
    A(f"v_and_b32 {v(26)}, 2, {v(20)}")
    A(f"v_cmp_eq_u32 vcc, 2, {v(26)}")
    A(f"v_cndmask_b32 {v(vOW)}, {v(25)}, {v(24)}, vcc")
    A(f"v_lshrrev_b32 {v(24)}, 2, {v(20)}")
    A(f"v_and_b32 {v(25)}, 1, {v(20)}")
    A(f"v_lshl_add_u32 {v(24)}, {v(24)}, 1, {v(25)}")
    A(f"v_mul_u32_u24 {v(24)}, 272, {v(24)}")
    A(f"v_lshl_add_u32 {v(24)}, {v(21)}, 5, {v(24)}")
    A(f"v_bfe_u32 {v(25)}, {v(20)}, 1, 1")
    A(f"v_lshl_add_u32 {v(24)}, {v(25)}, 4, {v(24)}")
    A(f"v_add_u32 {v(vOR)}, {L_OB}, {v(24)}")
    A(f"s_lshl_b32 {s(sT0)}, {s(sWAVE)}, 13")
    A(f"v_add_u32 {v(vWO0)}, {s(sT0)}, {v(vL16)}")
    A(f"v_add_u32 {v(vWO1)}, 65536, {v(vWO0)}")
    A(f"v_mov_b32 {v(vZ)}, 0")
    A(f"v_mov_b32 {v(vPM)}, 0")
    A(f"s_lshl_b32 {s(sRL2)}, {s(sRANK)}, 8")
    A(f"s_add_u32 {s(sRLO)}, {s(sRL2)}, {L_MEMB}")
    A(f"s_mov_b32 {s(sMASK)}, 0")
    A(f"s_mov_b32 {s(sMASK+1)}, -1")
    A(f"s_mov_b32 {s(sSC)}, {f2u(SCALE_LOG2E):#x}")
    A(f"s_mov_b32 {s(sSC+1)}, {f2u(-SCALE_LOG2E):#x}")

def gen_init_comm(A, lane, st):
    A(f"s_add_u32 {s(sMEMc)}, {s(sWS)}, {WS_MEM}")
    A(f"s_addc_u32 {s(sMEMc+1)}, {s(sWS+1)}, 0")
    A(f"s_add_u32 {s(sPc)}, {s(sWS)}, {WS_P}")
    A(f"s_addc_u32 {s(sPc+1)}, {s(sWS+1)}, 0")
    A(f"s_add_u32 {s(sPc2)}, {s(sPc)}, 32768")
    A(f"s_addc_u32 {s(sPc2+1)}, {s(sPc+1)}, 0")
    for r in range(4): A(f"v_mov_b32 {v(32+r)}, -1")
    A(f"s_lshl_b32 {s(sT0)}, {s(sRANK)}, 13")
    A(f"v_add_u32 {v(24)}, {s(sT0)}, {v(vW16)}")
    A(f"global_store_dwordx4 {v(24)}, {v(32,4)}, {s(sPc,2)} {st}")
    A(f"global_store_dwordx4 {v(24)}, {v(32,4)}, {s(sPc,2)} offset:1024 {st}")
    skip = A.label("L_nomem0")
    A(f"s_cmp_lg_u32 {s(sWAVE)}, 0")
    A(f"s_cbranch_scc1 {skip}")
    A(f"v_lshrrev_b32 {v(24)}, 2, {v(lane)}")
    A(f"v_and_b32 {v(25)}, 3, {v(lane)}")
    A(f"v_lshrrev_b32 {v(26)}, 2, {v(24)}")
    A(f"v_and_b32 {v(27)}, 1, {v(24)}")
    A(f"v_lshl_add_u32 {v(26)}, {v(26)}, 1, {v(27)}")
    A(f"v_bfe_u32 {v(27)}, {v(24)}, 1, 1")
    A(f"v_lshlrev_b32 {v(27)}, 3, {v(27)}")
    A(f"v_lshl_add_u32 {v(27)}, {v(25)}, 1, {v(27)}")
    A(f"s_lshr_b32 {s(sT0)}, {s(sRANK)}, 2")
    A(f"s_lshl_b32 {s(sT0)}, {s(sT0)}, 6")
    A(f"s_and_b32 {s(sT0+1)}, {s(sRANK)}, 3")
    A(f"s_lshl_b32 {s(sT0+1)}, {s(sT0+1)}, 2")
    A(f"s_add_u32 {s(sT0)}, {s(sT0)}, {s(sT0+1)}")
    A(f"v_and_b32 {v(28)}, 3, {v(27)}")
    A(f"v_lshlrev_b32 {v(28)}, 4, {v(28)}")
    A(f"v_lshrrev_b32 {v(29)}, 2, {v(27)}")
    A(f"v_add_u32 {v(28)}, {v(28)}, {v(29)}")
    A(f"v_add_u32 {v(28)}, {s(sT0)}, {v(28)}")
    A(f"v_lshl_add_u32 {v(28)}, {v(26)}, 9, {v(28)}")
    A(f"v_lshlrev_b32 {v(28)}, 1, {v(28)}")
    A(f"global_load_ushort {v(29)}, {v(28)}, {s(60,2)}")
    A(f"global_load_ushort {v(30)}, {v(28)}, {s(60,2)} offset:32")
    A(f"v_lshlrev_b32 {v(24)}, 2, {v(lane)}")
    A(f"s_lshl_b32 {s(sT0)}, {s(sRANK)}, 8")
    A(f"v_add_u32 {v(24)}, {s(sT0)}, {v(24)}")
    A(f"s_waitcnt vmcnt(0)")
    A(f"v_lshl_or_b32 {v(29)}, {v(30)}, 16, {v(29)}")
    A(f"global_store_dword {v(24)}, {v(29)}, {s(sMEMc,2)} {st}")
    A(f"v_add_u32 {v(24)}, 8192, {v(24)}")
    A(f"global_store_dword {v(24)}, {v(32)}, {s(sMEMc,2)} {st}")
    A(f"{skip}:")
    A("s_waitcnt vmcnt(0)")
    A("s_barrier")
    skip2 = A.label("L_noarr")
    A(f"s_cmp_lg_u32 {s(sWAVE)}, 0")
    A(f"s_cbranch_scc1 {skip2}")
    A(f"s_mov_b64 exec, 1")
    A(f"s_getreg_b32 {s(sT0)}, hwreg(HW_REG_XCC_ID, 0, 4)")
    A(f"s_lshl_b32 {s(sT0)}, 1, {s(sT0)}")
    A(f"v_mov_b32 {v(24)}, {DBG_XMASK}")
    A(f"v_mov_b32 {v(25)}, {s(sT0)}")
    A(f"global_atomic_or {v(24)}, {v(25)}, {s(sDBG,2)}")
    A("s_waitcnt vmcnt(0)")
    A(f"v_mov_b32 {v(24)}, 4")
    A(f"v_mov_b32 {v(25)}, 1")
    A(f"global_atomic_add {v(24)}, {v(25)}, {s(sDBG,2)}")
    A(f"s_mov_b64 exec, -1")
    A(f"{skip2}:")

def gen_weights(A, lane):
    A(f"v_and_b32 {v(20)}, 15, {v(lane)}")
    A(f"v_lshrrev_b32 {v(21)}, 4, {v(lane)}")
    A(f"v_lshlrev_b32 {v(24)}, 1, {v(21)}")
    A(f"v_xor_b32 {v(24)}, {v(24)}, {v(20)}")
    A(f"v_lshlrev_b32 {v(24)}, 4, {v(24)}")
    A(f"s_lshl_b32 {s(sT0)}, {s(sWAVE)}, 5")
    A(f"v_add_u32 {v(25)}, {s(sT0)}, {v(21)}")
    A(f"v_lshlrev_b32 {v(25)}, 13, {v(25)}")
    A(f"v_mov_b32 {v(30)}, {v(21)}")
    A(f"v_add_u32 {v(22)}, {v(25)}, {v(24)}")
    A(f"v_xor_b32 {v(23)}, 128, {v(22)}")
    A(f"s_and_b32 {s(sT0)}, {s(sWAVE)}, 1")
    A(f"s_lshl_b32 {s(sT0)}, {s(sT0)}, 7")
    A(f"v_xor_b32 {v(24)}, {s(sT0)}, {v(vL16)}")
    A(f"v_bfe_u32 {v(32)}, {v(lane)}, 2, 2")
    A(f"v_and_b32 {v(33)}, 3, {v(lane)}")
    A(f"v_and_b32 {v(34)}, 1, {v(32)}")
    A(f"v_lshrrev_b32 {v(35)}, 1, {v(32)}")
    A(f"v_and_b32 {v(36)}, 1, {v(30)}")
    A(f"v_lshrrev_b32 {v(37)}, 1, {v(30)}")
    A(f"v_lshlrev_b32 {v(38)}, 4, {v(34)}")
    A(f"v_lshl_add_u32 {v(38)}, {v(35)}, 1, {v(38)}")
    A(f"v_lshl_add_u32 {v(38)}, {v(37)}, 2, {v(38)}")
    A(f"v_add_u32 {v(38)}, {v(38)}, {v(36)}")
    A(f"v_lshlrev_b32 {v(39)}, 2, {v(34)}")
    A(f"v_lshl_add_u32 {v(39)}, {v(35)}, 1, {v(39)}")
    A(f"v_add_u32 {v(39)}, {v(39)}, {v(36)}")
    A(f"v_lshlrev_b32 {v(39)}, 1, {v(39)}")
    A(f"v_lshrrev_b32 {v(40)}, 1, {v(33)}")
    A(f"s_lshl_b32 {s(sT0)}, {s(sWAVE)}, 2")
    A(f"v_add_u32 {v(40)}, {s(sT0)}, {v(40)}")
    A(f"v_xor_b32 {v(40)}, {v(40)}, {v(39)}")
    A(f"v_lshlrev_b32 {v(40)}, 4, {v(40)}")
    A(f"v_lshl_add_u32 {v(40)}, {v(38)}, 8, {v(40)}")
    A(f"v_and_b32 {v(41)}, 1, {v(33)}")
    A(f"v_lshl_add_u32 {v(26)}, {v(41)}, 3, {v(40)}")
    A(f"v_xor_b32 {v(27)}, 32, {v(26)}")
    A(f"v_lshlrev_b32 {v(38)}, 4, {v(37)}")
    A(f"v_lshl_add_u32 {v(38)}, {v(35)}, 3, {v(38)}")
    A(f"v_lshl_add_u32 {v(38)}, {v(36)}, 2, {v(38)}")
    A(f"v_add_u32 {v(38)}, {v(38)}, {v(34)}")
    A(f"v_lshlrev_b32 {v(39)}, 3, {v(35)}")
    A(f"v_lshl_add_u32 {v(39)}, {v(36)}, 2, {v(39)}")
    A(f"v_lshl_add_u32 {v(39)}, {v(34)}, 1, {v(39)}")
    A(f"v_lshrrev_b32 {v(40)}, 1, {v(33)}")
    A(f"s_lshl_b32 {s(sT0)}, {s(sWAVE)}, 4")
    A(f"v_add_u32 {v(40)}, {s(sT0)}, {v(40)}")
    A(f"v_xor_b32 {v(40)}, {v(40)}, {v(39)}")
    A(f"v_lshlrev_b32 {v(40)}, 4, {v(40)}")
    A(f"v_lshl_add_u32 {v(40)}, {v(38)}, 10, {v(40)}")
    A(f"v_lshl_add_u32 {v(28)}, {v(41)}, 3, {v(40)}")
    A(f"s_lshl_b32 {s(sT0+1)}, {s(sWAVE)}, 13")
    done = A.label("L_wdone")
    labs = [A.label("L_wv") for _ in range(4)]
    for w in range(1,4):
        A(f"s_cmp_eq_u32 {s(sWAVE)}, {w}")
        A(f"s_cbranch_scc1 {labs[w]}")
    for w in range(4):
        A(f"{labs[w]}:")
        gen_startup(A, w)
        A(f"s_branch {done}")
    A(f"{done}:")

def delay(A, n):
    while n > 0:
        k = min(n, 16); A(f"s_nop {k-1}"); n -= k

sFL1=58; sFL2=54; sFMASK=56; sMODE=57

def chain_flag_wait_blocking(A, ptr_s):
    lab = A.label("L_cfw"); ok = A.label("L_cfwok")
    A(f"v_lshrrev_b32 {v(24)}, 2, {v(vL16)}")
    A(f"{lab}:")
    A(f"global_load_dword {v(25)}, {v(24)}, {s(ptr_s,2)} sc1")
    A(f"s_add_u32 {s(sSPIN)}, {s(sSPIN)}, 1")
    A(f"s_cmp_gt_u32 {s(sSPIN)}, 0x40000")
    A(f"s_cbranch_scc1 L_chain_abort")
    A("s_waitcnt vmcnt(0)")
    A(f"v_cmp_ne_u32 vcc, 0, {v(25)}")
    A(f"s_and_b32 {s(sT0)}, vcc_lo, {s(sFMASK)}")
    A(f"s_cmp_eq_u32 {s(sT0)}, {s(sFMASK)}")
    A(f"s_cbranch_scc1 {ok}")
    A("s_sleep 2")
    A(f"s_branch {lab}")
    A(f"{ok}:")

def gen_chain(A, nsteps=64, stamp=0, smode="", D1=30, D2=10, flags=False, force_slow=False, X=0):
    st = "sc1" if flags else smode
    lane = 31
    gen_persistent(A, lane)
    gen_init_comm(A, lane, st)
    gen_weights(A, lane)
    A(f"s_lshl_b32 {s(sT0)}, {s(sRANK)}, 13")
    A(f"s_add_u32 {s(sKX)}, {s(sWS)}, {s(sT0)}")
    A(f"s_addc_u32 {s(sKX+1)}, {s(sWS+1)}, 0")
    A(f"s_add_u32 {s(sVX)}, {s(sKX)}, {WS_VX}")
    A(f"s_addc_u32 {s(sVX+1)}, {s(sKX+1)}, 0")
    A(f"s_and_b32 {s(sT0)}, {s(sWAVE)}, 1")
    A(f"s_lshl_b32 {s(sT0)}, {s(sT0)}, 24")
    A(f"s_add_u32 {s(sPFK)}, {s(sKX)}, {s(sT0)}")
    A(f"s_addc_u32 {s(sPFK+1)}, {s(sKX+1)}, 0")
    A(f"s_add_u32 {s(sPFK)}, {s(sPFK)}, {32*8192}")
    A(f"s_addc_u32 {s(sPFK+1)}, {s(sPFK+1)}, 0")
    A(f"s_add_u32 {s(sKM)}, {s(sWS)}, {WS_MEMP}")
    A(f"s_addc_u32 {s(sKM+1)}, {s(sWS+1)}, 0")
    def kv_dma():
        return [f"s_add_u32 m0, {s(sOFF)}, {L_KXB}",
                f"global_load_lds_dwordx4 {v(vW16)}, {s(sKX,2)} sc1",
                f"global_load_lds_dwordx4 {v(vW16)}, {s(sKX,2)} offset:1024 sc1",
                f"s_add_u32 m0, {s(sOFF)}, {L_VXB}",
                f"global_load_lds_dwordx4 {v(vW16)}, {s(sVX,2)} sc1",
                f"global_load_lds_dwordx4 {v(vW16)}, {s(sVX,2)} offset:1024 sc1"]
    def kv_adv():
        A(f"s_add_u32 {s(sKX)}, {s(sKX)}, {32*8192}")
        A(f"s_addc_u32 {s(sKX+1)}, {s(sKX+1)}, 0")
        A(f"s_add_u32 {s(sVX)}, {s(sVX)}, {32*8192}")
        A(f"s_addc_u32 {s(sVX+1)}, {s(sVX+1)}, 0")
    A(f"s_mov_b32 {s(sSPIN)}, 0")
    A(f"s_mov_b32 {s(sFMK2)}, 0")
    if not flags:
        A(f"s_add_u32 {s(sFL1)}, {s(sWS)}, {WS_FLAGS}")
        A(f"s_addc_u32 {s(sFL1+1)}, {s(sWS+1)}, 0")
        A(f"s_mov_b32 {s(sFMASK)}, 0")
        A(f"s_add_u32 {s(sPFK)}, {s(sPFK)}, {32*8192}")
        A(f"s_addc_u32 {s(sPFK+1)}, {s(sPFK+1)}, 0")
    if flags:
        A(f"s_add_u32 {s(sFL1)}, {s(sWS)}, {WS_FLAGS}")
        A(f"s_addc_u32 {s(sFL1+1)}, {s(sWS+1)}, 0")
        A(f"s_lshr_b32 {s(sT0)}, {s(sRANK)}, 1")
        A(f"s_lshl_b32 {s(sFMASK)}, 0x10001, {s(sT0)}")
        lfi = A.label("L_cfi")
        A(f"v_mov_b32 {v(24)}, {DBG_FINIT}")
        A(f"{lfi}:")
        A(f"global_load_dword {v(25)}, {v(24)}, {s(sDBG,2)} sc1")
        A(f"s_add_u32 {s(sSPIN)}, {s(sSPIN)}, 1")
        A(f"s_cmp_gt_u32 {s(sSPIN)}, 0x40000")
        A(f"s_cbranch_scc1 L_chain_abort")
        A("s_waitcnt vmcnt(0)")
        A(f"v_cmp_gt_u32 vcc, 256, {v(25)}")
        A(f"s_cbranch_vccnz {lfi}")
        chain_flag_wait_blocking(A, sFL1)
    if flags:
        A(f"s_add_u32 {s(sFL1)}, {s(sFL1)}, 1024")
        A(f"s_addc_u32 {s(sFL1+1)}, {s(sFL1+1)}, 0")
        chain_flag_wait_blocking(A, sFL1)
        A(f"s_add_u32 {s(sFL1)}, {s(sFL1)}, 1024")
        A(f"s_addc_u32 {s(sFL1+1)}, {s(sFL1+1)}, 0")
        A(f"v_lshrrev_b32 {v(24)}, 2, {v(vL16)}")
        A(f"global_load_dword {v(vPF)}, {v(24)}, {s(sFL1,2)} sc1")
        A(f"s_add_u32 {s(sFL1)}, {s(sFL1)}, 1024")
        A(f"s_addc_u32 {s(sFL1+1)}, {s(sFL1+1)}, 0")
        A(f"s_mov_b32 {s(sFMK2)}, {s(sFMASK)}")
        A(f"s_add_u32 {s(sPFK)}, {s(sPFK)}, {32*8192}")
        A(f"s_addc_u32 {s(sPFK+1)}, {s(sPFK+1)}, 0")
    for x in kv_dma(): A(x)
    kv_adv()
    lw = A.label("L_winit")
    A(f"v_mov_b32 {v(24)}, 4")
    A(f"{lw}:")
    A(f"global_load_dword {v(25)}, {v(24)}, {s(sDBG,2)} sc1")
    A(f"s_add_u32 {s(sSPIN)}, {s(sSPIN)}, 1")
    A(f"s_cmp_gt_u32 {s(sSPIN)}, 0x100000")
    A(f"s_cbranch_scc1 L_chain_abort")
    A(f"s_waitcnt vmcnt(0)")
    A(f"v_cmp_gt_u32 vcc, 32, {v(25)}")
    A(f"s_cbranch_vccnz {lw}")
    if flags:
        A(f"v_mov_b32 {v(24)}, {DBG_XMASK}")
        A(f"global_load_dword {v(25)}, {v(24)}, {s(sDBG,2)} sc1")
        A("s_waitcnt vmcnt(0)")
        A(f"v_readfirstlane_b32 {s(sMODE)}, {v(25)}")
        A(f"s_bcnt1_i32_b32 {s(sMODE)}, {s(sMODE)}")
        if force_slow: A(f"s_mov_b32 {s(sMODE)}, 2")
    A(f"s_mov_b32 {s(sSTEP)}, 0")
    A(f"s_mov_b32 {s(sSPIN)}, 0")
    if stamp:
        A(f"s_memtime {s(sTS,2)}")
        A("s_waitcnt lgkmcnt(0)")
        for k in range(26): A(f"s_mov_b32 {s(76+k)}, 0")
        A(f"s_mov_b32 {s(sTS+4)}, 0")
        A(f"s_mov_b32 {s(sTS+5)}, 0")
    def ts(k):
        if stamp >= 2 and k < 13: A(f"s_memtime {s(76+2*k,2)}")
    def dump_stamps():
        if stamp >= 2:
            lab = A.label("L_nodump")
            A(f"s_cmp_lg_u32 {s(sSTEP)}, 40")
            A(f"s_cbranch_scc1 {lab}")
            A("s_waitcnt lgkmcnt(0)")
            A(f"s_lshl_b32 {s(sT0)}, {s(sRANK)}, 2")
            A(f"s_add_u32 {s(sT0)}, {s(sT0)}, {s(sWAVE)}")
            A(f"s_lshl_b32 {s(sT0)}, {s(sT0)}, 6")
            A(f"s_add_u32 {s(sT0)}, {s(sT0)}, {WS_END_CHAIN + 0x4000}")
            A(f"v_mov_b32 {v(24)}, {s(sT0)}")
            for k in range(13):
                A(f"v_mov_b32 {v(25)}, {s(76+2*k)}")
                A(f"global_store_dword {v(24)}, {v(25)}, {s(sWS,2)} offset:{4*k}")
            A(f"{lab}:")

    K0,Q0,K1,Q1 = AQK, AQK+4, AQK+8, AQK+12
    V0,V1 = AV, AV+4
    QK = AQK
    PA = KXR
    def step_scalars():
        A(f"s_and_b32 {s(sPH)}, {s(sSTEP)}, 1")
        A(f"s_lshl_b32 {s(sT0+1)}, {s(sPH)}, 13")
        A(f"s_add_u32 {s(sT0+1)}, {s(sT0+1)}, {WS_MEM}")
        A(f"s_add_u32 {s(sMEMc)}, {s(sWS)}, {s(sT0+1)}")
        A(f"s_addc_u32 {s(sMEMc+1)}, {s(sWS+1)}, 0")
        A(f"s_xor_b32 {s(sT0+1)}, {s(sT0+1)}, 8192")
        A(f"s_add_u32 {s(sMEMn)}, {s(sWS)}, {s(sT0+1)}")
        A(f"s_addc_u32 {s(sMEMn+1)}, {s(sWS+1)}, 0")
    def zero_acc():
        A(f"v_mfma_f32_32x32x8_bf16 {v(AQK,16)}, {v(vZP,2)}, {v(vZP,2)}, 0")
        for r in range(AV, AV+8, 2): A(f"v_pk_mov_b32 {v(r,2)}, 0, 0")
        for p in range(4): A(f"v_add_u32 {v(S0+p)}, {s(sOFF+p)}, {v(vLH)}")

    FARN = {0:0, 2:3, 3:2}
    def step_body(st, sfx, far, slowpaths):
        L = lambda x: f"{x}{sfx}"
        A(f"{L('L_step')}:")
        ts(12)
        delay(A, D2)
        MR = S0
        A(f"{L('L_pollm')}:")
        A(f"global_load_dwordx4 {ma(0)}, {v(vW16)}, {s(sMEMc,2)} sc1")
        A(f"global_load_dwordx4 {ma(1)}, {v(vW16)}, {s(sMEMc,2)} offset:1024 sc1")
        A(f"s_add_u32 {s(sSPIN)}, {s(sSPIN)}, 1")
        A(f"s_cmp_gt_u32 {s(sSPIN)}, 0x40000")
        A(f"s_cbranch_scc1 L_chain_abort")
        A("s_waitcnt vmcnt(0)")
        A(f"v_max3_u32 {v(T0)}, {v(MA)}, {v(MA+1)}, {v(MA+2)}")
        A(f"v_max3_u32 {v(T0+1)}, {v(MA+3)}, {v(MA+4)}, {v(MA+5)}")
        A(f"v_max3_u32 {v(T0)}, {v(T0)}, {v(MA+6)}, {v(MA+7)}")
        A(f"v_max_u32 {v(T0)}, {v(T0)}, {v(T0+1)}")
        A(f"v_cmp_eq_u32 vcc, -1, {v(T0)}")
        A(f"s_cbranch_vccnz {L('L_pollm')}")
        ts(0)
        A(f"ds_write_b128 {v(MR)}, {ma(0)}")
        A(smf(K0, ma(0), WK(0,0)))
        A(f"ds_write_b128 {v(MR)}, {ma(1)} offset:1024")
        A(smf(Q0, ma(0), WQ(0,0)))
        if far:
            fok = A.label("L_fok"); fs_ = f"L_fslow{sfx}"
            if flags:
                A(f"v_cmp_ne_u32 vcc, 0, {v(vPF)}")
                A(f"s_and_b32 {s(sT0)}, vcc_lo, {s(sFMK2)}")
                A(f"s_cmp_eq_u32 {s(sT0)}, {s(sFMK2)}")
                A(f"s_cbranch_scc0 {fs_}")
                A(f"{fok}:")
                slowpaths.append((fs_, fok))
            A(f"v_lshlrev_b32 {v(vPF)}, 3, {v(vL16)}")
            A(f"global_load_dword {v(vPF)}, {v(vPF)}, {s(sPFK,2)}")
        A(smf(K1, ma(0), WK(1,0)))
        if far:
            A(f"v_lshrrev_b32 {v(X0)}, 2, {v(vL16)}")
            A(f"global_load_dword {v(vPF)}, {v(X0)}, {s(sFL1,2)} sc1")
        A(smf(Q1, ma(0), WQ(1,0)))
        A("s_waitcnt lgkmcnt(0)")
        A("s_barrier")
        rds = []
        for p in range(3):
            rds.append(f"ds_read_b128 {ma(2*p+2)}, {v(MR+1+p)}")
            rds.append(f"ds_read_b128 {ma(2*p+3)}, {v(MR+1+p)} offset:1024")
        A(rds[0]); A(rds[1])
        own = [(K0,ma(1),WK(0,1)),(Q0,ma(1),WQ(0,1)),(K1,ma(1),WK(1,1)),(Q1,ma(1),WQ(1,1))]
        for i in range(4):
            A(smf(*own[i])); A(rds[i+2])
        kxq = [(t,ks) for ks in range(4) for t in range(2)]
        kxr = [f"ds_read_b128 {v(KXR+(t*4+ks)*4,4)}, {v(vLH)} offset:{L_KXB-L_MEMB+(t*4+ks)*1024}" for (t,ks) in kxq]
        fill = [[],[],[],[],[],[],[],[]]
        if far == 2:
            fill.append([f"v_and_b32 {v(X0)}, 0xf0, {v(vL16)}"])
            fill.append([f"v_add_u32 {v(X0+1)}, {s(sRLO)}, {v(X0)}"])
            fill.append([f"ds_read_b128 {v(S1,4)}, {v(X0+1)}"])
            fill.append([f"v_add_u32 {v(X0+1)}, {s(sRL2)}, {v(X0)}"])
        if far == 2:
            pub = fill[8:]; fill = fill[:8]
            fill += [[x] for x in kxr] + pub
        else:
            fill += [[x] for x in kxr]
        A("s_waitcnt lgkmcnt(4)")
        g = 0
        for b in range(2,8):
            if b == 4:
                nrel = 0
                if far:
                    nrel = sum(1 for f in fill_done for x in f if x.startswith("ds_read"))
                A(f"s_waitcnt lgkmcnt({nrel})")
            order = ((K0,WK(0,b)),(Q0,WQ(0,b)),(K1,WK(1,b)),(Q1,WQ(1,b)))
            for n,(acc,W) in enumerate(order):
                if b == 2 and n == 0: fill_done = []
                A(smf(acc, ma(b), W))
                if fill:
                    f = fill.pop(0); fill_done.append(f)
                    for x in f: A(x)
        assert not fill, len(fill)
        ts(1)
        vq = [(t,b) for b in range(8) for t in range(2)]
        vi = [0]
        def vph(n=1):
            for _ in range(n):
                if vi[0] < 16:
                    t,b = vq[vi[0]]; vi[0] += 1
                    A(smf(V0+4*t, ma(b), WVf(t,b)))
        X_ = T0
        vph(2)
        A(f"v_pk_add_f32 {v(K0,2)}, {v(K0,2)}, {v(K0+2,2)}")
        A(f"v_pk_add_f32 {v(Q0,2)}, {v(Q0,2)}, {v(Q0+2,2)}")
        A(f"v_pk_add_f32 {v(K1,2)}, {v(K1,2)}, {v(K1+2,2)}")
        A(f"v_cvt_pk_bf16_f32 {v(X_)}, {v(K0)}, {v(K0+1)}")
        A(f"v_cvt_pk_bf16_f32 {v(X_+1)}, {v(Q0)}, {v(Q0+1)}")
        A(f"v_pk_add_f32 {v(Q1,2)}, {v(Q1,2)}, {v(Q1+2,2)}")
        A(f"ds_write_b64 {v(vMQW)}, {v(X_,2)}")
        A(f"v_cvt_pk_bf16_f32 {v(X_+2)}, {v(K1)}, {v(K1+1)}")
        A(f"v_cvt_pk_bf16_f32 {v(X_+3)}, {v(Q1)}, {v(Q1+1)}")
        A(f"ds_write_b64 {v(vMQW)}, {v(X_+2,2)} offset:512")
        vph(4)
        A("s_waitcnt lgkmcnt(0)")
        if far == 2:
            A("s_mov_b64 exec, 0xffff")
            A(f"global_store_dwordx4 {v(X0+1)}, {v(S1,4)}, {s(sKM,2)} sc1")
            A("s_mov_b64 exec, -1")
        A("s_barrier")
        A(f"s_cmp_eq_u32 {s(sSTEP)}, {nsteps-1}")
        A(f"s_cbranch_scc1 L_chain_done")
        for ks in range(4):
            A(f"ds_read_b64_tr_b16 {v(QK+4*ks,2)}, {v(vMQR0)} offset:{ks*1024}")
            A(f"ds_read_b64_tr_b16 {v(QK+4*ks+2,2)}, {v(vMQR1)} offset:{ks*1024}")
            if ks in (1,3): vph(1)
        vph(3)
        ts(2)
        FB = [MA, MA+8, MA+16, MA+24, AV, AQK, AQK+8, 120]
        frags = [(j,b) for j in range(8) for b in range(2)]
        def wo_rd(fi, buf):
            j,b = frags[fi]; out = []
            for hx in range(2):
                q = 2*b + hx
                off = q*32768 + j*1024
                reg = vWO0 if off < 65536 else vWO1
                if off >= 65536: off -= 65536
                out.append(f"ds_read_b128 {v(FB[buf]+4*hx,4)}, {v(reg)} offset:{off}")
            return out
        for ks in range(4):
            if ks == 0: A(f"s_waitcnt lgkmcnt(4)")
            if ks == 2: A(f"s_waitcnt lgkmcnt(0)")
            c0 = "0" if ks == 0 else v(S0,4); c1 = "0" if ks == 0 else v(S1,4); cm = "0" if ks == 0 else v(SM,4)
            A(f"v_mfma_f32_16x16x32_bf16 {v(S0,4)}, {v(KXR+ks*4,4)}, {v(QK+4*ks,4)}, {c0}")
            A(f"v_mfma_f32_16x16x32_bf16 {v(S1,4)}, {v(KXR+16+ks*4,4)}, {v(QK+4*ks,4)}, {c1}")
            if ks == 2: A(f"ds_read_b128 {v(KXR,4)}, {v(vVXA)}")
            if ks == 3: A(f"ds_read_b128 {v(KXR+4,4)}, {v(vVXA)} offset:1024")
            A(f"v_mfma_f32_16x16x32_bf16 {v(SM,4)}, {v(QK+4*ks,4)}, {v(QK+4*ks,4)}, {cm}")
        VXO = KXR; B1 = KXR+8
        wr = wo_rd(0,0) + wo_rd(1,1) + wo_rd(2,2)
        vph(1); A(wr[0])
        vph(1); A(wr[1])
        vph(1); A(wr[2])
        ts(3)
        m1,m2 = T0, T0+1
        A(f"v_max3_f32 {v(m1)}, {v(S0)}, {v(S0+1)}, {v(S0+2)}")
        A(f"v_max3_f32 {v(m2)}, {v(S0+3)}, {v(S1)}, {v(S1+1)}")
        vph(1)
        A(f"v_max3_f32 {v(m1)}, {v(m1)}, {v(S1+2)}, {v(S1+3)}")
        A(f"v_max3_f32 {v(m2)}, {v(m2)}, {v(SM)}, {v(SM+1)}")
        vph(1)
        A(f"v_max_f32 {v(m1)}, {v(m1)}, {v(m2)}")
        A(f"v_mov_b32 {v(m2)}, {v(m1)}")
        A(wr[3])
        A(f"v_permlane16_swap_b32 {v(m1)}, {v(m2)}")
        A(f"v_max_f32 {v(m1)}, {v(m1)}, {v(m2)}")
        A(f"v_mov_b32 {v(m2)}, {v(m1)}")
        A(wr[4])
        A(f"v_permlane32_swap_b32 {v(m1)}, {v(m2)}")
        A(f"v_max_f32 {v(m1)}, {v(m1)}, {v(m2)}")
        A(f"v_mul_f32 {v(m1)}, {s(sSC+1)}, {v(m1)}")
        for r in (S0,S0+2,S1,S1+2,SM):
            A(f"v_pk_fma_f32 {v(r,2)}, {v(r,2)}, {s(sSC,2)}, {v(m1,2)} op_sel_hi:[1,0,0]")
        VMa = X0
        for r in (S0,S0+1,S0+2,S0+3): A(f"v_exp_f32 {v(r)}, {v(r)}")
        A(f"v_pk_add_f32 {v(V0,2)}, {v(V0,2)}, {v(V0+2,2)}")
        A(f"v_pk_add_f32 {v(V1,2)}, {v(V1,2)}, {v(V1+2,2)}")
        for r in (S1,S1+1,S1+2,S1+3): A(f"v_exp_f32 {v(r)}, {v(r)}")
        A(f"v_cvt_pk_bf16_f32 {v(B1)}, {v(S0)}, {v(S0+1)}")
        A(f"v_cvt_pk_bf16_f32 {v(B1+1)}, {v(S0+2)}, {v(S0+3)}")
        A(f"v_exp_f32 {v(SM)}, {v(SM)}")
        A(f"v_exp_f32 {v(SM+1)}, {v(SM+1)}")
        A(f"v_cvt_pk_bf16_f32 {v(B1+2)}, {v(S1)}, {v(S1+1)}")
        A(f"v_cvt_pk_bf16_f32 {v(B1+3)}, {v(S1+2)}, {v(S1+3)}")
        A(f"v_cvt_pk_bf16_f32 {v(VMa)}, {v(V0)}, {v(V0+1)}")
        A(f"v_cvt_pk_bf16_f32 {v(VMa+1)}, {v(V1)}, {v(V1+1)}")
        A(f"v_cvt_pk_bf16_f32 {v(vPM)}, {v(SM)}, {v(SM+1)}")
        A(f"v_cvt_pk_bf16_f32 {v(VMa+2)}, {v(V1)}, {v(V1+1)}")
        A(f"v_cvt_pk_bf16_f32 {v(VMa+3)}, {v(V0)}, {v(V0+1)}")
        O0, O1 = KXR+16, KXR+20
        A("s_waitcnt lgkmcnt(5)")
        A(f"v_mfma_f32_16x16x32_bf16 {v(O0,4)}, {v(VXO,4)}, {v(B1,4)}, 0")
        A(f"v_pk_add_f32 {v(S0,2)}, {v(S0,2)}, {v(S0+2,2)}")
        A(f"v_mfma_f32_16x16x32_bf16 {v(O1,4)}, {v(VXO+4,4)}, {v(B1,4)}, 0")
        A(f"v_pk_add_f32 {v(S1,2)}, {v(S1,2)}, {v(S1+2,2)}")
        A(f"v_mfma_f32_16x16x16_bf16 {v(O0,4)}, {v(VMa,2)}, {v(vPM,2)}, {v(O0,4)}")
        A(f"v_pk_add_f32 {v(S0,2)}, {v(S0,2)}, {v(S1,2)}")
        A(f"v_mfma_f32_16x16x16_bf16 {v(O1,4)}, {v(VMa+2,2)}, {v(vPM,2)}, {v(O1,4)}")
        A(f"v_pk_add_f32 {v(S0,2)}, {v(S0,2)}, {v(SM,2)}")
        A(f"v_add_f32 {v(m1)}, {v(S0)}, {v(S0+1)}")
        A(f"v_mov_b32 {v(m2)}, {v(m1)}")
        A(f"v_permlane16_swap_b32 {v(m1)}, {v(m2)}")
        A(f"v_add_f32 {v(m1)}, {v(m1)}, {v(m2)}")
        A(f"v_mov_b32 {v(m2)}, {v(m1)}")
        A(wr[5])
        A(f"v_permlane32_swap_b32 {v(m1)}, {v(m2)}")
        A(f"v_add_f32 {v(m1)}, {v(m1)}, {v(m2)}")
        A(f"v_rcp_f32 {v(m1)}, {v(m1)}")
        w3 = wo_rd(3,3) + wo_rd(4,4)
        A(w3[0])
        for r in (O0,O0+2,O1,O1+2):
            A(f"v_pk_mul_f32 {v(r,2)}, {v(r,2)}, {v(m1,2)} op_sel_hi:[1,0]")
        OP = S0
        A(f"v_cvt_pk_bf16_f32 {v(OP)}, {v(O0)}, {v(O0+1)}")
        A(f"v_cvt_pk_bf16_f32 {v(OP+1)}, {v(O0+2)}, {v(O0+3)}")
        A(f"v_cvt_pk_bf16_f32 {v(OP+2)}, {v(O1)}, {v(O1+1)}")
        A(f"v_cvt_pk_bf16_f32 {v(OP+3)}, {v(O1+2)}, {v(O1+3)}")
        A(f"ds_write2_b64 {v(vOW)}, {v(OP,2)}, {v(OP+2,2)} offset0:0 offset1:4")
        ts(4)
        A(f"v_mfma_f32_32x32x8_bf16 {v(PA,16)}, {v(vZP,2)}, {v(vZP,2)}, 0")
        A(w3[1]); A(w3[2])
        A(f"v_mfma_f32_32x32x8_bf16 {v(PA+16,16)}, {v(vZP,2)}, {v(vZP,2)}, 0")
        A(w3[3])
        w5 = wo_rd(5,5) + wo_rd(6,6)
        for x in w5: A(x)
        A("s_waitcnt lgkmcnt(7)")
        A("s_barrier")
        OA = S0
        A(f"ds_read_b128 {v(OA,4)}, {v(vOR)}")
        A(f"ds_read_b128 {v(OA+4,4)}, {v(vOR)} offset:128")
        w7 = wo_rd(7,7)
        for x in w7: A(x)
        for x in kv_dma(): A(x)
        ts(5)
        A("s_waitcnt lgkmcnt(2)")
        issued = [7]; nxt = 8
        PK0 = X0
        for fi in range(16):
            j,b = frags[fi]
            buf = fi % 8
            if fi >= 7 and fi % 2 == 1:
                tgt = min(fi+1, 15)
                later = len(issued) - 1 - issued.index(tgt)
                A(f"s_waitcnt lgkmcnt({min(15,2*later)})")
            A(f"v_smfmac_f32_16x16x64_bf16 {v(PA+4*j,4)}, {v(OA+4*b,4)}, {v(FB[buf],8)}, {v(vIDX)}")
            if nxt < 16:
                for x in wo_rd(nxt, nxt % 8): A(x)
                issued.append(nxt); nxt += 1
            if b == 1 and j >= 1:
                jj = j-1
                dst = (PK0 + jj) if jj < 4 else (PA + jj - 4)
                A(f"v_pk_add_f32 {v(PA+4*jj,2)}, {v(PA+4*jj,2)}, {v(PA+4*jj+2,2)}")
                A(f"v_cvt_pk_bf16_f32 {v(dst)}, {v(PA+4*jj)}, {v(PA+4*jj+1)}")
                if jj == 3:
                    A(f"v_bfi_b32 {v(PK0)}, 1, {s(sPH)}, {v(PK0)}")
                    A(f"global_store_dwordx4 {v(vPP)}, {v(PK0,4)}, {s(sPc,2)} {st}")
        A(f"v_bfi_b32 {v(PA)}, 1, {s(sPH)}, {v(PA)}")
        A(f"v_pk_add_f32 {v(PA+28,2)}, {v(PA+28,2)}, {v(PA+30,2)}")
        A(f"v_cvt_pk_bf16_f32 {v(PA+3)}, {v(PA+28)}, {v(PA+29)}")
        A(f"global_store_dwordx4 {v(vPP)}, {v(PA,4)}, {s(sPc2,2)} {st}")
        ts(6)
        kv_adv()
        if not far:
            RS = MA
            A(f"v_bfe_u32 {v(MA+4)}, {v(vL16)}, 4, 3")
            A(f"v_mov_b32 {v(MA+5)}, 0x3f80")
            A(f"v_mov_b32 {v(MA+6)}, 0x3f800000")
            for d in range(4):
                A(f"v_cmp_eq_u32 vcc, {2*d}, {v(MA+4)}")
                A(f"v_cndmask_b32 {v(RS+d)}, 0, {v(MA+5)}, vcc")
                A(f"v_cmp_eq_u32 vcc, {2*d+1}, {v(MA+4)}")
                A(f"v_cndmask_b32 {v(RS+d)}, {v(RS+d)}, {v(MA+6)}, vcc")
            delay(A, D1)
            G = KXR+4
            RA = KXR+20
            A(f"{L('L_pollp')}:")
            for t in range(4):
                A(f"global_load_dwordx4 {v(G+4*t,4)}, {v(vPG)}, {s(sPc,2)} offset:{t*1024} sc1")
            A(f"s_add_u32 {s(sSPIN)}, {s(sSPIN)}, 1")
            A(f"s_cmp_gt_u32 {s(sSPIN)}, 0x40000")
            A(f"s_cbranch_scc1 L_chain_abort")
            A("s_waitcnt vmcnt(2)")
            A(f"v_mfma_f32_16x16x32_bf16 {v(RA,4)}, {v(RS,4)}, {v(G,4)}, 0")
            A(f"v_bitop3_b32 {v(T0)}, {v(G)}, {v(G+4)}, {s(sPH)} bitop3:0x7e")
            A(f"v_mfma_f32_16x16x32_bf16 {v(RA,4)}, {v(RS,4)}, {v(G+4,4)}, {v(RA,4)}")
            A("s_waitcnt vmcnt(0)")
            A(f"v_mfma_f32_16x16x32_bf16 {v(RA,4)}, {v(RS,4)}, {v(G+8,4)}, {v(RA,4)}")
            A(f"v_bitop3_b32 {v(T0+1)}, {v(G+8)}, {v(G+12)}, {s(sPH)} bitop3:0x7e")
            A(f"v_mfma_f32_16x16x32_bf16 {v(RA,4)}, {v(RS,4)}, {v(G+12,4)}, {v(RA,4)}")
            A(f"v_bitop3_b32 {v(T0)}, {v(T0)}, {v(T0+1)}, 1 bitop3:0xa8")
            A(f"v_cmp_ne_u32 vcc, 0, {v(T0)}")
            A(f"s_cbranch_vccnz {L('L_pollp')}")
            ts(7)
            for r in range(4):
                A(f"v_add_f32_dpp {v(RA+r)}, {v(RA+r)}, {v(RA+r)} row_ror:8 row_mask:0xf bank_mask:0xf")
            A(f"v_cvt_pk_bf16_f32 {v(T0)}, {v(RA)}, {v(RA+2)}")
            A(f"v_cvt_pk_bf16_f32 {v(T0+1)}, {v(RA+1)}, {v(RA+3)}")
            A(f"v_cndmask_b32 {v(T0)}, {v(T0)}, {v(T0+1)}, {s(sMASK,2)}")
            A(f"global_store_dword {v(vMP)}, {v(T0)}, {s(sMEMn,2)} {st}")
            A(f"v_mov_b32 {v(T0+2)}, -1")
            A(f"global_store_dword {v(vMP)}, {v(T0+2)}, {s(sMEMc,2)} {st}")
            ts(8)
        if far:
            A("s_waitcnt vmcnt(0)")
            A(f"s_add_u32 {s(sKM)}, {s(sKM)}, 8192")
            A(f"s_addc_u32 {s(sKM+1)}, {s(sKM+1)}, 0")
            A(f"s_cmp_lt_u32 {s(sSTEP)}, {nsteps-3}")
            A(f"s_cselect_b32 {s(sT0)}, {32*8192}, 0")
            A(f"s_cselect_b32 {s(sT0+1)}, 1024, 0")
            A(f"s_cselect_b32 {s(sFMK2)}, {s(sFMASK)}, 0")
            A(f"s_add_u32 {s(sPFK)}, {s(sPFK)}, {s(sT0)}")
            A(f"s_addc_u32 {s(sPFK+1)}, {s(sPFK+1)}, 0")
            A(f"s_add_u32 {s(sFL1)}, {s(sFL1)}, {s(sT0+1)}")
            A(f"s_addc_u32 {s(sFL1+1)}, {s(sFL1+1)}, 0")
        dump_stamps()
        A(f"s_add_u32 {s(sSTEP)}, {s(sSTEP)}, 1")
        step_scalars(); zero_acc()
        A("s_barrier")
        A(f"s_branch {L('L_step')}")
    def slow_code(slowpaths):
        for (fs_, fok) in slowpaths:
            A(f"{fs_}:")
            A(f"v_lshrrev_b32 {v(X0)}, 2, {v(vL16)}")
            A(f"s_sub_u32 {s(sT0+2)}, {s(sFL1)}, 1024")
            A(f"s_subb_u32 {s(sT0+3)}, {s(sFL1+1)}, 0")
            A(f"global_load_dword {v(vPF)}, {v(X0)}, {s(sT0+2,2)} sc1")
            A(f"s_add_u32 {s(sSPIN)}, {s(sSPIN)}, 1")
            A(f"s_cmp_gt_u32 {s(sSPIN)}, 0x40000")
            A(f"s_cbranch_scc1 L_chain_abort")
            A("s_waitcnt vmcnt(0)")
            A(f"v_cmp_ne_u32 vcc, 0, {v(vPF)}")
            A(f"s_and_b32 {s(sT0)}, vcc_lo, {s(sFMK2)}")
            A(f"s_cmp_eq_u32 {s(sT0)}, {s(sFMK2)}")
            A(f"s_cbranch_scc1 {fok}")
            A("s_sleep 1")
            A(f"s_branch {fs_}")
    def main_loop(st, sfx):
        sp = []
        A(f"s_cmp_eq_u32 {s(sWAVE)}, 2")
        A(f"s_cbranch_scc1 L_step{sfx}_f2")
        A(f"s_cmp_eq_u32 {s(sWAVE)}, 3")
        A(f"s_cbranch_scc1 L_step{sfx}_f3")
        step_body(st, sfx+"_n", 0, sp)
        A.hist = []
        step_body(st, sfx+"_f2", 2, sp)
        A.hist = []
        step_body(st, sfx+"_f3", 3, sp)
        slow_code(sp)
    step_scalars(); zero_acc()
    A("s_barrier")
    if flags:
        A(f"s_cmp_lg_u32 {s(sMODE)}, 1")
        A("s_cbranch_scc1 L_main_slow")
        main_loop("", "_fast")
        A.hist = []
        A("L_main_slow:")
        main_loop("sc1", "_slow")
    else:
        main_loop(smode, "")
    A("L_chain_abort:")
    A(f"s_mov_b32 {s(sSTEP)}, 0xdead")
    A("s_branch L_chain_end")
    A("L_chain_done:")
    A("L_chain_end:")
    if stamp:
        A(f"s_lshl_b32 {s(sT0)}, {s(sRANK)}, 2")
        A(f"s_add_u32 {s(sT0)}, {s(sT0)}, {s(sWAVE)}")
        A(f"s_lshl_b32 {s(sT0)}, {s(sT0)}, 6")
        A(f"s_add_u32 {s(sT0)}, {s(sT0)}, {WS_END_CHAIN}")
        A(f"v_mov_b32 {v(24)}, {s(sT0)}")
        A(f"s_memtime {s(sTS+2,2)}")
        A("s_waitcnt lgkmcnt(0)")
        A(f"s_sub_u32 {s(sTS+2)}, {s(sTS+2)}, {s(sTS)}")
        A(f"v_mov_b32 {v(25)}, {s(sTS+2)}")
        A(f"global_store_dword {v(24)}, {v(25)}, {s(sWS,2)} offset:40")
        A(f"v_mov_b32 {v(25)}, {s(sSTEP)}")
        A(f"global_store_dword {v(24)}, {v(25)}, {s(sWS,2)} offset:44")
        A(f"v_mov_b32 {v(25)}, {s(sSPIN)}")
        A(f"global_store_dword {v(24)}, {v(25)}, {s(sWS,2)} offset:48")
    A("s_waitcnt vmcnt(0)")

def gen_entry(A):
    A(f"s_load_dwordx2 {s(60,2)}, s[0:1], {KA_MEM0}")
    A(f"s_load_dwordx2 {s(62,2)}, s[0:1], {KA_WQ}")
    A(f"s_load_dwordx2 {s(64,2)}, s[0:1], {KA_WK}")
    A(f"s_load_dwordx2 {s(66,2)}, s[0:1], {KA_WV}")
    A(f"s_load_dwordx2 {s(68,2)}, s[0:1], {KA_WO}")
    A(f"s_load_dwordx2 {s(sDBG,2)}, s[0:1], {KA_DBG}")
    A(f"s_load_dwordx2 {s(sWS,2)}, s[0:1], {KA_WS}")
    A(f"s_getreg_b32 {s(sT0)}, hwreg(HW_REG_XCC_ID, 0, 4)")
    A("v_lshrrev_b32 v1, 6, v0")
    A(f"v_readfirstlane_b32 {s(sWAVE)}, v1")
    A("v_and_b32 v31, 63, v0")
    A("s_waitcnt lgkmcnt(0)")

def gen_standalone(stamp=0, **kw):
    A = Asm()
    name = "chain_kernel"
    A.raw("; @launch kernel=chain_kernel grid=(256,1,1) block=(256,1,1) lds=163840")
    A.raw('.amdgcn_target "amdgcn-amd-amdhsa--gfx950"')
    A.raw(kstart(name))
    gen_entry(A)
    A(f"s_cmp_lg_u32 {s(sT0)}, 0")
    A("s_cbranch_scc1 L_exit")
    A("s_cmp_ge_u32 s2, 256")
    A("s_cbranch_scc1 L_exit")
    A("v_mov_b32 v2, 0")
    A("v_mov_b32 v3, 1")
    A(f"v_mov_b32 v5, {L_MISC}")
    tk = "L_tk"
    A(f"s_cmp_lg_u32 {s(sWAVE)}, 0")
    A(f"s_cbranch_scc1 {tk}")
    A("s_mov_b64 exec, 1")
    A(f"global_atomic_add v4, v2, v3, {s(sDBG,2)} sc0")
    A("s_waitcnt vmcnt(0)")
    A("ds_write_b32 v5, v4")
    A("s_waitcnt lgkmcnt(0)")
    A("s_mov_b64 exec, -1")
    A(f"{tk}:")
    A("s_barrier")
    A("ds_read_b32 v4, v5")
    A("s_waitcnt lgkmcnt(0)")
    A(f"v_readfirstlane_b32 {s(sRANK)}, v4")
    A(f"s_cmp_ge_u32 {s(sRANK)}, 32")
    A("s_cbranch_scc1 L_exit")
    gen_chain(A, 64, stamp, **kw)
    A("L_exit:")
    A("s_endpgm")
    A.raw(kd(name))
    return A

if __name__ == "__main__":
    import sys
    kw = {}
    for x in sys.argv[3:]:
        k,val = x.split("="); kw[k] = int(val)
    A = gen_standalone(stamp=int(sys.argv[2]) if len(sys.argv)>2 else 0, **kw)
    open(sys.argv[1], "w").write(A.text())
    print("nops inserted:", A.nops, "lines", len(A.out))
```

```python
WS_KX   = 0x0000000
WS_VX   = 0x1000000
WS_Q    = 0x2000000
WS_KM   = 0x3020000
WS_VM   = 0x3920000
WS_MEM  = 0x4200000
WS_P    = 0x4210000
WS_END_CHAIN = 0x4290000
KA_X=0; KA_MEM0=8; KA_WQ=16; KA_WK=24; KA_WV=32; KA_WO=40; KA_SEG=48; KA_BX=56
KA_W1=64; KA_W3=72; KA_W2=80; KA_GW=88; KA_OUT=96; KA_DBG=104; KA_WS=112
L_WO=0; L_MQK=131072; L_MEMB=135168; L_KXB=143360; L_VXB=151552; L_OB=159744; L_MISC=161920
LDS_TOTAL=163840
WS_H    = 0x5000000
WS_PB   = 0x6000000
WS_PA   = 0x7000000
WS_FLAGS= 0x9001000
FL1_K=0; FL1_V=16; FL1_Q=32; FL1_H=48
FL2_KM=0; FL2_PA=32; FL2_PB=48
DBG_CHT=0
DBG_CINIT=4
DBG_WT=8
DBG_XMASK=12
DBG_FINIT=16

WS_MEMP = 0x4400000
DBG_CW=20
DBG_OVF=24
DBG_XCNT=64
```

```python
from asmlib import *
from layout import *
from engine import *
import struct
def f2u(x): return struct.unpack("<I", struct.pack("<f", x))[0]
LOG2E = 1.4426950408889634
sIN = 60


sFLG=46
wFV=30
wFL=254
USE_FLAGS=False
def flag_init_ptr(A):
    A(f"s_add_u32 {s(sFLG)}, {s(sWS)}, {WS_FLAGS}")
    A(f"s_addc_u32 {s(sFLG+1)}, {s(sWS+1)}, 0")
def flag_set(A, seg_s, row, idx_s=None, idx_c=0):
    lab = A.label("L_fs")
    A(f"s_cmp_lg_u32 {s(sWAVE)}, 0")
    A(f"s_cbranch_scc1 {lab}")
    A.cbegin()
    A(f"s_lshl_b32 {s(48)}, {s(seg_s)}, 10")
    if idx_s is not None:
        A(f"s_lshl_b32 {s(49)}, {s(idx_s)}, 2")
        A(f"s_add_u32 {s(48)}, {s(48)}, {s(49)}")
    A(f"s_add_u32 {s(48)}, {s(48)}, {row*256 + idx_c*4}")
    A(f"v_mov_b32 {v(wFL)}, {s(48)}")
    A(f"v_mov_b32 {v(wFL+1)}, 1")
    A("s_mov_b64 exec, 1")
    A(f"global_store_dword {v(wFL)}, {v(wFL+1)}, {s(sFLG,2)} sc1")
    A("s_mov_b64 exec, -1")
    A.cend()
    A(f"{lab}:")
def flag_wait(A, seg_s, row, mask_lo_s, mask_hi_s):
    lab = A.label("L_fw"); ok = A.label("L_fwok")
    A(f"s_lshl_b32 {s(48)}, {s(seg_s)}, 10")
    A(f"s_add_u32 {s(48)}, {s(48)}, {row*256}")
    A(f"v_lshlrev_b32 {v(wFL)}, 2, {v(wLANE)}")
    A(f"v_add_u32 {v(wFL)}, {s(48)}, {v(wFL)}")
    A(f"s_mov_b32 {s(49)}, 0")
    A(f"{lab}:")
    A(f"global_load_dword {v(wFL+1)}, {v(wFL)}, {s(sFLG,2)} sc1")
    A(f"s_add_u32 {s(49)}, {s(49)}, 1")
    A(f"s_cmp_gt_u32 {s(49)}, 0x20000")
    A(f"s_cbranch_scc1 {ok}")
    A("s_waitcnt vmcnt(0)")
    A(f"v_cmp_ne_u32 vcc, 0, {v(wFL+1)}")
    A(f"s_and_b32 {s(50)}, vcc_lo, {s(mask_lo_s)}")
    A(f"s_and_b32 {s(51)}, vcc_hi, {s(mask_hi_s)}")
    A(f"s_xor_b32 {s(50)}, {s(50)}, {s(mask_lo_s)}")
    A(f"s_xor_b32 {s(51)}, {s(51)}, {s(mask_hi_s)}")
    A(f"s_or_b32 {s(50)}, {s(50)}, {s(51)}")
    A(f"s_cmp_eq_u32 {s(50)}, 0")
    A(f"s_cbranch_scc1 {ok}")
    A("s_sleep 4")
    A(f"s_branch {lab}")
    A(f"{ok}:")
def wait_finit(A):
    lab = A.label("L_wfi"); ok = A.label("L_wfiok")
    A(f"v_mov_b32 {v(wFL)}, {DBG_FINIT}")
    A(f"s_mov_b32 {s(49)}, 0")
    A(f"{lab}:")
    A(f"global_load_dword {v(wFL+1)}, {v(wFL)}, {s(sDBG,2)} sc1")
    A(f"s_add_u32 {s(49)}, {s(49)}, 1")
    A(f"s_cmp_gt_u32 {s(49)}, 0x20000")
    A(f"s_cbranch_scc1 {ok}")
    A("s_waitcnt vmcnt(0)")
    A(f"v_cmp_gt_u32 vcc, 256, {v(wFL+1)}")
    A(f"s_cbranch_vccz {ok}")
    A("s_sleep 2")
    A(f"s_branch {lab}")
    A(f"{ok}:")

def load_ptrs(A):
    for reg,off in ((60,KA_X),(62,KA_WQ),(64,KA_WK),(66,KA_WV),(68,KA_WO),(70,KA_W1),(72,KA_W3),(74,KA_W2),(76,KA_GW),(78,KA_OUT),(sDBG,KA_DBG),(sWS,KA_WS)):
        A(f"s_load_dwordx2 {s(reg,2)}, s[0:1], {off}")
    A("v_lshrrev_b32 v1, 6, v0")
    A(f"v_readfirstlane_b32 {s(sWAVE)}, v1")
    A(f"v_and_b32 {v(wLANE)}, 63, v0")
    A(f"v_lshlrev_b32 {v(wL16)}, 4, {v(wLANE)}")
    A("s_waitcnt lgkmcnt(0)")

def dma_x_setup(A):
    A(f"s_and_b32 {s(sT)}, {s(sWAVE)}, 1")
    A(f"s_lshl_b32 {s(sT)}, {s(sT)}, 7")
    A(f"v_xor_b32 {v(wDM)}, {s(sT)}, {v(wL16)}")

def dma_x(A, slot_reg):
    A(f"s_lshl_b32 {s(sT)}, {s(sWAVE)}, 13")
    A(f"s_add_u32 {s(sT+4)}, {s(sAP)}, {s(sT)}")
    A(f"s_addc_u32 {s(sT+5)}, {s(sAP+1)}, 0")
    A(f"s_add_u32 {s(sT)}, {s(sT)}, {s(slot_reg)}")
    out = []
    for i in range(8):
        A(f"v_xor_b32 {v(wDM+1)}, {i*16}, {v(wDM)}")
        A(f"s_add_u32 m0, {s(sT)}, {i*1024}")
        A(f"global_load_lds_dwordx4 {v(wDM+1)}, {s(sT+4,2)}")
        if i < 7:
            A(f"s_add_u32 {s(sT+4)}, {s(sT+4)}, 1024")
            A(f"s_addc_u32 {s(sT+5)}, {s(sT+5)}, 0")

def dma_lin(A, slot_reg, nfrag=32, mod=""):
    per = nfrag // 4
    A(f"s_mul_i32 {s(sT)}, {s(sWAVE)}, {per*1024}")
    A(f"s_add_u32 {s(sT+4)}, {s(sAP)}, {s(sT)}")
    A(f"s_addc_u32 {s(sT+5)}, {s(sAP+1)}, 0")
    A(f"s_add_u32 {s(sT)}, {s(sT)}, {s(slot_reg)}")
    for i in range(0, per, 4):
        A(f"s_add_u32 m0, {s(sT)}, {i*1024}")
        for j in range(min(4, per-i)):
            A(f"global_load_lds_dwordx4 {v(wL16)}, {s(sT+4,2)} offset:{j*1024} {mod}")
        if i + 4 < per:
            A(f"s_add_u32 {s(sT+4)}, {s(sT+4)}, 4096")
            A(f"s_addc_u32 {s(sT+5)}, {s(sT+5)}, 0")

sSLOT=34; sCNT=35; sSL=36; sSTR=33

def epi_kq(A, st=""):
    E = wE
    for Tt in range(2):
        for hf in range(2):
            for d in range(4):
                r = wAC + 16*Tt + 8*hf + 2*d
                A(f"v_cvt_pk_bf16_f32 {v(E+8*Tt+4*hf+d)}, {v(r)}, {v(r+1)}")
            A(f"global_store_dwordx4 {v(E+20)}, {v(E+8*Tt+4*hf,4)}, {s(sOP,2)} offset:{Tt*1024+hf*512} {st}")

def epi_v(A, st=""):
    E = wE
    for Tt in range(2):
        for u in range(2):
            base = wAC + 16*Tt
            regs = [base+4*u, base+4*u+2, base+8+4*u, base+8+4*u+2]
            for d in range(4):
                A(f"v_cvt_pk_bf16_f32 {v(E+8*Tt+4*u+d)}, {v(regs[d])}, {v(regs[d]+1)}")
            A(f"global_store_dwordx4 {v(E+20)}, {v(E+8*Tt+4*u,4)}, {s(sOP,2)} offset:{Tt*2048+u*512} {st}")

def unpack2(A, dlo, dhi, src):
    A(f"v_lshlrev_b32 {v(dlo)}, 16, {v(src)}")
    A(f"v_and_b32 {v(dhi)}, 0xffff0000, {v(src)}")

def epi_ffn(A, st=""):
    E = wE
    G = wAC; U = wAC+16
    t = E+8
    for hf in range(2):
        for d in range(4):
            g = G + 8*hf + 2*d; u = U + 8*hf + 2*d
            A(f"v_cvt_pk_bf16_f32 {v(t)}, {v(g)}, {v(g+1)}")
            A(f"v_cvt_pk_bf16_f32 {v(t+1)}, {v(u)}, {v(u+1)}")
            unpack2(A, t+2, t+3, t)
            unpack2(A, t+6, t+7, t+1)
            A(f"v_pk_mul_f32 {v(t+4,2)}, {v(t+2,2)}, {s(40,2)}")
            A(f"v_exp_f32 {v(t+4)}, {v(t+4)}")
            A(f"v_exp_f32 {v(t+5)}, {v(t+5)}")
            A(f"v_pk_add_f32 {v(t+4,2)}, {v(t+4,2)}, {s(42,2)}")
            A(f"v_rcp_f32 {v(t+4)}, {v(t+4)}")
            A(f"v_rcp_f32 {v(t+5)}, {v(t+5)}")
            A(f"v_pk_mul_f32 {v(t+4,2)}, {v(t+4,2)}, {v(t+2,2)}")
            A(f"v_cvt_pk_bf16_f32 {v(t)}, {v(t+4)}, {v(t+5)}")
            unpack2(A, t+4, t+5, t)
            A(f"v_pk_mul_f32 {v(t+4,2)}, {v(t+4,2)}, {v(t+6,2)}")
            A(f"v_cvt_pk_bf16_f32 {v(E+4*hf+d)}, {v(t+4)}, {v(t+5)}")
        A(f"global_store_dwordx4 {v(wL16)}, {v(E+4*hf,4)}, {s(sOP,2)} offset:{hf*1024} {st}")

def epi_part(A, st=""):
    for Tt in range(2):
        for hq in range(4):
            r = wAC + 16*Tt + 4*hq
            off = Tt*4096 + hq*1024
            if off < 4096: A(f"global_store_dwordx4 {v(wL16)}, {v(r,4)}, {s(sOP,2)} offset:{off} {st}")
            else: A(f"global_store_dwordx4 {v(wDM)}, {v(r,4)}, {s(sOP,2)} offset:{off-4096} {st}")

PROF=False
def pst(A,k):
    if PROF:
        A(f"s_memtime {s(90,2)}"); A("s_waitcnt lgkmcnt(0)")
        A(f"s_sub_u32 {s(92)}, {s(90)}, {s(93)}"); A(f"s_mov_b32 {s(93)}, {s(90)}"); A(f"s_add_u32 {s(94+k)}, {s(94+k)}, {s(92)}")
def seg_loop(A, kind, nseg_reg_init, seg_stride, ksteps=32, st=""):
    mode = "x"
    lab = A.label("L_seg")
    def set_ap():
        A(f"s_lshl_b32 {s(sT)}, {s(sSEG)}, 15")
        A(f"s_add_u32 {s(sAP)}, {s(60)}, {s(sT)}")
        A(f"s_addc_u32 {s(sAP+1)}, {s(61)}, 0")
    A(f"s_mov_b32 {s(sSLOT)}, 0")
    set_ap()
    dma_x(A, sSLOT)
    nst = 2 if kind == "ffn" else 4
    A(f"s_mov_b32 {s(52)}, -1")
    A(f"s_mov_b32 {s(53)}, -1")
    A("s_waitcnt vmcnt(0)")
    if PROF:
        for k in range(6): A(f"s_mov_b32 {s(94+k)}, 0")
        A(f"s_memtime {s(90,2)}"); A("s_waitcnt lgkmcnt(0)"); A(f"s_mov_b32 {s(93)}, {s(90)}")
    A(f"{lab}:")
    A(f"s_waitcnt vmcnt({nst})")
    A("s_barrier")
    pst(A,0)
    if USE_FLAGS:
        nf = A.label("L_nf")
        A(f"s_cmp_eq_u32 {s(52)}, -1")
        A(f"s_cbranch_scc1 {nf}")
        flag_set(A, 52, 0, idx_s=sSL)
        A(f"{nf}:")
        A(f"s_mov_b32 {s(52)}, {s(53)}")
        A(f"s_mov_b32 {s(53)}, {s(sSEG)}")
    if kind in ("k","q","v"):
        base = {"k":WS_KX,"q":WS_Q,"v":WS_VX}[kind]
        A(f"s_lshl_b32 {s(sT)}, {s(sSEG)}, 18")
        A(f"s_add_u32 {s(sT)}, {s(sT)}, {s(37)}")
        A(f"s_add_u32 {s(sT)}, {s(sT)}, {base}")
    else:
        A(f"s_mul_i32 {s(sT)}, {s(sSEG)}, {56*2048}")
        A(f"s_add_u32 {s(sT)}, {s(sT)}, {s(37)}")
        A(f"s_add_u32 {s(sT)}, {s(sT)}, {WS_H}")
    A(f"s_add_u32 {s(sOP)}, {s(sWS)}, {s(sT)}")
    A(f"s_addc_u32 {s(sOP+1)}, {s(sWS+1)}, 0")
    nx = A.label("L_nonext")
    A(f"s_add_u32 {s(sSEG)}, {s(sSEG)}, {s(sSTR)}")
    A(f"s_sub_u32 {s(sCNT)}, {s(sCNT)}, 1")
    A(f"s_xor_b32 {s(sSLOT)}, {s(sSLOT)}, 32768")
    A(f"s_cmp_eq_u32 {s(sCNT)}, 0")
    A(f"s_cbranch_scc1 {nx}")
    A.cbegin()
    set_ap()
    dma_x(A, sSLOT)
    A.cend()
    A(f"{nx}:")
    pst(A,1)
    mma_chunk(A, ksteps, mode, 0, transposed=(kind != "v"))
    pst(A,2)
    for b in range(8): A(f"v_xor_b32 {v(wAR+b)}, 32768, {v(wAR+b)}")
    if kind in ("k","q"): epi_kq(A, st)
    elif kind == "v": epi_v(A, st)
    else: epi_ffn(A, st)
    pst(A,3)
    A(f"s_cmp_lg_u32 {s(sCNT)}, 0")
    A(f"s_cbranch_scc1 {lab}")
    if USE_FLAGS:
        A("s_waitcnt vmcnt(0)")
        A("s_barrier")
        nf2 = A.label("L_nf")
        A(f"s_cmp_eq_u32 {s(52)}, -1")
        A(f"s_cbranch_scc1 {nf2}")
        flag_set(A, 52, 0, idx_s=sSL)
        A(f"{nf2}:")
        flag_set(A, 53, 0, idx_s=sSL)

def gen_proj_body(A, st=""):
    done = A.label("L_pdone")
    lk, lv, lq, lf = [A.label(x) for x in ("L_pk","L_pv","L_pq","L_pf")]
    A(f"s_cmp_lt_u32 {s(sSL)}, 16"); A(f"s_cbranch_scc1 {lk}")
    A(f"s_cmp_lt_u32 {s(sSL)}, 32"); A(f"s_cbranch_scc1 {lv}")
    A(f"s_cmp_lt_u32 {s(sSL)}, 48"); A(f"s_cbranch_scc1 {lq}")
    A(f"s_branch {lf}")
    for kind,lab,first,ptr in (("k",lk,0,64),("v",lv,16,66),("q",lq,32,62)):
        A(f"{lab}:")
        A(f"s_sub_u32 {s(sT+6)}, {s(sSL)}, {first}")
        A(f"s_lshl_b32 {s(sT)}, {s(sT+6)}, 9")
        A(f"s_add_u32 {s(sWB)}, {s(ptr)}, {s(sT)}")
        A(f"s_addc_u32 {s(sWB+1)}, {s(ptr+1)}, 0")
        A(f"s_mov_b32 {s(sLDW)}, 8192")
        A(f"s_lshr_b32 {s(sT)}, {s(sWAVE)}, 1")
        A(f"s_lshl_b32 {s(sT+1)}, {s(sT+6)}, 1")
        A(f"s_add_u32 {s(sT)}, {s(sT)}, {s(sT+1)}")
        A(f"s_lshl_b32 {s(37)}, {s(sT)}, 13")
        A(f"s_and_b32 {s(sT)}, {s(sWAVE)}, 1")
        A(f"s_lshl_b32 {s(sT)}, {s(sT)}, {11 if kind != 'v' else 12}")
        A(f"s_add_u32 {s(37)}, {s(37)}, {s(sT)}")
        load_weights(A, 32, ffn=False, sigma=(kind != "v"))
        setup_a_addr(A, "x"); dma_x_setup(A)
        T = wT
        if kind != "v":
            A(f"v_bfe_u32 {v(T)}, {v(wLANE)}, 4, 1")
            A(f"v_lshrrev_b32 {v(T+1)}, 5, {v(wLANE)}")
            A(f"v_and_b32 {v(T+2)}, 15, {v(wLANE)}")
            A(f"v_lshl_add_u32 {v(T+1)}, {v(T+1)}, 4, {v(T+2)}")
            A(f"v_lshlrev_b32 {v(T+1)}, 4, {v(T+1)}")
            A(f"v_lshl_add_u32 {v(wE+20)}, {v(T)}, 12, {v(T+1)}")
        else:
            A(f"v_bfe_u32 {v(T)}, {v(wLANE)}, 4, 1")
            A(f"v_lshrrev_b32 {v(T+1)}, 5, {v(wLANE)}")
            A(f"v_and_b32 {v(T+2)}, 15, {v(wLANE)}")
            A(f"v_lshl_add_u32 {v(T+1)}, {v(T+1)}, 4, {v(T+2)}")
            A(f"v_lshlrev_b32 {v(T+1)}, 4, {v(T+1)}")
            A(f"v_lshl_add_u32 {v(wE+20)}, {v(T)}, 10, {v(T+1)}")
        seg_loop(A, kind, None, 4, 32, st)
        A(f"s_branch {done}")
    A(f"{lf}:")
    A(f"s_sub_u32 {s(sT+6)}, {s(sSL)}, 48")
    A(f"s_lshl_b32 {s(sT)}, {s(sT+6)}, 8")
    A(f"s_add_u32 {s(sWB)}, {s(70)}, {s(sT)}")
    A(f"s_addc_u32 {s(sWB+1)}, {s(71)}, 0")
    A(f"s_add_u32 {s(sWB2)}, {s(72)}, {s(sT)}")
    A(f"s_addc_u32 {s(sWB2+1)}, {s(73)}, 0")
    A(f"s_mov_b32 {s(sLDW)}, 3584")
    A(f"s_lshl_b32 {s(sT)}, {s(sT+6)}, 2")
    A(f"s_add_u32 {s(sT)}, {s(sT)}, {s(sWAVE)}")
    A(f"s_lshl_b32 {s(37)}, {s(sT)}, 11")
    A(f"s_mov_b32 {s(40)}, {f2u(-LOG2E):#x}"); A(f"s_mov_b32 {s(41)}, {f2u(-LOG2E):#x}")
    A(f"s_mov_b32 {s(42)}, 1.0"); A(f"s_mov_b32 {s(43)}, 1.0")
    load_weights(A, 32, ffn=True, sigma=True)
    setup_a_addr(A, "x"); dma_x_setup(A)
    seg_loop(A, "ffn", None, 4, 32, st)
    A(f"{done}:")

def gen_proj_kernel(A, name="proj_kernel"):
    A.raw(kstart(name))
    load_ptrs(A)
    A("s_cmp_ge_u32 s2, 248")
    A("s_cbranch_scc1 L_proj_exit")
    A(f"s_lshr_b32 {s(sSL)}, s2, 2")
    A(f"s_and_b32 {s(sSEG)}, s2, 3")
    A(f"s_mov_b32 {s(sCNT)}, 16")
    A(f"s_mov_b32 {s(sSTR)}, 4")
    if PROF:
        A(f"s_memtime {s(88,2)}"); A("s_waitcnt lgkmcnt(0)")
    gen_proj_body(A)
    if PROF:
        A(f"s_memtime {s(90,2)}"); A("s_waitcnt lgkmcnt(0)")
        A(f"s_sub_u32 {s(98)}, {s(90)}, {s(88)}")
        A(f"s_lshl_b32 {s(12)}, s2, 5"); A(f"s_add_u32 {s(12)}, {s(12)}, {WS_END_CHAIN}")
        A(f"v_mov_b32 v24, {s(12)}")
        for k in range(5):
            A(f"v_mov_b32 v25, {s(94+k)}"); A(f"global_store_dword v24, v25, {s(sWS,2)} offset:{4*k}")
        A("s_waitcnt vmcnt(0)")
    A("L_proj_exit:")
    A("s_endpgm")

def part_loop(A, ksteps, src, st="", seg_stride=1, pre=None):
    lab = A.label("L_seg")
    def set_ap():
        A(f"s_mul_i32 {s(sT)}, {s(sSEG)}, {56*2048}")
        A(f"s_add_u32 {s(sT)}, {s(sT)}, {s(37)}")
        A(f"s_add_u32 {s(sAP)}, {s(sWS)}, {s(sT)}")
        A(f"s_addc_u32 {s(sAP+1)}, {s(sWS+1)}, 0")
    mod = "sc1" if USE_FLAGS else ""
    A(f"s_mov_b32 {s(sSLOT)}, 0")
    if USE_FLAGS:
        wl = A.label("L_dw")
        A(f"s_mov_b32 {s(52)}, {s(sSEG)}")
        A(f"s_mov_b32 {s(53)}, {s(sCNT)}")
        A(f"{wl}:")
        flag_wait(A, 52, 0, 54, 55)
        A(f"s_add_u32 {s(52)}, {s(52)}, {seg_stride}")
        A(f"s_sub_u32 {s(53)}, {s(53)}, 1")
        A(f"s_cmp_lg_u32 {s(53)}, 0")
        A(f"s_cbranch_scc1 {wl}")
    set_ap()
    dma_lin(A, sSLOT, ksteps, mod)
    A(f"s_mov_b32 {s(52)}, -1")
    A(f"s_mov_b32 {s(53)}, -1")
    A("s_waitcnt vmcnt(0)")
    A(f"{lab}:")
    A("s_waitcnt vmcnt(8)")
    A("s_barrier")
    if USE_FLAGS:
        nf = A.label("L_nf")
        A(f"s_cmp_eq_u32 {s(52)}, -1")
        A(f"s_cbranch_scc1 {nf}")
        flag_set(A, 52, 1, idx_s=sSL, idx_c=FL2_PB)
        A(f"{nf}:")
        A(f"s_mov_b32 {s(52)}, {s(53)}")
        A(f"s_mov_b32 {s(53)}, {s(sSEG)}")
    A(f"s_lshl_b32 {s(sT)}, {s(sSEG)}, 16")
    A(f"s_add_u32 {s(sT)}, {s(sT)}, {s(38)}")
    A(f"s_add_u32 {s(sOP)}, {s(sWS)}, {s(sT)}")
    A(f"s_addc_u32 {s(sOP+1)}, {s(sWS+1)}, 0")
    nx = A.label("L_nonext")
    A(f"s_add_u32 {s(sSEG)}, {s(sSEG)}, {seg_stride}")
    A(f"s_sub_u32 {s(sCNT)}, {s(sCNT)}, 1")
    A(f"s_xor_b32 {s(sSLOT)}, {s(sSLOT)}, 32768")
    A(f"s_cmp_eq_u32 {s(sCNT)}, 0")
    A(f"s_cbranch_scc1 {nx}")
    A.cbegin()
    set_ap()
    dma_lin(A, sSLOT, ksteps, mod)
    A.cend()
    A(f"{nx}:")
    mma_chunk(A, ksteps, "f", 0, transposed=True)
    A(f"v_xor_b32 {v(wAR)}, 32768, {v(wAR)}")
    epi_part(A, st)
    A(f"s_cmp_lg_u32 {s(sCNT)}, 0")
    A(f"s_cbranch_scc1 {lab}")
    if USE_FLAGS:
        A("s_waitcnt vmcnt(0)")
        A("s_barrier")
        nf2 = A.label("L_nf")
        A(f"s_cmp_eq_u32 {s(52)}, -1")
        A(f"s_cbranch_scc1 {nf2}")
        flag_set(A, 52, 1, idx_s=sSL, idx_c=FL2_PB)
        A(f"{nf2}:")
        flag_set(A, 53, 1, idx_s=sSL, idx_c=FL2_PB)

def gen_down_body(A, seg_stride, st=""):
    done = A.label("L_ddone"); l3 = A.label("L_d3")
    A(f"s_lshr_b32 {s(sT+6)}, {s(sSL)}, 1")
    A(f"s_and_b32 {s(sT+7)}, {s(sSL)}, 1")
    A(f"s_lshl_b32 {s(sT)}, {s(sT+6)}, 19")
    A(f"s_lshl_b32 {s(sT+1)}, {s(sT+7)}, 9")
    A(f"s_add_u32 {s(sT)}, {s(sT)}, {s(sT+1)}")
    A(f"s_add_u32 {s(sWB)}, {s(74)}, {s(sT)}")
    A(f"s_addc_u32 {s(sWB+1)}, {s(75)}, 0")
    A(f"s_mov_b32 {s(sLDW)}, 1024")
    A(f"s_lshl_b32 {s(37)}, {s(sT+6)}, 15")
    A(f"s_add_u32 {s(37)}, {s(37)}, {WS_H}")
    A(f"s_lshl_b32 {s(38)}, {s(sT+6)}, 22")
    A(f"s_lshl_b32 {s(sT)}, {s(sT+7)}, 15")
    A(f"s_add_u32 {s(38)}, {s(38)}, {s(sT)}")
    A(f"s_lshl_b32 {s(sT)}, {s(sWAVE)}, 13")
    A(f"s_add_u32 {s(38)}, {s(38)}, {s(sT)}")
    A(f"s_add_u32 {s(38)}, {s(38)}, {WS_PB}")
    A(f"v_add_u32 {v(wDM)}, 4096, {v(wL16)}")
    A(f"s_mov_b32 {s(54)}, 0")
    A(f"s_lshl_b32 {s(sT)}, {s(sT+6)}, 2")
    A(f"s_add_u32 {s(sT)}, {s(sT)}, 16")
    A(f"s_lshl_b32 {s(55)}, 15, {s(sT)}")
    A(f"s_and_b32 {s(55)}, {s(55)}, 0x3fffffff")
    A(f"s_cmp_eq_u32 {s(sT+6)}, 3")
    A(f"s_cbranch_scc1 {l3}")
    for ksteps,lab in ((32,None),(16,l3)):
        if lab: A(f"{lab}:")
        load_weights(A, ksteps, ffn=False, sigma=True)
        setup_a_addr(A, "f")
        part_loop(A, ksteps, "h", st, seg_stride)
        A(f"s_branch {done}")
    A(f"{done}:")

def gen_down_kernel(A, name="down_kernel"):
    A.raw(kstart(name))
    load_ptrs(A)
    A("s_cmp_ge_u32 s2, 256")
    A("s_cbranch_scc1 L_down_exit")
    A(f"s_lshr_b32 {s(sSL)}, s2, 5")
    A(f"s_and_b32 {s(sSEG)}, s2, 31")
    A(f"s_mov_b32 {s(sCNT)}, 2")
    gen_down_body(A, 32)
    A("L_down_exit:")
    A("s_endpgm")

SCALE_LOG2E = (128.0 ** -0.5) * LOG2E
aQ=96; aKX=128; aKM=160; aVX=176; aVM=208
aS=216
aBI=236
aP=240
aT=252
aO=64
aOW=11
aM=12

def attn_loads(A, mod=""):
    P = 44
    A(f"s_lshl_b32 {s(sT)}, {s(sSEG)}, 5")
    A(f"s_add_u32 {s(sT)}, {s(sT)}, {s(39)}")
    A(f"s_lshl_b32 {s(sT+1)}, {s(sT)}, 13")
    for (base, reg, n) in ((WS_Q,aQ,8),(WS_KX,aKX,8),(WS_VX,aVX,8)):
        A(f"s_add_u32 {s(sT+2)}, {s(sT+1)}, {base}")
        A(f"s_add_u32 {s(P)}, {s(sWS)}, {s(sT+2)}")
        A(f"s_addc_u32 {s(P+1)}, {s(sWS+1)}, 0")
        for i in range(n):
            if i == 4:
                A(f"s_add_u32 {s(P)}, {s(P)}, 4096")
                A(f"s_addc_u32 {s(P+1)}, {s(P+1)}, 0")
            A(f"global_load_dwordx4 {v(reg+4*i,4)}, {v(wL16)}, {s(P,2)} offset:{(i&3)*1024} {mod}")
    A(f"s_lshl_b32 {s(sT+1)}, {s(sT)}, 12")
    A(f"s_add_u32 {s(sT+2)}, {s(sT+1)}, {WS_KM}")
    A(f"s_add_u32 {s(P)}, {s(sWS)}, {s(sT+2)}")
    A(f"s_addc_u32 {s(P+1)}, {s(sWS+1)}, 0")
    for i in range(4):
        A(f"global_load_dwordx4 {v(aKM+4*i,4)}, {v(wL16)}, {s(P,2)} offset:{i*1024} {mod}")
    A(f"s_add_u32 {s(sT+2)}, {s(sT+1)}, {WS_VM}")
    A(f"s_add_u32 {s(P)}, {s(sWS)}, {s(sT+2)}")
    A(f"s_addc_u32 {s(P+1)}, {s(sWS+1)}, 0")
    A(f"v_lshrrev_b32 {v(aM+18)}, 1, {v(wL16)}")
    for i in range(4):
        A(f"global_load_dwordx2 {v(aVM+2*i,2)}, {v(aM+18)}, {s(P,2)} offset:{i*512} {mod}")

def attn_setup(A):
    T = aM
    A(f"v_and_b32 {v(T)}, 15, {v(wLANE)}")
    A(f"v_lshrrev_b32 {v(T+1)}, 4, {v(wLANE)}")
    A(f"v_lshlrev_b32 {v(T+2)}, 2, {v(T+1)}")
    A(f"v_mov_b32 {v(T+4)}, 0xff000000")
    for r in range(4):
        A(f"v_add_u32 {v(T+3)}, {r}, {v(T+2)}")
        A(f"v_cmp_gt_u32 vcc, {v(T+3)}, {v(T)}")
        A(f"v_cndmask_b32 {v(aBI+r)}, 0, {v(T+4)}, vcc")
    A(f"v_mov_b32 {v(aP+2)}, 0"); A(f"v_mov_b32 {v(aP+3)}, 0")
    A(f"v_mov_b32 {v(aP+9)}, 0"); A(f"v_mov_b32 {v(aP+11)}, 0")
    A(f"v_lshrrev_b32 {v(T+2)}, 1, {v(T+1)}")
    A(f"v_lshl_add_u32 {v(T+2)}, {v(T+2)}, 5, {v(T)}")
    A(f"v_lshlrev_b32 {v(T+2)}, 4, {v(T+2)}")
    A(f"v_and_b32 {v(T+3)}, 1, {v(T+1)}")
    A(f"v_lshl_add_u32 {v(T+2)}, {v(T+3)}, 3, {v(T+2)}")
    A(f"s_lshl_b32 {s(sT)}, {s(sWAVE)}, 13")
    A(f"v_add_u32 {v(aOW)}, {s(sT)}, {v(T+2)}")
    A(f"s_mov_b32 {s(40)}, {f2u(SCALE_LOG2E):#x}")
    A(f"s_mov_b32 {s(41)}, {f2u(-SCALE_LOG2E):#x}")

def xlane(A, op, r, t):
    A(f"v_mov_b32 {v(t)}, {v(r)}")
    A(f"v_permlane16_swap_b32 {v(r)}, {v(t)}")
    A(f"{op} {v(r)}, {v(r)}, {v(t)}")
    A(f"v_mov_b32 {v(t)}, {v(r)}")
    A(f"v_permlane32_swap_b32 {v(r)}, {v(t)}")
    A(f"{op} {v(r)}, {v(r)}, {v(t)}")

def attention(A):
    S00,S01,S11,SM0,SM1 = aS, aS+4, aS+8, aS+12, aS+16
    def q(t,ks): return v(aQ+(t*4+ks)*4,4)
    def kx(t,ks): return v(aKX+(t*4+ks)*4,4)
    def km(ks): return v(aKM+4*ks,4)
    for ks in range(4):
        for (S,Aop,Bop,c0) in ((S00,kx(0,ks),q(0,ks),v(aBI,4)),(S01,kx(0,ks),q(1,ks),"0"),(S11,kx(1,ks),q(1,ks),v(aBI,4)),
                               (SM0,km(ks),q(0,ks),"0"),(SM1,km(ks),q(1,ks),"0")):
            c = c0 if ks == 0 else v(S,4)
            A(f"v_mfma_f32_16x16x32_bf16 {v(S,4)}, {Aop}, {Bop}, {c}")
    m0_,m1_,t0,t1 = aM, aM+1, aM+2, aM+3
    l0,l1 = aM+4, aM+5
    A(f"v_max3_f32 {v(m0_)}, {v(S00)}, {v(S00+1)}, {v(S00+2)}")
    A(f"v_max3_f32 {v(m0_)}, {v(m0_)}, {v(S00+3)}, {v(SM0)}")
    A(f"v_max_f32 {v(m0_)}, {v(m0_)}, {v(SM0+1)}")
    A(f"v_max3_f32 {v(m1_)}, {v(S01)}, {v(S01+1)}, {v(S01+2)}")
    A(f"v_max3_f32 {v(m1_)}, {v(m1_)}, {v(S01+3)}, {v(S11)}")
    A(f"v_max3_f32 {v(m1_)}, {v(m1_)}, {v(S11+1)}, {v(S11+2)}")
    A(f"v_max3_f32 {v(m1_)}, {v(m1_)}, {v(S11+3)}, {v(SM1)}")
    A(f"v_max_f32 {v(m1_)}, {v(m1_)}, {v(SM1+1)}")
    xlane(A, "v_max_f32", m0_, t0)
    xlane(A, "v_max_f32", m1_, t1)
    A(f"v_mul_f32 {v(m0_)}, {s(41)}, {v(m0_)}")
    A(f"v_mul_f32 {v(m1_)}, {s(41)}, {v(m1_)}")
    for (S,n,m) in ((S00,4,m0_),(SM0,2,m0_),(S01,4,m1_),(S11,4,m1_),(SM1,2,m1_)):
        for r in range(n):
            A(f"v_fma_f32 {v(S+r)}, {v(S+r)}, {s(40)}, {v(m)}")
            A(f"v_exp_f32 {v(S+r)}, {v(S+r)}")
    A(f"v_cvt_pk_bf16_f32 {v(aP)}, {v(S00)}, {v(S00+1)}")
    A(f"v_cvt_pk_bf16_f32 {v(aP+1)}, {v(S00+2)}, {v(S00+3)}")
    A(f"v_cvt_pk_bf16_f32 {v(aP+4)}, {v(S01)}, {v(S01+1)}")
    A(f"v_cvt_pk_bf16_f32 {v(aP+5)}, {v(S01+2)}, {v(S01+3)}")
    A(f"v_cvt_pk_bf16_f32 {v(aP+6)}, {v(S11)}, {v(S11+1)}")
    A(f"v_cvt_pk_bf16_f32 {v(aP+7)}, {v(S11+2)}, {v(S11+3)}")
    A(f"v_cvt_pk_bf16_f32 {v(aP+8)}, {v(SM0)}, {v(SM0+1)}")
    A(f"v_cvt_pk_bf16_f32 {v(aP+10)}, {v(SM1)}, {v(SM1+1)}")
    A(f"v_add_f32 {v(l0)}, {v(S00)}, {v(S00+1)}")
    for r in (S00+2,S00+3,SM0,SM0+1): A(f"v_add_f32 {v(l0)}, {v(l0)}, {v(r)}")
    A(f"v_add_f32 {v(l1)}, {v(S01)}, {v(S01+1)}")
    for r in (S01+2,S01+3,S11,S11+1,S11+2,S11+3,SM1,SM1+1): A(f"v_add_f32 {v(l1)}, {v(l1)}, {v(r)}")
    xlane(A, "v_add_f32", l0, t0)
    xlane(A, "v_add_f32", l1, t1)
    A(f"v_rcp_f32 {v(l0)}, {v(l0)}")
    A(f"v_rcp_f32 {v(l1)}, {v(l1)}")
    for th in range(2):
        Bx = v(aP+4*th,4); Bm = v(aP+8+2*th,2); l = (l0,l1)[th]
        for tau in range(8):
            vm = v(aVM+2*(tau>>1),2)
            A(f"v_mfma_f32_16x16x32_bf16 {v(aO+4*tau,4)}, {v(aVX+4*tau,4)}, {Bx}, 0")
        for tau in range(8):
            if tau & 1 == 0: a2 = v(aVM+2*(tau>>1),2)
            else: a2 = v(aM+8+2*(tau>>1),2)
            A(f"v_mfma_f32_16x16x16_bf16 {v(aO+4*tau,4)}, {a2}, {Bm}, {v(aO+4*tau,4)}")
        for tau in range(8):
            o = aO+4*tau
            for r in range(4): A(f"v_mul_f32 {v(o+r)}, {v(o+r)}, {v(l)}")
            A(f"v_cvt_pk_bf16_f32 {v(aM+16)}, {v(o)}, {v(o+1)}")
            A(f"v_cvt_pk_bf16_f32 {v(aM+17)}, {v(o+2)}, {v(o+3)}")
            A(f"ds_write_b64 {v(aOW)}, {v(aM+16,2)} offset:{tau*1024 + th*256}")

def attn_fix_vm(A):
    for i in range(4):
        A(f"v_mov_b32 {v(aM+8+2*i)}, {v(aVM+2*i+1)}")
        A(f"v_mov_b32 {v(aM+8+2*i+1)}, {v(aVM+2*i)}")

def gen_attn_body(A, seg_stride, st="", mod=""):
    A(f"s_lshr_b32 {s(sT+6)}, {s(sSL)}, 1")
    A(f"s_and_b32 {s(sT+7)}, {s(sSL)}, 1")
    A(f"s_lshl_b32 {s(sT)}, {s(sT+6)}, 19")
    A(f"s_lshl_b32 {s(sT+1)}, {s(sT+7)}, 9")
    A(f"s_add_u32 {s(sT)}, {s(sT)}, {s(sT+1)}")
    A(f"s_add_u32 {s(sWB)}, {s(68)}, {s(sT)}")
    A(f"s_addc_u32 {s(sWB+1)}, {s(69)}, 0")
    A(f"s_mov_b32 {s(sLDW)}, 1024")
    A(f"s_lshl_b32 {s(39)}, {s(sT+6)}, 2")
    A(f"s_add_u32 {s(39)}, {s(39)}, {s(sWAVE)}")
    A(f"s_lshl_b32 {s(38)}, {s(sT+6)}, 22")
    A(f"s_lshl_b32 {s(sT)}, {s(sT+7)}, 15")
    A(f"s_add_u32 {s(38)}, {s(38)}, {s(sT)}")
    A(f"s_lshl_b32 {s(sT)}, {s(sWAVE)}, 13")
    A(f"s_add_u32 {s(38)}, {s(38)}, {s(sT)}")
    A(f"s_add_u32 {s(38)}, {s(38)}, {WS_PA}")
    load_weights(A, 32, ffn=False, sigma=True)
    setup_a_addr(A, "f")
    A(f"v_add_u32 {v(wDM)}, 4096, {v(wL16)}")
    attn_setup(A)
    if USE_FLAGS:
        A(f"s_lshr_b32 {s(sT)}, {s(39)}, 1")
        A(f"s_lshl_b32 {s(54)}, 0x10001, {s(sT)}")
        A(f"s_lshl_b32 {s(55)}, 1, {s(sT)}")
        A(f"s_mov_b32 {s(56)}, {s(54)}")
        A(f"s_mov_b32 {s(57)}, 0")
        A(f"s_mov_b32 {s(52)}, -1")
    lab = A.label("L_aseg")
    A(f"{lab}:")
    if USE_FLAGS:
        flag_wait(A, sSEG, 0, 54, 55)
        flag_wait(A, sSEG, 1, 56, 57)
    attn_loads(A, mod)
    A(f"s_lshl_b32 {s(sT)}, {s(sSEG)}, 16")
    A(f"s_add_u32 {s(sT)}, {s(sT)}, {s(38)}")
    A(f"s_add_u32 {s(sOP)}, {s(sWS)}, {s(sT)}")
    A(f"s_addc_u32 {s(sOP+1)}, {s(sWS+1)}, 0")
    A("s_waitcnt vmcnt(0)")
    attn_fix_vm(A)
    attention(A)
    A("s_waitcnt lgkmcnt(0)")
    A("s_barrier")
    if USE_FLAGS:
        nf = A.label("L_nf")
        A(f"s_cmp_eq_u32 {s(52)}, -1")
        A(f"s_cbranch_scc1 {nf}")
        flag_set(A, 52, 1, idx_s=sSL, idx_c=FL2_PA)
        A(f"{nf}:")
        A(f"s_mov_b32 {s(52)}, {s(sSEG)}")
    mma_chunk(A, 32, "f", 0, transposed=True)
    A(f"v_xor_b32 {v(wAR)}, 32768, {v(wAR)}")
    A(f"v_xor_b32 {v(aOW)}, 32768, {v(aOW)}")
    epi_part(A, st)
    if USE_FLAGS:
        A("s_waitcnt vmcnt(0)")
        A("s_barrier")
        flag_set(A, 52, 1, idx_s=sSL, idx_c=FL2_PA)
        A(f"s_mov_b32 {s(52)}, -1")
    A(f"s_add_u32 {s(sSEG)}, {s(sSEG)}, {seg_stride}")
    A(f"s_sub_u32 {s(sCNT)}, {s(sCNT)}, 1")
    A(f"s_cmp_lg_u32 {s(sCNT)}, 0")
    A(f"s_cbranch_scc1 {lab}")


def gen_kvm_body(A):
    done = A.label("L_kvmdone"); lv = A.label("L_kvmv")
    A(f"s_cmp_ge_u32 {s(sSL)}, 16")
    A(f"s_cbranch_scc1 {lv}")
    for kind in ("k","v"):
        if kind == "v": A(f"{lv}:")
        ptr = 64 if kind == "k" else 66
        A(f"s_and_b32 {s(sT+6)}, {s(sSL)}, 15")
        A(f"s_lshl_b32 {s(sT)}, {s(sT+6)}, 9")
        A(f"s_add_u32 {s(sWB)}, {s(ptr)}, {s(sT)}")
        A(f"s_addc_u32 {s(sWB+1)}, {s(ptr+1)}, 0")
        A(f"s_mov_b32 {s(sLDW)}, 8192")
        A(f"s_lshr_b32 {s(sT)}, {s(sWAVE)}, 1")
        A(f"s_lshl_b32 {s(sT+1)}, {s(sT+6)}, 1")
        A(f"s_add_u32 {s(sT)}, {s(sT)}, {s(sT+1)}")
        A(f"s_lshl_b32 {s(37)}, {s(sT)}, 12")
        A(f"s_and_b32 {s(sT)}, {s(sWAVE)}, 1")
        A(f"s_lshl_b32 {s(sT)}, {s(sT)}, {11 if kind == 'k' else 10}")
        A(f"s_add_u32 {s(37)}, {s(37)}, {s(sT)}")
        load_weights(A, 32, ffn=False, sigma=(kind == "k"))
        setup_a_addr(A, "x")
        T = wT
        A(f"v_and_b32 {v(T)}, 15, {v(wLANE)}")
        A(f"v_lshrrev_b32 {v(T+1)}, 4, {v(wLANE)}")
        A(f"v_lshrrev_b32 {v(T+2)}, 2, {v(T)}")
        A(f"v_and_b32 {v(T+3)}, 1, {v(T)}")
        A(f"v_lshl_add_u32 {v(T+2)}, {v(T+2)}, 1, {v(T+3)}")
        A(f"v_bfe_u32 {v(T+3)}, {v(T)}, 1, 1")
        A(f"v_lshrrev_b32 {v(T+4)}, 1, {v(T+1)}")
        A(f"v_xor_b32 {v(T+4)}, {v(T+4)}, {v(T+2)}")
        A(f"v_lshlrev_b32 {v(T+4)}, 4, {v(T+4)}")
        A(f"v_lshl_add_u32 {v(T+4)}, {v(T+2)}, 10, {v(T+4)}")
        A(f"v_and_b32 {v(T+5)}, 1, {v(T+1)}")
        A(f"v_lshlrev_b32 {v(T+5)}, 3, {v(T+5)}")
        A(f"v_lshl_add_u32 {v(T+5)}, {v(T+3)}, 2, {v(T+5)}")
        A(f"v_add_u32 {v(T+4)}, {v(T+4)}, {v(T+5)}")
        A(f"s_lshl_b32 {s(sT)}, {s(sWAVE)}, 8")
        A(f"v_add_u32 {v(10)}, {s(sT)}, {v(T+4)}")
        A(f"s_lshl_b32 {s(sT)}, {s(sWAVE)}, 11")
        A(f"v_add_u32 {v(11)}, {s(sT)}, {v(wL16)}")
        if kind == "k":
            A(f"v_and_b32 {v(T)}, 7, {v(wLANE)}")
            A(f"v_lshrrev_b32 {v(T+1)}, 1, {v(T)}")
            A(f"v_and_b32 {v(T+2)}, 1, {v(T)}")
            A(f"v_lshl_add_u32 {v(T+1)}, {v(T+1)}, 2, {v(T+2)}")
            A(f"v_lshrrev_b32 {v(T+2)}, 5, {v(wLANE)}")
            A(f"v_lshl_add_u32 {v(T+1)}, {v(T+2)}, 4, {v(T+1)}")
            A(f"v_lshlrev_b32 {v(T+1)}, 4, {v(T+1)}")
            A(f"v_bfe_u32 {v(T+2)}, {v(wLANE)}, 3, 2")
            A(f"v_lshl_add_u32 {v(wE+20)}, {v(T+2)}, 17, {v(T+1)}")
        else:
            A(f"v_and_b32 {v(T)}, 15, {v(wLANE)}")
            A(f"v_bfe_u32 {v(T+1)}, {v(wLANE)}, 4, 1")
            A(f"v_lshrrev_b32 {v(T+2)}, 5, {v(wLANE)}")
            A(f"v_lshl_add_u32 {v(T+2)}, {v(T+2)}, 5, {v(T)}")
            A(f"v_lshlrev_b32 {v(T+2)}, 3, {v(T+2)}")
            A(f"v_lshl_add_u32 {v(wE+20)}, {v(T+1)}, 2, {v(T+2)}")
            for j in range(1,4): A(f"v_add_u32 {v(wE+20+j)}, {j*131072}, {v(wE+20)}")
        A(f"s_mov_b32 {s(sSEG)}, 0")
        A(f"s_add_u32 {s(sAP)}, {s(sWS)}, {WS_MEMP}")
        A(f"s_addc_u32 {s(sAP+1)}, {s(sWS+1)}, 0")
        lab = A.label("L_kvms")
        A(f"{lab}:")
        for q in range(4):
            pl = A.label("L_kvmp"); ok = A.label("L_kvmok")
            A(f"s_mov_b32 {s(49)}, 0")
            A(f"{pl}:")
            A(f"global_load_dwordx4 {v(32,4)}, {v(11)}, {s(sAP,2)} sc1")
            A(f"global_load_dwordx4 {v(36,4)}, {v(11)}, {s(sAP,2)} offset:1024 sc1")
            A(f"s_add_u32 {s(49)}, {s(49)}, 1")
            A(f"s_cmp_gt_u32 {s(49)}, 0x20000")
            A(f"s_cbranch_scc1 {ok}")
            A("s_waitcnt vmcnt(0)")
            A(f"v_max3_u32 {v(T)}, {v(32)}, {v(33)}, {v(34)}")
            A(f"v_max3_u32 {v(T+1)}, {v(35)}, {v(36)}, {v(37)}")
            A(f"v_max3_u32 {v(T)}, {v(T)}, {v(38)}, {v(39)}")
            A(f"v_max_u32 {v(T)}, {v(T)}, {v(T+1)}")
            A(f"v_cmp_eq_u32 vcc, -1, {v(T)}")
            A(f"s_cbranch_vccz {ok}")
            A("s_sleep 2")
            A(f"s_branch {pl}")
            A(f"{ok}:")
            A("s_waitcnt vmcnt(0)")
            A(f"v_xor_b32 {v(T+3)}, {(q&1)*128}, {v(10)}")
            A(f"v_add_u32 {v(T+3)}, {q*8192}, {v(T+3)}")
            for i in range(2):
                for qq in range(4):
                    A(f"v_xor_b32 {v(T+2)}, {(8*i+2*qq)*16}, {v(T+3)}")
                    for hi4 in range(2):
                        e8 = qq + 4*hi4
                        src = 32 + 4*i + (e8 >> 1)
                        op = "ds_write_b16_d16_hi" if (e8 & 1) else "ds_write_b16"
                        A(f"{op} {v(T+2)}, {v(src)} offset:{2*hi4}")
            A("s_waitcnt lgkmcnt(0)")
            A(f"s_add_u32 {s(sAP)}, {s(sAP)}, 8192")
            A(f"s_addc_u32 {s(sAP+1)}, {s(sAP+1)}, 0")
        A("s_barrier")
        A(f"s_lshl_b32 {s(sT)}, {s(sSEG)}, 17")
        A(f"s_add_u32 {s(sT)}, {s(sT)}, {s(37)}")
        A(f"s_add_u32 {s(sT)}, {s(sT)}, {WS_KM if kind == 'k' else WS_VM}")
        A(f"s_add_u32 {s(sOP)}, {s(sWS)}, {s(sT)}")
        A(f"s_addc_u32 {s(sOP+1)}, {s(sWS+1)}, 0")
        mma_chunk(A, 32, "x", 0, transposed=(kind == "k"))
        for b in range(8): A(f"v_xor_b32 {v(wAR+b)}, 32768, {v(wAR+b)}")
        A(f"v_xor_b32 {v(10)}, 32768, {v(10)}")
        E = wE
        if kind == "k":
            for Tt in range(2):
                for hf in range(2):
                    for d in range(4):
                        r = wAC + 16*Tt + 8*hf + 2*d
                        A(f"v_cvt_pk_bf16_f32 {v(E+8*Tt+4*hf+d)}, {v(r)}, {v(r+1)}")
                    A(f"global_store_dwordx4 {v(E+20)}, {v(E+8*Tt+4*hf,4)}, {s(sOP,2)} offset:{Tt*1024+hf*512} sc1")
        else:
            for Tt in range(2):
                for j in range(4):
                    r = wAC + 16*Tt + 4*j
                    A(f"v_cvt_pk_bf16_f32 {v(E+8*Tt+2*j)}, {v(r)}, {v(r+1)}")
                    A(f"v_cvt_pk_bf16_f32 {v(E+8*Tt+2*j+1)}, {v(r+2)}, {v(r+3)}")
                    A(f"global_store_dword {v(E+20+j)}, {v(E+8*Tt+2*j)}, {s(sOP,2)} offset:{Tt*512} sc1")
                    A(f"global_store_dword {v(E+20+j)}, {v(E+8*Tt+2*j+1)}, {s(sOP,2)} offset:{Tt*512+128} sc1")
        A("s_waitcnt vmcnt(0)")
        A("s_barrier")
        for q in range(4):
            flag_set(A, sSEG, 1, idx_s=sSL)
            A(f"s_add_u32 {s(sSEG)}, {s(sSEG)}, 1")
        A(f"s_cmp_lt_u32 {s(sSEG)}, 64")
        A(f"s_cbranch_scc1 {lab}")
        A(f"s_branch {done}")
    A(f"{done}:")

def gen_attn_kernel(A, name="attn_kernel"):
    A.raw(kstart(name))
    load_ptrs(A)
    A("s_cmp_ge_u32 s2, 256")
    A("s_cbranch_scc1 L_attn_exit")
    A(f"s_lshr_b32 {s(sSL)}, s2, 4")
    A(f"s_and_b32 {s(sSEG)}, s2, 15")
    A(f"s_mov_b32 {s(sCNT)}, 4")
    gen_attn_body(A, 16)
    A("L_attn_exit:")
    A("s_endpgm")

def gen_final_body(A, mod=""):
    T = 12
    A(f"s_lshl_b32 {s(sT)}, {s(sWAVE)}, 6")
    A(f"v_add_u32 {v(T)}, {s(sT)}, {v(wLANE)}")
    A(f"v_lshrrev_b32 {v(T+1)}, 3, {v(T)}")
    A(f"v_and_b32 {v(T+2)}, 7, {v(T)}")
    A(f"v_lshlrev_b32 {v(T+3)}, 7, {v(T+2)}")
    A(f"v_lshl_add_u32 {v(T+4)}, {v(T+1)}, 10, {v(T+3)}")
    A(f"s_lshl_b32 {s(sT)}, {s(sSEG)}, 15")
    A(f"s_add_u32 {s(44)}, {s(60)}, {s(sT)}")
    A(f"s_addc_u32 {s(45)}, {s(61)}, 0")
    for i in range(8):
        A(f"global_load_dwordx4 {v(32+4*i,4)}, {v(T+4)}, {s(44,2)} offset:{16*i}")
        A(f"global_load_dwordx4 {v(64+4*i,4)}, {v(T+3)}, {s(76,2)} offset:{16*i}")
    A(f"s_lshr_b32 {s(sT)}, {s(sSL)}, 1")
    A(f"s_lshl_b32 {s(sT)}, {s(sT)}, 15")
    A(f"s_and_b32 {s(sT+1)}, {s(sSL)}, 1")
    A(f"s_lshl_b32 {s(sT+1)}, {s(sT+1)}, 12")
    A(f"s_add_u32 {s(sT)}, {s(sT)}, {s(sT+1)}")
    A(f"s_lshl_b32 {s(sT+1)}, {s(sWAVE)}, 13")
    A(f"s_add_u32 {s(sT)}, {s(sT)}, {s(sT+1)}")
    A(f"s_lshl_b32 {s(sT+1)}, {s(sSEG)}, 16")
    A(f"s_add_u32 {s(sT+2)}, {s(sT)}, {s(sT+1)}")
    A("s_waitcnt vmcnt(0)")
    A(f"v_mov_b32 {v(T+5)}, 0")
    for i in range(32):
        x = 32+i; g = 64+i
        A(f"v_lshlrev_b32 {v(T+6)}, 16, {v(x)}")
        A(f"v_and_b32 {v(T+7)}, 0xffff0000, {v(x)}")
        A(f"v_lshlrev_b32 {v(T+8)}, 16, {v(g)}")
        A(f"v_and_b32 {v(T+9)}, 0xffff0000, {v(g)}")
        A(f"v_mul_f32 {v(T+6)}, {v(T+6)}, {v(T+8)}")
        A(f"v_mul_f32 {v(T+7)}, {v(T+7)}, {v(T+9)}")
        A(f"v_cvt_pk_bf16_f32 {v(T+6)}, {v(T+6)}, {v(T+7)}")
        A(f"v_lshlrev_b32 {v(T+7)}, 16, {v(T+6)}")
        A(f"v_and_b32 {v(T+6)}, 0xffff0000, {v(T+6)}")
        A(f"v_add_f32 {v(T+5)}, {v(T+5)}, {v(T+7)}")
        A(f"v_add_f32 {v(T+5)}, {v(T+5)}, {v(T+6)}")
    A(f"v_add_f32_dpp {v(T+5)}, {v(T+5)}, {v(T+5)} quad_perm:[1,0,3,2] row_mask:0xf bank_mask:0xf")
    A(f"v_add_f32_dpp {v(T+5)}, {v(T+5)}, {v(T+5)} quad_perm:[2,3,0,1] row_mask:0xf bank_mask:0xf")
    A(f"v_add_f32_dpp {v(T+5)}, {v(T+5)}, {v(T+5)} row_half_mirror row_mask:0xf bank_mask:0xf")
    A(f"v_cvt_pk_bf16_f32 {v(T+5)}, {v(T+5)}, {v(T+5)}")
    A(f"v_lshlrev_b32 {v(T+5)}, 16, {v(T+5)}")
    A(f"v_mul_f32 {v(T+6)}, {f2u(-LOG2E):#x}, {v(T+5)}")
    A(f"v_exp_f32 {v(T+6)}, {v(T+6)}")
    A(f"v_add_f32 {v(T+6)}, 1.0, {v(T+6)}")
    A(f"v_rcp_f32 {v(T+6)}, {v(T+6)}")
    A(f"v_cvt_pk_bf16_f32 {v(T+6)}, {v(T+6)}, {v(T+6)}")
    A(f"v_lshlrev_b32 {v(T+6)}, 16, {v(T+6)}")
    A(f"v_lshlrev_b32 {v(T+7)}, 2, {v(T+1)}")
    A(f"v_add_u32 {v(T+7)}, 131072, {v(T+7)}")
    A(f"ds_write_b32 {v(T+7)}, {v(T+6)}")
    for p in range(12):
        base = (WS_PA + p*64*65536) if p < 8 else (WS_PB + (p-8)*64*65536)
        A(f"s_add_u32 {s(sT+3)}, {s(sT+2)}, {base}")
        A(f"s_add_u32 {s(44)}, {s(sWS)}, {s(sT+3)}")
        A(f"s_addc_u32 {s(45)}, {s(sWS+1)}, 0")
        for hq in range(4):
            A(f"global_load_dwordx4 {v(32+16*p+4*hq,4)}, {v(wL16)}, {s(44,2)} offset:{hq*1024} {mod}")
    A("s_waitcnt lgkmcnt(0)")
    A("s_barrier")
    A(f"v_and_b32 {v(T+7)}, 31, {v(wLANE)}")
    A(f"v_lshlrev_b32 {v(T+8)}, 2, {v(T+7)}")
    A(f"v_add_u32 {v(T+8)}, 131072, {v(T+8)}")
    A(f"ds_read_b32 {v(T+6)}, {v(T+8)}")
    A("s_waitcnt vmcnt(0) lgkmcnt(0)")
    A(f"v_sub_f32 {v(T+9)}, 1.0, {v(T+6)}")
    A(f"v_cvt_pk_bf16_f32 {v(T+9)}, {v(T+9)}, {v(T+9)}")
    A(f"v_lshlrev_b32 {v(T+9)}, 16, {v(T+9)}")
    for p in range(1,8):
        for r in range(0,16,2): A(f"v_pk_add_f32 {v(32+r,2)}, {v(32+r,2)}, {v(32+16*p+r,2)}")
    for p in range(9,12):
        for r in range(0,16,2): A(f"v_pk_add_f32 {v(160+r,2)}, {v(160+r,2)}, {v(32+16*p+r,2)}")
    for r in range(0,16,2):
        A(f"v_cvt_pk_bf16_f32 {v(T+10)}, {v(32+r)}, {v(32+r+1)}")
        A(f"v_cvt_pk_bf16_f32 {v(T+11)}, {v(160+r)}, {v(160+r+1)}")
        unpack2(A, 48, 49, T+10)
        unpack2(A, 50, 51, T+11)
        A(f"v_mul_f32 {v(48)}, {v(48)}, {v(T+6)}"); A(f"v_mul_f32 {v(49)}, {v(49)}, {v(T+6)}")
        A(f"v_mul_f32 {v(50)}, {v(50)}, {v(T+9)}"); A(f"v_mul_f32 {v(51)}, {v(51)}, {v(T+9)}")
        A(f"v_cvt_pk_bf16_f32 {v(T+10)}, {v(48)}, {v(49)}")
        A(f"v_cvt_pk_bf16_f32 {v(T+11)}, {v(50)}, {v(51)}")
        unpack2(A, 48, 49, T+10)
        unpack2(A, 50, 51, T+11)
        A(f"v_pk_add_f32 {v(48,2)}, {v(48,2)}, {v(50,2)}")
        A(f"v_cvt_pk_bf16_f32 {v(56 + r//2)}, {v(48)}, {v(49)}")
    A(f"s_lshr_b32 {s(sT)}, {s(sSL)}, 1")
    A(f"s_lshl_b32 {s(sT)}, {s(sT)}, 9")
    A(f"s_and_b32 {s(sT+1)}, {s(sSL)}, 1")
    A(f"s_lshl_b32 {s(sT+1)}, {s(sT+1)}, 6")
    A(f"s_add_u32 {s(sT)}, {s(sT)}, {s(sT+1)}")
    A(f"s_lshl_b32 {s(sT+1)}, {s(sWAVE)}, 7")
    A(f"s_add_u32 {s(sT)}, {s(sT)}, {s(sT+1)}")
    A(f"s_lshl_b32 {s(sT+1)}, {s(sSEG)}, 15")
    A(f"s_add_u32 {s(sT)}, {s(sT)}, {s(sT+1)}")
    A(f"s_add_u32 {s(44)}, {s(78)}, {s(sT)}")
    A(f"s_addc_u32 {s(45)}, {s(79)}, 0")
    A(f"v_lshrrev_b32 {v(T+8)}, 5, {v(wLANE)}")
    A(f"v_lshlrev_b32 {v(T+8)}, 4, {v(T+8)}")
    A(f"v_lshl_add_u32 {v(T+8)}, {v(T+7)}, 10, {v(T+8)}")
    A(f"global_store_dwordx4 {v(T+8)}, {v(56,4)}, {s(44,2)}")
    A(f"global_store_dwordx4 {v(T+8)}, {v(60,4)}, {s(44,2)} offset:32")

def gen_final_kernel(A, name="final_kernel"):
    A.raw(kstart(name))
    load_ptrs(A)
    A("s_cmp_ge_u32 s2, 256")
    A("s_cbranch_scc1 L_fin_exit")
    A(f"s_lshr_b32 {s(sSEG)}, s2, 2")
    A(f"s_and_b32 {s(sSL)}, s2, 3")
    gen_final_body(A)
    A("L_fin_exit:")
    A("s_endpgm")

if __name__ == "__main__":
    import sys
    PROF = len(sys.argv) > 2
    A = Asm()
    names = ["proj_kernel","down_kernel","attn_kernel","final_kernel"]
    for n in names: A.raw(f"; @launch kernel={n} grid=(256,1,1) block=(256,1,1) lds=163840")
    A.raw('.amdgcn_target "amdgcn-amd-amdhsa--gfx950"')
    gen_proj_kernel(A); gen_down_kernel(A); gen_attn_kernel(A); gen_final_kernel(A)
    for n in names: A.raw(kd(n))
    open(sys.argv[1],"w").write(A.text())
    print("nops", A.nops, "lines", len(A.out))
```

```python
import sys
from asmlib import *
from layout import *
import chain9 as chain, workers as W
from engine import *
NAME = "gated_mix__memory_aug_recurrent_mem_tr__glu_gated_swiglu__prompt_kernel"
HDR = open("gated_mix__memory_aug_recurrent_mem_tr__glu_gated_swiglu__prompt.s.ref").read().split("; Override launch geometry")[0]

def gen(stamp=0, force_slow=False, wstamp=False, **kw):
    W.USE_FLAGS = True
    A = Asm()
    A.raw(HDR.rstrip("\n"))
    A.raw("; @launch grid=(256,1,1) block=(256,1,1) lds=163840")
    A.raw('.amdgcn_target "amdgcn-amd-amdhsa--gfx950"')
    A.raw(kstart(NAME))
    A("s_cmp_ge_u32 s2, 256")
    A("s_cbranch_scc1 L_exit")
    A(f"s_load_dwordx2 {s(6,2)}, s[0:1], {KA_DBG}")
    A(f"s_load_dwordx2 {s(4,2)}, s[0:1], {KA_WS}")
    A("s_getreg_b32 s12, hwreg(HW_REG_XCC_ID, 0, 4)")
    A("v_lshrrev_b32 v1, 6, v0")
    A("v_readfirstlane_b32 s8, v1")
    A("v_and_b32 v31, 63, v0")
    A("s_waitcnt lgkmcnt(0)")
    A("s_cmp_lg_u32 s8, 0")
    A("s_cbranch_scc1 L_role")
    A("s_lshl_b32 s13, s2, 8")
    A(f"s_add_u32 s13, s13, {WS_FLAGS}")
    A("v_lshlrev_b32 v2, 2, v31")
    A("v_add_u32 v2, s13, v2")
    A("v_mov_b32 v3, 0")
    A("global_store_dword v2, v3, s[4:5] sc1")
    A("s_lshl_b32 s13, s2, 11")
    A(f"s_add_u32 s13, s13, {WS_MEMP}")
    A("v_lshlrev_b32 v2, 4, v31")
    A("v_add_u32 v2, s13, v2")
    for r in range(8,12): A(f"v_mov_b32 v{r}, -1")
    A("global_store_dwordx4 v2, v[8:11], s[4:5] sc1")
    A("global_store_dwordx4 v2, v[8:11], s[4:5] offset:1024 sc1")
    A("s_mov_b64 exec, 1")
    A("v_mov_b32 v3, 1")
    A("s_cmp_lg_u32 s12, 0")
    A("s_cbranch_scc1 L_trywork")
    A(f"v_mov_b32 v2, {DBG_CHT}")
    A("global_atomic_add v4, v2, v3, s[6:7] sc0")
    A("s_waitcnt vmcnt(0)")
    A("v_readfirstlane_b32 s14, v4")
    A("s_cmp_lt_u32 s14, 32")
    A("s_cbranch_scc1 L_haverole")
    A("L_trywork:")
    A(f"v_mov_b32 v2, {DBG_WT}")
    A("global_atomic_add v4, v2, v3, s[6:7] sc0")
    A("s_waitcnt vmcnt(0)")
    A("v_readfirstlane_b32 s14, v4")
    A("s_add_u32 s14, s14, 32")
    A("s_cmp_lt_u32 s14, 256")
    A("s_cbranch_scc1 L_haverole")
    A(f"v_mov_b32 v2, {DBG_CHT}")
    A("global_atomic_add v4, v2, v3, s[6:7] sc0")
    A("s_waitcnt vmcnt(0)")
    A("v_readfirstlane_b32 s14, v4")
    A("L_haverole:")
    A(f"v_mov_b32 v2, {DBG_FINIT}")
    A("global_atomic_add v2, v3, s[6:7]")
    A("v_mov_b32 v4, s14")
    A(f"v_mov_b32 v5, {L_MISC}")
    A("ds_write_b32 v5, v4")
    A("s_waitcnt lgkmcnt(0)")
    A("s_mov_b64 exec, -1")
    A("L_role:")
    A("s_barrier")
    A(f"v_mov_b32 v5, {L_MISC}")
    A("ds_read_b32 v4, v5")
    A("s_waitcnt lgkmcnt(0)")
    A("v_readfirstlane_b32 s14, v4")
    A("s_barrier")
    A("s_cmp_ge_u32 s14, 32")
    A("s_cbranch_scc1 L_worker")
    A(f"s_mov_b32 {s(chain.sRANK)}, s14")
    A(f"s_load_dwordx2 {s(60,2)}, s[0:1], {KA_MEM0}")
    A(f"s_load_dwordx2 {s(62,2)}, s[0:1], {KA_WQ}")
    A(f"s_load_dwordx2 {s(64,2)}, s[0:1], {KA_WK}")
    A(f"s_load_dwordx2 {s(66,2)}, s[0:1], {KA_WV}")
    A(f"s_load_dwordx2 {s(68,2)}, s[0:1], {KA_WO}")
    A("s_waitcnt lgkmcnt(0)")
    chain.gen_chain(A, 64, stamp, flags=True, force_slow=force_slow, **kw)
    A("s_endpgm")
    A.hist = []
    A("L_worker:")
    A("s_sub_u32 s58, s14, 32")
    W.load_ptrs(A)
    W.flag_init_ptr(A)
    def wst(k):
        if wstamp:
            A(f"s_memrealtime {s(80+2*k,2)}")
    wst(0)
    W.wait_finit(A)
    A("s_cmp_lt_u32 s58, 32")
    A("s_cbranch_scc0 L_w1a")
    A(f"s_mov_b32 {s(W.sSL)}, s58")
    W.gen_kvm_body(A)
    A("s_branch L_wend")
    A("L_w1a:")
    A("s_cmp_lt_u32 s58, 218")
    A("s_cbranch_scc0 L_w2")
    A("s_sub_u32 s12, s58, 32")
    A("s_mul_i32 s13, s12, 21846")
    A("s_lshr_b32 s13, s13, 16")
    A(f"s_mov_b32 {s(W.sSL)}, s13")
    A("s_mul_i32 s13, s13, 3")
    A(f"s_sub_u32 {s(sSEG)}, s12, s13")
    A(f"s_mov_b32 {s(W.sSTR)}, 3")
    A(f"s_cmp_eq_u32 {s(sSEG)}, 0")
    A(f"s_cselect_b32 {s(W.sCNT)}, 22, 21")
    W.gen_proj_body(A, st="sc1")
    A("L_w2:")
    wst(1)
    A("s_barrier")
    A("s_cmp_lt_u32 s58, 128")
    A("s_cbranch_scc1 L_w3")
    A("s_cmp_lt_u32 s58, 160")
    A("s_cbranch_scc0 L_w4")
    A("s_sub_u32 s12, s58, 128")
    A(f"s_lshr_b32 {s(W.sSL)}, s12, 2")
    A(f"s_and_b32 {s(sSEG)}, s12, 3")
    A(f"s_mov_b32 {s(W.sCNT)}, 16")
    W.gen_down_body(A, 4, st="sc1")
    A("s_branch L_wend")
    A("L_w3:")
    A("s_sub_u32 s12, s58, 32")
    A(f"s_and_b32 {s(W.sSL)}, s12, 15")
    A(f"s_lshr_b32 {s(sSEG)}, s12, 4")
    A(f"s_cmp_lt_u32 {s(sSEG)}, 4")
    A(f"s_cselect_b32 {s(W.sCNT)}, 11, 10")
    W.gen_attn_body(A, 6, st="sc1", mod="sc1")
    A("s_branch L_wend")
    A("L_w4:")
    A("s_sub_u32 s59, s58, 160")
    A("L_w4loop:")
    A(f"s_lshr_b32 {s(sSEG)}, s59, 2")
    A(f"s_and_b32 {s(W.sSL)}, s59, 3")
    A(f"s_lshr_b32 s12, {s(W.sSL)}, 1")
    A("s_lshl_b32 s55, 0x555555, s12")
    A("s_mov_b32 s54, 0")
    W.flag_wait(A, sSEG, 1, 54, 55)
    W.gen_final_body(A, mod="sc1")
    A("s_barrier")
    A("s_add_u32 s59, s59, 64")
    A("s_cmp_lt_u32 s59, 256")
    A("s_cbranch_scc1 L_w4loop")
    A("L_wend:")
    wst(2)
    if wstamp:
        A("s_waitcnt lgkmcnt(0)")
        A("s_lshl_b32 s12, s58, 5")
        A(f"s_add_u32 s12, s12, {WS_END_CHAIN + 0x8000}")
        A("v_mov_b32 v24, s12")
        for k in range(3):
            A(f"v_mov_b32 v25, {s(80+2*k)}")
            A(f"global_store_dword v24, v25, s[4:5] offset:{4*k}")
    A("s_waitcnt vmcnt(0)")
    A("L_exit:")
    A("s_endpgm")
    A.raw(kd(NAME))
    return A

if __name__ == "__main__":
    kw = {}
    for x in sys.argv[2:]:
        k,val = x.split("="); kw[k] = int(val)
    A = gen(**kw)
    open(sys.argv[1], "w").write(A.text())
    print("nops", A.nops, "lines", len(A.out), "bytes", len(A.text()))
```

```python
from asmlib import *
from layout import *
import struct
def f2u(x): return struct.unpack("<I", struct.pack("<f", x))[0]
SCALE_LOG2E = (128.0 ** -0.5) * 1.4426950408889634

vL16,vIDX,vW16,vLH,vVXA,vPF,vZP,vZP1,vPP,vPG,vMP,vMQW,vMQR0,vMQR1,vOW,vOR,vWO0,vWO1,vPM,vZ = range(20)
X0=20
S0=24; S1=28; SM=120
MA=32
KXR=64
AQK=96
AV=112
T0=124
WV=128
def WQ(t,b): return a(0+(t*8+b)*8, 8)
def WK(t,b): return a(128+(t*8+b)*8, 8)
def WVf(t,b): return v(WV+(t*8+b)*8, 8)
def ma(b): return v(MA+4*b,4)
sWS=4; sDBG=6; sWAVE=8; sRANK=9; sSTEP=10; sT0=12
sMRD=20
sMEMn=24; sMEMc=26; sPc=28; sPc2=30; sKX=32; sVX=34; sKM=36; sVM=38; sSC=40
sSPIN=42; sPH=43; sW=44; sMASK=46; sPFK=48; sOFF=50
sIN=60
sTS=70

def smf(acc, A_, B_): return f"v_smfmac_f32_16x16x64_bf16 {v(acc,4)}, {A_}, {B_}, {v(vIDX)}"

STARTUP_STAMPS = False
WO_FIRST = True
WMOD = "sc1"
EARLY_FLAGS = [False]
L_SCR = 131072

def raw_regs(mat, qq, w):
    out = []
    for bl in range(2):
        bp = (2*qq + bl - 2*w) % 8
        for t in range(2):
            base = (t*8+bp)*8
            for h in range(2):
                if mat == 0: out.append(a(base+4*h, 4))
                elif mat == 1: out.append(a(128+base+4*h, 4))
                else: out.append(v(WV+base+4*h, 4))
    return out

def gen_startup_issue(A, chunk, w):
    if chunk < 12:
        mat = chunk // 4; qq = chunk % 4
        wreg = [62, 64, 66][mat]
        A(f"s_lshl_b32 {s(sT0)}, {s(sRANK)}, 8")
        A(f"s_add_u32 {s(sW)}, {s(wreg)}, {s(sT0)}")
        A(f"s_addc_u32 {s(sW+1)}, {s(wreg+1)}, 0")
        A(f"s_add_u32 {s(sW)}, {s(sW)}, {qq*128*8192}")
        A(f"s_addc_u32 {s(sW+1)}, {s(sW+1)}, 0")
        rr = raw_regs(mat, qq, w)
        for i in range(8):
            A(f"global_load_dwordx4 {rr[i]}, {v(22 + (i>>2))}, {s(sW,2)} {WMOD}")
            if i < 7:
                A(f"s_add_u32 {s(sW)}, {s(sW)}, {4*8192}")
                A(f"s_addc_u32 {s(sW+1)}, {s(sW+1)}, 0")
    else:
        qq = chunk - 12
        A(f"s_lshl_b32 {s(sT0)}, {s(sRANK)}, 17")
        A(f"s_add_u32 {s(sW)}, {s(68)}, {s(sT0)}")
        A(f"s_addc_u32 {s(sW+1)}, {s(69)}, 0")
        A(f"s_lshl_b32 {s(sT0)}, {s(sWAVE)}, 13")
        A(f"s_add_u32 {s(sT0)}, {s(sT0)}, {qq*32*1024}")
        A(f"s_add_u32 {s(sW)}, {s(sW)}, {s(sT0)}")
        A(f"s_addc_u32 {s(sW+1)}, {s(sW+1)}, 0")
        for i in range(8):
            f = (4*((i>>2)&1) + 2*(i&1))*16
            A(f"v_xor_b32 {v(25)}, {f}, {v(24)}")
            A(f"s_add_u32 m0, {s(sT0+1)}, {qq*32768 + i*1024}")
            A(f"global_load_lds_dwordx4 {v(25)}, {s(sW,2)} {WMOD}")
            if i < 7:
                A(f"s_add_u32 {s(sW)}, {s(sW)}, 1024")
                A(f"s_addc_u32 {s(sW+1)}, {s(sW+1)}, 0")

def gen_startup(A, w, st):
    DEPTH = 7
    A(f"s_lshl_b32 {s(sT0)}, {s(sWAVE)}, 13")
    A(f"s_add_u32 {s(sT0)}, {s(sT0)}, {L_SCR}")
    A(f"v_add_u32 {v(21)}, {s(sT0)}, {v(vL16)}")
    A(f"v_add_u32 {v(26)}, {L_SCR}, {v(26)}")
    A(f"v_add_u32 {v(27)}, {L_SCR}, {v(27)}")
    order = [12,13,14,15] + list(range(12)) if WO_FIRST else list(range(16))
    for i in range(DEPTH): gen_startup_issue(A, order[i], w)
    A(f"v_mov_b32 {v(99)}, {DBG_FINIT}")
    A(f"global_load_dword {v(99)}, {v(99)}, {s(sDBG,2)} sc1")
    for i in range(16):
        c = order[i]
        left = min(DEPTH-1, 15 - i)
        extra = (1 if i < 7 else 0) + ((4 if EARLY_FLAGS[0] else 1) if i >= 14 else 0)
        A(f"s_waitcnt vmcnt({8*left + extra})")
        if STARTUP_STAMPS and i % 2 == 1: A(f"s_memrealtime {s(76+i-1,2)}")
        if i == 0 and w == 0:
            A(f"v_lshl_or_b32 {v(96)}, {v(97)}, 16, {v(96)}")
            A(f"global_store_dword {v(98)}, {v(96)}, {s(sMEMc,2)} {st}")
        if c < 12:
            mat = c // 4; qq = c % 4
            rr = raw_regs(mat, qq, w)
            for k in range(8):
                A(f"ds_write_b128 {v(21)}, {rr[k]} offset:{k*1024}")
            A("s_waitcnt lgkmcnt(0)")
            A("s_barrier")
            for bl in range(2):
                bp = (2*qq + bl - 2*w) % 8
                for t in range(2):
                    for x in range(4):
                        off = (64*bl + 32*(x&1) + 8*(x>>1))*256
                        if mat == 0: dst = a(0+(t*8+bp)*8 + 2*x, 2)
                        elif mat == 1: dst = a(128+(t*8+bp)*8 + 2*x, 2)
                        else: dst = v(WV+(t*8+bp)*8 + 2*x, 2)
                        A(f"ds_read_b64_tr_b16 {dst}, {v(26+t)} offset:{off}")
            if i + DEPTH < 16: gen_startup_issue(A, order[i + DEPTH], w)
            A("s_waitcnt lgkmcnt(0)")
            A("s_barrier")
        else:
            slot = c - 12
            A("s_barrier")
            A(f"v_add_u32 {v(29)}, {slot*32768}, {v(28)}")
            for j in range(8):
                A(f"v_xor_b32 {v(30)}, {2*j*16}, {v(29)}")
                for xl in range(2):
                    A(f"ds_read_b64_tr_b16 {v(32+4*j+2*xl,2)}, {v(30)} offset:{2*xl*1024}")
            if i + DEPTH < 16: gen_startup_issue(A, order[i + DEPTH], w)
            A("s_waitcnt lgkmcnt(0)")
            A("s_barrier")
            for j in range(8):
                base = slot*32768 + j*1024
                if base < 65536: A(f"ds_write_b128 {v(vWO0)}, {v(32+4*j,4)} offset:{base}")
                else: A(f"ds_write_b128 {v(vWO1)}, {v(32+4*j,4)} offset:{base-65536}")
        if i == 13:
            A(f"v_lshrrev_b32 {v(103)}, 2, {v(vL16)}")
            A(f"v_and_b32 {v(104)}, 0x1c, {v(103)}")
            A(f"global_load_dword {v(100)}, {v(104)}, {s(sDBG,2)} sc1")
            if EARLY_FLAGS[0]:
                A(f"global_load_dword {v(101)}, {v(103)}, {s(sFL1,2)} sc1")
                A(f"global_load_dword {v(102)}, {v(103)}, {s(sFL1,2)} offset:1024 sc1")
                A(f"global_load_dword {v(vPF)}, {v(103)}, {s(sFL1,2)} offset:2048 sc1")
        if i == 7 and w == 0:
            A(f"v_mov_b32 {v(96)}, 4")
            A(f"v_mov_b32 {v(97)}, 1")
            A("s_mov_b64 exec, 1")
            A(f"global_atomic_add {v(96)}, {v(97)}, {s(sDBG,2)}")
            A("s_mov_b64 exec, -1")
    A("s_waitcnt lgkmcnt(0)")
    A("s_barrier")

sKX2=20; sRLO=22; sRL2=23; sFMK2=11
def gen_persistent(A, lane):
    A(f"v_lshlrev_b32 {v(vL16)}, 4, {v(lane)}")
    A(f"v_and_b32 {v(20)}, 15, {v(lane)}")
    A(f"v_lshrrev_b32 {v(21)}, 4, {v(lane)}")
    A(f"v_bfe_u32 {v(22)}, {v(20)}, 1, 1")
    A(f"v_mov_b32 {v(vIDX)}, 0x44444444")
    A(f"v_mov_b32 {v(23)}, 0xeeeeeeee")
    A(f"v_cmp_eq_u32 vcc, 1, {v(22)}")
    A(f"v_cndmask_b32 {v(vIDX)}, {v(vIDX)}, {v(23)}, vcc")
    A(f"s_lshl_b32 {s(sT0)}, {s(sWAVE)}, 11")
    A(f"v_add_u32 {v(vW16)}, {s(sT0)}, {v(vL16)}")
    A(f"v_add_u32 {v(vLH)}, {L_MEMB}, {v(vL16)}")
    A(f"v_add_u32 {v(vVXA)}, {L_VXB}, {v(vW16)}")
    A(f"v_add_u32 {v(vLH)}, {L_MEMB}, {v(vL16)}")
    for p in (1,2,3):
        A(f"s_add_u32 {s(sT0)}, {s(sWAVE)}, {p}")
        A(f"s_and_b32 {s(sT0)}, {s(sT0)}, 3")
        A(f"s_lshl_b32 {s(sOFF+p)}, {s(sT0)}, 11")
    A(f"s_lshl_b32 {s(sOFF)}, {s(sWAVE)}, 11")
    A(f"v_mov_b32 {v(vZP)}, 0")
    A(f"v_mov_b32 {v(vZP1)}, 0")
    A(f"v_mov_b32 {v(vPF)}, 0")
    A(f"v_lshrrev_b32 {v(24)}, 2, {v(20)}")
    A(f"s_lshl_b32 {s(sT0)}, {s(sWAVE)}, 3")
    A(f"v_add_u32 {v(24)}, {s(sT0)}, {v(24)}")
    A(f"v_lshlrev_b32 {v(24)}, 13, {v(24)}")
    A(f"v_lshrrev_b32 {v(25)}, 1, {v(21)}")
    A(f"v_lshl_add_u32 {v(24)}, {v(25)}, 12, {v(24)}")
    A(f"v_and_b32 {v(25)}, 1, {v(21)}")
    A(f"v_and_b32 {v(26)}, 3, {v(20)}")
    A(f"v_lshl_add_u32 {v(25)}, {v(25)}, 2, {v(26)}")
    A(f"v_lshl_add_u32 {v(24)}, {v(25)}, 4, {v(24)}")
    A(f"s_lshl_b32 {s(sT0)}, {s(sRANK)}, 7")
    A(f"v_add_u32 {v(vPP)}, {s(sT0)}, {v(24)}")
    A(f"s_lshl_b32 {s(sT0)}, {s(sRANK)}, 13")
    A(f"s_lshl_b32 {s(sT0+1)}, {s(sWAVE)}, 12")
    A(f"s_add_u32 {s(sT0)}, {s(sT0)}, {s(sT0+1)}")
    A(f"v_add_u32 {v(vPG)}, {s(sT0)}, {v(vL16)}")
    A(f"v_bfe_u32 {v(24)}, {v(20)}, 2, 1")
    A(f"s_lshl_b32 {s(sT0)}, {s(sWAVE)}, 1")
    A(f"v_add_u32 {v(24)}, {s(sT0)}, {v(24)}")
    A(f"v_lshlrev_b32 {v(24)}, 2, {v(24)}")
    A(f"v_bfe_u32 {v(25)}, {v(20)}, 1, 1")
    A(f"v_lshl_add_u32 {v(24)}, {v(25)}, 1, {v(24)}")
    A(f"v_lshrrev_b32 {v(25)}, 1, {v(21)}")
    A(f"v_add_u32 {v(24)}, {v(24)}, {v(25)}")
    A(f"v_lshlrev_b32 {v(24)}, 4, {v(24)}")
    A(f"v_and_b32 {v(25)}, 1, {v(20)}")
    A(f"v_and_b32 {v(26)}, 1, {v(21)}")
    A(f"v_lshl_add_u32 {v(25)}, {v(25)}, 1, {v(26)}")
    A(f"v_lshl_add_u32 {v(24)}, {v(25)}, 2, {v(24)}")
    A(f"s_lshl_b32 {s(sT0)}, {s(sRANK)}, 8")
    A(f"v_add_u32 {v(vMP)}, {s(sT0)}, {v(24)}")
    A(f"v_lshlrev_b32 {v(24)}, 1, {v(20)}")
    A(f"v_lshrrev_b32 {v(25)}, 1, {v(21)}")
    A(f"v_lshlrev_b32 {v(25)}, 3, {v(25)}")
    A(f"v_xor_b32 {v(24)}, {v(24)}, {v(25)}")
    A(f"v_lshl_add_u32 {v(24)}, {v(21)}, 5, {v(24)}")
    A(f"v_lshlrev_b32 {v(24)}, 2, {v(24)}")
    A(f"s_lshl_b32 {s(sT0)}, {s(sWAVE)}, 10")
    A(f"s_add_u32 {s(sT0)}, {s(sT0)}, {L_MQK}")
    A(f"v_add_u32 {v(vMQW)}, {s(sT0)}, {v(24)}")
    A(f"v_bfe_u32 {v(24)}, {v(lane)}, 2, 2")
    A(f"v_and_b32 {v(25)}, 3, {v(lane)}")
    A(f"v_lshlrev_b32 {v(24)}, 1, {v(24)}")
    A(f"v_and_b32 {v(26)}, 1, {v(21)}")
    A(f"v_lshl_add_u32 {v(24)}, {v(26)}, 4, {v(24)}")
    A(f"v_lshrrev_b32 {v(26)}, 1, {v(25)}")
    A(f"v_lshlrev_b32 {v(26)}, 3, {v(26)}")
    A(f"v_xor_b32 {v(24)}, {v(24)}, {v(26)}")
    A(f"v_lshl_add_u32 {v(24)}, {v(25)}, 5, {v(24)}")
    A(f"v_lshrrev_b32 {v(26)}, 1, {v(21)}")
    A(f"v_lshl_add_u32 {v(24)}, {v(26)}, 7, {v(24)}")
    A(f"v_lshlrev_b32 {v(24)}, 2, {v(24)}")
    A(f"v_add_u32 {v(vMQR0)}, {L_MQK}, {v(24)}")
    A(f"v_xor_b32 {v(vMQR1)}, 32, {v(vMQR0)}")
    A(f"v_lshrrev_b32 {v(24)}, 2, {v(20)}")
    A(f"v_and_b32 {v(25)}, 1, {v(20)}")
    A(f"v_lshl_add_u32 {v(24)}, {v(24)}, 1, {v(25)}")
    A(f"v_mul_u32_u24 {v(24)}, 272, {v(24)}")
    A(f"v_lshl_add_u32 {v(24)}, {v(21)}, 3, {v(24)}")
    A(f"s_lshl_b32 {s(sT0)}, {s(sWAVE)}, 6")
    A(f"s_add_u32 {s(sT0)}, {s(sT0)}, {L_OB}")
    A(f"v_add_u32 {v(24)}, {s(sT0)}, {v(24)}")
    A(f"v_lshlrev_b32 {v(25)}, 3, {v(lane)}")
    A(f"v_add_u32 {v(25)}, {L_MQK}, {v(25)}")
    A(f"v_and_b32 {v(26)}, 2, {v(20)}")
    A(f"v_cmp_eq_u32 vcc, 2, {v(26)}")
    A(f"v_cndmask_b32 {v(vOW)}, {v(25)}, {v(24)}, vcc")
    A(f"v_lshrrev_b32 {v(24)}, 2, {v(20)}")
    A(f"v_and_b32 {v(25)}, 1, {v(20)}")
    A(f"v_lshl_add_u32 {v(24)}, {v(24)}, 1, {v(25)}")
    A(f"v_mul_u32_u24 {v(24)}, 272, {v(24)}")
    A(f"v_lshl_add_u32 {v(24)}, {v(21)}, 5, {v(24)}")
    A(f"v_bfe_u32 {v(25)}, {v(20)}, 1, 1")
    A(f"v_lshl_add_u32 {v(24)}, {v(25)}, 4, {v(24)}")
    A(f"v_add_u32 {v(vOR)}, {L_OB}, {v(24)}")
    A(f"s_lshl_b32 {s(sT0)}, {s(sWAVE)}, 13")
    A(f"v_add_u32 {v(vWO0)}, {s(sT0)}, {v(vL16)}")
    A(f"v_add_u32 {v(vWO1)}, 65536, {v(vWO0)}")
    A(f"v_mov_b32 {v(vZ)}, 0")
    A(f"v_mov_b32 {v(vPM)}, 0")
    A(f"s_lshl_b32 {s(sRL2)}, {s(sRANK)}, 8")
    A(f"s_add_u32 {s(sRLO)}, {s(sRL2)}, {L_MEMB}")
    A(f"s_mov_b32 {s(sMASK)}, 0")
    A(f"s_mov_b32 {s(sMASK+1)}, -1")
    A(f"s_mov_b32 {s(sSC)}, {f2u(SCALE_LOG2E):#x}")
    A(f"s_mov_b32 {s(sSC+1)}, {f2u(-SCALE_LOG2E):#x}")

def gen_init_comm(A, lane, st):
    A(f"s_add_u32 {s(sMEMc)}, {s(sWS)}, {WS_MEM}")
    A(f"s_addc_u32 {s(sMEMc+1)}, {s(sWS+1)}, 0")
    A(f"s_add_u32 {s(sPc)}, {s(sWS)}, {WS_P}")
    A(f"s_addc_u32 {s(sPc+1)}, {s(sWS+1)}, 0")
    A(f"s_add_u32 {s(sPc2)}, {s(sPc)}, 32768")
    A(f"s_addc_u32 {s(sPc2+1)}, {s(sPc+1)}, 0")
    for r in range(4): A(f"v_mov_b32 {v(32+r)}, -1")
    A(f"s_lshl_b32 {s(sT0)}, {s(sRANK)}, 13")
    A(f"v_add_u32 {v(24)}, {s(sT0)}, {v(vW16)}")
    A(f"global_store_dwordx4 {v(24)}, {v(32,4)}, {s(sPc,2)} {st}")
    A(f"global_store_dwordx4 {v(24)}, {v(32,4)}, {s(sPc,2)} offset:1024 {st}")
    for r in (96,97,98): A(f"v_mov_b32 {v(r)}, 0")
    skip = A.label("L_nomem0")
    A(f"s_cmp_lg_u32 {s(sWAVE)}, 0")
    A(f"s_cbranch_scc1 {skip}")
    A(f"v_lshrrev_b32 {v(24)}, 2, {v(lane)}")
    A(f"v_and_b32 {v(25)}, 3, {v(lane)}")
    A(f"v_lshrrev_b32 {v(26)}, 2, {v(24)}")
    A(f"v_and_b32 {v(27)}, 1, {v(24)}")
    A(f"v_lshl_add_u32 {v(26)}, {v(26)}, 1, {v(27)}")
    A(f"v_bfe_u32 {v(27)}, {v(24)}, 1, 1")
    A(f"v_lshlrev_b32 {v(27)}, 3, {v(27)}")
    A(f"v_lshl_add_u32 {v(27)}, {v(25)}, 1, {v(27)}")
    A(f"s_lshr_b32 {s(sT0)}, {s(sRANK)}, 2")
    A(f"s_lshl_b32 {s(sT0)}, {s(sT0)}, 6")
    A(f"s_and_b32 {s(sT0+1)}, {s(sRANK)}, 3")
    A(f"s_lshl_b32 {s(sT0+1)}, {s(sT0+1)}, 2")
    A(f"s_add_u32 {s(sT0)}, {s(sT0)}, {s(sT0+1)}")
    A(f"v_and_b32 {v(28)}, 3, {v(27)}")
    A(f"v_lshlrev_b32 {v(28)}, 4, {v(28)}")
    A(f"v_lshrrev_b32 {v(29)}, 2, {v(27)}")
    A(f"v_add_u32 {v(28)}, {v(28)}, {v(29)}")
    A(f"v_add_u32 {v(28)}, {s(sT0)}, {v(28)}")
    A(f"v_lshl_add_u32 {v(28)}, {v(26)}, 9, {v(28)}")
    A(f"v_lshlrev_b32 {v(28)}, 1, {v(28)}")
    A(f"global_load_ushort {v(96)}, {v(28)}, {s(60,2)}")
    A(f"global_load_ushort {v(97)}, {v(28)}, {s(60,2)} offset:32")
    A(f"v_lshlrev_b32 {v(98)}, 2, {v(lane)}")
    A(f"s_lshl_b32 {s(sT0)}, {s(sRANK)}, 8")
    A(f"v_add_u32 {v(98)}, {s(sT0)}, {v(98)}")
    A(f"v_add_u32 {v(24)}, 8192, {v(98)}")
    A(f"global_store_dword {v(24)}, {v(32)}, {s(sMEMc,2)} {st}")
    A(f"s_mov_b64 exec, 1")
    A(f"s_getreg_b32 {s(sT0)}, hwreg(HW_REG_XCC_ID, 0, 4)")
    A(f"s_lshl_b32 {s(sT0)}, 1, {s(sT0)}")
    A(f"v_mov_b32 {v(24)}, {DBG_XMASK}")
    A(f"v_mov_b32 {v(25)}, {s(sT0)}")
    A(f"global_atomic_or {v(24)}, {v(25)}, {s(sDBG,2)}")
    A(f"s_mov_b64 exec, -1")
    A(f"{skip}:")

def gen_weights(A, lane, st):
    A(f"v_and_b32 {v(20)}, 15, {v(lane)}")
    A(f"v_lshrrev_b32 {v(21)}, 4, {v(lane)}")
    A(f"v_lshlrev_b32 {v(24)}, 1, {v(21)}")
    A(f"v_xor_b32 {v(24)}, {v(24)}, {v(20)}")
    A(f"v_lshlrev_b32 {v(24)}, 4, {v(24)}")
    A(f"s_lshl_b32 {s(sT0)}, {s(sWAVE)}, 5")
    A(f"v_add_u32 {v(25)}, {s(sT0)}, {v(21)}")
    A(f"v_lshlrev_b32 {v(25)}, 13, {v(25)}")
    A(f"v_mov_b32 {v(30)}, {v(21)}")
    A(f"v_add_u32 {v(22)}, {v(25)}, {v(24)}")
    A(f"v_xor_b32 {v(23)}, 128, {v(22)}")
    A(f"s_and_b32 {s(sT0)}, {s(sWAVE)}, 1")
    A(f"s_lshl_b32 {s(sT0)}, {s(sT0)}, 7")
    A(f"v_xor_b32 {v(24)}, {s(sT0)}, {v(vL16)}")
    A(f"v_bfe_u32 {v(32)}, {v(lane)}, 2, 2")
    A(f"v_and_b32 {v(33)}, 3, {v(lane)}")
    A(f"v_and_b32 {v(34)}, 1, {v(32)}")
    A(f"v_lshrrev_b32 {v(35)}, 1, {v(32)}")
    A(f"v_and_b32 {v(36)}, 1, {v(30)}")
    A(f"v_lshrrev_b32 {v(37)}, 1, {v(30)}")
    A(f"v_lshlrev_b32 {v(38)}, 4, {v(34)}")
    A(f"v_lshl_add_u32 {v(38)}, {v(35)}, 1, {v(38)}")
    A(f"v_lshl_add_u32 {v(38)}, {v(37)}, 2, {v(38)}")
    A(f"v_add_u32 {v(38)}, {v(38)}, {v(36)}")
    A(f"v_lshlrev_b32 {v(39)}, 2, {v(34)}")
    A(f"v_lshl_add_u32 {v(39)}, {v(35)}, 1, {v(39)}")
    A(f"v_add_u32 {v(39)}, {v(39)}, {v(36)}")
    A(f"v_lshlrev_b32 {v(39)}, 1, {v(39)}")
    A(f"v_lshrrev_b32 {v(40)}, 1, {v(33)}")
    A(f"s_lshl_b32 {s(sT0)}, {s(sWAVE)}, 2")
    A(f"v_add_u32 {v(40)}, {s(sT0)}, {v(40)}")
    A(f"v_xor_b32 {v(40)}, {v(40)}, {v(39)}")
    A(f"v_lshlrev_b32 {v(40)}, 4, {v(40)}")
    A(f"v_lshl_add_u32 {v(40)}, {v(38)}, 8, {v(40)}")
    A(f"v_and_b32 {v(41)}, 1, {v(33)}")
    A(f"v_lshl_add_u32 {v(26)}, {v(41)}, 3, {v(40)}")
    A(f"v_xor_b32 {v(27)}, 32, {v(26)}")
    A(f"v_lshlrev_b32 {v(38)}, 4, {v(37)}")
    A(f"v_lshl_add_u32 {v(38)}, {v(35)}, 3, {v(38)}")
    A(f"v_lshl_add_u32 {v(38)}, {v(36)}, 2, {v(38)}")
    A(f"v_add_u32 {v(38)}, {v(38)}, {v(34)}")
    A(f"v_lshlrev_b32 {v(39)}, 3, {v(35)}")
    A(f"v_lshl_add_u32 {v(39)}, {v(36)}, 2, {v(39)}")
    A(f"v_lshl_add_u32 {v(39)}, {v(34)}, 1, {v(39)}")
    A(f"v_lshrrev_b32 {v(40)}, 1, {v(33)}")
    A(f"s_lshl_b32 {s(sT0)}, {s(sWAVE)}, 4")
    A(f"v_add_u32 {v(40)}, {s(sT0)}, {v(40)}")
    A(f"v_xor_b32 {v(40)}, {v(40)}, {v(39)}")
    A(f"v_lshlrev_b32 {v(40)}, 4, {v(40)}")
    A(f"v_lshl_add_u32 {v(40)}, {v(38)}, 10, {v(40)}")
    A(f"v_lshl_add_u32 {v(28)}, {v(41)}, 3, {v(40)}")
    A(f"s_lshl_b32 {s(sT0+1)}, {s(sWAVE)}, 13")
    done = A.label("L_wdone")
    labs = [A.label("L_wv") for _ in range(4)]
    for w in range(1,4):
        A(f"s_cmp_eq_u32 {s(sWAVE)}, {w}")
        A(f"s_cbranch_scc1 {labs[w]}")
    for w in range(4):
        A(f"{labs[w]}:")
        gen_startup(A, w, st)
        A(f"s_branch {done}")
    A(f"{done}:")

def delay(A, n):
    while n > 0:
        k = min(n, 16); A(f"s_nop {k-1}"); n -= k

sFL1=58; sFL2=54; sFMASK=56; sMODE=57

def chain_flag_wait_blocking(A, ptr_s):
    lab = A.label("L_cfw"); ok = A.label("L_cfwok")
    A(f"v_lshrrev_b32 {v(24)}, 2, {v(vL16)}")
    A(f"{lab}:")
    A(f"global_load_dword {v(25)}, {v(24)}, {s(ptr_s,2)} sc1")
    A(f"s_add_u32 {s(sSPIN)}, {s(sSPIN)}, 1")
    A(f"s_cmp_gt_u32 {s(sSPIN)}, 0x40000")
    A(f"s_cbranch_scc1 L_chain_abort")
    A("s_waitcnt vmcnt(0)")
    A(f"v_cmp_ne_u32 vcc, 0, {v(25)}")
    A(f"s_and_b32 {s(sT0)}, vcc_lo, {s(sFMASK)}")
    A(f"s_cmp_eq_u32 {s(sT0)}, {s(sFMASK)}")
    A(f"s_cbranch_scc1 {ok}")
    A("s_sleep 2")
    A(f"s_branch {lab}")
    A(f"{ok}:")

def gen_chain(A, nsteps=64, stamp=0, smode="", D1=10, D2=10, flags=False, force_slow=False, X=0, VA=4, DS=25, DP=35, D3=120, B0=1):
    st = "sc1" if flags else smode
    lane = 31
    if stamp == 1: A(f"s_memrealtime {s(80,2)}")
    gen_persistent(A, lane)
    gen_init_comm(A, lane, st)
    EARLY_FLAGS[0] = flags
    A(f"s_add_u32 {s(sFL1)}, {s(sWS)}, {WS_FLAGS}")
    A(f"s_addc_u32 {s(sFL1+1)}, {s(sWS+1)}, 0")
    gen_weights(A, lane, st)
    if stamp == 1: A(f"s_memrealtime {s(82,2)}")
    A(f"s_lshl_b32 {s(sT0)}, {s(sRANK)}, 13")
    A(f"s_add_u32 {s(sKX)}, {s(sWS)}, {s(sT0)}")
    A(f"s_addc_u32 {s(sKX+1)}, {s(sWS+1)}, 0")
    A(f"s_add_u32 {s(sVX)}, {s(sKX)}, {WS_VX}")
    A(f"s_addc_u32 {s(sVX+1)}, {s(sKX+1)}, 0")
    A(f"s_and_b32 {s(sT0)}, {s(sWAVE)}, 1")
    A(f"s_lshl_b32 {s(sT0)}, {s(sT0)}, 24")
    A(f"s_add_u32 {s(sPFK)}, {s(sKX)}, {s(sT0)}")
    A(f"s_addc_u32 {s(sPFK+1)}, {s(sKX+1)}, 0")
    A(f"s_add_u32 {s(sPFK)}, {s(sPFK)}, {32*8192}")
    A(f"s_addc_u32 {s(sPFK+1)}, {s(sPFK+1)}, 0")
    A(f"s_add_u32 {s(sKM)}, {s(sWS)}, {WS_MEMP}")
    A(f"s_addc_u32 {s(sKM+1)}, {s(sWS+1)}, 0")
    def kv_dma():
        return [f"s_add_u32 m0, {s(sOFF)}, {L_KXB}",
                f"global_load_lds_dwordx4 {v(vW16)}, {s(sKX,2)} sc1",
                f"global_load_lds_dwordx4 {v(vW16)}, {s(sKX,2)} offset:1024 sc1",
                f"s_add_u32 m0, {s(sOFF)}, {L_VXB}",
                f"global_load_lds_dwordx4 {v(vW16)}, {s(sVX,2)} sc1",
                f"global_load_lds_dwordx4 {v(vW16)}, {s(sVX,2)} offset:1024 sc1"]
    def kv_adv():
        A(f"s_add_u32 {s(sKX)}, {s(sKX)}, {32*8192}")
        A(f"s_addc_u32 {s(sKX+1)}, {s(sKX+1)}, 0")
        A(f"s_add_u32 {s(sVX)}, {s(sVX)}, {32*8192}")
        A(f"s_addc_u32 {s(sVX+1)}, {s(sVX+1)}, 0")
    A(f"s_mov_b32 {s(sSPIN)}, 0")
    A(f"s_mov_b32 {s(sFMK2)}, 0")
    if not flags:
        A(f"s_mov_b32 {s(sFMASK)}, 0")
        A(f"s_add_u32 {s(sPFK)}, {s(sPFK)}, {32*8192}")
        A(f"s_addc_u32 {s(sPFK+1)}, {s(sPFK+1)}, 0")
    if flags:
        A(f"s_lshr_b32 {s(sT0)}, {s(sRANK)}, 1")
        A(f"s_lshl_b32 {s(sFMASK)}, 0x10001, {s(sT0)}")
        lfi = A.label("L_cfi"); lfo = A.label("L_cfo")
        A(f"v_cmp_gt_u32 vcc, 256, {v(99)}")
        A(f"s_cbranch_vccz {lfo}")
        A("s_waitcnt vmcnt(0)")
        A(f"v_mov_b32 {v(101)}, 0")
        A(f"v_mov_b32 {v(24)}, {DBG_FINIT}")
        A(f"{lfi}:")
        A(f"global_load_dword {v(25)}, {v(24)}, {s(sDBG,2)} sc1")
        A(f"s_add_u32 {s(sSPIN)}, {s(sSPIN)}, 1")
        A(f"s_cmp_gt_u32 {s(sSPIN)}, 0x40000")
        A(f"s_cbranch_scc1 L_chain_abort")
        A("s_waitcnt vmcnt(0)")
        A(f"v_cmp_gt_u32 vcc, 256, {v(25)}")
        A(f"s_cbranch_vccnz {lfi}")
        A(f"{lfo}:")
    lw = A.label("L_winit"); lchk = A.label("L_wchk")
    A("s_waitcnt vmcnt(0)")
    A(f"s_branch {lchk}")
    A(f"{lw}:")
    A(f"global_load_dword {v(100)}, {v(104)}, {s(sDBG,2)} sc1")
    if flags:
        A(f"global_load_dword {v(101)}, {v(103)}, {s(sFL1,2)} sc1")
        A(f"global_load_dword {v(102)}, {v(103)}, {s(sFL1,2)} offset:1024 sc1")
        A(f"global_load_dword {v(vPF)}, {v(103)}, {s(sFL1,2)} offset:2048 sc1")
    A(f"s_add_u32 {s(sSPIN)}, {s(sSPIN)}, 1")
    A(f"s_cmp_gt_u32 {s(sSPIN)}, 0x40000")
    A(f"s_cbranch_scc1 L_chain_abort")
    A(f"s_waitcnt vmcnt(0)")
    A(f"{lchk}:")
    A(f"v_readlane_b32 {s(sT0)}, {v(100)}, 1")
    A(f"v_readlane_b32 {s(sMODE)}, {v(100)}, 3")
    A(f"s_cmp_lt_u32 {s(sT0)}, 32")
    A(f"s_cbranch_scc1 {lw}")
    if flags:
        A(f"v_cmp_ne_u32 vcc, 0, {v(101)}")
        A(f"s_and_b32 {s(sT0)}, vcc_lo, {s(sFMASK)}")
        A(f"v_cmp_ne_u32 vcc, 0, {v(102)}")
        A(f"s_and_b32 {s(sT0)}, {s(sT0)}, vcc_lo")
        A(f"s_cmp_eq_u32 {s(sT0)}, {s(sFMASK)}")
        A(f"s_cbranch_scc0 {lw}")
        A(f"s_add_u32 {s(sFL1)}, {s(sFL1)}, 3072")
        A(f"s_addc_u32 {s(sFL1+1)}, {s(sFL1+1)}, 0")
        A(f"s_mov_b32 {s(sFMK2)}, {s(sFMASK)}")
        A(f"s_add_u32 {s(sPFK)}, {s(sPFK)}, {32*8192}")
        A(f"s_addc_u32 {s(sPFK+1)}, {s(sPFK+1)}, 0")
        A(f"s_bcnt1_i32_b32 {s(sMODE)}, {s(sMODE)}")
        if force_slow: A(f"s_mov_b32 {s(sMODE)}, 2")
    for x in kv_dma(): A(x)
    kv_adv()
    if flags:
        cw = A.label("L_cw")
        A(f"s_cmp_lg_u32 {s(sWAVE)}, 0")
        A(f"s_cbranch_scc1 {cw}")
        A(f"v_mov_b32 {v(24)}, {DBG_CW}")
        A(f"v_mov_b32 {v(25)}, 1")
        A("s_mov_b64 exec, 1")
        A(f"global_atomic_add {v(24)}, {v(25)}, {s(sDBG,2)}")
        A("s_mov_b64 exec, -1")
        A(f"{cw}:")
    A(f"s_mov_b32 {s(sSTEP)}, 0")
    A(f"s_mov_b32 {s(sSPIN)}, 0")
    if stamp:
        A(f"s_memtime {s(sTS,2)}")
        A("s_waitcnt lgkmcnt(0)")
        if stamp == 1: A(f"s_memrealtime {s(84,2)}"); A("s_waitcnt lgkmcnt(0)")
        else:
            for k in range(26): A(f"s_mov_b32 {s(76+k)}, 0")
        A(f"s_mov_b32 {s(sTS+4)}, 0")
        A(f"s_mov_b32 {s(sTS+5)}, 0")
    def ts(k):
        if stamp >= 2 and k < 13: A(f"s_memtime {s(76+2*k,2)}")
    def dump_stamps():
        if stamp >= 2:
            lab = A.label("L_nodump")
            A(f"s_cmp_lg_u32 {s(sSTEP)}, 41")
            A(f"s_cbranch_scc1 {lab}")
            A("s_waitcnt lgkmcnt(0)")
            A(f"s_lshl_b32 {s(sT0)}, {s(sRANK)}, 2")
            A(f"s_add_u32 {s(sT0)}, {s(sT0)}, {s(sWAVE)}")
            A(f"s_lshl_b32 {s(sT0)}, {s(sT0)}, 6")
            A(f"s_add_u32 {s(sT0)}, {s(sT0)}, {WS_END_CHAIN + 0x4000}")
            A(f"v_mov_b32 {v(T0)}, {s(sT0)}")
            for k in range(13):
                A(f"v_mov_b32 {v(T0+1)}, {s(76+2*k)}")
                A(f"global_store_dword {v(T0)}, {v(T0+1)}, {s(sWS,2)} offset:{4*k}")
            A(f"{lab}:")

    K0,Q0,K1,Q1 = AQK, AQK+4, AQK+8, AQK+12
    V0,V1 = AV, AV+4
    QK = AQK
    PA = KXR
    def step_scalars():
        A(f"s_and_b32 {s(sPH)}, {s(sSTEP)}, 1")
        A(f"s_lshl_b32 {s(sT0+1)}, {s(sPH)}, 13")
        A(f"s_add_u32 {s(sT0+1)}, {s(sT0+1)}, {WS_MEM}")
        A(f"s_add_u32 {s(sMEMc)}, {s(sWS)}, {s(sT0+1)}")
        A(f"s_addc_u32 {s(sMEMc+1)}, {s(sWS+1)}, 0")
        A(f"s_xor_b32 {s(sT0+1)}, {s(sT0+1)}, 8192")
        A(f"s_add_u32 {s(sMEMn)}, {s(sWS)}, {s(sT0+1)}")
        A(f"s_addc_u32 {s(sMEMn+1)}, {s(sWS+1)}, 0")
    def zero_acc():
        A(f"v_mfma_f32_32x32x8_bf16 {v(AQK,16)}, {v(vZP,2)}, {v(vZP,2)}, 0")
        for r in range(AV, AV+8, 2): A(f"v_pk_mov_b32 {v(r,2)}, 0, 0")
        for p in range(4): A(f"v_add_u32 {v(S0+p)}, {s(sOFF+p)}, {v(vLH)}")

    FARN = {0:0, 2:3, 3:2}
    def step_body(st, sfx, far, slowpaths):
        L = lambda x: f"{x}{sfx}"
        A(f"{L('L_step')}:")
        ts(12)
        delay(A, D2)
        MR = S0
        MB = KXR
        def chk(base):
            A(f"v_max3_u32 {v(T0)}, {v(base)}, {v(base+1)}, {v(base+2)}")
            A(f"v_max3_u32 {v(T0+1)}, {v(base+3)}, {v(base+4)}, {v(base+5)}")
            A(f"v_max3_u32 {v(T0)}, {v(T0)}, {v(base+6)}, {v(base+7)}")
            A(f"v_max_u32 {v(T0)}, {v(T0)}, {v(T0+1)}")
            A(f"v_cmp_eq_u32 vcc, -1, {v(T0)}")
        def ldm(base):
            A(f"global_load_dwordx4 {v(base,4)}, {v(vW16)}, {s(sMEMc,2)} sc1")
            A(f"global_load_dwordx4 {v(base+4,4)}, {v(vW16)}, {s(sMEMc,2)} offset:1024 sc1")
        ldm(MA)
        delay(A, DS)
        A(f"{L('L_pollm')}:")
        ldm(MB)
        A("s_waitcnt vmcnt(2)")
        chk(MA)
        A(f"s_cbranch_vccz {L('L_gotm')}")
        ldm(MA)
        A(f"s_add_u32 {s(sSPIN)}, {s(sSPIN)}, 1")
        A(f"s_cmp_gt_u32 {s(sSPIN)}, 0x40000")
        A(f"s_cbranch_scc1 L_chain_abort")
        A("s_waitcnt vmcnt(2)")
        chk(MB)
        A(f"s_cbranch_vccnz {L('L_pollm2')}")
        for r in range(0,8,2): A(f"v_pk_mov_b32 {v(MA+r,2)}, {v(MB+r,2)}, {v(MB+r,2)} op_sel:[0,1]")
        A(f"s_branch {L('L_gotm2')}")
        A(f"{L('L_pollm2')}:")
        A(f"s_branch {L('L_pollm')}")
        A(f"{L('L_gotm')}:")
        A(f"{L('L_gotm2')}:")
        ts(0)
        A(f"ds_write_b128 {v(MR)}, {ma(0)}")
        A(smf(K0, ma(0), WK(0,0)))
        A(f"ds_write_b128 {v(MR)}, {ma(1)} offset:1024")
        A(smf(Q0, ma(0), WQ(0,0)))
        if far:
            fok = A.label("L_fok"); fs_ = f"L_fslow{sfx}"
            if flags:
                A(f"v_cmp_ne_u32 vcc, 0, {v(vPF)}")
                A(f"s_and_b32 {s(sT0)}, vcc_lo, {s(sFMK2)}")
                A(f"s_cmp_eq_u32 {s(sT0)}, {s(sFMK2)}")
                A(f"s_cbranch_scc0 {fs_}")
                A(f"{fok}:")
                slowpaths.append((fs_, fok))
            A(f"v_lshlrev_b32 {v(vPF)}, 3, {v(vL16)}")
            A(f"global_load_dword {v(vPF)}, {v(vPF)}, {s(sPFK,2)}")
        A(smf(K1, ma(0), WK(1,0)))
        if far:
            A(f"v_lshrrev_b32 {v(X0)}, 2, {v(vL16)}")
            A(f"global_load_dword {v(vPF)}, {v(X0)}, {s(sFL1,2)} sc1")
        A(smf(Q1, ma(0), WQ(1,0)))
        A(smf(V0, ma(0), WVf(0,0)))
        A(smf(V1, ma(0), WVf(1,0)))
        A("s_waitcnt lgkmcnt(0)")
        A("s_barrier")
        rds = []
        for p in range(3):
            rds.append(f"ds_read_b128 {ma(2*p+2)}, {v(MR+1+p)}")
            rds.append(f"ds_read_b128 {ma(2*p+3)}, {v(MR+1+p)} offset:1024")
        A(rds[0]); A(rds[1])
        own = [(K0,ma(1),WK(0,1)),(Q0,ma(1),WQ(0,1)),(K1,ma(1),WK(1,1)),(Q1,ma(1),WQ(1,1))]
        for i in range(4):
            A(smf(*own[i])); A(rds[i+2])
        A(smf(V0, ma(1), WVf(0,1)))
        A(smf(V1, ma(1), WVf(1,1)))
        kxq = [(t,ks) for ks in range(4) for t in range(2)]
        kxr = [f"ds_read_b128 {v(KXR+(t*4+ks)*4,4)}, {v(vLH)} offset:{L_KXB-L_MEMB+(t*4+ks)*1024}" for (t,ks) in kxq]
        kxr[0] = [f"s_waitcnt vmcnt({2 if far else 0})", kxr[0]]
        fill = [[],[],[],[],[],[],[],[]]
        if far == 2:
            fill.append([f"v_and_b32 {v(X0)}, 0xf0, {v(vL16)}"])
            fill.append([f"v_add_u32 {v(X0+1)}, {s(sRLO)}, {v(X0)}"])
            fill.append([f"ds_read_b128 {v(S1,4)}, {v(X0+1)}"])
            fill.append([f"v_add_u32 {v(X0+1)}, {s(sRL2)}, {v(X0)}"])
        if far == 2:
            pub = fill[8:]; fill = fill[:8]
            fill += [(x if isinstance(x,list) else [x]) for x in kxr] + pub
        else:
            fill += [(x if isinstance(x,list) else [x]) for x in kxr]
        A("s_waitcnt lgkmcnt(4)")
        g = 0
        for b in range(2,8):
            if b == 4:
                nrel = 0
                if far:
                    nrel = sum(1 for f in fill_done for x in f if x.startswith("ds_read"))
                A(f"s_waitcnt lgkmcnt({nrel})")
            order = ((K0,WK(0,b)),(Q0,WQ(0,b)),(K1,WK(1,b)),(Q1,WQ(1,b)))
            for n,(acc,W) in enumerate(order):
                if b == 2 and n == 0: fill_done = []
                A(smf(acc, ma(b), W))
                if fill:
                    f = fill.pop(0); fill_done.append(f)
                    for x in f: A(x)
        assert not fill, len(fill)
        ts(1)
        vq = [(t,b) for b in range(2,8) for t in range(2)]
        vi = [0]
        def vph(n=1):
            for _ in range(n):
                if vi[0] < len(vq):
                    t,b = vq[vi[0]]; vi[0] += 1
                    A(smf(V0+4*t, ma(b), WVf(t,b)))
        X_ = T0
        FB = [MA, MA+8, MA+16, MA+24, AV, AQK, AQK+8, 120]
        frags = [(j,b) for j in range(8) for b in range(2)]
        def wo_rd(fi, buf):
            j,b = frags[fi]; out = []
            for hx in range(2):
                q = 2*b + hx
                off = q*32768 + j*1024
                reg = vWO0 if off < 65536 else vWO1
                if off >= 65536: off -= 65536
                out.append(f"ds_read_b128 {v(FB[buf]+4*hx,4)}, {v(reg)} offset:{off}")
            return out
        vph(2)
        A(f"v_pk_add_f32 {v(K0,2)}, {v(K0,2)}, {v(K0+2,2)}")
        A(f"v_pk_add_f32 {v(Q0,2)}, {v(Q0,2)}, {v(Q0+2,2)}")
        A(f"v_pk_add_f32 {v(K1,2)}, {v(K1,2)}, {v(K1+2,2)}")
        A(f"v_cvt_pk_bf16_f32 {v(X_)}, {v(K0)}, {v(K0+1)}")
        A(f"v_cvt_pk_bf16_f32 {v(X_+1)}, {v(Q0)}, {v(Q0+1)}")
        A(f"v_pk_add_f32 {v(Q1,2)}, {v(Q1,2)}, {v(Q1+2,2)}")
        A(f"ds_write_b64 {v(vMQW)}, {v(X_,2)}")
        A(f"v_cvt_pk_bf16_f32 {v(X_+2)}, {v(K1)}, {v(K1+1)}")
        A(f"v_cvt_pk_bf16_f32 {v(X_+3)}, {v(Q1)}, {v(Q1+1)}")
        A(f"ds_write_b64 {v(vMQW)}, {v(X_+2,2)} offset:512")
        vph(VA)
        A("s_waitcnt lgkmcnt(0)")
        if far == 2:
            A("s_mov_b64 exec, 0xffff")
            A(f"global_store_dwordx4 {v(X0+1)}, {v(S1,4)}, {s(sKM,2)} sc1")
            A("s_mov_b64 exec, -1")
        A("s_barrier")
        A(f"s_cmp_eq_u32 {s(sSTEP)}, {nsteps-1}")
        A(f"s_cbranch_scc1 L_chain_done")
        for ks in range(4):
            A(f"ds_read_b64_tr_b16 {v(QK+4*ks,2)}, {v(vMQR0)} offset:{ks*1024}")
            A(f"ds_read_b64_tr_b16 {v(QK+4*ks+2,2)}, {v(vMQR1)} offset:{ks*1024}")
        vph(16)
        ts(2)
        VXO = KXR; B1 = KXR+8
        VMa = X0
        ONE = T0+2
        wr = wo_rd(0,0) + wo_rd(1,1) + wo_rd(2,2) + wo_rd(3,3)
        sf = {1: [wr[0]], 2: [wr[1]], 3: [wr[2]], 4: [wr[3]],
              5: [f"v_pk_add_f32 {v(V0,2)}, {v(V0,2)}, {v(V0+2,2)}"],
              6: [f"v_pk_add_f32 {v(V1,2)}, {v(V1,2)}, {v(V1+2,2)}", f"ds_read_b128 {v(KXR,4)}, {v(vVXA)}"],
              7: [f"v_cvt_pk_bf16_f32 {v(VMa)}, {v(V0)}, {v(V0+1)}", f"ds_read_b128 {v(KXR+4,4)}, {v(vVXA)} offset:1024"],
              8: [f"v_cvt_pk_bf16_f32 {v(VMa+1)}, {v(V1)}, {v(V1+1)}"],
              9: [f"v_cvt_pk_bf16_f32 {v(VMa+2)}, {v(V1)}, {v(V1+1)}"],
              10: [f"v_cvt_pk_bf16_f32 {v(VMa+3)}, {v(V0)}, {v(V0+1)}"],
              11: [wr[4]],
              0: [f"v_mov_b32 {v(ONE)}, 0x3f803f80"]}
        sf[8].append(f"v_mov_b32 {v(ONE+1)}, 0x3f803f80")
        g = 0
        for ks in range(4):
            if ks == 0: A(f"s_waitcnt lgkmcnt(4)")
            if ks == 2: A(f"s_waitcnt lgkmcnt(4)")
            c0 = "0" if ks == 0 else v(S0,4); c1 = "0" if ks == 0 else v(S1,4); cm = "0" if ks == 0 else v(SM,4)
            for mf in (f"v_mfma_f32_16x16x32_bf16 {v(S0,4)}, {v(KXR+ks*4,4)}, {v(QK+4*ks,4)}, {c0}",
                       f"v_mfma_f32_16x16x32_bf16 {v(S1,4)}, {v(KXR+16+ks*4,4)}, {v(QK+4*ks,4)}, {c1}",
                       f"v_mfma_f32_16x16x32_bf16 {v(SM,4)}, {v(QK+4*ks,4)}, {v(QK+4*ks,4)}, {cm}"):
                A(mf)
                for x in sf.get(g, []): A(x)
                g += 1
        ts(3)
        m1,m2 = T0, T0+1
        A(wr[5])
        A(f"v_max3_f32 {v(m1)}, {v(S0)}, {v(S0+1)}, {v(S0+2)}")
        A(f"v_max3_f32 {v(m2)}, {v(S0+3)}, {v(S1)}, {v(S1+1)}")
        A(f"v_max3_f32 {v(m1)}, {v(m1)}, {v(S1+2)}, {v(S1+3)}")
        A(f"v_max3_f32 {v(m2)}, {v(m2)}, {v(SM)}, {v(SM+1)}")
        A(f"v_max_f32 {v(m1)}, {v(m1)}, {v(m2)}")
        A(f"v_max_f32 {v(m2)}, {v(m1)}, {v(m2)}")
        A(wr[6])
        A(f"v_permlane16_swap_b32 {v(m1)}, {v(m2)}")
        A(f"v_max_f32 {v(m1)}, {v(m1)}, {v(m2)}")
        A(f"v_mov_b32 {v(m2)}, {v(m1)}")
        A(wr[7])
        A(f"v_permlane32_swap_b32 {v(m1)}, {v(m2)}")
        A(f"v_max_f32 {v(m1)}, {v(m1)}, {v(m2)}")
        A(f"v_mul_f32 {v(m1)}, {s(sSC+1)}, {v(m1)}")
        for r in (S0,S0+2,S1,S1+2,SM):
            A(f"v_pk_fma_f32 {v(r,2)}, {v(r,2)}, {s(sSC,2)}, {v(m1,2)} op_sel_hi:[1,0,0]")
        for r in (S0,S0+1,S0+2,S0+3): A(f"v_exp_f32 {v(r)}, {v(r)}")
        for r in (S1,S1+1): A(f"v_exp_f32 {v(r)}, {v(r)}")
        A(f"v_cvt_pk_bf16_f32 {v(B1)}, {v(S0)}, {v(S0+1)}")
        for r in (S1+2,S1+3): A(f"v_exp_f32 {v(r)}, {v(r)}")
        A(f"v_cvt_pk_bf16_f32 {v(B1+1)}, {v(S0+2)}, {v(S0+3)}")
        A(f"v_cvt_pk_bf16_f32 {v(B1+2)}, {v(S1)}, {v(S1+1)}")
        A(f"v_exp_f32 {v(SM)}, {v(SM)}")
        A(f"v_cvt_pk_bf16_f32 {v(B1+3)}, {v(S1+2)}, {v(S1+3)}")
        A(f"v_exp_f32 {v(SM+1)}, {v(SM+1)}")
        O0, O1 = KXR+16, KXR+20
        LS = SM
        A(f"v_cvt_pk_bf16_f32 {v(vPM)}, {v(SM)}, {v(SM+1)}")
        A("s_waitcnt lgkmcnt(4)")
        A(f"v_mfma_f32_16x16x16_bf16 {v(LS,4)}, {v(ONE,2)}, {v(B1,2)}, 0")
        A(f"v_mfma_f32_16x16x16_bf16 {v(LS,4)}, {v(ONE,2)}, {v(B1+2,2)}, {v(LS,4)}")
        A(f"v_mfma_f32_16x16x16_bf16 {v(LS,4)}, {v(ONE,2)}, {v(vPM,2)}, {v(LS,4)}")
        w4 = wo_rd(4,4)
        A(f"v_mfma_f32_16x16x32_bf16 {v(O0,4)}, {v(VXO,4)}, {v(B1,4)}, 0")
        A(w4[0])
        A(f"v_mfma_f32_16x16x32_bf16 {v(O1,4)}, {v(VXO+4,4)}, {v(B1,4)}, 0")
        A(w4[1])
        A(f"v_mfma_f32_16x16x16_bf16 {v(O0,4)}, {v(VMa,2)}, {v(vPM,2)}, {v(O0,4)}")
        A(f"v_rcp_f32 {v(m1)}, {v(LS)}")
        A(f"v_mfma_f32_16x16x16_bf16 {v(O1,4)}, {v(VMa+2,2)}, {v(vPM,2)}, {v(O1,4)}")
        for r in (O0,O0+2,O1,O1+2):
            A(f"v_pk_mul_f32 {v(r,2)}, {v(r,2)}, {v(m1,2)} op_sel_hi:[1,0]")
        OP = S0
        A(f"v_cvt_pk_bf16_f32 {v(OP)}, {v(O0)}, {v(O0+1)}")
        A(f"v_cvt_pk_bf16_f32 {v(OP+1)}, {v(O0+2)}, {v(O0+3)}")
        A(f"v_cvt_pk_bf16_f32 {v(OP+2)}, {v(O1)}, {v(O1+1)}")
        A(f"v_cvt_pk_bf16_f32 {v(OP+3)}, {v(O1+2)}, {v(O1+3)}")
        A(f"ds_write2_b64 {v(vOW)}, {v(OP,2)}, {v(OP+2,2)} offset0:0 offset1:4")
        ts(4)
        A(f"v_mfma_f32_32x32x8_bf16 {v(PA,16)}, {v(vZP,2)}, {v(vZP,2)}, 0")
        w5 = wo_rd(5,5) + wo_rd(6,6)
        A(w5[0]); A(w5[1])
        A(f"v_mfma_f32_32x32x8_bf16 {v(PA+16,16)}, {v(vZP,2)}, {v(vZP,2)}, 0")
        A(w5[2]); A(w5[3])
        A("s_waitcnt lgkmcnt(4)")
        A("s_barrier")
        OA = S0
        A(f"ds_read_b128 {v(OA,4)}, {v(vOR)}")
        A(f"ds_read_b128 {v(OA+4,4)}, {v(vOR)} offset:128")
        w7 = wo_rd(7,7)
        for x in w7: A(x)
        for x in kv_dma(): A(x)
        ts(5)
        A("s_waitcnt lgkmcnt(2)")
        issued = [7]; nxt = 8
        PK0 = X0
        for fi in range(16):
            j,b = frags[fi]
            buf = fi % 8
            if fi >= 7 and fi % 2 == 1:
                tgt = min(fi+1, 15)
                later = len(issued) - 1 - issued.index(tgt)
                A(f"s_waitcnt lgkmcnt({min(15,2*later)})")
            A(f"v_smfmac_f32_16x16x64_bf16 {v(PA+4*j,4)}, {v(OA+4*b,4)}, {v(FB[buf],8)}, {v(vIDX)}")
            if nxt < 16:
                for x in wo_rd(nxt, nxt % 8): A(x)
                issued.append(nxt); nxt += 1
            if b == 1 and j >= 1:
                jj = j-1
                dst = (PK0 + jj) if jj < 4 else (PA + jj - 4)
                A(f"v_pk_add_f32 {v(PA+4*jj,2)}, {v(PA+4*jj,2)}, {v(PA+4*jj+2,2)}")
                A(f"v_cvt_pk_bf16_f32 {v(dst)}, {v(PA+4*jj)}, {v(PA+4*jj+1)}")
                if jj == 3:
                    A(f"v_bfi_b32 {v(PK0)}, 1, {s(sPH)}, {v(PK0)}")
                    A(f"global_store_dwordx4 {v(vPP)}, {v(PK0,4)}, {s(sPc,2)} {st}")
        A(f"v_bfi_b32 {v(PA)}, 1, {s(sPH)}, {v(PA)}")
        A(f"v_pk_add_f32 {v(PA+28,2)}, {v(PA+28,2)}, {v(PA+30,2)}")
        A(f"v_cvt_pk_bf16_f32 {v(PA+3)}, {v(PA+28)}, {v(PA+29)}")
        A(f"global_store_dwordx4 {v(vPP)}, {v(PA,4)}, {s(sPc2,2)} {st}")
        ts(6)
        kv_adv()
        A(f"s_add_u32 {s(sSTEP)}, {s(sSTEP)}, 1")
        zero_acc()
        if not far:
            RS = MA
            A(f"v_bfe_u32 {v(MA+4)}, {v(vL16)}, 4, 3")
            A(f"v_mov_b32 {v(MA+5)}, 0x3f80")
            A(f"v_mov_b32 {v(MA+6)}, 0x3f800000")
            for d in range(4):
                A(f"v_cmp_eq_u32 vcc, {2*d}, {v(MA+4)}")
                A(f"v_cndmask_b32 {v(RS+d)}, 0, {v(MA+5)}, vcc")
                A(f"v_cmp_eq_u32 vcc, {2*d+1}, {v(MA+4)}")
                A(f"v_cndmask_b32 {v(RS+d)}, {v(RS+d)}, {v(MA+6)}, vcc")
            delay(A, D1)
            G = KXR+4
            RA = KXR+20
            GB = MA+8
            def ldp(base):
                for t in range(4):
                    A(f"global_load_dwordx4 {v(base+4*t,4)}, {v(vPG)}, {s(sPc,2)} offset:{t*1024} sc1")
            def chkp(base):
                A(f"v_bitop3_b32 {v(T0)}, {v(base)}, {v(base+4)}, {s(sPH)} bitop3:0x7e")
                A(f"v_bitop3_b32 {v(T0+1)}, {v(base+8)}, {v(base+12)}, {s(sPH)} bitop3:0x7e")
                A(f"v_bitop3_b32 {v(T0)}, {v(T0)}, {v(T0+1)}, 1 bitop3:0xa8")
                A(f"v_cmp_ne_u32 vcc, 0, {v(T0)}")
            def summ(base):
                for t in range(4):
                    c = "0" if t == 0 else v(RA,4)
                    A(f"v_mfma_f32_16x16x32_bf16 {v(RA,4)}, {v(RS,4)}, {v(base+4*t,4)}, {c}")
            ldp(G)
            delay(A, DP)
            A(f"{L('L_pollp')}:")
            ldp(GB)
            A("s_waitcnt vmcnt(4)")
            summ(G)
            chkp(G)
            A(f"s_cbranch_vccz {L('L_gotp')}")
            ldp(G)
            A(f"s_add_u32 {s(sSPIN)}, {s(sSPIN)}, 1")
            A(f"s_cmp_gt_u32 {s(sSPIN)}, 0x40000")
            A(f"s_cbranch_scc1 L_chain_abort")
            A("s_waitcnt vmcnt(4)")
            summ(GB)
            chkp(GB)
            A(f"s_cbranch_vccnz {L('L_pollp')}")
            A(f"{L('L_gotp')}:")
            ts(7)
            for r in range(4):
                A(f"v_add_f32_dpp {v(RA+r)}, {v(RA+r)}, {v(RA+r)} row_ror:8 row_mask:0xf bank_mask:0xf")
            A(f"v_cvt_pk_bf16_f32 {v(T0)}, {v(RA)}, {v(RA+2)}")
            A(f"v_cvt_pk_bf16_f32 {v(T0+1)}, {v(RA+1)}, {v(RA+3)}")
            A(f"v_cndmask_b32 {v(T0)}, {v(T0)}, {v(T0+1)}, {s(sMASK,2)}")
            A(f"global_store_dword {v(vMP)}, {v(T0)}, {s(sMEMn,2)} {st}")
            A(f"v_mov_b32 {v(T0+2)}, -1")
            A(f"global_store_dword {v(vMP)}, {v(T0+2)}, {s(sMEMc,2)} {st}")
            ts(8)
        if far:
            A(f"s_add_u32 {s(sKM)}, {s(sKM)}, 8192")
            A(f"s_addc_u32 {s(sKM+1)}, {s(sKM+1)}, 0")
            A(f"s_cmp_lt_u32 {s(sSTEP)}, {nsteps-2}")
            A(f"s_cselect_b32 {s(sT0)}, {32*8192}, 0")
            A(f"s_cselect_b32 {s(sT0+1)}, 1024, 0")
            A(f"s_cselect_b32 {s(sFMK2)}, {s(sFMASK)}, 0")
            A(f"s_add_u32 {s(sPFK)}, {s(sPFK)}, {s(sT0)}")
            A(f"s_addc_u32 {s(sPFK+1)}, {s(sPFK+1)}, 0")
            A(f"s_add_u32 {s(sFL1)}, {s(sFL1)}, {s(sT0+1)}")
            A(f"s_addc_u32 {s(sFL1+1)}, {s(sFL1+1)}, 0")
            A("s_waitcnt vmcnt(0)")
        dump_stamps()
        A(f"s_mov_b64 {s(sT0+2,2)}, {s(sMEMc,2)}")
        A(f"s_mov_b64 {s(sMEMc,2)}, {s(sMEMn,2)}")
        A(f"s_mov_b64 {s(sMEMn,2)}, {s(sT0+2,2)}")
        A(f"s_xor_b32 {s(sPH)}, {s(sPH)}, 1")
        if B0: A("s_barrier")
        elif far: delay(A, D3)
        A(f"s_branch {L('L_step')}")
    def slow_code(slowpaths):
        for (fs_, fok) in slowpaths:
            A(f"{fs_}:")
            A(f"v_lshrrev_b32 {v(X0)}, 2, {v(vL16)}")
            A(f"s_sub_u32 {s(sT0+2)}, {s(sFL1)}, 1024")
            A(f"s_subb_u32 {s(sT0+3)}, {s(sFL1+1)}, 0")
            A(f"global_load_dword {v(vPF)}, {v(X0)}, {s(sT0+2,2)} sc1")
            A(f"s_add_u32 {s(sSPIN)}, {s(sSPIN)}, 1")
            A(f"s_cmp_gt_u32 {s(sSPIN)}, 0x40000")
            A(f"s_cbranch_scc1 L_chain_abort")
            A("s_waitcnt vmcnt(0)")
            A(f"v_cmp_ne_u32 vcc, 0, {v(vPF)}")
            A(f"s_and_b32 {s(sT0)}, vcc_lo, {s(sFMK2)}")
            A(f"s_cmp_eq_u32 {s(sT0)}, {s(sFMK2)}")
            A(f"s_cbranch_scc1 {fok}")
            A("s_sleep 1")
            A(f"s_branch {fs_}")
    def main_loop(st, sfx):
        sp = []
        A(f"s_cmp_eq_u32 {s(sWAVE)}, 2")
        A(f"s_cbranch_scc1 L_step{sfx}_f2")
        A(f"s_cmp_eq_u32 {s(sWAVE)}, 3")
        A(f"s_cbranch_scc1 L_step{sfx}_f3")
        step_body(st, sfx+"_n", 0, sp)
        A.hist = []
        step_body(st, sfx+"_f2", 2, sp)
        A.hist = []
        step_body(st, sfx+"_f3", 3, sp)
        slow_code(sp)
    step_scalars(); zero_acc()
    A("s_barrier")
    if flags:
        A(f"s_cmp_lg_u32 {s(sMODE)}, 1")
        A("s_cbranch_scc1 L_main_slow")
        main_loop("", "_fast")
        A.hist = []
        A("L_main_slow:")
        main_loop("sc1", "_slow")
    else:
        main_loop(smode, "")
    A("L_chain_abort:")
    A(f"s_mov_b32 {s(sSTEP)}, 0xdead")
    A("s_branch L_chain_end")
    A("L_chain_done:")
    A("L_chain_end:")
    if STARTUP_STAMPS:
        A("s_waitcnt lgkmcnt(0)")
        A(f"s_lshl_b32 {s(sT0)}, {s(sRANK)}, 2")
        A(f"s_add_u32 {s(sT0)}, {s(sT0)}, {s(sWAVE)}")
        A(f"s_lshl_b32 {s(sT0)}, {s(sT0)}, 6")
        A(f"s_add_u32 {s(sT0)}, {s(sT0)}, {WS_END_CHAIN + 0x4000}")
        A(f"v_mov_b32 {v(24)}, {s(sT0)}")
        for k in range(8):
            A(f"v_mov_b32 {v(25)}, {s(76+2*k)}")
            A(f"global_store_dword {v(24)}, {v(25)}, {s(sWS,2)} offset:{4*k}")
    if stamp:
        A(f"s_lshl_b32 {s(sT0)}, {s(sRANK)}, 2")
        A(f"s_add_u32 {s(sT0)}, {s(sT0)}, {s(sWAVE)}")
        A(f"s_lshl_b32 {s(sT0)}, {s(sT0)}, 6")
        A(f"s_add_u32 {s(sT0)}, {s(sT0)}, {WS_END_CHAIN}")
        A(f"v_mov_b32 {v(24)}, {s(sT0)}")
        A(f"s_memtime {s(sTS+2,2)}")
        A("s_waitcnt lgkmcnt(0)")
        A(f"s_sub_u32 {s(sTS+2)}, {s(sTS+2)}, {s(sTS)}")
        A(f"v_mov_b32 {v(25)}, {s(sTS+2)}")
        A(f"global_store_dword {v(24)}, {v(25)}, {s(sWS,2)} offset:40")
        A(f"v_mov_b32 {v(25)}, {s(sSTEP)}")
        A(f"global_store_dword {v(24)}, {v(25)}, {s(sWS,2)} offset:44")
        A(f"v_mov_b32 {v(25)}, {s(sSPIN)}")
        A(f"global_store_dword {v(24)}, {v(25)}, {s(sWS,2)} offset:48")
        if stamp == 1:
            A(f"s_memrealtime {s(86,2)}"); A("s_waitcnt lgkmcnt(0)")
            for k in range(4):
                A(f"v_mov_b32 {v(25)}, {s(80+2*k)}")
                A(f"global_store_dword {v(24)}, {v(25)}, {s(sWS,2)} offset:{4*k}")
    A("s_waitcnt vmcnt(0)")

def gen_entry(A):
    A(f"s_load_dwordx2 {s(60,2)}, s[0:1], {KA_MEM0}")
    A(f"s_load_dwordx2 {s(62,2)}, s[0:1], {KA_WQ}")
    A(f"s_load_dwordx2 {s(64,2)}, s[0:1], {KA_WK}")
    A(f"s_load_dwordx2 {s(66,2)}, s[0:1], {KA_WV}")
    A(f"s_load_dwordx2 {s(68,2)}, s[0:1], {KA_WO}")
    A(f"s_load_dwordx2 {s(sDBG,2)}, s[0:1], {KA_DBG}")
    A(f"s_load_dwordx2 {s(sWS,2)}, s[0:1], {KA_WS}")
    A(f"s_getreg_b32 {s(sT0)}, hwreg(HW_REG_XCC_ID, 0, 4)")
    A("v_lshrrev_b32 v1, 6, v0")
    A(f"v_readfirstlane_b32 {s(sWAVE)}, v1")
    A("v_and_b32 v31, 63, v0")
    A("s_waitcnt lgkmcnt(0)")

def gen_standalone(stamp=0, **kw):
    A = Asm()
    name = "chain_kernel"
    A.raw("; @launch kernel=chain_kernel grid=(256,1,1) block=(256,1,1) lds=163840")
    A.raw('.amdgcn_target "amdgcn-amd-amdhsa--gfx950"')
    A.raw(kstart(name))
    gen_entry(A)
    A(f"s_cmp_lg_u32 {s(sT0)}, 0")
    A("s_cbranch_scc1 L_exit")
    A("s_cmp_ge_u32 s2, 256")
    A("s_cbranch_scc1 L_exit")
    A("v_mov_b32 v2, 0")
    A("v_mov_b32 v3, 1")
    A(f"v_mov_b32 v5, {L_MISC}")
    tk = "L_tk"
    A(f"s_cmp_lg_u32 {s(sWAVE)}, 0")
    A(f"s_cbranch_scc1 {tk}")
    A("s_mov_b64 exec, 1")
    A(f"global_atomic_add v4, v2, v3, {s(sDBG,2)} sc0")
    A("s_waitcnt vmcnt(0)")
    A("ds_write_b32 v5, v4")
    A("s_waitcnt lgkmcnt(0)")
    A("s_mov_b64 exec, -1")
    A(f"{tk}:")
    A("s_barrier")
    A("ds_read_b32 v4, v5")
    A("s_waitcnt lgkmcnt(0)")
    A(f"v_readfirstlane_b32 {s(sRANK)}, v4")
    A(f"s_cmp_ge_u32 {s(sRANK)}, 32")
    A("s_cbranch_scc1 L_exit")
    gen_chain(A, 64, stamp, **kw)
    A("L_exit:")
    A("s_endpgm")
    A.raw(kd(name))
    return A

if __name__ == "__main__":
    import sys
    kw = {}
    for x in sys.argv[3:]:
        k,val = x.split("="); kw[k] = int(val)
    A = gen_standalone(stamp=int(sys.argv[2]) if len(sys.argv)>2 else 0, **kw)
    open(sys.argv[1], "w").write(A.text())
    print("nops inserted:", A.nops, "lines", len(A.out))
```

```python
from asmlib import *
from layout import *

wLANE=0
wL16=1
wAR=2
wDM=10
wT=12
wAF=32
wAC=64
wE=96
sWS=4; sDBG=6; sWAVE=8; sT=12
sWB=20
sWB2=22
sLDW=24
sAP=26
sOP=28
sSEG=30; sSEGN=31; sTYPE=32
LDS_A0=0

def load_weights(A, ksteps, ffn=False, sigma=True, lab="w"):
    nch = ksteps // 4
    T = wT
    A(f"v_lshrrev_b32 {v(T)}, 5, {v(wLANE)}")
    A(f"v_and_b32 {v(T+1)}, 31, {v(wLANE)}")
    for par in range(2):
        A(f"v_add_u32 {v(T+2)}, {2*par}, {v(T)}")
        A(f"v_lshlrev_b32 {v(T+2)}, 2, {v(T+2)}")
        A(f"v_xor_b32 {v(T+2)}, {v(T+2)}, {v(T+1)}")
        lo, hi = T+4+2*par, T+5+2*par
        if not ffn:
            A(f"v_lshlrev_b32 {v(T+3)}, 4, {v(T+2)}")
            A(f"v_mov_b32 {v(hi)}, {s(sWB+1)}")
            A(f"v_add_co_u32 {v(lo)}, vcc, {s(sWB)}, {v(T+3)}")
            A(f"v_addc_co_u32 {v(hi)}, vcc, 0, {v(hi)}, vcc")
        else:
            A(f"v_and_b32 {v(T+3)}, 15, {v(T+2)}")
            A(f"v_lshlrev_b32 {v(T+3)}, 4, {v(T+3)}")
            A(f"v_cmp_lt_u32 vcc, 15, {v(T+2)}")
            A(f"v_mov_b32 {v(lo)}, {s(sWB)}")
            A(f"v_mov_b32 {v(hi)}, {s(sWB2)}")
            A(f"v_cndmask_b32 {v(lo)}, {v(lo)}, {v(hi)}, vcc")
            A(f"v_mov_b32 {v(hi)}, {s(sWB+1)}")
            A(f"v_mov_b32 {v(T+8)}, {s(sWB2+1)}")
            A(f"v_cndmask_b32 {v(hi)}, {v(hi)}, {v(T+8)}, vcc")
            A(f"v_add_co_u32 {v(lo)}, vcc, {v(lo)}, {v(T+3)}")
            A(f"v_addc_co_u32 {v(hi)}, vcc, 0, {v(hi)}, vcc")
        A(f"s_lshl_b32 {s(sT)}, {s(sWAVE)}, 4")
        A(f"s_add_u32 {s(sT)}, {s(sT)}, {2*par}")
        A(f"v_add_u32 {v(T+3)}, {s(sT)}, {v(T)}")
        A(f"v_mul_lo_u32 {v(T+3)}, {v(T+3)}, {s(sLDW)}")
        A(f"v_add_co_u32 {v(lo)}, vcc, {v(lo)}, {v(T+3)}")
        A(f"v_addc_co_u32 {v(hi)}, vcc, 0, {v(hi)}, vcc")
    A(f"s_lshl_b32 {s(sT+2)}, {s(sLDW)}, 2")
    A(f"s_mul_i32 {s(sT+3)}, {s(sLDW)}, 48")
    A(f"s_lshl_b32 {s(sT+1)}, {s(sWAVE)}, 13")
    def raw_regs(c):
        return [a((Tt*32+4*c+kk)*4, 4) for Tt in range(2) for kk in range(4)]
    def issue(c):
        rr = raw_regs(c)
        for i in range(8):
            lo = T+4+2*(i&1)
            A(f"global_load_dwordx4 {rr[i]}, {v(lo,2)}, off")
            A(f"v_add_co_u32 {v(lo)}, vcc, {s(sT+2)}, {v(lo)}")
            A(f"v_addc_co_u32 {v(lo+1)}, vcc, 0, {v(lo+1)}, vcc")
        for par in range(2):
            lo = T+4+2*par
            A(f"v_add_co_u32 {v(lo)}, vcc, {s(sT+3)}, {v(lo)}")
            A(f"v_addc_co_u32 {v(lo+1)}, vcc, 0, {v(lo+1)}, vcc")
    A(f"v_bfe_u32 {v(T+10)}, {v(wLANE)}, 2, 2")
    A(f"v_and_b32 {v(T+11)}, 3, {v(wLANE)}")
    if sigma:
        A(f"v_and_b32 {v(T+12)}, 1, {v(T+11)}")
        A(f"v_lshlrev_b32 {v(T+12)}, 1, {v(T+12)}")
        A(f"v_lshrrev_b32 {v(T+11)}, 1, {v(T+11)}")
        A(f"v_or_b32 {v(T+11)}, {v(T+11)}, {v(T+12)}")
    A(f"v_bfe_u32 {v(T+12)}, {v(wLANE)}, 4, 1")
    A(f"v_lshrrev_b32 {v(T+13)}, 5, {v(wLANE)}")
    A(f"v_lshrrev_b32 {v(T+14)}, 1, {v(T+11)}")
    A(f"v_lshl_add_u32 {v(T+14)}, {v(T+12)}, 1, {v(T+14)}")
    A(f"v_lshl_add_u32 {v(T+13)}, {v(T+13)}, 3, {v(T+10)}")
    for Tt in range(2):
        if not ffn: A(f"s_lshl_b32 {s(sT)}, {s(sWAVE)}, 3"); A(f"s_add_u32 {s(sT)}, {s(sT)}, {4*Tt}")
        else: A(f"s_lshl_b32 {s(sT)}, {s(sWAVE)}, 2"); A(f"s_add_u32 {s(sT)}, {s(sT)}, {16*Tt}")
        A(f"v_add_u32 {v(T+15)}, {s(sT)}, {v(T+14)}")
        A(f"v_lshlrev_b32 {v(T+16)}, 2, {v(T+10)}")
        A(f"v_xor_b32 {v(T+15)}, {v(T+15)}, {v(T+16)}")
        A(f"v_lshlrev_b32 {v(T+15)}, 4, {v(T+15)}")
        A(f"v_lshl_add_u32 {v(T+15)}, {v(T+13)}, 9, {v(T+15)}")
        A(f"v_and_b32 {v(T+16)}, 1, {v(T+11)}")
        A(f"v_lshl_add_u32 {v(T+17+Tt)}, {v(T+16)}, 3, {v(T+15)}")
    DEPTH = min(7, nch)
    A(f"v_add_u32 {v(T+9)}, {s(sT+1)}, {v(wL16)}")
    for c in range(DEPTH): issue(c)
    for c in range(nch):
        slot = c % 2
        left = min(DEPTH-1, nch - 1 - c)
        A(f"s_waitcnt vmcnt({8*left})")
        rr = raw_regs(c)
        for i in range(8):
            A(f"ds_write_b128 {v(T+9)}, {rr[i]} offset:{slot*32768 + i*1024}")
        A("s_waitcnt lgkmcnt(0)")
        A("s_barrier")
        for Tt in range(2):
            for kk in range(4):
                kap = 4*c + kk
                for y in range(2):
                    A(f"ds_read_b64_tr_b16 {a((Tt*32+kap)*4 + 2*y, 2)}, {v(T+17+Tt)} offset:{slot*32768 + (16*kk + 4*y)*512}")
        if c + DEPTH < nch: issue(c + DEPTH)
        A("s_waitcnt lgkmcnt(0)")
    A("s_barrier")

def setup_a_addr(A, mode):
    if mode == "f":
        A(f"v_mov_b32 {v(wAR)}, {v(wL16)}")
    else:
        T = wT
        A(f"v_and_b32 {v(T)}, 31, {v(wLANE)}")
        A(f"v_lshrrev_b32 {v(T+1)}, 5, {v(wLANE)}")
        A(f"v_and_b32 {v(T+2)}, 15, {v(wLANE)}")
        for b in range(8):
            A(f"v_add_u32 {v(T+3)}, {2*b}, {v(T+1)}")
            A(f"v_xor_b32 {v(T+3)}, {v(T+3)}, {v(T+2)}")
            A(f"v_lshlrev_b32 {v(T+3)}, 4, {v(T+3)}")
            A(f"v_lshl_add_u32 {v(wAR+b)}, {v(T)}, 10, {v(T+3)}")

def a_read(kap, buf, mode, slot_off):
    dst = v(wAF+4*buf, 4)
    if mode == "f":
        return f"ds_read_b128 {dst}, {v(wAR)} offset:{slot_off + kap*1024}"
    a_, b_ = kap >> 3, kap & 7
    return f"ds_read_b128 {dst}, {v(wAR+b_)} offset:{slot_off + a_*256}"

def mma_chunk(A, ksteps, mode, slot_off, transposed, fillers=None, acc=wAC):
    fillers = list(fillers or [])
    NB = 8
    pre = min(6, ksteps)
    for k in range(pre): A(a_read(k, k % NB, mode, slot_off))
    nread = pre
    for k in range(ksteps):
        outstanding = nread - 1 - k
        A(f"s_waitcnt lgkmcnt({min(outstanding,15)})")
        for Tt in range(2):
            d = v(acc+16*Tt, 16); c = "0" if k == 0 else d
            w_ = a((Tt*32+k)*4, 4); x_ = v(wAF+4*(k % NB), 4)
            if transposed: A(f"v_mfma_f32_32x32x16_bf16 {d}, {w_}, {x_}, {c}")
            else: A(f"v_mfma_f32_32x32x16_bf16 {d}, {x_}, {w_}, {c}")
            if Tt == 0 and nread < ksteps:
                A(a_read(nread, nread % NB, mode, slot_off)); nread += 1
            for _ in range(2):
                if fillers: A(fillers.pop(0))
    for f in fillers: A(f)
```

```python
from asmlib import *
from layout import *
from engine import *
import struct
def f2u(x): return struct.unpack("<I", struct.pack("<f", x))[0]
LOG2E = 1.4426950408889634
sIN = 60


sFLG=46
wFV=30
wFL=254
USE_FLAGS=False
def flag_init_ptr(A):
    A(f"s_add_u32 {s(sFLG)}, {s(sWS)}, {WS_FLAGS}")
    A(f"s_addc_u32 {s(sFLG+1)}, {s(sWS+1)}, 0")
def flag_set(A, seg_s, row, idx_s=None, idx_c=0):
    lab = A.label("L_fs")
    A(f"s_cmp_lg_u32 {s(sWAVE)}, 0")
    A(f"s_cbranch_scc1 {lab}")
    A.cbegin()
    A(f"s_lshl_b32 {s(48)}, {s(seg_s)}, 10")
    if idx_s is not None:
        A(f"s_lshl_b32 {s(49)}, {s(idx_s)}, 2")
        A(f"s_add_u32 {s(48)}, {s(48)}, {s(49)}")
    A(f"s_add_u32 {s(48)}, {s(48)}, {row*256 + idx_c*4}")
    A(f"v_mov_b32 {v(wFL)}, {s(48)}")
    A(f"v_mov_b32 {v(wFL+1)}, 1")
    A("s_mov_b64 exec, 1")
    A(f"global_store_dword {v(wFL)}, {v(wFL+1)}, {s(sFLG,2)} sc1")
    A("s_mov_b64 exec, -1")
    A.cend()
    A(f"{lab}:")
def flag_wait(A, seg_s, row, mask_lo_s, mask_hi_s):
    lab = A.label("L_fw"); ok = A.label("L_fwok")
    A(f"s_lshl_b32 {s(48)}, {s(seg_s)}, 10")
    A(f"s_add_u32 {s(48)}, {s(48)}, {row*256}")
    A(f"v_lshlrev_b32 {v(wFL)}, 2, {v(wLANE)}")
    A(f"v_add_u32 {v(wFL)}, {s(48)}, {v(wFL)}")
    A(f"s_mov_b32 {s(49)}, 0")
    A(f"{lab}:")
    A(f"global_load_dword {v(wFL+1)}, {v(wFL)}, {s(sFLG,2)} sc1")
    A(f"s_add_u32 {s(49)}, {s(49)}, 1")
    A(f"s_cmp_gt_u32 {s(49)}, 0x20000")
    A(f"s_cbranch_scc1 {ok}")
    A("s_waitcnt vmcnt(0)")
    A(f"v_cmp_ne_u32 vcc, 0, {v(wFL+1)}")
    A(f"s_and_b32 {s(50)}, vcc_lo, {s(mask_lo_s)}")
    A(f"s_and_b32 {s(51)}, vcc_hi, {s(mask_hi_s)}")
    A(f"s_xor_b32 {s(50)}, {s(50)}, {s(mask_lo_s)}")
    A(f"s_xor_b32 {s(51)}, {s(51)}, {s(mask_hi_s)}")
    A(f"s_or_b32 {s(50)}, {s(50)}, {s(51)}")
    A(f"s_cmp_eq_u32 {s(50)}, 0")
    A(f"s_cbranch_scc1 {ok}")
    A("s_sleep 1")
    A(f"s_branch {lab}")
    A(f"{ok}:")
def wait_finit(A):
    lab = A.label("L_wfi"); ok = A.label("L_wfiok")
    A(f"v_mov_b32 {v(wFL)}, {DBG_FINIT}")
    A(f"s_mov_b32 {s(49)}, 0")
    A(f"{lab}:")
    A(f"global_load_dword {v(wFL+1)}, {v(wFL)}, {s(sDBG,2)} sc1")
    A(f"s_add_u32 {s(49)}, {s(49)}, 1")
    A(f"s_cmp_gt_u32 {s(49)}, 0x20000")
    A(f"s_cbranch_scc1 {ok}")
    A("s_waitcnt vmcnt(0)")
    A(f"v_cmp_gt_u32 vcc, 256, {v(wFL+1)}")
    A(f"s_cbranch_vccz {ok}")
    A("s_sleep 2")
    A(f"s_branch {lab}")
    A(f"{ok}:")

def load_ptrs(A):
    for reg,off in ((60,KA_X),(62,KA_WQ),(64,KA_WK),(66,KA_WV),(68,KA_WO),(70,KA_W1),(72,KA_W3),(74,KA_W2),(76,KA_GW),(78,KA_OUT),(sDBG,KA_DBG),(sWS,KA_WS)):
        A(f"s_load_dwordx2 {s(reg,2)}, s[0:1], {off}")
    A("v_lshrrev_b32 v1, 6, v0")
    A(f"v_readfirstlane_b32 {s(sWAVE)}, v1")
    A(f"v_and_b32 {v(wLANE)}, 63, v0")
    A(f"v_lshlrev_b32 {v(wL16)}, 4, {v(wLANE)}")
    A("s_waitcnt lgkmcnt(0)")

def dma_x_setup(A):
    A(f"s_and_b32 {s(sT)}, {s(sWAVE)}, 1")
    A(f"s_lshl_b32 {s(sT)}, {s(sT)}, 7")
    A(f"v_xor_b32 {v(wDM)}, {s(sT)}, {v(wL16)}")

def dma_x(A, slot_reg):
    A(f"s_lshl_b32 {s(sT)}, {s(sWAVE)}, 13")
    A(f"s_add_u32 {s(sT+4)}, {s(sAP)}, {s(sT)}")
    A(f"s_addc_u32 {s(sT+5)}, {s(sAP+1)}, 0")
    A(f"s_add_u32 {s(sT)}, {s(sT)}, {s(slot_reg)}")
    out = []
    for i in range(8):
        A(f"v_xor_b32 {v(wDM+1)}, {i*16}, {v(wDM)}")
        A(f"s_add_u32 m0, {s(sT)}, {i*1024}")
        A(f"global_load_lds_dwordx4 {v(wDM+1)}, {s(sT+4,2)}")
        if i < 7:
            A(f"s_add_u32 {s(sT+4)}, {s(sT+4)}, 1024")
            A(f"s_addc_u32 {s(sT+5)}, {s(sT+5)}, 0")

def dma_lin(A, slot_reg, nfrag=32, mod=""):
    per = nfrag // 4
    A(f"s_mul_i32 {s(sT)}, {s(sWAVE)}, {per*1024}")
    A(f"s_add_u32 {s(sT+4)}, {s(sAP)}, {s(sT)}")
    A(f"s_addc_u32 {s(sT+5)}, {s(sAP+1)}, 0")
    A(f"s_add_u32 {s(sT)}, {s(sT)}, {s(slot_reg)}")
    for i in range(0, per, 4):
        A(f"s_add_u32 m0, {s(sT)}, {i*1024}")
        for j in range(min(4, per-i)):
            A(f"global_load_lds_dwordx4 {v(wL16)}, {s(sT+4,2)} offset:{j*1024} {mod}")
        if i + 4 < per:
            A(f"s_add_u32 {s(sT+4)}, {s(sT+4)}, 4096")
            A(f"s_addc_u32 {s(sT+5)}, {s(sT+5)}, 0")

sSLOT=34; sCNT=35; sSL=36; sSTR=33

def epi_kq(A, st=""):
    E = wE
    for Tt in range(2):
        for hf in range(2):
            for d in range(4):
                r = wAC + 16*Tt + 8*hf + 2*d
                A(f"v_cvt_pk_bf16_f32 {v(E+8*Tt+4*hf+d)}, {v(r)}, {v(r+1)}")
            A(f"global_store_dwordx4 {v(E+20)}, {v(E+8*Tt+4*hf,4)}, {s(sOP,2)} offset:{Tt*1024+hf*512} {st}")

def epi_v(A, st=""):
    E = wE
    for Tt in range(2):
        for u in range(2):
            base = wAC + 16*Tt
            regs = [base+4*u, base+4*u+2, base+8+4*u, base+8+4*u+2]
            for d in range(4):
                A(f"v_cvt_pk_bf16_f32 {v(E+8*Tt+4*u+d)}, {v(regs[d])}, {v(regs[d]+1)}")
            A(f"global_store_dwordx4 {v(E+20)}, {v(E+8*Tt+4*u,4)}, {s(sOP,2)} offset:{Tt*2048+u*512} {st}")

def unpack2(A, dlo, dhi, src):
    A(f"v_lshlrev_b32 {v(dlo)}, 16, {v(src)}")
    A(f"v_and_b32 {v(dhi)}, 0xffff0000, {v(src)}")

def epi_ffn(A, st=""):
    E = wE
    G = wAC; U = wAC+16
    t = E+8
    for hf in range(2):
        for d in range(4):
            g = G + 8*hf + 2*d; u = U + 8*hf + 2*d
            A(f"v_cvt_pk_bf16_f32 {v(t)}, {v(g)}, {v(g+1)}")
            A(f"v_cvt_pk_bf16_f32 {v(t+1)}, {v(u)}, {v(u+1)}")
            unpack2(A, t+2, t+3, t)
            unpack2(A, t+6, t+7, t+1)
            A(f"v_pk_mul_f32 {v(t+4,2)}, {v(t+2,2)}, {s(40,2)}")
            A(f"v_exp_f32 {v(t+4)}, {v(t+4)}")
            A(f"v_exp_f32 {v(t+5)}, {v(t+5)}")
            A(f"v_pk_add_f32 {v(t+4,2)}, {v(t+4,2)}, {s(42,2)}")
            A(f"v_rcp_f32 {v(t+4)}, {v(t+4)}")
            A(f"v_rcp_f32 {v(t+5)}, {v(t+5)}")
            A(f"v_pk_mul_f32 {v(t+4,2)}, {v(t+4,2)}, {v(t+2,2)}")
            A(f"v_cvt_pk_bf16_f32 {v(t)}, {v(t+4)}, {v(t+5)}")
            unpack2(A, t+4, t+5, t)
            A(f"v_pk_mul_f32 {v(t+4,2)}, {v(t+4,2)}, {v(t+6,2)}")
            A(f"v_cvt_pk_bf16_f32 {v(E+4*hf+d)}, {v(t+4)}, {v(t+5)}")
        A(f"global_store_dwordx4 {v(wL16)}, {v(E+4*hf,4)}, {s(sOP,2)} offset:{hf*1024} {st}")

def epi_part(A, st=""):
    for Tt in range(2):
        for hq in range(4):
            r = wAC + 16*Tt + 4*hq
            off = Tt*4096 + hq*1024
            if off < 4096: A(f"global_store_dwordx4 {v(wL16)}, {v(r,4)}, {s(sOP,2)} offset:{off} {st}")
            else: A(f"global_store_dwordx4 {v(wDM)}, {v(r,4)}, {s(sOP,2)} offset:{off-4096} {st}")

PROF=False
def pst(A,k):
    if PROF:
        A(f"s_memtime {s(90,2)}"); A("s_waitcnt lgkmcnt(0)")
        A(f"s_sub_u32 {s(92)}, {s(90)}, {s(93)}"); A(f"s_mov_b32 {s(93)}, {s(90)}"); A(f"s_add_u32 {s(94+k)}, {s(94+k)}, {s(92)}")
def seg_loop(A, kind, nseg_reg_init, seg_stride, ksteps=32, st=""):
    mode = "x"
    lab = A.label("L_seg")
    def set_ap():
        A(f"s_lshl_b32 {s(sT)}, {s(sSEG)}, 15")
        A(f"s_add_u32 {s(sAP)}, {s(60)}, {s(sT)}")
        A(f"s_addc_u32 {s(sAP+1)}, {s(61)}, 0")
    A(f"s_mov_b32 {s(sSLOT)}, 0")
    set_ap()
    dma_x(A, sSLOT)
    nst = 2 if kind == "ffn" else 4
    A(f"s_mov_b32 {s(52)}, -1")
    A(f"s_mov_b32 {s(53)}, -1")
    A("s_waitcnt vmcnt(0)")
    if PROF:
        for k in range(6): A(f"s_mov_b32 {s(94+k)}, 0")
        A(f"s_memtime {s(90,2)}"); A("s_waitcnt lgkmcnt(0)"); A(f"s_mov_b32 {s(93)}, {s(90)}")
    A(f"{lab}:")
    A(f"s_waitcnt vmcnt({nst})")
    A("s_barrier")
    pst(A,0)
    if USE_FLAGS:
        nf = A.label("L_nf")
        A(f"s_cmp_eq_u32 {s(52)}, -1")
        A(f"s_cbranch_scc1 {nf}")
        flag_set(A, 52, 0, idx_s=sSL)
        A(f"{nf}:")
        A(f"s_mov_b32 {s(52)}, {s(53)}")
        A(f"s_mov_b32 {s(53)}, {s(sSEG)}")
    if kind in ("k","q","v"):
        base = {"k":WS_KX,"q":WS_Q,"v":WS_VX}[kind]
        A(f"s_lshl_b32 {s(sT)}, {s(sSEG)}, 18")
        A(f"s_add_u32 {s(sT)}, {s(sT)}, {s(37)}")
        A(f"s_add_u32 {s(sT)}, {s(sT)}, {base}")
    else:
        A(f"s_mul_i32 {s(sT)}, {s(sSEG)}, {56*2048}")
        A(f"s_add_u32 {s(sT)}, {s(sT)}, {s(37)}")
        A(f"s_add_u32 {s(sT)}, {s(sT)}, {WS_H}")
    A(f"s_add_u32 {s(sOP)}, {s(sWS)}, {s(sT)}")
    A(f"s_addc_u32 {s(sOP+1)}, {s(sWS+1)}, 0")
    nx = A.label("L_nonext")
    A(f"s_add_u32 {s(sSEG)}, {s(sSEG)}, {s(sSTR)}")
    A(f"s_sub_u32 {s(sCNT)}, {s(sCNT)}, 1")
    A(f"s_xor_b32 {s(sSLOT)}, {s(sSLOT)}, 32768")
    A(f"s_cmp_eq_u32 {s(sCNT)}, 0")
    A(f"s_cbranch_scc1 {nx}")
    A.cbegin()
    set_ap()
    dma_x(A, sSLOT)
    A.cend()
    A(f"{nx}:")
    pst(A,1)
    mma_chunk(A, ksteps, mode, 0, transposed=(kind != "v"))
    pst(A,2)
    for b in range(8): A(f"v_xor_b32 {v(wAR+b)}, 32768, {v(wAR+b)}")
    if kind in ("k","q"): epi_kq(A, st)
    elif kind == "v": epi_v(A, st)
    else: epi_ffn(A, st)
    if USE_FLAGS:
        nfirst = A.label("L_nfirst")
        A(f"s_cmp_eq_u32 {s(52)}, -1")
        A(f"s_cbranch_scc0 {nfirst}")
        A(f"s_cmp_lt_u32 {s(53)}, 3")
        A(f"s_cbranch_scc0 {nfirst}")
        A("s_waitcnt vmcnt(0)")
        A("s_barrier")
        flag_set(A, 53, 0, idx_s=sSL)
        A(f"{nfirst}:")
    pst(A,3)
    A(f"s_cmp_lg_u32 {s(sCNT)}, 0")
    A(f"s_cbranch_scc1 {lab}")
    if USE_FLAGS:
        A("s_waitcnt vmcnt(0)")
        A("s_barrier")
        nf2 = A.label("L_nf")
        A(f"s_cmp_eq_u32 {s(52)}, -1")
        A(f"s_cbranch_scc1 {nf2}")
        flag_set(A, 52, 0, idx_s=sSL)
        A(f"{nf2}:")
        flag_set(A, 53, 0, idx_s=sSL)

def gen_proj_body(A, st=""):
    done = A.label("L_pdone")
    lk, lv, lq, lf = [A.label(x) for x in ("L_pk","L_pv","L_pq","L_pf")]
    A(f"s_cmp_lt_u32 {s(sSL)}, 16"); A(f"s_cbranch_scc1 {lk}")
    A(f"s_cmp_lt_u32 {s(sSL)}, 32"); A(f"s_cbranch_scc1 {lv}")
    A(f"s_cmp_lt_u32 {s(sSL)}, 48"); A(f"s_cbranch_scc1 {lq}")
    A(f"s_branch {lf}")
    for kind,lab,first,ptr in (("k",lk,0,64),("v",lv,16,66),("q",lq,32,62)):
        A(f"{lab}:")
        A(f"s_sub_u32 {s(sT+6)}, {s(sSL)}, {first}")
        A(f"s_lshl_b32 {s(sT)}, {s(sT+6)}, 9")
        A(f"s_add_u32 {s(sWB)}, {s(ptr)}, {s(sT)}")
        A(f"s_addc_u32 {s(sWB+1)}, {s(ptr+1)}, 0")
        A(f"s_mov_b32 {s(sLDW)}, 8192")
        A(f"s_lshr_b32 {s(sT)}, {s(sWAVE)}, 1")
        A(f"s_lshl_b32 {s(sT+1)}, {s(sT+6)}, 1")
        A(f"s_add_u32 {s(sT)}, {s(sT)}, {s(sT+1)}")
        A(f"s_lshl_b32 {s(37)}, {s(sT)}, 13")
        A(f"s_and_b32 {s(sT)}, {s(sWAVE)}, 1")
        A(f"s_lshl_b32 {s(sT)}, {s(sT)}, {11 if kind != 'v' else 12}")
        A(f"s_add_u32 {s(37)}, {s(37)}, {s(sT)}")
        load_weights(A, 32, ffn=False, sigma=(kind != "v"))
        setup_a_addr(A, "x"); dma_x_setup(A)
        T = wT
        if kind != "v":
            A(f"v_bfe_u32 {v(T)}, {v(wLANE)}, 4, 1")
            A(f"v_lshrrev_b32 {v(T+1)}, 5, {v(wLANE)}")
            A(f"v_and_b32 {v(T+2)}, 15, {v(wLANE)}")
            A(f"v_lshl_add_u32 {v(T+1)}, {v(T+1)}, 4, {v(T+2)}")
            A(f"v_lshlrev_b32 {v(T+1)}, 4, {v(T+1)}")
            A(f"v_lshl_add_u32 {v(wE+20)}, {v(T)}, 12, {v(T+1)}")
        else:
            A(f"v_bfe_u32 {v(T)}, {v(wLANE)}, 4, 1")
            A(f"v_lshrrev_b32 {v(T+1)}, 5, {v(wLANE)}")
            A(f"v_and_b32 {v(T+2)}, 15, {v(wLANE)}")
            A(f"v_lshl_add_u32 {v(T+1)}, {v(T+1)}, 4, {v(T+2)}")
            A(f"v_lshlrev_b32 {v(T+1)}, 4, {v(T+1)}")
            A(f"v_lshl_add_u32 {v(wE+20)}, {v(T)}, 10, {v(T+1)}")
        seg_loop(A, kind, None, 4, 32, st)
        A(f"s_branch {done}")
    A(f"{lf}:")
    A(f"s_sub_u32 {s(sT+6)}, {s(sSL)}, 48")
    A(f"s_lshl_b32 {s(sT)}, {s(sT+6)}, 8")
    A(f"s_add_u32 {s(sWB)}, {s(70)}, {s(sT)}")
    A(f"s_addc_u32 {s(sWB+1)}, {s(71)}, 0")
    A(f"s_add_u32 {s(sWB2)}, {s(72)}, {s(sT)}")
    A(f"s_addc_u32 {s(sWB2+1)}, {s(73)}, 0")
    A(f"s_mov_b32 {s(sLDW)}, 3584")
    A(f"s_lshl_b32 {s(sT)}, {s(sT+6)}, 2")
    A(f"s_add_u32 {s(sT)}, {s(sT)}, {s(sWAVE)}")
    A(f"s_lshl_b32 {s(37)}, {s(sT)}, 11")
    A(f"s_mov_b32 {s(40)}, {f2u(-LOG2E):#x}"); A(f"s_mov_b32 {s(41)}, {f2u(-LOG2E):#x}")
    A(f"s_mov_b32 {s(42)}, 1.0"); A(f"s_mov_b32 {s(43)}, 1.0")
    load_weights(A, 32, ffn=True, sigma=True)
    setup_a_addr(A, "x"); dma_x_setup(A)
    seg_loop(A, "ffn", None, 4, 32, st)
    A(f"{done}:")

def gen_proj_kernel(A, name="proj_kernel"):
    A.raw(kstart(name))
    load_ptrs(A)
    A("s_cmp_ge_u32 s2, 248")
    A("s_cbranch_scc1 L_proj_exit")
    A(f"s_lshr_b32 {s(sSL)}, s2, 2")
    A(f"s_and_b32 {s(sSEG)}, s2, 3")
    A(f"s_mov_b32 {s(sCNT)}, 16")
    A(f"s_mov_b32 {s(sSTR)}, 4")
    if PROF:
        A(f"s_memtime {s(88,2)}"); A("s_waitcnt lgkmcnt(0)")
    gen_proj_body(A)
    if PROF:
        A(f"s_memtime {s(90,2)}"); A("s_waitcnt lgkmcnt(0)")
        A(f"s_sub_u32 {s(98)}, {s(90)}, {s(88)}")
        A(f"s_lshl_b32 {s(12)}, s2, 5"); A(f"s_add_u32 {s(12)}, {s(12)}, {WS_END_CHAIN}")
        A(f"v_mov_b32 v24, {s(12)}")
        for k in range(5):
            A(f"v_mov_b32 v25, {s(94+k)}"); A(f"global_store_dword v24, v25, {s(sWS,2)} offset:{4*k}")
        A("s_waitcnt vmcnt(0)")
    A("L_proj_exit:")
    A("s_endpgm")

def part_loop(A, ksteps, src, st="", seg_stride=1, pre=None):
    lab = A.label("L_seg")
    def set_ap():
        A(f"s_mul_i32 {s(sT)}, {s(sSEG)}, {56*2048}")
        A(f"s_add_u32 {s(sT)}, {s(sT)}, {s(37)}")
        A(f"s_add_u32 {s(sAP)}, {s(sWS)}, {s(sT)}")
        A(f"s_addc_u32 {s(sAP+1)}, {s(sWS+1)}, 0")
    mod = "sc1" if USE_FLAGS else ""
    A(f"s_mov_b32 {s(sSLOT)}, 0")
    if USE_FLAGS:
        wl = A.label("L_dw")
        A(f"s_mov_b32 {s(52)}, {s(sSEG)}")
        A(f"s_mov_b32 {s(53)}, {s(sCNT)}")
        A(f"{wl}:")
        flag_wait(A, 52, 0, 54, 55)
        A(f"s_add_u32 {s(52)}, {s(52)}, {seg_stride}")
        A(f"s_sub_u32 {s(53)}, {s(53)}, 1")
        A(f"s_cmp_lg_u32 {s(53)}, 0")
        A(f"s_cbranch_scc1 {wl}")
    set_ap()
    dma_lin(A, sSLOT, ksteps, mod)
    A(f"s_mov_b32 {s(52)}, -1")
    A(f"s_mov_b32 {s(53)}, -1")
    A("s_waitcnt vmcnt(0)")
    A(f"{lab}:")
    A("s_waitcnt vmcnt(8)")
    A("s_barrier")
    if USE_FLAGS:
        nf = A.label("L_nf")
        A(f"s_cmp_eq_u32 {s(52)}, -1")
        A(f"s_cbranch_scc1 {nf}")
        flag_set(A, 52, 1, idx_s=sSL, idx_c=FL2_PB)
        A(f"{nf}:")
        A(f"s_mov_b32 {s(52)}, {s(53)}")
        A(f"s_mov_b32 {s(53)}, {s(sSEG)}")
    A(f"s_lshl_b32 {s(sT)}, {s(sSEG)}, 16")
    A(f"s_add_u32 {s(sT)}, {s(sT)}, {s(38)}")
    A(f"s_add_u32 {s(sOP)}, {s(sWS)}, {s(sT)}")
    A(f"s_addc_u32 {s(sOP+1)}, {s(sWS+1)}, 0")
    nx = A.label("L_nonext")
    A(f"s_add_u32 {s(sSEG)}, {s(sSEG)}, {seg_stride}")
    A(f"s_sub_u32 {s(sCNT)}, {s(sCNT)}, 1")
    A(f"s_xor_b32 {s(sSLOT)}, {s(sSLOT)}, 32768")
    A(f"s_cmp_eq_u32 {s(sCNT)}, 0")
    A(f"s_cbranch_scc1 {nx}")
    A.cbegin()
    set_ap()
    dma_lin(A, sSLOT, ksteps, mod)
    A.cend()
    A(f"{nx}:")
    mma_chunk(A, ksteps, "f", 0, transposed=True)
    A(f"v_xor_b32 {v(wAR)}, 32768, {v(wAR)}")
    epi_part(A, st)
    A(f"s_cmp_lg_u32 {s(sCNT)}, 0")
    A(f"s_cbranch_scc1 {lab}")
    if USE_FLAGS:
        A("s_waitcnt vmcnt(0)")
        A("s_barrier")
        nf2 = A.label("L_nf")
        A(f"s_cmp_eq_u32 {s(52)}, -1")
        A(f"s_cbranch_scc1 {nf2}")
        flag_set(A, 52, 1, idx_s=sSL, idx_c=FL2_PB)
        A(f"{nf2}:")
        flag_set(A, 53, 1, idx_s=sSL, idx_c=FL2_PB)

def gen_down_body(A, seg_stride, st=""):
    done = A.label("L_ddone"); l3 = A.label("L_d3")
    A(f"s_lshr_b32 {s(sT+6)}, {s(sSL)}, 1")
    A(f"s_and_b32 {s(sT+7)}, {s(sSL)}, 1")
    A(f"s_lshl_b32 {s(sT)}, {s(sT+6)}, 19")
    A(f"s_lshl_b32 {s(sT+1)}, {s(sT+7)}, 9")
    A(f"s_add_u32 {s(sT)}, {s(sT)}, {s(sT+1)}")
    A(f"s_add_u32 {s(sWB)}, {s(74)}, {s(sT)}")
    A(f"s_addc_u32 {s(sWB+1)}, {s(75)}, 0")
    A(f"s_mov_b32 {s(sLDW)}, 1024")
    A(f"s_lshl_b32 {s(37)}, {s(sT+6)}, 15")
    A(f"s_add_u32 {s(37)}, {s(37)}, {WS_H}")
    A(f"s_lshl_b32 {s(38)}, {s(sT+6)}, 22")
    A(f"s_lshl_b32 {s(sT)}, {s(sT+7)}, 15")
    A(f"s_add_u32 {s(38)}, {s(38)}, {s(sT)}")
    A(f"s_lshl_b32 {s(sT)}, {s(sWAVE)}, 13")
    A(f"s_add_u32 {s(38)}, {s(38)}, {s(sT)}")
    A(f"s_add_u32 {s(38)}, {s(38)}, {WS_PB}")
    A(f"v_add_u32 {v(wDM)}, 4096, {v(wL16)}")
    A(f"s_mov_b32 {s(54)}, 0")
    A(f"s_lshl_b32 {s(sT)}, {s(sT+6)}, 2")
    A(f"s_add_u32 {s(sT)}, {s(sT)}, 16")
    A(f"s_lshl_b32 {s(55)}, 15, {s(sT)}")
    A(f"s_and_b32 {s(55)}, {s(55)}, 0x3fffffff")
    A(f"s_cmp_eq_u32 {s(sT+6)}, 3")
    A(f"s_cbranch_scc1 {l3}")
    for ksteps,lab in ((32,None),(16,l3)):
        if lab: A(f"{lab}:")
        load_weights(A, ksteps, ffn=False, sigma=True)
        setup_a_addr(A, "f")
        part_loop(A, ksteps, "h", st, seg_stride)
        A(f"s_branch {done}")
    A(f"{done}:")

def gen_down_kernel(A, name="down_kernel"):
    A.raw(kstart(name))
    load_ptrs(A)
    A("s_cmp_ge_u32 s2, 256")
    A("s_cbranch_scc1 L_down_exit")
    A(f"s_lshr_b32 {s(sSL)}, s2, 5")
    A(f"s_and_b32 {s(sSEG)}, s2, 31")
    A(f"s_mov_b32 {s(sCNT)}, 2")
    gen_down_body(A, 32)
    A("L_down_exit:")
    A("s_endpgm")

SCALE_LOG2E = (128.0 ** -0.5) * LOG2E
aQ=96; aKX=128; aKM=160; aVX=176; aVM=208
aS=216
aBI=236
aP=240
aT=252
aO=64
aOW=11
aM=12

def attn_loads(A, mod="", part=0):
    P = 44
    A(f"s_lshl_b32 {s(sT)}, {s(sSEG)}, 5")
    A(f"s_add_u32 {s(sT)}, {s(sT)}, {s(39)}")
    A(f"s_lshl_b32 {s(sT+1)}, {s(sT)}, 13")
    for (base, reg, n) in (((WS_Q,aQ,8),(WS_KX,aKX,8),(WS_VX,aVX,8)) if part in (0,1) else ()):
        A(f"s_add_u32 {s(sT+2)}, {s(sT+1)}, {base}")
        A(f"s_add_u32 {s(P)}, {s(sWS)}, {s(sT+2)}")
        A(f"s_addc_u32 {s(P+1)}, {s(sWS+1)}, 0")
        for i in range(n):
            if i == 4:
                A(f"s_add_u32 {s(P)}, {s(P)}, 4096")
                A(f"s_addc_u32 {s(P+1)}, {s(P+1)}, 0")
            A(f"global_load_dwordx4 {v(reg+4*i,4)}, {v(wL16)}, {s(P,2)} offset:{(i&3)*1024} {mod}")
    if part == 1: return
    A(f"s_lshl_b32 {s(sT+1)}, {s(sT)}, 12")
    A(f"s_add_u32 {s(sT+2)}, {s(sT+1)}, {WS_KM}")
    A(f"s_add_u32 {s(P)}, {s(sWS)}, {s(sT+2)}")
    A(f"s_addc_u32 {s(P+1)}, {s(sWS+1)}, 0")
    for i in range(4):
        A(f"global_load_dwordx4 {v(aKM+4*i,4)}, {v(wL16)}, {s(P,2)} offset:{i*1024} {mod}")
    A(f"s_add_u32 {s(sT+2)}, {s(sT+1)}, {WS_VM}")
    A(f"s_add_u32 {s(P)}, {s(sWS)}, {s(sT+2)}")
    A(f"s_addc_u32 {s(P+1)}, {s(sWS+1)}, 0")
    A(f"v_lshrrev_b32 {v(aM+18)}, 1, {v(wL16)}")
    for i in range(4):
        A(f"global_load_dwordx2 {v(aVM+2*i,2)}, {v(aM+18)}, {s(P,2)} offset:{i*512} {mod}")

def attn_setup(A):
    T = aM
    A(f"v_and_b32 {v(T)}, 15, {v(wLANE)}")
    A(f"v_lshrrev_b32 {v(T+1)}, 4, {v(wLANE)}")
    A(f"v_lshlrev_b32 {v(T+2)}, 2, {v(T+1)}")
    A(f"v_mov_b32 {v(T+4)}, 0xff000000")
    for r in range(4):
        A(f"v_add_u32 {v(T+3)}, {r}, {v(T+2)}")
        A(f"v_cmp_gt_u32 vcc, {v(T+3)}, {v(T)}")
        A(f"v_cndmask_b32 {v(aBI+r)}, 0, {v(T+4)}, vcc")
    A(f"v_mov_b32 {v(aP+2)}, 0"); A(f"v_mov_b32 {v(aP+3)}, 0")
    A(f"v_mov_b32 {v(aP+9)}, 0"); A(f"v_mov_b32 {v(aP+11)}, 0")
    A(f"v_lshrrev_b32 {v(T+2)}, 1, {v(T+1)}")
    A(f"v_lshl_add_u32 {v(T+2)}, {v(T+2)}, 5, {v(T)}")
    A(f"v_lshlrev_b32 {v(T+2)}, 4, {v(T+2)}")
    A(f"v_and_b32 {v(T+3)}, 1, {v(T+1)}")
    A(f"v_lshl_add_u32 {v(T+2)}, {v(T+3)}, 3, {v(T+2)}")
    A(f"s_lshl_b32 {s(sT)}, {s(sWAVE)}, 13")
    A(f"v_add_u32 {v(aOW)}, {s(sT)}, {v(T+2)}")
    A(f"s_mov_b32 {s(40)}, {f2u(SCALE_LOG2E):#x}")
    A(f"s_mov_b32 {s(41)}, {f2u(-SCALE_LOG2E):#x}")

def xlane(A, op, r, t):
    A(f"v_mov_b32 {v(t)}, {v(r)}")
    A(f"v_permlane16_swap_b32 {v(r)}, {v(t)}")
    A(f"{op} {v(r)}, {v(r)}, {v(t)}")
    A(f"v_mov_b32 {v(t)}, {v(r)}")
    A(f"v_permlane32_swap_b32 {v(r)}, {v(t)}")
    A(f"{op} {v(r)}, {v(r)}, {v(t)}")

def attention(A):
    S00,S01,S11,SM0,SM1 = aS, aS+4, aS+8, aS+12, aS+16
    def q(t,ks): return v(aQ+(t*4+ks)*4,4)
    def kx(t,ks): return v(aKX+(t*4+ks)*4,4)
    def km(ks): return v(aKM+4*ks,4)
    for ks in range(4):
        for (S,Aop,Bop,c0) in ((S00,kx(0,ks),q(0,ks),v(aBI,4)),(S01,kx(0,ks),q(1,ks),"0"),(S11,kx(1,ks),q(1,ks),v(aBI,4)),
                               (SM0,km(ks),q(0,ks),"0"),(SM1,km(ks),q(1,ks),"0")):
            c = c0 if ks == 0 else v(S,4)
            A(f"v_mfma_f32_16x16x32_bf16 {v(S,4)}, {Aop}, {Bop}, {c}")
    m0_,m1_,t0,t1 = aM, aM+1, aM+2, aM+3
    l0,l1 = aM+4, aM+5
    A(f"v_max3_f32 {v(m0_)}, {v(S00)}, {v(S00+1)}, {v(S00+2)}")
    A(f"v_max3_f32 {v(m0_)}, {v(m0_)}, {v(S00+3)}, {v(SM0)}")
    A(f"v_max_f32 {v(m0_)}, {v(m0_)}, {v(SM0+1)}")
    A(f"v_max3_f32 {v(m1_)}, {v(S01)}, {v(S01+1)}, {v(S01+2)}")
    A(f"v_max3_f32 {v(m1_)}, {v(m1_)}, {v(S01+3)}, {v(S11)}")
    A(f"v_max3_f32 {v(m1_)}, {v(m1_)}, {v(S11+1)}, {v(S11+2)}")
    A(f"v_max3_f32 {v(m1_)}, {v(m1_)}, {v(S11+3)}, {v(SM1)}")
    A(f"v_max_f32 {v(m1_)}, {v(m1_)}, {v(SM1+1)}")
    xlane(A, "v_max_f32", m0_, t0)
    xlane(A, "v_max_f32", m1_, t1)
    A(f"v_mul_f32 {v(m0_)}, {s(41)}, {v(m0_)}")
    A(f"v_mul_f32 {v(m1_)}, {s(41)}, {v(m1_)}")
    for (S,n,m) in ((S00,4,m0_),(SM0,2,m0_),(S01,4,m1_),(S11,4,m1_),(SM1,2,m1_)):
        for r in range(n):
            A(f"v_fma_f32 {v(S+r)}, {v(S+r)}, {s(40)}, {v(m)}")
            A(f"v_exp_f32 {v(S+r)}, {v(S+r)}")
    A(f"v_cvt_pk_bf16_f32 {v(aP)}, {v(S00)}, {v(S00+1)}")
    A(f"v_cvt_pk_bf16_f32 {v(aP+1)}, {v(S00+2)}, {v(S00+3)}")
    A(f"v_cvt_pk_bf16_f32 {v(aP+4)}, {v(S01)}, {v(S01+1)}")
    A(f"v_cvt_pk_bf16_f32 {v(aP+5)}, {v(S01+2)}, {v(S01+3)}")
    A(f"v_cvt_pk_bf16_f32 {v(aP+6)}, {v(S11)}, {v(S11+1)}")
    A(f"v_cvt_pk_bf16_f32 {v(aP+7)}, {v(S11+2)}, {v(S11+3)}")
    A(f"v_cvt_pk_bf16_f32 {v(aP+8)}, {v(SM0)}, {v(SM0+1)}")
    A(f"v_cvt_pk_bf16_f32 {v(aP+10)}, {v(SM1)}, {v(SM1+1)}")
    A(f"v_add_f32 {v(l0)}, {v(S00)}, {v(S00+1)}")
    for r in (S00+2,S00+3,SM0,SM0+1): A(f"v_add_f32 {v(l0)}, {v(l0)}, {v(r)}")
    A(f"v_add_f32 {v(l1)}, {v(S01)}, {v(S01+1)}")
    for r in (S01+2,S01+3,S11,S11+1,S11+2,S11+3,SM1,SM1+1): A(f"v_add_f32 {v(l1)}, {v(l1)}, {v(r)}")
    xlane(A, "v_add_f32", l0, t0)
    xlane(A, "v_add_f32", l1, t1)
    A(f"v_rcp_f32 {v(l0)}, {v(l0)}")
    A(f"v_rcp_f32 {v(l1)}, {v(l1)}")
    for th in range(2):
        Bx = v(aP+4*th,4); Bm = v(aP+8+2*th,2); l = (l0,l1)[th]
        for tau in range(8):
            vm = v(aVM+2*(tau>>1),2)
            A(f"v_mfma_f32_16x16x32_bf16 {v(aO+4*tau,4)}, {v(aVX+4*tau,4)}, {Bx}, 0")
        for tau in range(8):
            if tau & 1 == 0: a2 = v(aVM+2*(tau>>1),2)
            else: a2 = v(aM+8+2*(tau>>1),2)
            A(f"v_mfma_f32_16x16x16_bf16 {v(aO+4*tau,4)}, {a2}, {Bm}, {v(aO+4*tau,4)}")
        for tau in range(8):
            o = aO+4*tau
            for r in range(4): A(f"v_mul_f32 {v(o+r)}, {v(o+r)}, {v(l)}")
            A(f"v_cvt_pk_bf16_f32 {v(aM+16)}, {v(o)}, {v(o+1)}")
            A(f"v_cvt_pk_bf16_f32 {v(aM+17)}, {v(o+2)}, {v(o+3)}")
            A(f"ds_write_b64 {v(aOW)}, {v(aM+16,2)} offset:{tau*1024 + th*256}")

def attn_fix_vm(A):
    for i in range(4):
        A(f"v_mov_b32 {v(aM+8+2*i)}, {v(aVM+2*i+1)}")
        A(f"v_mov_b32 {v(aM+8+2*i+1)}, {v(aVM+2*i)}")

def gen_attn_body(A, seg_stride, st="", mod=""):
    A(f"s_lshr_b32 {s(sT+6)}, {s(sSL)}, 1")
    A(f"s_and_b32 {s(sT+7)}, {s(sSL)}, 1")
    A(f"s_lshl_b32 {s(sT)}, {s(sT+6)}, 19")
    A(f"s_lshl_b32 {s(sT+1)}, {s(sT+7)}, 9")
    A(f"s_add_u32 {s(sT)}, {s(sT)}, {s(sT+1)}")
    A(f"s_add_u32 {s(sWB)}, {s(68)}, {s(sT)}")
    A(f"s_addc_u32 {s(sWB+1)}, {s(69)}, 0")
    A(f"s_mov_b32 {s(sLDW)}, 1024")
    A(f"s_lshl_b32 {s(39)}, {s(sT+6)}, 2")
    A(f"s_add_u32 {s(39)}, {s(39)}, {s(sWAVE)}")
    A(f"s_lshl_b32 {s(38)}, {s(sT+6)}, 22")
    A(f"s_lshl_b32 {s(sT)}, {s(sT+7)}, 15")
    A(f"s_add_u32 {s(38)}, {s(38)}, {s(sT)}")
    A(f"s_lshl_b32 {s(sT)}, {s(sWAVE)}, 13")
    A(f"s_add_u32 {s(38)}, {s(38)}, {s(sT)}")
    A(f"s_add_u32 {s(38)}, {s(38)}, {WS_PA}")
    load_weights(A, 32, ffn=False, sigma=True)
    setup_a_addr(A, "f")
    A(f"v_add_u32 {v(wDM)}, 4096, {v(wL16)}")
    attn_setup(A)
    if USE_FLAGS:
        A(f"s_lshr_b32 {s(sT)}, {s(39)}, 1")
        A(f"s_lshl_b32 {s(54)}, 0x10001, {s(sT)}")
        A(f"s_lshl_b32 {s(55)}, 1, {s(sT)}")
        A(f"s_mov_b32 {s(56)}, {s(54)}")
        A(f"s_mov_b32 {s(57)}, 0")
        A(f"s_mov_b32 {s(52)}, -1")
    lab = A.label("L_aseg")
    A(f"{lab}:")
    if USE_FLAGS:
        flag_wait(A, sSEG, 0, 54, 55)
        attn_loads(A, mod, 1)
        flag_wait(A, sSEG, 1, 56, 57)
        attn_loads(A, mod, 2)
    else:
        attn_loads(A, mod)
    A(f"s_lshl_b32 {s(sT)}, {s(sSEG)}, 16")
    A(f"s_add_u32 {s(sT)}, {s(sT)}, {s(38)}")
    A(f"s_add_u32 {s(sOP)}, {s(sWS)}, {s(sT)}")
    A(f"s_addc_u32 {s(sOP+1)}, {s(sWS+1)}, 0")
    A("s_waitcnt vmcnt(0)")
    attn_fix_vm(A)
    attention(A)
    A("s_waitcnt lgkmcnt(0)")
    A("s_barrier")
    if USE_FLAGS:
        nf = A.label("L_nf")
        A(f"s_cmp_eq_u32 {s(52)}, -1")
        A(f"s_cbranch_scc1 {nf}")
        flag_set(A, 52, 1, idx_s=sSL, idx_c=FL2_PA)
        A(f"{nf}:")
        A(f"s_mov_b32 {s(52)}, {s(sSEG)}")
    mma_chunk(A, 32, "f", 0, transposed=True)
    A(f"v_xor_b32 {v(wAR)}, 32768, {v(wAR)}")
    A(f"v_xor_b32 {v(aOW)}, 32768, {v(aOW)}")
    epi_part(A, st)
    if USE_FLAGS:
        A("s_waitcnt vmcnt(0)")
        A("s_barrier")
        flag_set(A, 52, 1, idx_s=sSL, idx_c=FL2_PA)
        A(f"s_mov_b32 {s(52)}, -1")
    A(f"s_add_u32 {s(sSEG)}, {s(sSEG)}, {seg_stride}")
    A(f"s_sub_u32 {s(sCNT)}, {s(sCNT)}, 1")
    A(f"s_cmp_lg_u32 {s(sCNT)}, 0")
    A(f"s_cbranch_scc1 {lab}")


def gen_kvm_body(A):
    done = A.label("L_kvmdone"); lv = A.label("L_kvmv")
    A(f"s_cmp_ge_u32 {s(sSL)}, 16")
    A(f"s_cbranch_scc1 {lv}")
    for kind in ("k","v"):
        if kind == "v": A(f"{lv}:")
        ptr = 64 if kind == "k" else 66
        A(f"s_and_b32 {s(sT+6)}, {s(sSL)}, 15")
        A(f"s_lshl_b32 {s(sT)}, {s(sT+6)}, 9")
        A(f"s_add_u32 {s(sWB)}, {s(ptr)}, {s(sT)}")
        A(f"s_addc_u32 {s(sWB+1)}, {s(ptr+1)}, 0")
        A(f"s_mov_b32 {s(sLDW)}, 8192")
        A(f"s_lshr_b32 {s(sT)}, {s(sWAVE)}, 1")
        A(f"s_lshl_b32 {s(sT+1)}, {s(sT+6)}, 1")
        A(f"s_add_u32 {s(sT)}, {s(sT)}, {s(sT+1)}")
        A(f"s_lshl_b32 {s(37)}, {s(sT)}, 12")
        A(f"s_and_b32 {s(sT)}, {s(sWAVE)}, 1")
        A(f"s_lshl_b32 {s(sT)}, {s(sT)}, {11 if kind == 'k' else 10}")
        A(f"s_add_u32 {s(37)}, {s(37)}, {s(sT)}")
        load_weights(A, 32, ffn=False, sigma=(kind == "k"))
        setup_a_addr(A, "x")
        T = wT
        A(f"v_and_b32 {v(T)}, 15, {v(wLANE)}")
        A(f"v_lshrrev_b32 {v(T+1)}, 4, {v(wLANE)}")
        A(f"v_lshrrev_b32 {v(T+2)}, 2, {v(T)}")
        A(f"v_and_b32 {v(T+3)}, 1, {v(T)}")
        A(f"v_lshl_add_u32 {v(T+2)}, {v(T+2)}, 1, {v(T+3)}")
        A(f"v_bfe_u32 {v(T+3)}, {v(T)}, 1, 1")
        A(f"v_lshrrev_b32 {v(T+4)}, 1, {v(T+1)}")
        A(f"v_xor_b32 {v(T+4)}, {v(T+4)}, {v(T+2)}")
        A(f"v_lshlrev_b32 {v(T+4)}, 4, {v(T+4)}")
        A(f"v_lshl_add_u32 {v(T+4)}, {v(T+2)}, 10, {v(T+4)}")
        A(f"v_and_b32 {v(T+5)}, 1, {v(T+1)}")
        A(f"v_lshlrev_b32 {v(T+5)}, 3, {v(T+5)}")
        A(f"v_lshl_add_u32 {v(T+5)}, {v(T+3)}, 2, {v(T+5)}")
        A(f"v_add_u32 {v(T+4)}, {v(T+4)}, {v(T+5)}")
        A(f"s_lshl_b32 {s(sT)}, {s(sWAVE)}, 8")
        A(f"v_add_u32 {v(10)}, {s(sT)}, {v(T+4)}")
        A(f"s_lshl_b32 {s(sT)}, {s(sWAVE)}, 11")
        A(f"v_add_u32 {v(11)}, {s(sT)}, {v(wL16)}")
        if kind == "k":
            A(f"v_and_b32 {v(T)}, 7, {v(wLANE)}")
            A(f"v_lshrrev_b32 {v(T+1)}, 1, {v(T)}")
            A(f"v_and_b32 {v(T+2)}, 1, {v(T)}")
            A(f"v_lshl_add_u32 {v(T+1)}, {v(T+1)}, 2, {v(T+2)}")
            A(f"v_lshrrev_b32 {v(T+2)}, 5, {v(wLANE)}")
            A(f"v_lshl_add_u32 {v(T+1)}, {v(T+2)}, 4, {v(T+1)}")
            A(f"v_lshlrev_b32 {v(T+1)}, 4, {v(T+1)}")
            A(f"v_bfe_u32 {v(T+2)}, {v(wLANE)}, 3, 2")
            A(f"v_lshl_add_u32 {v(wE+20)}, {v(T+2)}, 17, {v(T+1)}")
        else:
            A(f"v_and_b32 {v(T)}, 15, {v(wLANE)}")
            A(f"v_bfe_u32 {v(T+1)}, {v(wLANE)}, 4, 1")
            A(f"v_lshrrev_b32 {v(T+2)}, 5, {v(wLANE)}")
            A(f"v_lshl_add_u32 {v(T+2)}, {v(T+2)}, 5, {v(T)}")
            A(f"v_lshlrev_b32 {v(T+2)}, 3, {v(T+2)}")
            A(f"v_lshl_add_u32 {v(wE+20)}, {v(T+1)}, 2, {v(T+2)}")
            for j in range(1,4): A(f"v_add_u32 {v(wE+20+j)}, {j*131072}, {v(wE+20)}")
        A(f"s_mov_b32 {s(sSEG)}, 0")
        A(f"s_add_u32 {s(sAP)}, {s(sWS)}, {WS_MEMP}")
        A(f"s_addc_u32 {s(sAP+1)}, {s(sWS+1)}, 0")
        lab = A.label("L_kvms")
        A(f"{lab}:")
        for q in range(4):
            pl = A.label("L_kvmp"); ok = A.label("L_kvmok")
            A(f"s_mov_b32 {s(49)}, 0")
            A(f"{pl}:")
            A(f"global_load_dwordx4 {v(32,4)}, {v(11)}, {s(sAP,2)} sc1")
            A(f"global_load_dwordx4 {v(36,4)}, {v(11)}, {s(sAP,2)} offset:1024 sc1")
            A(f"s_add_u32 {s(49)}, {s(49)}, 1")
            A(f"s_cmp_gt_u32 {s(49)}, 0x20000")
            A(f"s_cbranch_scc1 {ok}")
            A("s_waitcnt vmcnt(0)")
            A(f"v_max3_u32 {v(T)}, {v(32)}, {v(33)}, {v(34)}")
            A(f"v_max3_u32 {v(T+1)}, {v(35)}, {v(36)}, {v(37)}")
            A(f"v_max3_u32 {v(T)}, {v(T)}, {v(38)}, {v(39)}")
            A(f"v_max_u32 {v(T)}, {v(T)}, {v(T+1)}")
            A(f"v_cmp_eq_u32 vcc, -1, {v(T)}")
            A(f"s_cbranch_vccz {ok}")
            A("s_sleep 2")
            A(f"s_branch {pl}")
            A(f"{ok}:")
            A("s_waitcnt vmcnt(0)")
            A(f"v_xor_b32 {v(T+3)}, {(q&1)*128}, {v(10)}")
            A(f"v_add_u32 {v(T+3)}, {q*8192}, {v(T+3)}")
            for i in range(2):
                for qq in range(4):
                    A(f"v_xor_b32 {v(T+2)}, {(8*i+2*qq)*16}, {v(T+3)}")
                    for hi4 in range(2):
                        e8 = qq + 4*hi4
                        src = 32 + 4*i + (e8 >> 1)
                        op = "ds_write_b16_d16_hi" if (e8 & 1) else "ds_write_b16"
                        A(f"{op} {v(T+2)}, {v(src)} offset:{2*hi4}")
            A("s_waitcnt lgkmcnt(0)")
            A(f"s_add_u32 {s(sAP)}, {s(sAP)}, 8192")
            A(f"s_addc_u32 {s(sAP+1)}, {s(sAP+1)}, 0")
        A("s_barrier")
        A(f"s_lshl_b32 {s(sT)}, {s(sSEG)}, 17")
        A(f"s_add_u32 {s(sT)}, {s(sT)}, {s(37)}")
        A(f"s_add_u32 {s(sT)}, {s(sT)}, {WS_KM if kind == 'k' else WS_VM}")
        A(f"s_add_u32 {s(sOP)}, {s(sWS)}, {s(sT)}")
        A(f"s_addc_u32 {s(sOP+1)}, {s(sWS+1)}, 0")
        mma_chunk(A, 32, "x", 0, transposed=(kind == "k"))
        for b in range(8): A(f"v_xor_b32 {v(wAR+b)}, 32768, {v(wAR+b)}")
        A(f"v_xor_b32 {v(10)}, 32768, {v(10)}")
        E = wE
        if kind == "k":
            for Tt in range(2):
                for hf in range(2):
                    for d in range(4):
                        r = wAC + 16*Tt + 8*hf + 2*d
                        A(f"v_cvt_pk_bf16_f32 {v(E+8*Tt+4*hf+d)}, {v(r)}, {v(r+1)}")
                    A(f"global_store_dwordx4 {v(E+20)}, {v(E+8*Tt+4*hf,4)}, {s(sOP,2)} offset:{Tt*1024+hf*512} sc1")
        else:
            for Tt in range(2):
                for j in range(4):
                    r = wAC + 16*Tt + 4*j
                    A(f"v_cvt_pk_bf16_f32 {v(E+8*Tt+2*j)}, {v(r)}, {v(r+1)}")
                    A(f"v_cvt_pk_bf16_f32 {v(E+8*Tt+2*j+1)}, {v(r+2)}, {v(r+3)}")
                    A(f"global_store_dword {v(E+20+j)}, {v(E+8*Tt+2*j)}, {s(sOP,2)} offset:{Tt*512} sc1")
                    A(f"global_store_dword {v(E+20+j)}, {v(E+8*Tt+2*j+1)}, {s(sOP,2)} offset:{Tt*512+128} sc1")
        A("s_waitcnt vmcnt(0)")
        A("s_barrier")
        for q in range(4):
            flag_set(A, sSEG, 1, idx_s=sSL)
            A(f"s_add_u32 {s(sSEG)}, {s(sSEG)}, 1")
        A(f"s_cmp_lt_u32 {s(sSEG)}, 64")
        A(f"s_cbranch_scc1 {lab}")
        A(f"s_branch {done}")
    A(f"{done}:")

def gen_attn_kernel(A, name="attn_kernel"):
    A.raw(kstart(name))
    load_ptrs(A)
    A("s_cmp_ge_u32 s2, 256")
    A("s_cbranch_scc1 L_attn_exit")
    A(f"s_lshr_b32 {s(sSL)}, s2, 4")
    A(f"s_and_b32 {s(sSEG)}, s2, 15")
    A(f"s_mov_b32 {s(sCNT)}, 4")
    gen_attn_body(A, 16)
    A("L_attn_exit:")
    A("s_endpgm")

def gen_final_body(A, mod="", wait_pb=None, wait_pa=None):
    T = 12
    A(f"s_lshl_b32 {s(sT)}, {s(sWAVE)}, 6")
    A(f"v_add_u32 {v(T)}, {s(sT)}, {v(wLANE)}")
    A(f"v_lshrrev_b32 {v(T+1)}, 3, {v(T)}")
    A(f"v_and_b32 {v(T+2)}, 7, {v(T)}")
    A(f"v_lshlrev_b32 {v(T+3)}, 7, {v(T+2)}")
    A(f"v_lshl_add_u32 {v(T+4)}, {v(T+1)}, 10, {v(T+3)}")
    A(f"s_lshl_b32 {s(sT)}, {s(sSEG)}, 15")
    A(f"s_add_u32 {s(44)}, {s(60)}, {s(sT)}")
    A(f"s_addc_u32 {s(45)}, {s(61)}, 0")
    for i in range(8):
        A(f"global_load_dwordx4 {v(32+4*i,4)}, {v(T+4)}, {s(44,2)} offset:{16*i}")
        A(f"global_load_dwordx4 {v(64+4*i,4)}, {v(T+3)}, {s(76,2)} offset:{16*i}")
    A(f"s_lshr_b32 {s(sT)}, {s(sSL)}, 1")
    A(f"s_lshl_b32 {s(sT)}, {s(sT)}, 15")
    A(f"s_and_b32 {s(sT+1)}, {s(sSL)}, 1")
    A(f"s_lshl_b32 {s(sT+1)}, {s(sT+1)}, 12")
    A(f"s_add_u32 {s(sT)}, {s(sT)}, {s(sT+1)}")
    A(f"s_lshl_b32 {s(sT+1)}, {s(sWAVE)}, 13")
    A(f"s_add_u32 {s(sT)}, {s(sT)}, {s(sT+1)}")
    A(f"s_lshl_b32 {s(sT+1)}, {s(sSEG)}, 16")
    A(f"s_add_u32 {s(sT+2)}, {s(sT)}, {s(sT+1)}")
    A("s_waitcnt vmcnt(0)")
    A(f"v_mov_b32 {v(T+5)}, 0")
    for i in range(32):
        x = 32+i; g = 64+i
        A(f"v_lshlrev_b32 {v(T+6)}, 16, {v(x)}")
        A(f"v_and_b32 {v(T+7)}, 0xffff0000, {v(x)}")
        A(f"v_lshlrev_b32 {v(T+8)}, 16, {v(g)}")
        A(f"v_and_b32 {v(T+9)}, 0xffff0000, {v(g)}")
        A(f"v_mul_f32 {v(T+6)}, {v(T+6)}, {v(T+8)}")
        A(f"v_mul_f32 {v(T+7)}, {v(T+7)}, {v(T+9)}")
        A(f"v_cvt_pk_bf16_f32 {v(T+6)}, {v(T+6)}, {v(T+7)}")
        A(f"v_lshlrev_b32 {v(T+7)}, 16, {v(T+6)}")
        A(f"v_and_b32 {v(T+6)}, 0xffff0000, {v(T+6)}")
        A(f"v_add_f32 {v(T+5)}, {v(T+5)}, {v(T+7)}")
        A(f"v_add_f32 {v(T+5)}, {v(T+5)}, {v(T+6)}")
    A(f"v_add_f32_dpp {v(T+5)}, {v(T+5)}, {v(T+5)} quad_perm:[1,0,3,2] row_mask:0xf bank_mask:0xf")
    A(f"v_add_f32_dpp {v(T+5)}, {v(T+5)}, {v(T+5)} quad_perm:[2,3,0,1] row_mask:0xf bank_mask:0xf")
    A(f"v_add_f32_dpp {v(T+5)}, {v(T+5)}, {v(T+5)} row_half_mirror row_mask:0xf bank_mask:0xf")
    A(f"v_cvt_pk_bf16_f32 {v(T+5)}, {v(T+5)}, {v(T+5)}")
    A(f"v_lshlrev_b32 {v(T+5)}, 16, {v(T+5)}")
    A(f"v_mul_f32 {v(T+6)}, {f2u(-LOG2E):#x}, {v(T+5)}")
    A(f"v_exp_f32 {v(T+6)}, {v(T+6)}")
    A(f"v_add_f32 {v(T+6)}, 1.0, {v(T+6)}")
    A(f"v_rcp_f32 {v(T+6)}, {v(T+6)}")
    A(f"v_cvt_pk_bf16_f32 {v(T+6)}, {v(T+6)}, {v(T+6)}")
    A(f"v_lshlrev_b32 {v(T+6)}, 16, {v(T+6)}")
    A(f"v_lshlrev_b32 {v(T+7)}, 2, {v(T+1)}")
    A(f"v_add_u32 {v(T+7)}, 131072, {v(T+7)}")
    A(f"ds_write_b32 {v(T+7)}, {v(T+6)}")
    def load_parts(ps):
        for p in ps:
            base = (WS_PA + p*64*65536) if p < 8 else (WS_PB + (p-8)*64*65536)
            A(f"s_add_u32 {s(sT+3)}, {s(sT+2)}, {base}")
            A(f"s_add_u32 {s(44)}, {s(sWS)}, {s(sT+3)}")
            A(f"s_addc_u32 {s(45)}, {s(sWS+1)}, 0")
            for hq in range(4):
                A(f"global_load_dwordx4 {v(32+16*p+4*hq,4)}, {v(wL16)}, {s(44,2)} offset:{hq*1024} {mod}")
    if wait_pb: wait_pb()
    load_parts(range(8,12))
    A("s_waitcnt lgkmcnt(0)")
    A("s_barrier")
    A(f"v_and_b32 {v(T+7)}, 31, {v(wLANE)}")
    A(f"v_lshlrev_b32 {v(T+8)}, 2, {v(T+7)}")
    A(f"v_add_u32 {v(T+8)}, 131072, {v(T+8)}")
    A(f"ds_read_b32 {v(T+6)}, {v(T+8)}")
    if wait_pa: wait_pa()
    load_parts(range(0,8))
    A("s_waitcnt vmcnt(0) lgkmcnt(0)")
    A(f"v_sub_f32 {v(T+9)}, 1.0, {v(T+6)}")
    A(f"v_cvt_pk_bf16_f32 {v(T+9)}, {v(T+9)}, {v(T+9)}")
    A(f"v_lshlrev_b32 {v(T+9)}, 16, {v(T+9)}")
    for p in range(1,8):
        for r in range(0,16,2): A(f"v_pk_add_f32 {v(32+r,2)}, {v(32+r,2)}, {v(32+16*p+r,2)}")
    for p in range(9,12):
        for r in range(0,16,2): A(f"v_pk_add_f32 {v(160+r,2)}, {v(160+r,2)}, {v(32+16*p+r,2)}")
    for r in range(0,16,2):
        A(f"v_cvt_pk_bf16_f32 {v(T+10)}, {v(32+r)}, {v(32+r+1)}")
        A(f"v_cvt_pk_bf16_f32 {v(T+11)}, {v(160+r)}, {v(160+r+1)}")
        unpack2(A, 48, 49, T+10)
        unpack2(A, 50, 51, T+11)
        A(f"v_mul_f32 {v(48)}, {v(48)}, {v(T+6)}"); A(f"v_mul_f32 {v(49)}, {v(49)}, {v(T+6)}")
        A(f"v_mul_f32 {v(50)}, {v(50)}, {v(T+9)}"); A(f"v_mul_f32 {v(51)}, {v(51)}, {v(T+9)}")
        A(f"v_cvt_pk_bf16_f32 {v(T+10)}, {v(48)}, {v(49)}")
        A(f"v_cvt_pk_bf16_f32 {v(T+11)}, {v(50)}, {v(51)}")
        unpack2(A, 48, 49, T+10)
        unpack2(A, 50, 51, T+11)
        A(f"v_pk_add_f32 {v(48,2)}, {v(48,2)}, {v(50,2)}")
        A(f"v_cvt_pk_bf16_f32 {v(56 + r//2)}, {v(48)}, {v(49)}")
    A(f"s_lshr_b32 {s(sT)}, {s(sSL)}, 1")
    A(f"s_lshl_b32 {s(sT)}, {s(sT)}, 9")
    A(f"s_and_b32 {s(sT+1)}, {s(sSL)}, 1")
    A(f"s_lshl_b32 {s(sT+1)}, {s(sT+1)}, 6")
    A(f"s_add_u32 {s(sT)}, {s(sT)}, {s(sT+1)}")
    A(f"s_lshl_b32 {s(sT+1)}, {s(sWAVE)}, 7")
    A(f"s_add_u32 {s(sT)}, {s(sT)}, {s(sT+1)}")
    A(f"s_lshl_b32 {s(sT+1)}, {s(sSEG)}, 15")
    A(f"s_add_u32 {s(sT)}, {s(sT)}, {s(sT+1)}")
    A(f"s_add_u32 {s(44)}, {s(78)}, {s(sT)}")
    A(f"s_addc_u32 {s(45)}, {s(79)}, 0")
    A(f"v_lshrrev_b32 {v(T+8)}, 5, {v(wLANE)}")
    A(f"v_lshlrev_b32 {v(T+8)}, 4, {v(T+8)}")
    A(f"v_lshl_add_u32 {v(T+8)}, {v(T+7)}, 10, {v(T+8)}")
    A(f"global_store_dwordx4 {v(T+8)}, {v(56,4)}, {s(44,2)} {mod}")
    A(f"global_store_dwordx4 {v(T+8)}, {v(60,4)}, {s(44,2)} offset:32 {mod}")

def gen_final_kernel(A, name="final_kernel"):
    A.raw(kstart(name))
    load_ptrs(A)
    A("s_cmp_ge_u32 s2, 256")
    A("s_cbranch_scc1 L_fin_exit")
    A(f"s_lshr_b32 {s(sSEG)}, s2, 2")
    A(f"s_and_b32 {s(sSL)}, s2, 3")
    gen_final_body(A)
    A("L_fin_exit:")
    A("s_endpgm")

if __name__ == "__main__":
    import sys
    PROF = len(sys.argv) > 2
    A = Asm()
    names = ["proj_kernel","down_kernel","attn_kernel","final_kernel"]
    for n in names: A.raw(f"; @launch kernel={n} grid=(256,1,1) block=(256,1,1) lds=163840")
    A.raw('.amdgcn_target "amdgcn-amd-amdhsa--gfx950"')
    gen_proj_kernel(A); gen_down_kernel(A); gen_attn_kernel(A); gen_final_kernel(A)
    for n in names: A.raw(kd(n))
    open(sys.argv[1],"w").write(A.text())
    print("nops", A.nops, "lines", len(A.out))
```

```python
import sys
from asmlib import *
from layout import *
import chain10 as chain, workers as W
from engine import *
NAME = "gated_mix__memory_aug_recurrent_mem_tr__glu_gated_swiglu__prompt_kernel"
HDR = open("gated_mix__memory_aug_recurrent_mem_tr__glu_gated_swiglu__prompt.s.ref").read().split("; Override launch geometry")[0]

def gen(stamp=0, force_slow=False, wstamp=False, sst=0, **kw):
    chain.STARTUP_STAMPS = bool(sst)
    W.USE_FLAGS = True
    A = Asm()
    A.raw(HDR.rstrip("\n"))
    A.raw("; @launch grid=(256,1,1) block=(256,1,1) lds=163840")
    A.raw('.amdgcn_target "amdgcn-amd-amdhsa--gfx950"')
    A.raw(kstart(NAME))
    A("s_cmp_ge_u32 s2, 256")
    A("s_cbranch_scc1 L_exit")
    if wstamp: A("s_memrealtime s[94:95]")
    A(f"s_load_dwordx2 {s(6,2)}, s[0:1], {KA_DBG}")
    A(f"s_load_dwordx2 {s(4,2)}, s[0:1], {KA_WS}")
    A("s_getreg_b32 s12, hwreg(HW_REG_XCC_ID, 0, 4)")
    A("v_lshrrev_b32 v1, 6, v0")
    A("v_readfirstlane_b32 s8, v1")
    A("v_and_b32 v31, 63, v0")
    A("s_waitcnt lgkmcnt(0)")
    A("s_cmp_lg_u32 s8, 0")
    A("s_cbranch_scc0 L_w0")
    A("s_getpc_b64 s[16:17]")
    A("L_pc:")
    A("s_sub_u32 s18, s8, 1")
    A("s_mul_i32 s18, s18, 8192")
    A("s_add_u32 s16, s16, s18")
    A("s_addc_u32 s17, s17, 0")
    A("v_lshlrev_b32 v2, 7, v31")
    A("s_mov_b32 s19, (L_code_end - L_pc + 24575) / 24576")
    A("L_pfc:")
    A("global_load_dword a255, v2, s[16:17]")
    A("s_add_u32 s16, s16, 24576")
    A("s_addc_u32 s17, s17, 0")
    A("s_sub_u32 s19, s19, 1")
    A("s_cmp_lg_u32 s19, 0")
    A("s_cbranch_scc1 L_pfc")
    A("s_branch L_role")
    A("L_w0:")
    A("s_lshl_b32 s13, s2, 8")
    A(f"s_add_u32 s13, s13, {WS_FLAGS}")
    A("v_lshlrev_b32 v2, 2, v31")
    A("v_add_u32 v2, s13, v2")
    A("v_mov_b32 v3, 0")
    A("global_store_dword v2, v3, s[4:5] sc1")
    A("s_lshl_b32 s13, s2, 11")
    A(f"s_add_u32 s13, s13, {WS_MEMP}")
    A("v_lshlrev_b32 v2, 4, v31")
    A("v_add_u32 v2, s13, v2")
    for r in range(8,12): A(f"v_mov_b32 v{r}, -1")
    A("global_store_dwordx4 v2, v[8:11], s[4:5] sc1")
    A("global_store_dwordx4 v2, v[8:11], s[4:5] offset:1024 sc1")
    A("s_mov_b64 exec, 1")
    A("v_mov_b32 v3, 1")
    A("s_lshl_b32 s13, s12, 2")
    A(f"s_add_u32 s13, s13, {DBG_XCNT}")
    A("v_mov_b32 v2, s13")
    A("global_atomic_add v4, v2, v3, s[6:7] sc0")
    A("s_waitcnt vmcnt(0)")
    A("v_readfirstlane_b32 s15, v4")
    A(f"v_mov_b32 v2, {DBG_FINIT}")
    A("global_atomic_add v2, v3, s[6:7]")
    A("s_lshl_b32 s14, s12, 5")
    A("s_add_u32 s14, s14, s15")
    A("s_cmp_lt_u32 s15, 32")
    A("s_cbranch_scc0 L_ovf")
    A("s_cmp_lt_u32 s12, 8")
    A("s_cbranch_scc1 L_haverole")
    A("L_ovf:")
    A(f"v_mov_b32 v2, {DBG_FINIT}")
    A("s_mov_b32 s16, 0")
    A("L_ovfw:")
    A("global_load_dword v4, v2, s[6:7] sc1")
    A("s_add_u32 s16, s16, 1")
    A("s_mov_b32 s14, 0xffff")
    A("s_cmp_gt_u32 s16, 0x40000")
    A("s_cbranch_scc1 L_haverole")
    A("s_waitcnt vmcnt(0)")
    A("v_readfirstlane_b32 s17, v4")
    A("s_cmp_lt_u32 s17, 256")
    A("s_cbranch_scc1 L_ovfw")
    A(f"v_mov_b32 v2, {DBG_OVF}")
    A("global_atomic_add v4, v2, v3, s[6:7] sc0")
    A("s_waitcnt vmcnt(0)")
    A("v_readfirstlane_b32 s16, v4")
    A("s_mov_b32 s17, 0")
    A("L_ovfl:")
    A("s_lshl_b32 s13, s17, 2")
    A(f"s_add_u32 s13, s13, {DBG_XCNT}")
    A("v_mov_b32 v2, s13")
    A("global_load_dword v4, v2, s[6:7] sc1")
    A("s_waitcnt vmcnt(0)")
    A("v_readfirstlane_b32 s18, v4")
    A("s_min_u32 s18, s18, 32")
    A("s_sub_u32 s19, 32, s18")
    A("s_cmp_lt_u32 s16, s19")
    A("s_cbranch_scc1 L_ovfg")
    A("s_sub_u32 s16, s16, s19")
    A("s_add_u32 s17, s17, 1")
    A("s_cmp_lt_u32 s17, 8")
    A("s_cbranch_scc1 L_ovfl")
    A("s_mov_b32 s14, 0xffff")
    A("s_branch L_haverole")
    A("L_ovfg:")
    A("s_lshl_b32 s14, s17, 5")
    A("s_add_u32 s14, s14, s18")
    A("s_add_u32 s14, s14, s16")
    A("L_haverole:")
    A("v_mov_b32 v4, s14")
    A(f"v_mov_b32 v5, {L_MISC}")
    A("ds_write_b32 v5, v4")
    A("s_waitcnt lgkmcnt(0)")
    A("s_mov_b64 exec, -1")
    A("L_role:")
    A("s_barrier")
    A(f"v_mov_b32 v5, {L_MISC}")
    A("ds_read_b32 v4, v5")
    A("s_waitcnt lgkmcnt(0)")
    A("v_readfirstlane_b32 s14, v4")
    A("s_barrier")
    A("s_cmp_ge_u32 s14, 256")
    A("s_cbranch_scc1 L_exit")
    A("s_cmp_ge_u32 s14, 32")
    A("s_cbranch_scc1 L_worker")
    A(f"s_mov_b32 {s(chain.sRANK)}, s14")
    A(f"s_load_dwordx2 {s(60,2)}, s[0:1], {KA_MEM0}")
    A(f"s_load_dwordx2 {s(62,2)}, s[0:1], {KA_WQ}")
    A(f"s_load_dwordx2 {s(64,2)}, s[0:1], {KA_WK}")
    A(f"s_load_dwordx2 {s(66,2)}, s[0:1], {KA_WV}")
    A(f"s_load_dwordx2 {s(68,2)}, s[0:1], {KA_WO}")
    A("s_waitcnt lgkmcnt(0)")
    chain.gen_chain(A, 64, stamp, flags=True, force_slow=force_slow, **kw)
    A("s_endpgm")
    A.hist = []
    A("L_worker:")
    A("s_sub_u32 s58, s14, 32")
    W.load_ptrs(A)
    W.flag_init_ptr(A)
    def wst(k):
        if wstamp:
            A(f"s_memrealtime {s(80+2*k,2)}")
    wst(0)
    W.wait_finit(A)
    def wait_cw():
        lab = A.label("L_wcw"); ok = A.label("L_wcwok")
        A(f"v_mov_b32 v254, {DBG_CW}")
        A("s_mov_b32 s49, 0")
        A(f"{lab}:")
        A("global_load_dword v255, v254, s[6:7] sc1")
        A("s_add_u32 s49, s49, 1")
        A("s_cmp_gt_u32 s49, 0x20000")
        A(f"s_cbranch_scc1 {ok}")
        A("s_waitcnt vmcnt(0)")
        A("v_cmp_gt_u32 vcc, 32, v255")
        A(f"s_cbranch_vccz {ok}")
        A("s_sleep 8")
        A(f"s_branch {lab}")
        A(f"{ok}:")
    A("s_cmp_lt_u32 s58, 128")
    A("s_cbranch_scc0 L_w1b")
    A(f"s_lshr_b32 {s(W.sSL)}, s58, 2")
    A("s_and_b32 s12, s58, 3")
    A("s_cmp_eq_u32 s12, 0")
    A("s_cbranch_scc0 L_w1p")
    A(f"s_and_b32 s12, {s(W.sSL)}, 15")
    A("s_lshl_b32 s12, s12, 18")
    A("s_lshl_b32 s13, s8, 16")
    A("s_add_u32 s12, s12, s13")
    A(f"s_cmp_lt_u32 {s(W.sSL)}, 16")
    A("s_cselect_b32 s14, s62, s68")
    A("s_cselect_b32 s15, s63, s69")
    A("s_add_u32 s14, s14, s12")
    A("s_addc_u32 s15, s15, 0")
    for i in range(60):
        A(f"global_load_dwordx4 v[{32+4*(i%48)}:{35+4*(i%48)}], v1, s[14:15]")
        A("s_add_u32 s14, s14, 1024")
        A("s_addc_u32 s15, s15, 0")
    for i in range(4):
        A(f"global_load_dwordx4 v[{32+4*i}:{35+4*i}], v1, s[14:15] offset:{i*1024}")
    A("s_waitcnt vmcnt(0)")
    wait_cw()
    W.gen_kvm_body(A)
    A("s_branch L_wend")
    A("L_w1p:")
    A(f"s_sub_u32 {s(sSEG)}, s12, 1")
    A("s_branch L_w1go")
    A("L_w1b:")
    A("s_cmp_lt_u32 s58, 218")
    A("s_cbranch_scc0 L_w2")
    wait_cw()
    A("s_sub_u32 s12, s58, 128")
    A("s_mul_i32 s13, s12, 21846")
    A("s_lshr_b32 s13, s13, 16")
    A(f"s_add_u32 {s(W.sSL)}, s13, 32")
    A("s_mul_i32 s13, s13, 3")
    A(f"s_sub_u32 {s(sSEG)}, s12, s13")
    A("L_w1go:")
    A(f"s_mov_b32 {s(W.sSTR)}, 3")
    A(f"s_cmp_eq_u32 {s(sSEG)}, 0")
    A(f"s_cselect_b32 {s(W.sCNT)}, 22, 21")
    W.gen_proj_body(A, st="sc1")
    A("L_w2:")
    wst(1)
    A("s_barrier")
    A("s_cmp_lt_u32 s58, 128")
    A("s_cbranch_scc1 L_w3")
    A("s_cmp_lt_u32 s58, 160")
    A("s_cbranch_scc0 L_w4")
    A("s_sub_u32 s12, s58, 128")
    A(f"s_lshr_b32 {s(W.sSL)}, s12, 2")
    A(f"s_and_b32 {s(sSEG)}, s12, 3")
    A(f"s_mov_b32 {s(W.sCNT)}, 16")
    W.gen_down_body(A, 4, st="sc1")
    A("s_branch L_wend")
    A("L_w3:")
    A("s_lshr_b32 s12, s58, 2")
    A("s_mul_i32 s12, s12, 3")
    A("s_and_b32 s13, s58, 3")
    A("s_add_u32 s12, s12, s13")
    A("s_sub_u32 s12, s12, 1")
    A(f"s_and_b32 {s(W.sSL)}, s12, 15")
    A(f"s_lshr_b32 {s(sSEG)}, s12, 4")
    A(f"s_cmp_lt_u32 {s(sSEG)}, 4")
    A(f"s_cselect_b32 {s(W.sCNT)}, 11, 10")
    W.gen_attn_body(A, 6, st="sc1", mod="sc1")
    A("s_branch L_wend")
    A("L_w4:")
    A("s_sub_u32 s59, s58, 160")
    A("L_w4loop:")
    A(f"s_lshr_b32 {s(sSEG)}, s59, 2")
    A(f"s_and_b32 {s(W.sSL)}, s59, 3")
    A(f"s_lshr_b32 s12, {s(W.sSL)}, 1")
    A("s_lshl_b32 s55, 0x550000, s12")
    A("s_lshl_b32 s57, 0x5555, s12")
    A("s_mov_b32 s54, 0")
    W.gen_final_body(A, mod="sc1", wait_pb=lambda: W.flag_wait(A, sSEG, 1, 54, 55), wait_pa=lambda: W.flag_wait(A, sSEG, 1, 54, 57))
    A("s_barrier")
    A("s_add_u32 s59, s59, 64")
    A("s_cmp_lt_u32 s59, 256")
    A("s_cbranch_scc1 L_w4loop")
    A("L_wend:")
    wst(2)
    if wstamp:
        A("s_waitcnt lgkmcnt(0)")
        A("s_lshl_b32 s12, s58, 5")
        A(f"s_add_u32 s12, s12, {WS_END_CHAIN + 0x8000}")
        A("v_mov_b32 v24, s12")
        for k in range(3):
            A(f"v_mov_b32 v25, {s(80+2*k)}")
            A(f"global_store_dword v24, v25, s[4:5] offset:{4*k}")
        A("v_mov_b32 v25, s94")
        A("global_store_dword v24, v25, s[4:5] offset:12")
    A("s_waitcnt vmcnt(0)")
    A("L_exit:")
    A("s_endpgm")
    A.raw("L_code_end:")
    A.raw(".fill 6144, 4, 0xbf800000")
    A.raw(kd(NAME))
    return A

if __name__ == "__main__":
    kw = {}
    for x in sys.argv[2:]:
        k,val = x.split("="); kw[k] = int(val)
    A = gen(**kw)
    open(sys.argv[1], "w").write(A.text())
    print("nops", A.nops, "lines", len(A.out), "bytes", len(A.text()))
```

```python
import sys
from asmlib import *
from layout import *
import chain10 as chain, workers as W
from engine import *
NAME = "gated_mix__memory_aug_recurrent_mem_tr__glu_gated_swiglu__prompt_kernel"
HDR = open("gated_mix__memory_aug_recurrent_mem_tr__glu_gated_swiglu__prompt.s.ref").read().split("; Override launch geometry")[0]

def gen(stamp=0, force_slow=False, wstamp=False, sst=0, dbgt=0, **kw):
    chain.STARTUP_STAMPS = bool(sst)
    W.USE_FLAGS = True
    A = Asm()
    A.raw(HDR.rstrip("\n"))
    A.raw("; @launch grid=(256,1,1) block=(256,1,1) lds=163840")
    A.raw('.amdgcn_target "amdgcn-amd-amdhsa--gfx950"')
    A.raw(kstart(NAME))
    A("s_cmp_ge_u32 s2, 256")
    A("s_cbranch_scc1 L_exit")
    if wstamp or dbgt: A("s_memrealtime s[94:95]")
    A(f"s_load_dwordx2 {s(6,2)}, s[0:1], {KA_DBG}")
    A(f"s_load_dwordx2 {s(4,2)}, s[0:1], {KA_WS}")
    A("s_getreg_b32 s12, hwreg(HW_REG_XCC_ID, 0, 4)")
    A("v_lshrrev_b32 v1, 6, v0")
    A("v_readfirstlane_b32 s8, v1")
    A("v_and_b32 v31, 63, v0")
    A("s_waitcnt lgkmcnt(0)")
    A("s_cmp_lg_u32 s8, 0")
    A("s_cbranch_scc0 L_w0")
    A("s_getpc_b64 s[16:17]")
    A("L_pc:")
    A("s_sub_u32 s18, s8, 1")
    A("s_mul_i32 s18, s18, 8192")
    A("s_add_u32 s16, s16, s18")
    A("s_addc_u32 s17, s17, 0")
    A("v_lshlrev_b32 v2, 7, v31")
    A("s_mov_b32 s19, (L_code_end - L_pc + 24575) / 24576")
    A("L_pfc:")
    A("global_load_dword a255, v2, s[16:17]")
    A("s_add_u32 s16, s16, 24576")
    A("s_addc_u32 s17, s17, 0")
    A("s_sub_u32 s19, s19, 1")
    A("s_cmp_lg_u32 s19, 0")
    A("s_cbranch_scc1 L_pfc")
    A("s_branch L_role")
    A("L_w0:")
    A("s_lshl_b32 s13, s2, 8")
    A(f"s_add_u32 s13, s13, {WS_FLAGS}")
    A("v_lshlrev_b32 v2, 2, v31")
    A("v_add_u32 v2, s13, v2")
    A("v_mov_b32 v3, 0")
    A("global_store_dword v2, v3, s[4:5] sc1")
    A("s_lshl_b32 s13, s2, 11")
    A(f"s_add_u32 s13, s13, {WS_MEMP}")
    A("v_lshlrev_b32 v2, 4, v31")
    A("v_add_u32 v2, s13, v2")
    for r in range(8,12): A(f"v_mov_b32 v{r}, -1")
    A("global_store_dwordx4 v2, v[8:11], s[4:5] sc1")
    A("global_store_dwordx4 v2, v[8:11], s[4:5] offset:1024 sc1")
    A("s_mov_b64 exec, 1")
    A("v_mov_b32 v3, 1")
    A("s_lshl_b32 s13, s12, 2")
    A(f"s_add_u32 s13, s13, {DBG_XCNT}")
    A("v_mov_b32 v2, s13")
    A("global_atomic_add v4, v2, v3, s[6:7] sc0")
    A("s_waitcnt vmcnt(0)")
    A("v_readfirstlane_b32 s15, v4")
    A(f"v_mov_b32 v2, {DBG_FINIT}")
    A("global_atomic_add v2, v3, s[6:7]")
    A("s_lshl_b32 s14, s12, 5")
    A("s_add_u32 s14, s14, s15")
    A("s_cmp_lt_u32 s15, 32")
    A("s_cbranch_scc0 L_ovf")
    A("s_cmp_lt_u32 s12, 8")
    A("s_cbranch_scc1 L_haverole")
    A("L_ovf:")
    A(f"v_mov_b32 v2, {DBG_FINIT}")
    A("s_mov_b32 s16, 0")
    A("L_ovfw:")
    A("global_load_dword v4, v2, s[6:7] sc1")
    A("s_add_u32 s16, s16, 1")
    A("s_mov_b32 s14, 0xffff")
    A("s_cmp_gt_u32 s16, 0x40000")
    A("s_cbranch_scc1 L_haverole")
    A("s_waitcnt vmcnt(0)")
    A("v_readfirstlane_b32 s17, v4")
    A("s_cmp_lt_u32 s17, 256")
    A("s_cbranch_scc1 L_ovfw")
    A(f"v_mov_b32 v2, {DBG_OVF}")
    A("global_atomic_add v4, v2, v3, s[6:7] sc0")
    A("s_waitcnt vmcnt(0)")
    A("v_readfirstlane_b32 s16, v4")
    A("s_mov_b32 s17, 0")
    A("L_ovfl:")
    A("s_lshl_b32 s13, s17, 2")
    A(f"s_add_u32 s13, s13, {DBG_XCNT}")
    A("v_mov_b32 v2, s13")
    A("global_load_dword v4, v2, s[6:7] sc1")
    A("s_waitcnt vmcnt(0)")
    A("v_readfirstlane_b32 s18, v4")
    A("s_min_u32 s18, s18, 32")
    A("s_sub_u32 s19, 32, s18")
    A("s_cmp_lt_u32 s16, s19")
    A("s_cbranch_scc1 L_ovfg")
    A("s_sub_u32 s16, s16, s19")
    A("s_add_u32 s17, s17, 1")
    A("s_cmp_lt_u32 s17, 8")
    A("s_cbranch_scc1 L_ovfl")
    A("s_mov_b32 s14, 0xffff")
    A("s_branch L_haverole")
    A("L_ovfg:")
    A("s_lshl_b32 s14, s17, 5")
    A("s_add_u32 s14, s14, s18")
    A("s_add_u32 s14, s14, s16")
    A("L_haverole:")
    A("v_mov_b32 v4, s14")
    A(f"v_mov_b32 v5, {L_MISC}")
    A("ds_write_b32 v5, v4")
    A("s_waitcnt lgkmcnt(0)")
    A("s_mov_b64 exec, -1")
    A("L_role:")
    A("s_barrier")
    A(f"v_mov_b32 v5, {L_MISC}")
    A("ds_read_b32 v4, v5")
    A("s_waitcnt lgkmcnt(0)")
    A("v_readfirstlane_b32 s14, v4")
    A("s_barrier")
    A("s_cmp_ge_u32 s14, 256")
    A("s_cbranch_scc1 L_exit")
    A("s_cmp_ge_u32 s14, 32")
    A("s_cbranch_scc1 L_worker")
    A(f"s_mov_b32 {s(chain.sRANK)}, s14")
    A(f"s_load_dwordx2 {s(60,2)}, s[0:1], {KA_MEM0}")
    A(f"s_load_dwordx2 {s(62,2)}, s[0:1], {KA_WQ}")
    A(f"s_load_dwordx2 {s(64,2)}, s[0:1], {KA_WK}")
    A(f"s_load_dwordx2 {s(66,2)}, s[0:1], {KA_WV}")
    A(f"s_load_dwordx2 {s(68,2)}, s[0:1], {KA_WO}")
    A("s_waitcnt lgkmcnt(0)")
    chain.gen_chain(A, 64, 1 if dbgt else stamp, flags=True, force_slow=force_slow, **kw)
    if dbgt:
        A("s_cmp_lg_u32 s9, 0"); A("s_cbranch_scc1 L_dt1"); A("s_cmp_lg_u32 s8, 0"); A("s_cbranch_scc1 L_dt1")
        A("s_memrealtime s[86:87]"); A("s_waitcnt lgkmcnt(0)")
        for k,r in enumerate((80,82,84,86)):
            A(f"s_sub_u32 s12, s{r}, s94"); A("v_mov_b32 v25, s12"); A(f"v_mov_b32 v24, {32+4*k}")
            A("global_store_dword v24, v25, s[6:7]")
        A("s_waitcnt vmcnt(0)")
        A("L_dt1:")
    A("s_endpgm")
    A.hist = []
    A("L_worker:")
    A("s_sub_u32 s58, s14, 32")
    W.load_ptrs(A)
    W.flag_init_ptr(A)
    def wst(k):
        if wstamp:
            A(f"s_memrealtime {s(80+2*k,2)}")
    wst(0)
    W.wait_finit(A)
    def wait_cw():
        lab = A.label("L_wcw"); ok = A.label("L_wcwok")
        A(f"v_mov_b32 v254, {DBG_CW}")
        A("s_mov_b32 s49, 0")
        A(f"{lab}:")
        A("global_load_dword v255, v254, s[6:7] sc1")
        A("s_add_u32 s49, s49, 1")
        A("s_cmp_gt_u32 s49, 0x20000")
        A(f"s_cbranch_scc1 {ok}")
        A("s_waitcnt vmcnt(0)")
        A("v_cmp_gt_u32 vcc, 32, v255")
        A(f"s_cbranch_vccz {ok}")
        A("s_sleep 8")
        A(f"s_branch {lab}")
        A(f"{ok}:")
    A("s_cmp_lt_u32 s58, 128")
    A("s_cbranch_scc0 L_w1b")
    A(f"s_lshr_b32 {s(W.sSL)}, s58, 2")
    A("s_and_b32 s12, s58, 3")
    A("s_cmp_eq_u32 s12, 0")
    A("s_cbranch_scc0 L_w1p")
    A(f"s_and_b32 s12, {s(W.sSL)}, 15")
    A("s_lshl_b32 s12, s12, 18")
    A("s_lshl_b32 s13, s8, 16")
    A("s_add_u32 s12, s12, s13")
    A(f"s_cmp_lt_u32 {s(W.sSL)}, 16")
    A("s_cselect_b32 s14, s62, s68")
    A("s_cselect_b32 s15, s63, s69")
    A("s_add_u32 s14, s14, s12")
    A("s_addc_u32 s15, s15, 0")
    for i in range(60):
        A(f"global_load_dwordx4 v[{32+4*(i%48)}:{35+4*(i%48)}], v1, s[14:15]")
        A("s_add_u32 s14, s14, 1024")
        A("s_addc_u32 s15, s15, 0")
    for i in range(4):
        A(f"global_load_dwordx4 v[{32+4*i}:{35+4*i}], v1, s[14:15] offset:{i*1024}")
    A("s_waitcnt vmcnt(0)")
    wait_cw()
    W.gen_kvm_body(A)
    A("s_branch L_wend")
    A("L_w1p:")
    A(f"s_sub_u32 {s(sSEG)}, s12, 1")
    A("s_branch L_w1go")
    A("L_w1b:")
    A("s_cmp_lt_u32 s58, 218")
    A("s_cbranch_scc0 L_w2")
    wait_cw()
    A("s_sub_u32 s12, s58, 128")
    A("s_mul_i32 s13, s12, 21846")
    A("s_lshr_b32 s13, s13, 16")
    A(f"s_add_u32 {s(W.sSL)}, s13, 32")
    A("s_mul_i32 s13, s13, 3")
    A(f"s_sub_u32 {s(sSEG)}, s12, s13")
    A("L_w1go:")
    A(f"s_mov_b32 {s(W.sSTR)}, 3")
    A(f"s_cmp_eq_u32 {s(sSEG)}, 0")
    A(f"s_cselect_b32 {s(W.sCNT)}, 22, 21")
    W.gen_proj_body(A, st="sc1")
    A("L_w2:")
    wst(1)
    A("s_barrier")
    A("s_cmp_lt_u32 s58, 128")
    A("s_cbranch_scc1 L_w3")
    A("s_cmp_lt_u32 s58, 160")
    A("s_cbranch_scc0 L_w4")
    A("s_sub_u32 s12, s58, 128")
    A(f"s_lshr_b32 {s(W.sSL)}, s12, 2")
    A(f"s_and_b32 {s(sSEG)}, s12, 3")
    A(f"s_mov_b32 {s(W.sCNT)}, 16")
    W.gen_down_body(A, 4, st="sc1")
    A("s_branch L_wend")
    A("L_w3:")
    A("s_lshr_b32 s12, s58, 2")
    A("s_mul_i32 s12, s12, 3")
    A("s_and_b32 s13, s58, 3")
    A("s_add_u32 s12, s12, s13")
    A("s_sub_u32 s12, s12, 1")
    A(f"s_and_b32 {s(W.sSL)}, s12, 15")
    A(f"s_lshr_b32 {s(sSEG)}, s12, 4")
    A(f"s_cmp_lt_u32 {s(sSEG)}, 4")
    A(f"s_cselect_b32 {s(W.sCNT)}, 11, 10")
    W.gen_attn_body(A, 6, st="sc1", mod="sc1")
    A("s_branch L_wend")
    A("L_w4:")
    A("s_sub_u32 s59, s58, 160")
    A("L_w4loop:")
    A(f"s_lshr_b32 {s(sSEG)}, s59, 2")
    A(f"s_and_b32 {s(W.sSL)}, s59, 3")
    A(f"s_lshr_b32 s12, {s(W.sSL)}, 1")
    A("s_lshl_b32 s55, 0x550000, s12")
    A("s_lshl_b32 s57, 0x5555, s12")
    A("s_mov_b32 s54, 0")
    W.gen_final_body(A, mod="sc1", wait_pb=lambda: W.flag_wait(A, sSEG, 1, 54, 55), wait_pa=lambda: W.flag_wait(A, sSEG, 1, 54, 57))
    A("s_barrier")
    A("s_add_u32 s59, s59, 64")
    A("s_cmp_lt_u32 s59, 256")
    A("s_cbranch_scc1 L_w4loop")
    A("L_wend:")
    if dbgt:
        A("s_memrealtime s[86:87]"); A("s_waitcnt lgkmcnt(0)")
        A("s_sub_u32 s12, s86, s94"); A("v_mov_b32 v25, s12"); A("v_mov_b32 v24, 48")
        A("s_mov_b64 exec, 1"); A("global_atomic_umax v24, v25, s[6:7]"); A("s_mov_b64 exec, -1")
    wst(2)
    if wstamp:
        A("s_waitcnt lgkmcnt(0)")
        A("s_lshl_b32 s12, s58, 5")
        A(f"s_add_u32 s12, s12, {WS_END_CHAIN + 0x8000}")
        A("v_mov_b32 v24, s12")
        for k in range(3):
            A(f"v_mov_b32 v25, {s(80+2*k)}")
            A(f"global_store_dword v24, v25, s[4:5] offset:{4*k}")
        A("v_mov_b32 v25, s94")
        A("global_store_dword v24, v25, s[4:5] offset:12")
    A("s_waitcnt vmcnt(0)")
    A("L_exit:")
    A("s_endpgm")
    A.raw("L_code_end:")
    A.raw(".fill 6144, 4, 0xbf800000")
    A.raw(kd(NAME))
    return A

if __name__ == "__main__":
    kw = {}
    for x in sys.argv[2:]:
        k,val = x.split("="); kw[k] = int(val)
    A = gen(**kw)
    open(sys.argv[1], "w").write(A.text())
    print("nops", A.nops, "lines", len(A.out), "bytes", len(A.text()))
```

```python
from asmlib import *
from layout import *
from engine import *
import struct
def f2u(x): return struct.unpack("<I", struct.pack("<f", x))[0]
LOG2E = 1.4426950408889634
sIN = 60


sFLG=46
wFV=30
wFL=254
USE_FLAGS=False
def flag_init_ptr(A):
    A(f"s_add_u32 {s(sFLG)}, {s(sWS)}, {WS_FLAGS}")
    A(f"s_addc_u32 {s(sFLG+1)}, {s(sWS+1)}, 0")
def flag_set(A, seg_s, row, idx_s=None, idx_c=0):
    lab = A.label("L_fs")
    A(f"s_cmp_lg_u32 {s(sWAVE)}, 0")
    A(f"s_cbranch_scc1 {lab}")
    A.cbegin()
    A(f"s_lshl_b32 {s(48)}, {s(seg_s)}, 10")
    if idx_s is not None:
        A(f"s_lshl_b32 {s(49)}, {s(idx_s)}, 2")
        A(f"s_add_u32 {s(48)}, {s(48)}, {s(49)}")
    A(f"s_add_u32 {s(48)}, {s(48)}, {row*256 + idx_c*4}")
    A(f"v_mov_b32 {v(wFL)}, {s(48)}")
    A(f"v_mov_b32 {v(wFL+1)}, 1")
    A("s_mov_b64 exec, 1")
    A(f"global_store_dword {v(wFL)}, {v(wFL+1)}, {s(sFLG,2)} sc1")
    A("s_mov_b64 exec, -1")
    A.cend()
    A(f"{lab}:")
def flag_wait(A, seg_s, row, mask_lo_s, mask_hi_s):
    lab = A.label("L_fw"); ok = A.label("L_fwok")
    A(f"s_lshl_b32 {s(48)}, {s(seg_s)}, 10")
    A(f"s_add_u32 {s(48)}, {s(48)}, {row*256}")
    A(f"v_lshlrev_b32 {v(wFL)}, 2, {v(wLANE)}")
    A(f"v_add_u32 {v(wFL)}, {s(48)}, {v(wFL)}")
    A(f"s_mov_b32 {s(49)}, 0")
    A(f"{lab}:")
    A(f"global_load_dword {v(wFL+1)}, {v(wFL)}, {s(sFLG,2)} sc1")
    A(f"s_add_u32 {s(49)}, {s(49)}, 1")
    A(f"s_cmp_gt_u32 {s(49)}, 0x20000")
    A(f"s_cbranch_scc1 {ok}")
    A("s_waitcnt vmcnt(0)")
    A(f"v_cmp_ne_u32 vcc, 0, {v(wFL+1)}")
    A(f"s_and_b32 {s(50)}, vcc_lo, {s(mask_lo_s)}")
    A(f"s_and_b32 {s(51)}, vcc_hi, {s(mask_hi_s)}")
    A(f"s_xor_b32 {s(50)}, {s(50)}, {s(mask_lo_s)}")
    A(f"s_xor_b32 {s(51)}, {s(51)}, {s(mask_hi_s)}")
    A(f"s_or_b32 {s(50)}, {s(50)}, {s(51)}")
    A(f"s_cmp_eq_u32 {s(50)}, 0")
    A(f"s_cbranch_scc1 {ok}")
    A("s_sleep 1")
    A(f"s_branch {lab}")
    A(f"{ok}:")
def wait_finit(A):
    lab = A.label("L_wfi"); ok = A.label("L_wfiok")
    A(f"v_mov_b32 {v(wFL)}, {DBG_FINIT}")
    A(f"s_mov_b32 {s(49)}, 0")
    A(f"{lab}:")
    A(f"global_load_dword {v(wFL+1)}, {v(wFL)}, {s(sDBG,2)} sc1")
    A(f"s_add_u32 {s(49)}, {s(49)}, 1")
    A(f"s_cmp_gt_u32 {s(49)}, 0x20000")
    A(f"s_cbranch_scc1 {ok}")
    A("s_waitcnt vmcnt(0)")
    A(f"v_cmp_gt_u32 vcc, 256, {v(wFL+1)}")
    A(f"s_cbranch_vccz {ok}")
    A("s_sleep 2")
    A(f"s_branch {lab}")
    A(f"{ok}:")

def load_ptrs(A):
    for reg,off in ((60,KA_X),(62,KA_WQ),(64,KA_WK),(66,KA_WV),(68,KA_WO),(70,KA_W1),(72,KA_W3),(74,KA_W2),(76,KA_GW),(78,KA_OUT),(sDBG,KA_DBG),(sWS,KA_WS)):
        A(f"s_load_dwordx2 {s(reg,2)}, s[0:1], {off}")
    A("v_lshrrev_b32 v1, 6, v0")
    A(f"v_readfirstlane_b32 {s(sWAVE)}, v1")
    A(f"v_and_b32 {v(wLANE)}, 63, v0")
    A(f"v_lshlrev_b32 {v(wL16)}, 4, {v(wLANE)}")
    A("s_waitcnt lgkmcnt(0)")

def dma_x_setup(A):
    A(f"s_and_b32 {s(sT)}, {s(sWAVE)}, 1")
    A(f"s_lshl_b32 {s(sT)}, {s(sT)}, 7")
    A(f"v_xor_b32 {v(wDM)}, {s(sT)}, {v(wL16)}")

def dma_x(A, slot_reg):
    A(f"s_lshl_b32 {s(sT)}, {s(sWAVE)}, 13")
    A(f"s_add_u32 {s(sT+4)}, {s(sAP)}, {s(sT)}")
    A(f"s_addc_u32 {s(sT+5)}, {s(sAP+1)}, 0")
    A(f"s_add_u32 {s(sT)}, {s(sT)}, {s(slot_reg)}")
    out = []
    for i in range(8):
        A(f"v_xor_b32 {v(wDM+1)}, {i*16}, {v(wDM)}")
        A(f"s_add_u32 m0, {s(sT)}, {i*1024}")
        A(f"global_load_lds_dwordx4 {v(wDM+1)}, {s(sT+4,2)}")
        if i < 7:
            A(f"s_add_u32 {s(sT+4)}, {s(sT+4)}, 1024")
            A(f"s_addc_u32 {s(sT+5)}, {s(sT+5)}, 0")

def dma_lin(A, slot_reg, nfrag=32, mod=""):
    per = nfrag // 4
    A(f"s_mul_i32 {s(sT)}, {s(sWAVE)}, {per*1024}")
    A(f"s_add_u32 {s(sT+4)}, {s(sAP)}, {s(sT)}")
    A(f"s_addc_u32 {s(sT+5)}, {s(sAP+1)}, 0")
    A(f"s_add_u32 {s(sT)}, {s(sT)}, {s(slot_reg)}")
    for i in range(0, per, 4):
        A(f"s_add_u32 m0, {s(sT)}, {i*1024}")
        for j in range(min(4, per-i)):
            A(f"global_load_lds_dwordx4 {v(wL16)}, {s(sT+4,2)} offset:{j*1024} {mod}")
        if i + 4 < per:
            A(f"s_add_u32 {s(sT+4)}, {s(sT+4)}, 4096")
            A(f"s_addc_u32 {s(sT+5)}, {s(sT+5)}, 0")

sSLOT=34; sCNT=35; sSL=36; sSTR=33

def epi_kq(A, st=""):
    E = wE
    for Tt in range(2):
        for hf in range(2):
            for d in range(4):
                r = wAC + 16*Tt + 8*hf + 2*d
                A(f"v_cvt_pk_bf16_f32 {v(E+8*Tt+4*hf+d)}, {v(r)}, {v(r+1)}")
            A(f"global_store_dwordx4 {v(E+20)}, {v(E+8*Tt+4*hf,4)}, {s(sOP,2)} offset:{Tt*1024+hf*512} {st}")

def epi_v(A, st=""):
    E = wE
    for Tt in range(2):
        for u in range(2):
            base = wAC + 16*Tt
            regs = [base+4*u, base+4*u+2, base+8+4*u, base+8+4*u+2]
            for d in range(4):
                A(f"v_cvt_pk_bf16_f32 {v(E+8*Tt+4*u+d)}, {v(regs[d])}, {v(regs[d]+1)}")
            A(f"global_store_dwordx4 {v(E+20)}, {v(E+8*Tt+4*u,4)}, {s(sOP,2)} offset:{Tt*2048+u*512} {st}")

def unpack2(A, dlo, dhi, src):
    A(f"v_lshlrev_b32 {v(dlo)}, 16, {v(src)}")
    A(f"v_and_b32 {v(dhi)}, 0xffff0000, {v(src)}")

def epi_ffn(A, st=""):
    E = wE
    G = wAC; U = wAC+16
    t = E+8
    for hf in range(2):
        for d in range(4):
            g = G + 8*hf + 2*d; u = U + 8*hf + 2*d
            A(f"v_cvt_pk_bf16_f32 {v(t)}, {v(g)}, {v(g+1)}")
            A(f"v_cvt_pk_bf16_f32 {v(t+1)}, {v(u)}, {v(u+1)}")
            unpack2(A, t+2, t+3, t)
            unpack2(A, t+6, t+7, t+1)
            A(f"v_pk_mul_f32 {v(t+4,2)}, {v(t+2,2)}, {s(40,2)}")
            A(f"v_exp_f32 {v(t+4)}, {v(t+4)}")
            A(f"v_exp_f32 {v(t+5)}, {v(t+5)}")
            A(f"v_pk_add_f32 {v(t+4,2)}, {v(t+4,2)}, {s(42,2)}")
            A(f"v_rcp_f32 {v(t+4)}, {v(t+4)}")
            A(f"v_rcp_f32 {v(t+5)}, {v(t+5)}")
            A(f"v_pk_mul_f32 {v(t+4,2)}, {v(t+4,2)}, {v(t+2,2)}")
            A(f"v_cvt_pk_bf16_f32 {v(t)}, {v(t+4)}, {v(t+5)}")
            unpack2(A, t+4, t+5, t)
            A(f"v_pk_mul_f32 {v(t+4,2)}, {v(t+4,2)}, {v(t+6,2)}")
            A(f"v_cvt_pk_bf16_f32 {v(E+4*hf+d)}, {v(t+4)}, {v(t+5)}")
        A(f"global_store_dwordx4 {v(wL16)}, {v(E+4*hf,4)}, {s(sOP,2)} offset:{hf*1024} {st}")

def epi_part(A, st=""):
    for Tt in range(2):
        for hq in range(4):
            r = wAC + 16*Tt + 4*hq
            off = Tt*4096 + hq*1024
            if off < 4096: A(f"global_store_dwordx4 {v(wL16)}, {v(r,4)}, {s(sOP,2)} offset:{off} {st}")
            else: A(f"global_store_dwordx4 {v(wDM)}, {v(r,4)}, {s(sOP,2)} offset:{off-4096} {st}")

PROF=False
WST=None
def pst(A,k):
    if PROF:
        A(f"s_memtime {s(90,2)}"); A("s_waitcnt lgkmcnt(0)")
        A(f"s_sub_u32 {s(92)}, {s(90)}, {s(93)}"); A(f"s_mov_b32 {s(93)}, {s(90)}"); A(f"s_add_u32 {s(94+k)}, {s(94+k)}, {s(92)}")
def seg_loop(A, kind, nseg_reg_init, seg_stride, ksteps=32, st=""):
    mode = "x"
    lab = A.label("L_seg")
    def set_ap():
        A(f"s_lshl_b32 {s(sT)}, {s(sSEG)}, 15")
        A(f"s_add_u32 {s(sAP)}, {s(60)}, {s(sT)}")
        A(f"s_addc_u32 {s(sAP+1)}, {s(61)}, 0")
    A(f"s_mov_b32 {s(sSLOT)}, 0")
    set_ap()
    dma_x(A, sSLOT)
    nst = 2 if kind == "ffn" else 4
    A(f"s_mov_b32 {s(52)}, -1")
    A(f"s_mov_b32 {s(53)}, -1")
    A("s_waitcnt vmcnt(0)")
    if PROF:
        for k in range(6): A(f"s_mov_b32 {s(94+k)}, 0")
        A(f"s_memtime {s(90,2)}"); A("s_waitcnt lgkmcnt(0)"); A(f"s_mov_b32 {s(93)}, {s(90)}")
    A(f"{lab}:")
    A(f"s_waitcnt vmcnt({nst})")
    A("s_barrier")
    pst(A,0)
    if USE_FLAGS:
        nf = A.label("L_nf")
        A(f"s_cmp_eq_u32 {s(52)}, -1")
        A(f"s_cbranch_scc1 {nf}")
        flag_set(A, 52, 0, idx_s=sSL)
        A(f"{nf}:")
        A(f"s_mov_b32 {s(52)}, {s(53)}")
        A(f"s_mov_b32 {s(53)}, {s(sSEG)}")
    if kind in ("k","q","v"):
        base = {"k":WS_KX,"q":WS_Q,"v":WS_VX}[kind]
        A(f"s_lshl_b32 {s(sT)}, {s(sSEG)}, 18")
        A(f"s_add_u32 {s(sT)}, {s(sT)}, {s(37)}")
        A(f"s_add_u32 {s(sT)}, {s(sT)}, {base}")
    else:
        A(f"s_mul_i32 {s(sT)}, {s(sSEG)}, {56*2048}")
        A(f"s_add_u32 {s(sT)}, {s(sT)}, {s(37)}")
        A(f"s_add_u32 {s(sT)}, {s(sT)}, {WS_H}")
    A(f"s_add_u32 {s(sOP)}, {s(sWS)}, {s(sT)}")
    A(f"s_addc_u32 {s(sOP+1)}, {s(sWS+1)}, 0")
    nx = A.label("L_nonext")
    A(f"s_add_u32 {s(sSEG)}, {s(sSEG)}, {s(sSTR)}")
    A(f"s_sub_u32 {s(sCNT)}, {s(sCNT)}, 1")
    A(f"s_xor_b32 {s(sSLOT)}, {s(sSLOT)}, 32768")
    A(f"s_cmp_eq_u32 {s(sCNT)}, 0")
    A(f"s_cbranch_scc1 {nx}")
    A.cbegin()
    set_ap()
    dma_x(A, sSLOT)
    A.cend()
    A(f"{nx}:")
    pst(A,1)
    mma_chunk(A, ksteps, mode, 0, transposed=(kind != "v"))
    pst(A,2)
    for b in range(8): A(f"v_xor_b32 {v(wAR+b)}, 32768, {v(wAR+b)}")
    if kind in ("k","q"): epi_kq(A, st)
    elif kind == "v": epi_v(A, st)
    else: epi_ffn(A, st)
    if USE_FLAGS:
        nfirst = A.label("L_nfirst")
        A(f"s_cmp_eq_u32 {s(52)}, -1")
        A(f"s_cbranch_scc0 {nfirst}")
        A(f"s_cmp_lt_u32 {s(53)}, 3")
        A(f"s_cbranch_scc0 {nfirst}")
        A("s_waitcnt vmcnt(0)")
        A("s_barrier")
        flag_set(A, 53, 0, idx_s=sSL)
        if WST: WST(5)
        A(f"{nfirst}:")
    pst(A,3)
    A(f"s_cmp_lg_u32 {s(sCNT)}, 0")
    A(f"s_cbranch_scc1 {lab}")
    if USE_FLAGS:
        A("s_waitcnt vmcnt(0)")
        A("s_barrier")
        nf2 = A.label("L_nf")
        A(f"s_cmp_eq_u32 {s(52)}, -1")
        A(f"s_cbranch_scc1 {nf2}")
        flag_set(A, 52, 0, idx_s=sSL)
        A(f"{nf2}:")
        flag_set(A, 53, 0, idx_s=sSL)

def gen_proj_body(A, st=""):
    done = A.label("L_pdone")
    lk, lv, lq, lf = [A.label(x) for x in ("L_pk","L_pv","L_pq","L_pf")]
    A(f"s_cmp_lt_u32 {s(sSL)}, 16"); A(f"s_cbranch_scc1 {lk}")
    A(f"s_cmp_lt_u32 {s(sSL)}, 32"); A(f"s_cbranch_scc1 {lv}")
    A(f"s_cmp_lt_u32 {s(sSL)}, 48"); A(f"s_cbranch_scc1 {lq}")
    A(f"s_branch {lf}")
    for kind,lab,first,ptr in (("k",lk,0,64),("v",lv,16,66),("q",lq,32,62)):
        A(f"{lab}:")
        A(f"s_sub_u32 {s(sT+6)}, {s(sSL)}, {first}")
        A(f"s_lshl_b32 {s(sT)}, {s(sT+6)}, 9")
        A(f"s_add_u32 {s(sWB)}, {s(ptr)}, {s(sT)}")
        A(f"s_addc_u32 {s(sWB+1)}, {s(ptr+1)}, 0")
        A(f"s_mov_b32 {s(sLDW)}, 8192")
        A(f"s_lshr_b32 {s(sT)}, {s(sWAVE)}, 1")
        A(f"s_lshl_b32 {s(sT+1)}, {s(sT+6)}, 1")
        A(f"s_add_u32 {s(sT)}, {s(sT)}, {s(sT+1)}")
        A(f"s_lshl_b32 {s(37)}, {s(sT)}, 13")
        A(f"s_and_b32 {s(sT)}, {s(sWAVE)}, 1")
        A(f"s_lshl_b32 {s(sT)}, {s(sT)}, {11 if kind != 'v' else 12}")
        A(f"s_add_u32 {s(37)}, {s(37)}, {s(sT)}")
        if WST: WST(3)
        load_weights(A, 32, ffn=False, sigma=(kind != "v"))
        if WST: WST(4)
        if USE_FLAGS: wait_finit(A)
        setup_a_addr(A, "x"); dma_x_setup(A)
        T = wT
        if kind != "v":
            A(f"v_bfe_u32 {v(T)}, {v(wLANE)}, 4, 1")
            A(f"v_lshrrev_b32 {v(T+1)}, 5, {v(wLANE)}")
            A(f"v_and_b32 {v(T+2)}, 15, {v(wLANE)}")
            A(f"v_lshl_add_u32 {v(T+1)}, {v(T+1)}, 4, {v(T+2)}")
            A(f"v_lshlrev_b32 {v(T+1)}, 4, {v(T+1)}")
            A(f"v_lshl_add_u32 {v(wE+20)}, {v(T)}, 12, {v(T+1)}")
        else:
            A(f"v_bfe_u32 {v(T)}, {v(wLANE)}, 4, 1")
            A(f"v_lshrrev_b32 {v(T+1)}, 5, {v(wLANE)}")
            A(f"v_and_b32 {v(T+2)}, 15, {v(wLANE)}")
            A(f"v_lshl_add_u32 {v(T+1)}, {v(T+1)}, 4, {v(T+2)}")
            A(f"v_lshlrev_b32 {v(T+1)}, 4, {v(T+1)}")
            A(f"v_lshl_add_u32 {v(wE+20)}, {v(T)}, 10, {v(T+1)}")
        seg_loop(A, kind, None, 4, 32, st)
        A(f"s_branch {done}")
    A(f"{lf}:")
    A(f"s_sub_u32 {s(sT+6)}, {s(sSL)}, 48")
    A(f"s_lshl_b32 {s(sT)}, {s(sT+6)}, 8")
    A(f"s_add_u32 {s(sWB)}, {s(70)}, {s(sT)}")
    A(f"s_addc_u32 {s(sWB+1)}, {s(71)}, 0")
    A(f"s_add_u32 {s(sWB2)}, {s(72)}, {s(sT)}")
    A(f"s_addc_u32 {s(sWB2+1)}, {s(73)}, 0")
    A(f"s_mov_b32 {s(sLDW)}, 3584")
    A(f"s_lshl_b32 {s(sT)}, {s(sT+6)}, 2")
    A(f"s_add_u32 {s(sT)}, {s(sT)}, {s(sWAVE)}")
    A(f"s_lshl_b32 {s(37)}, {s(sT)}, 11")
    A(f"s_mov_b32 {s(40)}, {f2u(-LOG2E):#x}"); A(f"s_mov_b32 {s(41)}, {f2u(-LOG2E):#x}")
    A(f"s_mov_b32 {s(42)}, 1.0"); A(f"s_mov_b32 {s(43)}, 1.0")
    load_weights(A, 32, ffn=True, sigma=True)
    if USE_FLAGS: wait_finit(A)
    setup_a_addr(A, "x"); dma_x_setup(A)
    seg_loop(A, "ffn", None, 4, 32, st)
    A(f"{done}:")

def gen_proj_kernel(A, name="proj_kernel"):
    A.raw(kstart(name))
    load_ptrs(A)
    A("s_cmp_ge_u32 s2, 248")
    A("s_cbranch_scc1 L_proj_exit")
    A(f"s_lshr_b32 {s(sSL)}, s2, 2")
    A(f"s_and_b32 {s(sSEG)}, s2, 3")
    A(f"s_mov_b32 {s(sCNT)}, 16")
    A(f"s_mov_b32 {s(sSTR)}, 4")
    if PROF:
        A(f"s_memtime {s(88,2)}"); A("s_waitcnt lgkmcnt(0)")
    gen_proj_body(A)
    if PROF:
        A(f"s_memtime {s(90,2)}"); A("s_waitcnt lgkmcnt(0)")
        A(f"s_sub_u32 {s(98)}, {s(90)}, {s(88)}")
        A(f"s_lshl_b32 {s(12)}, s2, 5"); A(f"s_add_u32 {s(12)}, {s(12)}, {WS_END_CHAIN}")
        A(f"v_mov_b32 v24, {s(12)}")
        for k in range(5):
            A(f"v_mov_b32 v25, {s(94+k)}"); A(f"global_store_dword v24, v25, {s(sWS,2)} offset:{4*k}")
        A("s_waitcnt vmcnt(0)")
    A("L_proj_exit:")
    A("s_endpgm")

def part_loop(A, ksteps, src, st="", seg_stride=1, pre=None):
    lab = A.label("L_seg")
    def set_ap():
        A(f"s_mul_i32 {s(sT)}, {s(sSEG)}, {56*2048}")
        A(f"s_add_u32 {s(sT)}, {s(sT)}, {s(37)}")
        A(f"s_add_u32 {s(sAP)}, {s(sWS)}, {s(sT)}")
        A(f"s_addc_u32 {s(sAP+1)}, {s(sWS+1)}, 0")
    mod = "sc1" if USE_FLAGS else ""
    A(f"s_mov_b32 {s(sSLOT)}, 0")
    if USE_FLAGS:
        wl = A.label("L_dw")
        A(f"s_mov_b32 {s(52)}, {s(sSEG)}")
        A(f"s_mov_b32 {s(53)}, {s(sCNT)}")
        A(f"{wl}:")
        flag_wait(A, 52, 0, 54, 55)
        A(f"s_add_u32 {s(52)}, {s(52)}, {seg_stride}")
        A(f"s_sub_u32 {s(53)}, {s(53)}, 1")
        A(f"s_cmp_lg_u32 {s(53)}, 0")
        A(f"s_cbranch_scc1 {wl}")
    set_ap()
    dma_lin(A, sSLOT, ksteps, mod)
    A(f"s_mov_b32 {s(52)}, -1")
    A(f"s_mov_b32 {s(53)}, -1")
    A("s_waitcnt vmcnt(0)")
    A(f"{lab}:")
    A("s_waitcnt vmcnt(8)")
    A("s_barrier")
    if USE_FLAGS:
        nf = A.label("L_nf")
        A(f"s_cmp_eq_u32 {s(52)}, -1")
        A(f"s_cbranch_scc1 {nf}")
        flag_set(A, 52, 1, idx_s=sSL, idx_c=FL2_PB)
        A(f"{nf}:")
        A(f"s_mov_b32 {s(52)}, {s(53)}")
        A(f"s_mov_b32 {s(53)}, {s(sSEG)}")
    A(f"s_lshl_b32 {s(sT)}, {s(sSEG)}, 16")
    A(f"s_add_u32 {s(sT)}, {s(sT)}, {s(38)}")
    A(f"s_add_u32 {s(sOP)}, {s(sWS)}, {s(sT)}")
    A(f"s_addc_u32 {s(sOP+1)}, {s(sWS+1)}, 0")
    nx = A.label("L_nonext")
    A(f"s_add_u32 {s(sSEG)}, {s(sSEG)}, {seg_stride}")
    A(f"s_sub_u32 {s(sCNT)}, {s(sCNT)}, 1")
    A(f"s_xor_b32 {s(sSLOT)}, {s(sSLOT)}, 32768")
    A(f"s_cmp_eq_u32 {s(sCNT)}, 0")
    A(f"s_cbranch_scc1 {nx}")
    A.cbegin()
    set_ap()
    dma_lin(A, sSLOT, ksteps, mod)
    A.cend()
    A(f"{nx}:")
    mma_chunk(A, ksteps, "f", 0, transposed=True)
    A(f"v_xor_b32 {v(wAR)}, 32768, {v(wAR)}")
    epi_part(A, st)
    A(f"s_cmp_lg_u32 {s(sCNT)}, 0")
    A(f"s_cbranch_scc1 {lab}")
    if USE_FLAGS:
        A("s_waitcnt vmcnt(0)")
        A("s_barrier")
        nf2 = A.label("L_nf")
        A(f"s_cmp_eq_u32 {s(52)}, -1")
        A(f"s_cbranch_scc1 {nf2}")
        flag_set(A, 52, 1, idx_s=sSL, idx_c=FL2_PB)
        A(f"{nf2}:")
        flag_set(A, 53, 1, idx_s=sSL, idx_c=FL2_PB)

def gen_down_body(A, seg_stride, st=""):
    done = A.label("L_ddone"); l3 = A.label("L_d3")
    A(f"s_lshr_b32 {s(sT+6)}, {s(sSL)}, 1")
    A(f"s_and_b32 {s(sT+7)}, {s(sSL)}, 1")
    A(f"s_lshl_b32 {s(sT)}, {s(sT+6)}, 19")
    A(f"s_lshl_b32 {s(sT+1)}, {s(sT+7)}, 9")
    A(f"s_add_u32 {s(sT)}, {s(sT)}, {s(sT+1)}")
    A(f"s_add_u32 {s(sWB)}, {s(74)}, {s(sT)}")
    A(f"s_addc_u32 {s(sWB+1)}, {s(75)}, 0")
    A(f"s_mov_b32 {s(sLDW)}, 1024")
    A(f"s_lshl_b32 {s(37)}, {s(sT+6)}, 15")
    A(f"s_add_u32 {s(37)}, {s(37)}, {WS_H}")
    A(f"s_lshl_b32 {s(38)}, {s(sT+6)}, 22")
    A(f"s_lshl_b32 {s(sT)}, {s(sT+7)}, 15")
    A(f"s_add_u32 {s(38)}, {s(38)}, {s(sT)}")
    A(f"s_lshl_b32 {s(sT)}, {s(sWAVE)}, 13")
    A(f"s_add_u32 {s(38)}, {s(38)}, {s(sT)}")
    A(f"s_add_u32 {s(38)}, {s(38)}, {WS_PB}")
    A(f"v_add_u32 {v(wDM)}, 4096, {v(wL16)}")
    A(f"s_mov_b32 {s(54)}, 0")
    A(f"s_lshl_b32 {s(sT)}, {s(sT+6)}, 2")
    A(f"s_add_u32 {s(sT)}, {s(sT)}, 16")
    A(f"s_lshl_b32 {s(55)}, 15, {s(sT)}")
    A(f"s_and_b32 {s(55)}, {s(55)}, 0x3fffffff")
    A(f"s_cmp_eq_u32 {s(sT+6)}, 3")
    A(f"s_cbranch_scc1 {l3}")
    for ksteps,lab in ((32,None),(16,l3)):
        if lab: A(f"{lab}:")
        load_weights(A, ksteps, ffn=False, sigma=True)
        setup_a_addr(A, "f")
        part_loop(A, ksteps, "h", st, seg_stride)
        A(f"s_branch {done}")
    A(f"{done}:")

def gen_down_kernel(A, name="down_kernel"):
    A.raw(kstart(name))
    load_ptrs(A)
    A("s_cmp_ge_u32 s2, 256")
    A("s_cbranch_scc1 L_down_exit")
    A(f"s_lshr_b32 {s(sSL)}, s2, 5")
    A(f"s_and_b32 {s(sSEG)}, s2, 31")
    A(f"s_mov_b32 {s(sCNT)}, 2")
    gen_down_body(A, 32)
    A("L_down_exit:")
    A("s_endpgm")

SCALE_LOG2E = (128.0 ** -0.5) * LOG2E
aQ=96; aKX=128; aKM=160; aVX=176; aVM=208
aS=216
aBI=236
aP=240
aT=252
aO=64
aOW=11
aM=12

def attn_loads(A, mod="", part=0):
    P = 44
    A(f"s_lshl_b32 {s(sT)}, {s(sSEG)}, 5")
    A(f"s_add_u32 {s(sT)}, {s(sT)}, {s(39)}")
    A(f"s_lshl_b32 {s(sT+1)}, {s(sT)}, 13")
    for (base, reg, n) in (((WS_Q,aQ,8),(WS_KX,aKX,8),(WS_VX,aVX,8)) if part in (0,1) else ()):
        A(f"s_add_u32 {s(sT+2)}, {s(sT+1)}, {base}")
        A(f"s_add_u32 {s(P)}, {s(sWS)}, {s(sT+2)}")
        A(f"s_addc_u32 {s(P+1)}, {s(sWS+1)}, 0")
        for i in range(n):
            if i == 4:
                A(f"s_add_u32 {s(P)}, {s(P)}, 4096")
                A(f"s_addc_u32 {s(P+1)}, {s(P+1)}, 0")
            A(f"global_load_dwordx4 {v(reg+4*i,4)}, {v(wL16)}, {s(P,2)} offset:{(i&3)*1024} {mod}")
    if part == 1: return
    A(f"s_lshl_b32 {s(sT+1)}, {s(sT)}, 12")
    A(f"s_add_u32 {s(sT+2)}, {s(sT+1)}, {WS_KM}")
    A(f"s_add_u32 {s(P)}, {s(sWS)}, {s(sT+2)}")
    A(f"s_addc_u32 {s(P+1)}, {s(sWS+1)}, 0")
    for i in range(4):
        A(f"global_load_dwordx4 {v(aKM+4*i,4)}, {v(wL16)}, {s(P,2)} offset:{i*1024} {mod}")
    A(f"s_add_u32 {s(sT+2)}, {s(sT+1)}, {WS_VM}")
    A(f"s_add_u32 {s(P)}, {s(sWS)}, {s(sT+2)}")
    A(f"s_addc_u32 {s(P+1)}, {s(sWS+1)}, 0")
    A(f"v_lshrrev_b32 {v(aM+18)}, 1, {v(wL16)}")
    for i in range(4):
        A(f"global_load_dwordx2 {v(aVM+2*i,2)}, {v(aM+18)}, {s(P,2)} offset:{i*512} {mod}")

def attn_setup(A):
    T = aM
    A(f"v_and_b32 {v(T)}, 15, {v(wLANE)}")
    A(f"v_lshrrev_b32 {v(T+1)}, 4, {v(wLANE)}")
    A(f"v_lshlrev_b32 {v(T+2)}, 2, {v(T+1)}")
    A(f"v_mov_b32 {v(T+4)}, 0xff000000")
    for r in range(4):
        A(f"v_add_u32 {v(T+3)}, {r}, {v(T+2)}")
        A(f"v_cmp_gt_u32 vcc, {v(T+3)}, {v(T)}")
        A(f"v_cndmask_b32 {v(aBI+r)}, 0, {v(T+4)}, vcc")
    A(f"v_mov_b32 {v(aP+2)}, 0"); A(f"v_mov_b32 {v(aP+3)}, 0")
    A(f"v_mov_b32 {v(aP+9)}, 0"); A(f"v_mov_b32 {v(aP+11)}, 0")
    A(f"v_lshrrev_b32 {v(T+2)}, 1, {v(T+1)}")
    A(f"v_lshl_add_u32 {v(T+2)}, {v(T+2)}, 5, {v(T)}")
    A(f"v_lshlrev_b32 {v(T+2)}, 4, {v(T+2)}")
    A(f"v_and_b32 {v(T+3)}, 1, {v(T+1)}")
    A(f"v_lshl_add_u32 {v(T+2)}, {v(T+3)}, 3, {v(T+2)}")
    A(f"s_lshl_b32 {s(sT)}, {s(sWAVE)}, 13")
    A(f"v_add_u32 {v(aOW)}, {s(sT)}, {v(T+2)}")
    A(f"s_mov_b32 {s(40)}, {f2u(SCALE_LOG2E):#x}")
    A(f"s_mov_b32 {s(41)}, {f2u(-SCALE_LOG2E):#x}")

def xlane(A, op, r, t):
    A(f"v_mov_b32 {v(t)}, {v(r)}")
    A(f"v_permlane16_swap_b32 {v(r)}, {v(t)}")
    A(f"{op} {v(r)}, {v(r)}, {v(t)}")
    A(f"v_mov_b32 {v(t)}, {v(r)}")
    A(f"v_permlane32_swap_b32 {v(r)}, {v(t)}")
    A(f"{op} {v(r)}, {v(r)}, {v(t)}")

def attention(A):
    S00,S01,S11,SM0,SM1 = aS, aS+4, aS+8, aS+12, aS+16
    def q(t,ks): return v(aQ+(t*4+ks)*4,4)
    def kx(t,ks): return v(aKX+(t*4+ks)*4,4)
    def km(ks): return v(aKM+4*ks,4)
    for ks in range(4):
        for (S,Aop,Bop,c0) in ((S00,kx(0,ks),q(0,ks),v(aBI,4)),(S01,kx(0,ks),q(1,ks),"0"),(S11,kx(1,ks),q(1,ks),v(aBI,4)),
                               (SM0,km(ks),q(0,ks),"0"),(SM1,km(ks),q(1,ks),"0")):
            c = c0 if ks == 0 else v(S,4)
            A(f"v_mfma_f32_16x16x32_bf16 {v(S,4)}, {Aop}, {Bop}, {c}")
    m0_,m1_,t0,t1 = aM, aM+1, aM+2, aM+3
    l0,l1 = aM+4, aM+5
    A(f"v_max3_f32 {v(m0_)}, {v(S00)}, {v(S00+1)}, {v(S00+2)}")
    A(f"v_max3_f32 {v(m0_)}, {v(m0_)}, {v(S00+3)}, {v(SM0)}")
    A(f"v_max_f32 {v(m0_)}, {v(m0_)}, {v(SM0+1)}")
    A(f"v_max3_f32 {v(m1_)}, {v(S01)}, {v(S01+1)}, {v(S01+2)}")
    A(f"v_max3_f32 {v(m1_)}, {v(m1_)}, {v(S01+3)}, {v(S11)}")
    A(f"v_max3_f32 {v(m1_)}, {v(m1_)}, {v(S11+1)}, {v(S11+2)}")
    A(f"v_max3_f32 {v(m1_)}, {v(m1_)}, {v(S11+3)}, {v(SM1)}")
    A(f"v_max_f32 {v(m1_)}, {v(m1_)}, {v(SM1+1)}")
    xlane(A, "v_max_f32", m0_, t0)
    xlane(A, "v_max_f32", m1_, t1)
    A(f"v_mul_f32 {v(m0_)}, {s(41)}, {v(m0_)}")
    A(f"v_mul_f32 {v(m1_)}, {s(41)}, {v(m1_)}")
    for (S,n,m) in ((S00,4,m0_),(SM0,2,m0_),(S01,4,m1_),(S11,4,m1_),(SM1,2,m1_)):
        for r in range(n):
            A(f"v_fma_f32 {v(S+r)}, {v(S+r)}, {s(40)}, {v(m)}")
            A(f"v_exp_f32 {v(S+r)}, {v(S+r)}")
    A(f"v_cvt_pk_bf16_f32 {v(aP)}, {v(S00)}, {v(S00+1)}")
    A(f"v_cvt_pk_bf16_f32 {v(aP+1)}, {v(S00+2)}, {v(S00+3)}")
    A(f"v_cvt_pk_bf16_f32 {v(aP+4)}, {v(S01)}, {v(S01+1)}")
    A(f"v_cvt_pk_bf16_f32 {v(aP+5)}, {v(S01+2)}, {v(S01+3)}")
    A(f"v_cvt_pk_bf16_f32 {v(aP+6)}, {v(S11)}, {v(S11+1)}")
    A(f"v_cvt_pk_bf16_f32 {v(aP+7)}, {v(S11+2)}, {v(S11+3)}")
    A(f"v_cvt_pk_bf16_f32 {v(aP+8)}, {v(SM0)}, {v(SM0+1)}")
    A(f"v_cvt_pk_bf16_f32 {v(aP+10)}, {v(SM1)}, {v(SM1+1)}")
    A(f"v_add_f32 {v(l0)}, {v(S00)}, {v(S00+1)}")
    for r in (S00+2,S00+3,SM0,SM0+1): A(f"v_add_f32 {v(l0)}, {v(l0)}, {v(r)}")
    A(f"v_add_f32 {v(l1)}, {v(S01)}, {v(S01+1)}")
    for r in (S01+2,S01+3,S11,S11+1,S11+2,S11+3,SM1,SM1+1): A(f"v_add_f32 {v(l1)}, {v(l1)}, {v(r)}")
    xlane(A, "v_add_f32", l0, t0)
    xlane(A, "v_add_f32", l1, t1)
    A(f"v_rcp_f32 {v(l0)}, {v(l0)}")
    A(f"v_rcp_f32 {v(l1)}, {v(l1)}")
    for th in range(2):
        Bx = v(aP+4*th,4); Bm = v(aP+8+2*th,2); l = (l0,l1)[th]
        for tau in range(8):
            vm = v(aVM+2*(tau>>1),2)
            A(f"v_mfma_f32_16x16x32_bf16 {v(aO+4*tau,4)}, {v(aVX+4*tau,4)}, {Bx}, 0")
        for tau in range(8):
            if tau & 1 == 0: a2 = v(aVM+2*(tau>>1),2)
            else: a2 = v(aM+8+2*(tau>>1),2)
            A(f"v_mfma_f32_16x16x16_bf16 {v(aO+4*tau,4)}, {a2}, {Bm}, {v(aO+4*tau,4)}")
        for tau in range(8):
            o = aO+4*tau
            for r in range(4): A(f"v_mul_f32 {v(o+r)}, {v(o+r)}, {v(l)}")
            A(f"v_cvt_pk_bf16_f32 {v(aM+16)}, {v(o)}, {v(o+1)}")
            A(f"v_cvt_pk_bf16_f32 {v(aM+17)}, {v(o+2)}, {v(o+3)}")
            A(f"ds_write_b64 {v(aOW)}, {v(aM+16,2)} offset:{tau*1024 + th*256}")

def attn_fix_vm(A):
    for i in range(4):
        A(f"v_mov_b32 {v(aM+8+2*i)}, {v(aVM+2*i+1)}")
        A(f"v_mov_b32 {v(aM+8+2*i+1)}, {v(aVM+2*i)}")

def gen_attn_body(A, seg_stride, st="", mod=""):
    A(f"s_lshr_b32 {s(sT+6)}, {s(sSL)}, 1")
    A(f"s_and_b32 {s(sT+7)}, {s(sSL)}, 1")
    A(f"s_lshl_b32 {s(sT)}, {s(sT+6)}, 19")
    A(f"s_lshl_b32 {s(sT+1)}, {s(sT+7)}, 9")
    A(f"s_add_u32 {s(sT)}, {s(sT)}, {s(sT+1)}")
    A(f"s_add_u32 {s(sWB)}, {s(68)}, {s(sT)}")
    A(f"s_addc_u32 {s(sWB+1)}, {s(69)}, 0")
    A(f"s_mov_b32 {s(sLDW)}, 1024")
    A(f"s_lshl_b32 {s(39)}, {s(sT+6)}, 2")
    A(f"s_add_u32 {s(39)}, {s(39)}, {s(sWAVE)}")
    A(f"s_lshl_b32 {s(38)}, {s(sT+6)}, 22")
    A(f"s_lshl_b32 {s(sT)}, {s(sT+7)}, 15")
    A(f"s_add_u32 {s(38)}, {s(38)}, {s(sT)}")
    A(f"s_lshl_b32 {s(sT)}, {s(sWAVE)}, 13")
    A(f"s_add_u32 {s(38)}, {s(38)}, {s(sT)}")
    A(f"s_add_u32 {s(38)}, {s(38)}, {WS_PA}")
    load_weights(A, 32, ffn=False, sigma=True)
    setup_a_addr(A, "f")
    A(f"v_add_u32 {v(wDM)}, 4096, {v(wL16)}")
    attn_setup(A)
    if USE_FLAGS:
        A(f"s_lshr_b32 {s(sT)}, {s(39)}, 1")
        A(f"s_lshl_b32 {s(54)}, 0x10001, {s(sT)}")
        A(f"s_lshl_b32 {s(55)}, 1, {s(sT)}")
        A(f"s_mov_b32 {s(56)}, {s(54)}")
        A(f"s_mov_b32 {s(57)}, 0")
        A(f"s_mov_b32 {s(52)}, -1")
    lab = A.label("L_aseg")
    A(f"{lab}:")
    if USE_FLAGS:
        flag_wait(A, sSEG, 0, 54, 55)
        attn_loads(A, mod, 1)
        flag_wait(A, sSEG, 1, 56, 57)
        attn_loads(A, mod, 2)
    else:
        attn_loads(A, mod)
    A(f"s_lshl_b32 {s(sT)}, {s(sSEG)}, 16")
    A(f"s_add_u32 {s(sT)}, {s(sT)}, {s(38)}")
    A(f"s_add_u32 {s(sOP)}, {s(sWS)}, {s(sT)}")
    A(f"s_addc_u32 {s(sOP+1)}, {s(sWS+1)}, 0")
    A("s_waitcnt vmcnt(0)")
    attn_fix_vm(A)
    attention(A)
    A("s_waitcnt lgkmcnt(0)")
    A("s_barrier")
    if USE_FLAGS:
        nf = A.label("L_nf")
        A(f"s_cmp_eq_u32 {s(52)}, -1")
        A(f"s_cbranch_scc1 {nf}")
        flag_set(A, 52, 1, idx_s=sSL, idx_c=FL2_PA)
        A(f"{nf}:")
        A(f"s_mov_b32 {s(52)}, {s(sSEG)}")
    mma_chunk(A, 32, "f", 0, transposed=True)
    A(f"v_xor_b32 {v(wAR)}, 32768, {v(wAR)}")
    A(f"v_xor_b32 {v(aOW)}, 32768, {v(aOW)}")
    epi_part(A, st)
    if USE_FLAGS:
        A("s_waitcnt vmcnt(0)")
        A("s_barrier")
        flag_set(A, 52, 1, idx_s=sSL, idx_c=FL2_PA)
        A(f"s_mov_b32 {s(52)}, -1")
    A(f"s_add_u32 {s(sSEG)}, {s(sSEG)}, {seg_stride}")
    A(f"s_sub_u32 {s(sCNT)}, {s(sCNT)}, 1")
    A(f"s_cmp_lg_u32 {s(sCNT)}, 0")
    A(f"s_cbranch_scc1 {lab}")


def gen_kvm_body(A):
    done = A.label("L_kvmdone"); lv = A.label("L_kvmv")
    A(f"s_cmp_ge_u32 {s(sSL)}, 16")
    A(f"s_cbranch_scc1 {lv}")
    for kind in ("k","v"):
        if kind == "v": A(f"{lv}:")
        ptr = 64 if kind == "k" else 66
        A(f"s_and_b32 {s(sT+6)}, {s(sSL)}, 15")
        A(f"s_lshl_b32 {s(sT)}, {s(sT+6)}, 9")
        A(f"s_add_u32 {s(sWB)}, {s(ptr)}, {s(sT)}")
        A(f"s_addc_u32 {s(sWB+1)}, {s(ptr+1)}, 0")
        A(f"s_mov_b32 {s(sLDW)}, 8192")
        A(f"s_lshr_b32 {s(sT)}, {s(sWAVE)}, 1")
        A(f"s_lshl_b32 {s(sT+1)}, {s(sT+6)}, 1")
        A(f"s_add_u32 {s(sT)}, {s(sT)}, {s(sT+1)}")
        A(f"s_lshl_b32 {s(37)}, {s(sT)}, 12")
        A(f"s_and_b32 {s(sT)}, {s(sWAVE)}, 1")
        A(f"s_lshl_b32 {s(sT)}, {s(sT)}, {11 if kind == 'k' else 10}")
        A(f"s_add_u32 {s(37)}, {s(37)}, {s(sT)}")
        load_weights(A, 32, ffn=False, sigma=(kind == "k"))
        setup_a_addr(A, "x")
        T = wT
        A(f"v_and_b32 {v(T)}, 15, {v(wLANE)}")
        A(f"v_lshrrev_b32 {v(T+1)}, 4, {v(wLANE)}")
        A(f"v_lshrrev_b32 {v(T+2)}, 2, {v(T)}")
        A(f"v_and_b32 {v(T+3)}, 1, {v(T)}")
        A(f"v_lshl_add_u32 {v(T+2)}, {v(T+2)}, 1, {v(T+3)}")
        A(f"v_bfe_u32 {v(T+3)}, {v(T)}, 1, 1")
        A(f"v_lshrrev_b32 {v(T+4)}, 1, {v(T+1)}")
        A(f"v_xor_b32 {v(T+4)}, {v(T+4)}, {v(T+2)}")
        A(f"v_lshlrev_b32 {v(T+4)}, 4, {v(T+4)}")
        A(f"v_lshl_add_u32 {v(T+4)}, {v(T+2)}, 10, {v(T+4)}")
        A(f"v_and_b32 {v(T+5)}, 1, {v(T+1)}")
        A(f"v_lshlrev_b32 {v(T+5)}, 3, {v(T+5)}")
        A(f"v_lshl_add_u32 {v(T+5)}, {v(T+3)}, 2, {v(T+5)}")
        A(f"v_add_u32 {v(T+4)}, {v(T+4)}, {v(T+5)}")
        A(f"s_lshl_b32 {s(sT)}, {s(sWAVE)}, 8")
        A(f"v_add_u32 {v(10)}, {s(sT)}, {v(T+4)}")
        A(f"s_lshl_b32 {s(sT)}, {s(sWAVE)}, 11")
        A(f"v_add_u32 {v(11)}, {s(sT)}, {v(wL16)}")
        if kind == "k":
            A(f"v_and_b32 {v(T)}, 7, {v(wLANE)}")
            A(f"v_lshrrev_b32 {v(T+1)}, 1, {v(T)}")
            A(f"v_and_b32 {v(T+2)}, 1, {v(T)}")
            A(f"v_lshl_add_u32 {v(T+1)}, {v(T+1)}, 2, {v(T+2)}")
            A(f"v_lshrrev_b32 {v(T+2)}, 5, {v(wLANE)}")
            A(f"v_lshl_add_u32 {v(T+1)}, {v(T+2)}, 4, {v(T+1)}")
            A(f"v_lshlrev_b32 {v(T+1)}, 4, {v(T+1)}")
            A(f"v_bfe_u32 {v(T+2)}, {v(wLANE)}, 3, 2")
            A(f"v_lshl_add_u32 {v(wE+20)}, {v(T+2)}, 17, {v(T+1)}")
        else:
            A(f"v_and_b32 {v(T)}, 15, {v(wLANE)}")
            A(f"v_bfe_u32 {v(T+1)}, {v(wLANE)}, 4, 1")
            A(f"v_lshrrev_b32 {v(T+2)}, 5, {v(wLANE)}")
            A(f"v_lshl_add_u32 {v(T+2)}, {v(T+2)}, 5, {v(T)}")
            A(f"v_lshlrev_b32 {v(T+2)}, 3, {v(T+2)}")
            A(f"v_lshl_add_u32 {v(wE+20)}, {v(T+1)}, 2, {v(T+2)}")
            for j in range(1,4): A(f"v_add_u32 {v(wE+20+j)}, {j*131072}, {v(wE+20)}")
        A(f"s_mov_b32 {s(sSEG)}, 0")
        A(f"s_add_u32 {s(sAP)}, {s(sWS)}, {WS_MEMP}")
        A(f"s_addc_u32 {s(sAP+1)}, {s(sWS+1)}, 0")
        lab = A.label("L_kvms")
        A(f"{lab}:")
        for q in range(4):
            pl = A.label("L_kvmp"); ok = A.label("L_kvmok")
            A(f"s_mov_b32 {s(49)}, 0")
            A(f"{pl}:")
            A(f"global_load_dwordx4 {v(32,4)}, {v(11)}, {s(sAP,2)} sc1")
            A(f"global_load_dwordx4 {v(36,4)}, {v(11)}, {s(sAP,2)} offset:1024 sc1")
            A(f"s_add_u32 {s(49)}, {s(49)}, 1")
            A(f"s_cmp_gt_u32 {s(49)}, 0x20000")
            A(f"s_cbranch_scc1 {ok}")
            A("s_waitcnt vmcnt(0)")
            A(f"v_max3_u32 {v(T)}, {v(32)}, {v(33)}, {v(34)}")
            A(f"v_max3_u32 {v(T+1)}, {v(35)}, {v(36)}, {v(37)}")
            A(f"v_max3_u32 {v(T)}, {v(T)}, {v(38)}, {v(39)}")
            A(f"v_max_u32 {v(T)}, {v(T)}, {v(T+1)}")
            A(f"v_cmp_eq_u32 vcc, -1, {v(T)}")
            A(f"s_cbranch_vccz {ok}")
            A("s_sleep 2")
            A(f"s_branch {pl}")
            A(f"{ok}:")
            A("s_waitcnt vmcnt(0)")
            A(f"v_xor_b32 {v(T+3)}, {(q&1)*128}, {v(10)}")
            A(f"v_add_u32 {v(T+3)}, {q*8192}, {v(T+3)}")
            for i in range(2):
                for qq in range(4):
                    A(f"v_xor_b32 {v(T+2)}, {(8*i+2*qq)*16}, {v(T+3)}")
                    for hi4 in range(2):
                        e8 = qq + 4*hi4
                        src = 32 + 4*i + (e8 >> 1)
                        op = "ds_write_b16_d16_hi" if (e8 & 1) else "ds_write_b16"
                        A(f"{op} {v(T+2)}, {v(src)} offset:{2*hi4}")
            A("s_waitcnt lgkmcnt(0)")
            A(f"s_add_u32 {s(sAP)}, {s(sAP)}, 8192")
            A(f"s_addc_u32 {s(sAP+1)}, {s(sAP+1)}, 0")
        A("s_barrier")
        A(f"s_lshl_b32 {s(sT)}, {s(sSEG)}, 17")
        A(f"s_add_u32 {s(sT)}, {s(sT)}, {s(37)}")
        A(f"s_add_u32 {s(sT)}, {s(sT)}, {WS_KM if kind == 'k' else WS_VM}")
        A(f"s_add_u32 {s(sOP)}, {s(sWS)}, {s(sT)}")
        A(f"s_addc_u32 {s(sOP+1)}, {s(sWS+1)}, 0")
        mma_chunk(A, 32, "x", 0, transposed=(kind == "k"))
        for b in range(8): A(f"v_xor_b32 {v(wAR+b)}, 32768, {v(wAR+b)}")
        A(f"v_xor_b32 {v(10)}, 32768, {v(10)}")
        E = wE
        if kind == "k":
            for Tt in range(2):
                for hf in range(2):
                    for d in range(4):
                        r = wAC + 16*Tt + 8*hf + 2*d
                        A(f"v_cvt_pk_bf16_f32 {v(E+8*Tt+4*hf+d)}, {v(r)}, {v(r+1)}")
                    A(f"global_store_dwordx4 {v(E+20)}, {v(E+8*Tt+4*hf,4)}, {s(sOP,2)} offset:{Tt*1024+hf*512} sc1")
        else:
            for Tt in range(2):
                for j in range(4):
                    r = wAC + 16*Tt + 4*j
                    A(f"v_cvt_pk_bf16_f32 {v(E+8*Tt+2*j)}, {v(r)}, {v(r+1)}")
                    A(f"v_cvt_pk_bf16_f32 {v(E+8*Tt+2*j+1)}, {v(r+2)}, {v(r+3)}")
                    A(f"global_store_dword {v(E+20+j)}, {v(E+8*Tt+2*j)}, {s(sOP,2)} offset:{Tt*512} sc1")
                    A(f"global_store_dword {v(E+20+j)}, {v(E+8*Tt+2*j+1)}, {s(sOP,2)} offset:{Tt*512+128} sc1")
        A("s_waitcnt vmcnt(0)")
        A("s_barrier")
        for q in range(4):
            flag_set(A, sSEG, 1, idx_s=sSL)
            A(f"s_add_u32 {s(sSEG)}, {s(sSEG)}, 1")
        A(f"s_cmp_lt_u32 {s(sSEG)}, 64")
        A(f"s_cbranch_scc1 {lab}")
        A(f"s_branch {done}")
    A(f"{done}:")

def gen_attn_kernel(A, name="attn_kernel"):
    A.raw(kstart(name))
    load_ptrs(A)
    A("s_cmp_ge_u32 s2, 256")
    A("s_cbranch_scc1 L_attn_exit")
    A(f"s_lshr_b32 {s(sSL)}, s2, 4")
    A(f"s_and_b32 {s(sSEG)}, s2, 15")
    A(f"s_mov_b32 {s(sCNT)}, 4")
    gen_attn_body(A, 16)
    A("L_attn_exit:")
    A("s_endpgm")

def gen_final_body(A, mod="", wait_pb=None, wait_pa=None):
    T = 12
    A(f"s_lshl_b32 {s(sT)}, {s(sWAVE)}, 6")
    A(f"v_add_u32 {v(T)}, {s(sT)}, {v(wLANE)}")
    A(f"v_lshrrev_b32 {v(T+1)}, 3, {v(T)}")
    A(f"v_and_b32 {v(T+2)}, 7, {v(T)}")
    A(f"v_lshlrev_b32 {v(T+3)}, 7, {v(T+2)}")
    A(f"v_lshl_add_u32 {v(T+4)}, {v(T+1)}, 10, {v(T+3)}")
    A(f"s_lshl_b32 {s(sT)}, {s(sSEG)}, 15")
    A(f"s_add_u32 {s(44)}, {s(60)}, {s(sT)}")
    A(f"s_addc_u32 {s(45)}, {s(61)}, 0")
    for i in range(8):
        A(f"global_load_dwordx4 {v(32+4*i,4)}, {v(T+4)}, {s(44,2)} offset:{16*i}")
        A(f"global_load_dwordx4 {v(64+4*i,4)}, {v(T+3)}, {s(76,2)} offset:{16*i}")
    A(f"s_lshr_b32 {s(sT)}, {s(sSL)}, 1")
    A(f"s_lshl_b32 {s(sT)}, {s(sT)}, 15")
    A(f"s_and_b32 {s(sT+1)}, {s(sSL)}, 1")
    A(f"s_lshl_b32 {s(sT+1)}, {s(sT+1)}, 12")
    A(f"s_add_u32 {s(sT)}, {s(sT)}, {s(sT+1)}")
    A(f"s_lshl_b32 {s(sT+1)}, {s(sWAVE)}, 13")
    A(f"s_add_u32 {s(sT)}, {s(sT)}, {s(sT+1)}")
    A(f"s_lshl_b32 {s(sT+1)}, {s(sSEG)}, 16")
    A(f"s_add_u32 {s(sT+2)}, {s(sT)}, {s(sT+1)}")
    A("s_waitcnt vmcnt(0)")
    A(f"v_mov_b32 {v(T+5)}, 0")
    for i in range(32):
        x = 32+i; g = 64+i
        A(f"v_lshlrev_b32 {v(T+6)}, 16, {v(x)}")
        A(f"v_and_b32 {v(T+7)}, 0xffff0000, {v(x)}")
        A(f"v_lshlrev_b32 {v(T+8)}, 16, {v(g)}")
        A(f"v_and_b32 {v(T+9)}, 0xffff0000, {v(g)}")
        A(f"v_mul_f32 {v(T+6)}, {v(T+6)}, {v(T+8)}")
        A(f"v_mul_f32 {v(T+7)}, {v(T+7)}, {v(T+9)}")
        A(f"v_cvt_pk_bf16_f32 {v(T+6)}, {v(T+6)}, {v(T+7)}")
        A(f"v_lshlrev_b32 {v(T+7)}, 16, {v(T+6)}")
        A(f"v_and_b32 {v(T+6)}, 0xffff0000, {v(T+6)}")
        A(f"v_add_f32 {v(T+5)}, {v(T+5)}, {v(T+7)}")
        A(f"v_add_f32 {v(T+5)}, {v(T+5)}, {v(T+6)}")
    A(f"v_add_f32_dpp {v(T+5)}, {v(T+5)}, {v(T+5)} quad_perm:[1,0,3,2] row_mask:0xf bank_mask:0xf")
    A(f"v_add_f32_dpp {v(T+5)}, {v(T+5)}, {v(T+5)} quad_perm:[2,3,0,1] row_mask:0xf bank_mask:0xf")
    A(f"v_add_f32_dpp {v(T+5)}, {v(T+5)}, {v(T+5)} row_half_mirror row_mask:0xf bank_mask:0xf")
    A(f"v_cvt_pk_bf16_f32 {v(T+5)}, {v(T+5)}, {v(T+5)}")
    A(f"v_lshlrev_b32 {v(T+5)}, 16, {v(T+5)}")
    A(f"v_mul_f32 {v(T+6)}, {f2u(-LOG2E):#x}, {v(T+5)}")
    A(f"v_exp_f32 {v(T+6)}, {v(T+6)}")
    A(f"v_add_f32 {v(T+6)}, 1.0, {v(T+6)}")
    A(f"v_rcp_f32 {v(T+6)}, {v(T+6)}")
    A(f"v_cvt_pk_bf16_f32 {v(T+6)}, {v(T+6)}, {v(T+6)}")
    A(f"v_lshlrev_b32 {v(T+6)}, 16, {v(T+6)}")
    A(f"v_lshlrev_b32 {v(T+7)}, 2, {v(T+1)}")
    A(f"v_add_u32 {v(T+7)}, 131072, {v(T+7)}")
    A(f"ds_write_b32 {v(T+7)}, {v(T+6)}")
    def load_parts(ps):
        for p in ps:
            base = (WS_PA + p*64*65536) if p < 8 else (WS_PB + (p-8)*64*65536)
            A(f"s_add_u32 {s(sT+3)}, {s(sT+2)}, {base}")
            A(f"s_add_u32 {s(44)}, {s(sWS)}, {s(sT+3)}")
            A(f"s_addc_u32 {s(45)}, {s(sWS+1)}, 0")
            for hq in range(4):
                A(f"global_load_dwordx4 {v(32+16*p+4*hq,4)}, {v(wL16)}, {s(44,2)} offset:{hq*1024} {mod}")
    if wait_pb: wait_pb()
    load_parts(range(8,12))
    A("s_waitcnt lgkmcnt(0)")
    A("s_barrier")
    A(f"v_and_b32 {v(T+7)}, 31, {v(wLANE)}")
    A(f"v_lshlrev_b32 {v(T+8)}, 2, {v(T+7)}")
    A(f"v_add_u32 {v(T+8)}, 131072, {v(T+8)}")
    A(f"ds_read_b32 {v(T+6)}, {v(T+8)}")
    if wait_pa: wait_pa()
    load_parts(range(0,8))
    A("s_waitcnt vmcnt(0) lgkmcnt(0)")
    A(f"v_sub_f32 {v(T+9)}, 1.0, {v(T+6)}")
    A(f"v_cvt_pk_bf16_f32 {v(T+9)}, {v(T+9)}, {v(T+9)}")
    A(f"v_lshlrev_b32 {v(T+9)}, 16, {v(T+9)}")
    for p in range(1,8):
        for r in range(0,16,2): A(f"v_pk_add_f32 {v(32+r,2)}, {v(32+r,2)}, {v(32+16*p+r,2)}")
    for p in range(9,12):
        for r in range(0,16,2): A(f"v_pk_add_f32 {v(160+r,2)}, {v(160+r,2)}, {v(32+16*p+r,2)}")
    for r in range(0,16,2):
        A(f"v_cvt_pk_bf16_f32 {v(T+10)}, {v(32+r)}, {v(32+r+1)}")
        A(f"v_cvt_pk_bf16_f32 {v(T+11)}, {v(160+r)}, {v(160+r+1)}")
        unpack2(A, 48, 49, T+10)
        unpack2(A, 50, 51, T+11)
        A(f"v_mul_f32 {v(48)}, {v(48)}, {v(T+6)}"); A(f"v_mul_f32 {v(49)}, {v(49)}, {v(T+6)}")
        A(f"v_mul_f32 {v(50)}, {v(50)}, {v(T+9)}"); A(f"v_mul_f32 {v(51)}, {v(51)}, {v(T+9)}")
        A(f"v_cvt_pk_bf16_f32 {v(T+10)}, {v(48)}, {v(49)}")
        A(f"v_cvt_pk_bf16_f32 {v(T+11)}, {v(50)}, {v(51)}")
        unpack2(A, 48, 49, T+10)
        unpack2(A, 50, 51, T+11)
        A(f"v_pk_add_f32 {v(48,2)}, {v(48,2)}, {v(50,2)}")
        A(f"v_cvt_pk_bf16_f32 {v(56 + r//2)}, {v(48)}, {v(49)}")
    A(f"s_lshr_b32 {s(sT)}, {s(sSL)}, 1")
    A(f"s_lshl_b32 {s(sT)}, {s(sT)}, 9")
    A(f"s_and_b32 {s(sT+1)}, {s(sSL)}, 1")
    A(f"s_lshl_b32 {s(sT+1)}, {s(sT+1)}, 6")
    A(f"s_add_u32 {s(sT)}, {s(sT)}, {s(sT+1)}")
    A(f"s_lshl_b32 {s(sT+1)}, {s(sWAVE)}, 7")
    A(f"s_add_u32 {s(sT)}, {s(sT)}, {s(sT+1)}")
    A(f"s_lshl_b32 {s(sT+1)}, {s(sSEG)}, 15")
    A(f"s_add_u32 {s(sT)}, {s(sT)}, {s(sT+1)}")
    A(f"s_add_u32 {s(44)}, {s(78)}, {s(sT)}")
    A(f"s_addc_u32 {s(45)}, {s(79)}, 0")
    A(f"v_lshrrev_b32 {v(T+8)}, 5, {v(wLANE)}")
    A(f"v_lshlrev_b32 {v(T+8)}, 4, {v(T+8)}")
    A(f"v_lshl_add_u32 {v(T+8)}, {v(T+7)}, 10, {v(T+8)}")
    A(f"global_store_dwordx4 {v(T+8)}, {v(56,4)}, {s(44,2)} {mod}")
    A(f"global_store_dwordx4 {v(T+8)}, {v(60,4)}, {s(44,2)} offset:32 {mod}")

def gen_final_kernel(A, name="final_kernel"):
    A.raw(kstart(name))
    load_ptrs(A)
    A("s_cmp_ge_u32 s2, 256")
    A("s_cbranch_scc1 L_fin_exit")
    A(f"s_lshr_b32 {s(sSEG)}, s2, 2")
    A(f"s_and_b32 {s(sSL)}, s2, 3")
    gen_final_body(A)
    A("L_fin_exit:")
    A("s_endpgm")

if __name__ == "__main__":
    import sys
    PROF = len(sys.argv) > 2
    A = Asm()
    names = ["proj_kernel","down_kernel","attn_kernel","final_kernel"]
    for n in names: A.raw(f"; @launch kernel={n} grid=(256,1,1) block=(256,1,1) lds=163840")
    A.raw('.amdgcn_target "amdgcn-amd-amdhsa--gfx950"')
    gen_proj_kernel(A); gen_down_kernel(A); gen_attn_kernel(A); gen_final_kernel(A)
    for n in names: A.raw(kd(n))
    open(sys.argv[1],"w").write(A.text())
    print("nops", A.nops, "lines", len(A.out))
```

```python
import sys
from asmlib import *
from layout import *
import chain10 as chain, workers as W
from engine import *
NAME = "gated_mix__memory_aug_recurrent_mem_tr__glu_gated_swiglu__prompt_kernel"
HDR = open("gated_mix__memory_aug_recurrent_mem_tr__glu_gated_swiglu__prompt.s.ref").read().split("; Override launch geometry")[0]

def gen(stamp=0, force_slow=False, wstamp=False, sst=0, dbgt=0, fake=0, wmod=0, **kw):
    chain.WMOD = ['sc1','nt',''][wmod]
    chain.STARTUP_STAMPS = bool(sst)
    W.USE_FLAGS = True
    A = Asm()
    A.raw(HDR.rstrip("\n"))
    A.raw("; @launch grid=(256,1,1) block=(256,1,1) lds=163840")
    A.raw('.amdgcn_target "amdgcn-amd-amdhsa--gfx950"')
    A.raw(kstart(NAME))
    A("s_cmp_ge_u32 s2, 256")
    A("s_cbranch_scc1 L_exit")
    if wstamp or dbgt: A("s_memrealtime s[94:95]")
    A(f"s_load_dwordx2 {s(6,2)}, s[0:1], {KA_DBG}")
    A(f"s_load_dwordx2 {s(4,2)}, s[0:1], {KA_WS}")
    A("s_getreg_b32 s12, hwreg(HW_REG_XCC_ID, 0, 4)")
    if fake == 1:
        A("s_and_b32 s13, s2, 15"); A("s_cmp_eq_u32 s13, 0"); A("s_cselect_b32 s12, 3, s12")
    if fake == 2:
        A("s_mov_b32 s12, 9")
    A("v_lshrrev_b32 v1, 6, v0")
    A("v_readfirstlane_b32 s8, v1")
    A("v_and_b32 v31, 63, v0")
    A("s_waitcnt lgkmcnt(0)")
    A("s_cmp_lg_u32 s8, 0")
    A("s_cbranch_scc0 L_w0")
    A("s_getpc_b64 s[16:17]")
    A("L_pc:")
    A("s_sub_u32 s18, s8, 1")
    A("s_mul_i32 s18, s18, 8192")
    A("s_add_u32 s16, s16, s18")
    A("s_addc_u32 s17, s17, 0")
    A("v_lshlrev_b32 v2, 7, v31")
    A("s_mov_b32 s19, (L_code_end - L_pc + 24575) / 24576")
    A("L_pfc:")
    A("global_load_dword a255, v2, s[16:17]")
    A("s_add_u32 s16, s16, 24576")
    A("s_addc_u32 s17, s17, 0")
    A("s_sub_u32 s19, s19, 1")
    A("s_cmp_lg_u32 s19, 0")
    A("s_cbranch_scc1 L_pfc")
    A("s_branch L_role")
    A("L_w0:")
    A("s_lshl_b32 s13, s2, 8")
    A(f"s_add_u32 s13, s13, {WS_FLAGS}")
    A("v_lshlrev_b32 v2, 2, v31")
    A("v_add_u32 v2, s13, v2")
    A("v_mov_b32 v3, 0")
    A("global_store_dword v2, v3, s[4:5] sc1")
    A("s_lshl_b32 s13, s2, 11")
    A(f"s_add_u32 s13, s13, {WS_MEMP}")
    A("v_lshlrev_b32 v2, 4, v31")
    A("v_add_u32 v2, s13, v2")
    for r in range(8,12): A(f"v_mov_b32 v{r}, -1")
    A("global_store_dwordx4 v2, v[8:11], s[4:5] sc1")
    A("global_store_dwordx4 v2, v[8:11], s[4:5] offset:1024 sc1")
    A("s_mov_b64 exec, 1")
    A("v_mov_b32 v3, 1")
    A("s_lshl_b32 s13, s12, 2")
    A(f"s_add_u32 s13, s13, {DBG_XCNT}")
    A("v_mov_b32 v2, s13")
    A("global_atomic_add v4, v2, v3, s[6:7] sc0")
    A("s_waitcnt vmcnt(0)")
    A("v_readfirstlane_b32 s15, v4")
    A(f"v_mov_b32 v2, {DBG_FINIT}")
    A("global_atomic_add v2, v3, s[6:7]")
    A("s_lshl_b32 s14, s12, 5")
    A("s_add_u32 s14, s14, s15")
    A("s_cmp_lt_u32 s15, 32")
    A("s_cbranch_scc0 L_ovf")
    A("s_cmp_lt_u32 s12, 8")
    A("s_cbranch_scc1 L_haverole")
    A("L_ovf:")
    A(f"v_mov_b32 v2, {DBG_FINIT}")
    A("s_mov_b32 s16, 0")
    A("L_ovfw:")
    A("global_load_dword v4, v2, s[6:7] sc1")
    A("s_add_u32 s16, s16, 1")
    A("s_mov_b32 s14, 0xffff")
    A("s_cmp_gt_u32 s16, 0x40000")
    A("s_cbranch_scc1 L_haverole")
    A("s_waitcnt vmcnt(0)")
    A("v_readfirstlane_b32 s17, v4")
    A("s_cmp_lt_u32 s17, 256")
    A("s_cbranch_scc1 L_ovfw")
    A(f"v_mov_b32 v2, {DBG_OVF}")
    A("global_atomic_add v4, v2, v3, s[6:7] sc0")
    A("s_waitcnt vmcnt(0)")
    A("v_readfirstlane_b32 s16, v4")
    A("s_mov_b32 s17, 0")
    A("L_ovfl:")
    A("s_lshl_b32 s13, s17, 2")
    A(f"s_add_u32 s13, s13, {DBG_XCNT}")
    A("v_mov_b32 v2, s13")
    A("global_load_dword v4, v2, s[6:7] sc1")
    A("s_waitcnt vmcnt(0)")
    A("v_readfirstlane_b32 s18, v4")
    A("s_min_u32 s18, s18, 32")
    A("s_sub_u32 s19, 32, s18")
    A("s_cmp_lt_u32 s16, s19")
    A("s_cbranch_scc1 L_ovfg")
    A("s_sub_u32 s16, s16, s19")
    A("s_add_u32 s17, s17, 1")
    A("s_cmp_lt_u32 s17, 8")
    A("s_cbranch_scc1 L_ovfl")
    A("s_mov_b32 s14, 0xffff")
    A("s_branch L_haverole")
    A("L_ovfg:")
    A("s_lshl_b32 s14, s17, 5")
    A("s_add_u32 s14, s14, s18")
    A("s_add_u32 s14, s14, s16")
    A("L_haverole:")
    A("v_mov_b32 v4, s14")
    A(f"v_mov_b32 v5, {L_MISC}")
    A("ds_write_b32 v5, v4")
    A("s_waitcnt lgkmcnt(0)")
    A("s_mov_b64 exec, -1")
    A("L_role:")
    A("s_barrier")
    A(f"v_mov_b32 v5, {L_MISC}")
    A("ds_read_b32 v4, v5")
    A("s_waitcnt lgkmcnt(0)")
    A("v_readfirstlane_b32 s14, v4")
    A("s_barrier")
    A("s_cmp_ge_u32 s14, 256")
    A("s_cbranch_scc1 L_exit")
    A("s_cmp_ge_u32 s14, 32")
    A("s_cbranch_scc1 L_worker")
    A(f"s_mov_b32 {s(chain.sRANK)}, s14")
    A(f"s_load_dwordx2 {s(60,2)}, s[0:1], {KA_MEM0}")
    A(f"s_load_dwordx2 {s(62,2)}, s[0:1], {KA_WQ}")
    A(f"s_load_dwordx2 {s(64,2)}, s[0:1], {KA_WK}")
    A(f"s_load_dwordx2 {s(66,2)}, s[0:1], {KA_WV}")
    A(f"s_load_dwordx2 {s(68,2)}, s[0:1], {KA_WO}")
    A("s_waitcnt lgkmcnt(0)")
    chain.gen_chain(A, 64, 1 if dbgt else stamp, flags=True, force_slow=force_slow, **kw)
    if dbgt:
        A("s_cmp_lg_u32 s9, 0"); A("s_cbranch_scc1 L_dt1"); A("s_cmp_lg_u32 s8, 0"); A("s_cbranch_scc1 L_dt1")
        A("s_memrealtime s[86:87]"); A("s_waitcnt lgkmcnt(0)")
        for k,r in enumerate((80,82,84,86)):
            A(f"s_sub_u32 s12, s{r}, s94"); A("v_mov_b32 v25, s12"); A(f"v_mov_b32 v24, {32+4*k}")
            A("global_store_dword v24, v25, s[6:7]")
        A("s_waitcnt vmcnt(0)")
        A("L_dt1:")
    A("s_endpgm")
    A.hist = []
    A("L_worker:")
    A("s_sub_u32 s58, s14, 32")
    W.load_ptrs(A)
    W.flag_init_ptr(A)
    def wst(k):
        if wstamp:
            A(f"s_memrealtime {s(80+2*k,2)}")
    W.WST = wst if wstamp else None
    wst(0)
    def wait_cw():
        lab = A.label("L_wcw"); ok = A.label("L_wcwok")
        A(f"v_mov_b32 v254, {DBG_CW}")
        A("s_mov_b32 s49, 0")
        A(f"{lab}:")
        A("global_load_dword v255, v254, s[6:7] sc1")
        A("s_add_u32 s49, s49, 1")
        A("s_cmp_gt_u32 s49, 0x20000")
        A(f"s_cbranch_scc1 {ok}")
        A("s_waitcnt vmcnt(0)")
        A("v_cmp_gt_u32 vcc, 32, v255")
        A(f"s_cbranch_vccz {ok}")
        A("s_sleep 8")
        A(f"s_branch {lab}")
        A(f"{ok}:")
    A("s_cmp_lt_u32 s58, 128")
    A("s_cbranch_scc0 L_w1b")
    A(f"s_lshr_b32 {s(W.sSL)}, s58, 2")
    A("s_and_b32 s12, s58, 3")
    A("s_cmp_eq_u32 s12, 0")
    A("s_cbranch_scc0 L_w1p")
    A(f"s_and_b32 s12, {s(W.sSL)}, 15")
    A("s_lshl_b32 s12, s12, 18")
    A("s_lshl_b32 s13, s8, 16")
    A("s_add_u32 s12, s12, s13")
    A(f"s_cmp_lt_u32 {s(W.sSL)}, 16")
    A("s_cselect_b32 s14, s62, s68")
    A("s_cselect_b32 s15, s63, s69")
    A("s_add_u32 s14, s14, s12")
    A("s_addc_u32 s15, s15, 0")
    for i in range(60):
        A(f"global_load_dwordx4 v[{32+4*(i%48)}:{35+4*(i%48)}], v1, s[14:15]")
        A("s_add_u32 s14, s14, 1024")
        A("s_addc_u32 s15, s15, 0")
    for i in range(4):
        A(f"global_load_dwordx4 v[{32+4*i}:{35+4*i}], v1, s[14:15] offset:{i*1024}")
    A("s_waitcnt vmcnt(0)")
    W.wait_finit(A)
    wait_cw()
    W.gen_kvm_body(A)
    A("s_branch L_wend")
    A("L_w1p:")
    A(f"s_sub_u32 {s(sSEG)}, s12, 1")
    A("s_branch L_w1go")
    A("L_w1b:")
    A("s_cmp_lt_u32 s58, 218")
    A("s_cbranch_scc0 L_w2")
    W.wait_finit(A)
    wait_cw()
    A("s_sub_u32 s12, s58, 128")
    A("s_mul_i32 s13, s12, 21846")
    A("s_lshr_b32 s13, s13, 16")
    A(f"s_add_u32 {s(W.sSL)}, s13, 32")
    A("s_mul_i32 s13, s13, 3")
    A(f"s_sub_u32 {s(sSEG)}, s12, s13")
    A("L_w1go:")
    A(f"s_mov_b32 {s(W.sSTR)}, 3")
    A(f"s_cmp_eq_u32 {s(sSEG)}, 0")
    A(f"s_cselect_b32 {s(W.sCNT)}, 22, 21")
    W.gen_proj_body(A, st="sc1")
    A("L_w2:")
    W.wait_finit(A)
    wst(1)
    A("s_barrier")
    A("s_cmp_lt_u32 s58, 128")
    A("s_cbranch_scc1 L_w3")
    A("s_cmp_lt_u32 s58, 160")
    A("s_cbranch_scc0 L_w4")
    A("s_sub_u32 s12, s58, 128")
    A(f"s_lshr_b32 {s(W.sSL)}, s12, 2")
    A(f"s_and_b32 {s(sSEG)}, s12, 3")
    A(f"s_mov_b32 {s(W.sCNT)}, 16")
    W.gen_down_body(A, 4, st="sc1")
    A("s_branch L_wend")
    A("L_w3:")
    A("s_lshr_b32 s12, s58, 2")
    A("s_mul_i32 s12, s12, 3")
    A("s_and_b32 s13, s58, 3")
    A("s_add_u32 s12, s12, s13")
    A("s_sub_u32 s12, s12, 1")
    A(f"s_and_b32 {s(W.sSL)}, s12, 15")
    A(f"s_lshr_b32 {s(sSEG)}, s12, 4")
    A(f"s_cmp_lt_u32 {s(sSEG)}, 4")
    A(f"s_cselect_b32 {s(W.sCNT)}, 11, 10")
    W.gen_attn_body(A, 6, st="sc1", mod="sc1")
    A("s_branch L_wend")
    A("L_w4:")
    A("s_sub_u32 s59, s58, 160")
    A("L_w4loop:")
    A(f"s_lshr_b32 {s(sSEG)}, s59, 2")
    A(f"s_and_b32 {s(W.sSL)}, s59, 3")
    A(f"s_lshr_b32 s12, {s(W.sSL)}, 1")
    A("s_lshl_b32 s55, 0x550000, s12")
    A("s_lshl_b32 s57, 0x5555, s12")
    A("s_mov_b32 s54, 0")
    W.gen_final_body(A, mod="sc1", wait_pb=lambda: W.flag_wait(A, sSEG, 1, 54, 55), wait_pa=lambda: W.flag_wait(A, sSEG, 1, 54, 57))
    A("s_barrier")
    A("s_add_u32 s59, s59, 64")
    A("s_cmp_lt_u32 s59, 256")
    A("s_cbranch_scc1 L_w4loop")
    A("L_wend:")
    if dbgt:
        A("s_memrealtime s[86:87]"); A("s_waitcnt lgkmcnt(0)")
        A("s_sub_u32 s12, s86, s94"); A("v_mov_b32 v25, s12"); A("v_mov_b32 v24, 48")
        A("s_mov_b64 exec, 1"); A("global_atomic_umax v24, v25, s[6:7]"); A("s_mov_b64 exec, -1")
    wst(2)
    if wstamp:
        A("s_waitcnt lgkmcnt(0)")
        A("s_lshl_b32 s12, s58, 5")
        A(f"s_add_u32 s12, s12, {WS_END_CHAIN + 0x8000}")
        A("v_mov_b32 v24, s12")
        for k in range(3):
            A(f"v_mov_b32 v25, {s(80+2*k)}")
            A(f"global_store_dword v24, v25, s[4:5] offset:{4*k}")
        A("v_mov_b32 v25, s94")
        A("global_store_dword v24, v25, s[4:5] offset:12")
        for k in range(3,6):
            A(f"v_mov_b32 v25, {s(80+2*k)}")
            A(f"global_store_dword v24, v25, s[4:5] offset:{4*(k+1)}")
    A("s_waitcnt vmcnt(0)")
    A("L_exit:")
    A("s_endpgm")
    A.raw("L_code_end:")
    A.raw(".fill 6144, 4, 0xbf800000")
    A.raw(kd(NAME))
    return A

if __name__ == "__main__":
    kw = {}
    for x in sys.argv[2:]:
        k,val = x.split("="); kw[k] = int(val)
    A = gen(**kw)
    open(sys.argv[1], "w").write(A.text())
    print("nops", A.nops, "lines", len(A.out), "bytes", len(A.text()))
```

```python
from asmlib import *
from layout import *
import struct
def f2u(x): return struct.unpack("<I", struct.pack("<f", x))[0]
SCALE_LOG2E = (128.0 ** -0.5) * 1.4426950408889634

vL16,vIDX,vW16,vLH,vVXA,vPF,vZP,vZP1,vPP,vPG,vMP,vMQW,vMQR0,vMQR1,vOW,vOR,vWO0,vWO1,vPM,vZ = range(20)
X0=20
S0=24; S1=28; SM=120
MA=32
KXR=64
AQK=96
AV=112
T0=124
WV=128
def WQ(t,b): return a(0+(t*8+b)*8, 8)
def WK(t,b): return a(128+(t*8+b)*8, 8)
def WVf(t,b): return v(WV+(t*8+b)*8, 8)
def ma(b): return v(MA+4*b,4)
sWS=4; sDBG=6; sWAVE=8; sRANK=9; sSTEP=10; sT0=12
sMRD=20
sMEMn=24; sMEMc=26; sPc=28; sPc2=30; sKX=32; sVX=34; sKM=36; sVM=38; sSC=40
sSPIN=42; sPH=43; sW=44; sMASK=46; sPFK=48; sOFF=50
sIN=60
sTS=70

def smf(acc, A_, B_): return f"v_smfmac_f32_16x16x64_bf16 {v(acc,4)}, {A_}, {B_}, {v(vIDX)}"

STARTUP_STAMPS = False
WO_FIRST = True
WMOD = "sc1"
EARLY_FLAGS = [False]
L_SCR = 131072

def raw_regs(mat, qq, w):
    out = []
    for bl in range(2):
        bp = (2*qq + bl - 2*w) % 8
        for t in range(2):
            base = (t*8+bp)*8
            for h in range(2):
                if mat == 0: out.append(a(base+4*h, 4))
                elif mat == 1: out.append(a(128+base+4*h, 4))
                else: out.append(v(WV+base+4*h, 4))
    return out

def gen_startup_issue(A, chunk, w):
    if chunk < 12:
        mat = chunk // 4; qq = chunk % 4
        wreg = [62, 64, 66][mat]
        A(f"s_lshl_b32 {s(sT0)}, {s(sRANK)}, 8")
        A(f"s_add_u32 {s(sW)}, {s(wreg)}, {s(sT0)}")
        A(f"s_addc_u32 {s(sW+1)}, {s(wreg+1)}, 0")
        A(f"s_add_u32 {s(sW)}, {s(sW)}, {qq*128*8192}")
        A(f"s_addc_u32 {s(sW+1)}, {s(sW+1)}, 0")
        rr = raw_regs(mat, qq, w)
        for i in range(8):
            A(f"global_load_dwordx4 {rr[i]}, {v(22 + (i>>2))}, {s(sW,2)} {WMOD}")
            if i < 7:
                A(f"s_add_u32 {s(sW)}, {s(sW)}, {4*8192}")
                A(f"s_addc_u32 {s(sW+1)}, {s(sW+1)}, 0")
    else:
        qq = chunk - 12
        A(f"s_lshl_b32 {s(sT0)}, {s(sRANK)}, 17")
        A(f"s_add_u32 {s(sW)}, {s(68)}, {s(sT0)}")
        A(f"s_addc_u32 {s(sW+1)}, {s(69)}, 0")
        A(f"s_lshl_b32 {s(sT0)}, {s(sWAVE)}, 13")
        A(f"s_add_u32 {s(sT0)}, {s(sT0)}, {qq*32*1024}")
        A(f"s_add_u32 {s(sW)}, {s(sW)}, {s(sT0)}")
        A(f"s_addc_u32 {s(sW+1)}, {s(sW+1)}, 0")
        for i in range(8):
            f = (4*((i>>2)&1) + 2*(i&1))*16
            A(f"v_xor_b32 {v(25)}, {f}, {v(24)}")
            A(f"s_add_u32 m0, {s(sT0+1)}, {qq*32768 + i*1024}")
            A(f"global_load_lds_dwordx4 {v(25)}, {s(sW,2)} {WMOD}")
            if i < 7:
                A(f"s_add_u32 {s(sW)}, {s(sW)}, 1024")
                A(f"s_addc_u32 {s(sW+1)}, {s(sW+1)}, 0")

def gen_startup(A, w, st):
    DEPTH = 7
    A(f"s_lshl_b32 {s(sT0)}, {s(sWAVE)}, 13")
    A(f"s_add_u32 {s(sT0)}, {s(sT0)}, {L_SCR}")
    A(f"v_add_u32 {v(21)}, {s(sT0)}, {v(vL16)}")
    A(f"v_add_u32 {v(26)}, {L_SCR}, {v(26)}")
    A(f"v_add_u32 {v(27)}, {L_SCR}, {v(27)}")
    order = [12,13,14,15] + list(range(12)) if WO_FIRST else list(range(16))
    for i in range(DEPTH): gen_startup_issue(A, order[i], w)
    A(f"v_mov_b32 {v(99)}, {DBG_FINIT}")
    A(f"global_load_dword {v(99)}, {v(99)}, {s(sDBG,2)} sc1")
    for i in range(16):
        c = order[i]
        left = min(DEPTH-1, 15 - i)
        extra = (1 if i < 7 else 0) + ((4 if EARLY_FLAGS[0] else 1) if i >= 14 else 0)
        A(f"s_waitcnt vmcnt({8*left + extra})")
        if STARTUP_STAMPS and i % 2 == 1: A(f"s_memrealtime {s(76+i-1,2)}")
        if i == 0 and w == 0:
            A(f"v_lshl_or_b32 {v(96)}, {v(97)}, 16, {v(96)}")
            A(f"global_store_dword {v(98)}, {v(96)}, {s(sMEMc,2)} {st}")
        if c < 12:
            mat = c // 4; qq = c % 4
            rr = raw_regs(mat, qq, w)
            for k in range(8):
                A(f"ds_write_b128 {v(21)}, {rr[k]} offset:{k*1024}")
            A("s_waitcnt lgkmcnt(0)")
            A("s_barrier")
            for bl in range(2):
                bp = (2*qq + bl - 2*w) % 8
                for t in range(2):
                    for x in range(4):
                        off = (64*bl + 32*(x&1) + 8*(x>>1))*256
                        if mat == 0: dst = a(0+(t*8+bp)*8 + 2*x, 2)
                        elif mat == 1: dst = a(128+(t*8+bp)*8 + 2*x, 2)
                        else: dst = v(WV+(t*8+bp)*8 + 2*x, 2)
                        A(f"ds_read_b64_tr_b16 {dst}, {v(26+t)} offset:{off}")
            if i + DEPTH < 16: gen_startup_issue(A, order[i + DEPTH], w)
            A("s_waitcnt lgkmcnt(0)")
            A("s_barrier")
        else:
            slot = c - 12
            A("s_barrier")
            A(f"v_add_u32 {v(29)}, {slot*32768}, {v(28)}")
            for j in range(8):
                A(f"v_xor_b32 {v(30)}, {2*j*16}, {v(29)}")
                for xl in range(2):
                    A(f"ds_read_b64_tr_b16 {v(32+4*j+2*xl,2)}, {v(30)} offset:{2*xl*1024}")
            if i + DEPTH < 16: gen_startup_issue(A, order[i + DEPTH], w)
            A("s_waitcnt lgkmcnt(0)")
            A("s_barrier")
            for j in range(8):
                base = slot*32768 + j*1024
                if base < 65536: A(f"ds_write_b128 {v(vWO0)}, {v(32+4*j,4)} offset:{base}")
                else: A(f"ds_write_b128 {v(vWO1)}, {v(32+4*j,4)} offset:{base-65536}")
        if i == 13:
            A(f"v_lshrrev_b32 {v(103)}, 2, {v(vL16)}")
            A(f"v_and_b32 {v(104)}, 0x1c, {v(103)}")
            A(f"global_load_dword {v(100)}, {v(104)}, {s(sDBG,2)} sc1")
            if EARLY_FLAGS[0]:
                A(f"global_load_dword {v(101)}, {v(103)}, {s(sFL1,2)} sc1")
                A(f"global_load_dword {v(102)}, {v(103)}, {s(sFL1,2)} offset:1024 sc1")
                A(f"global_load_dword {v(vPF)}, {v(103)}, {s(sFL1,2)} offset:2048 sc1")
        if i == 7 and w == 0:
            A(f"v_mov_b32 {v(96)}, 4")
            A(f"v_mov_b32 {v(97)}, 1")
            A("s_mov_b64 exec, 1")
            A(f"global_atomic_add {v(96)}, {v(97)}, {s(sDBG,2)}")
            A("s_mov_b64 exec, -1")
    A("s_waitcnt lgkmcnt(0)")
    A("s_barrier")

sKX2=20; sRLO=22; sRL2=23; sFMK2=11
def gen_persistent(A, lane):
    A(f"v_lshlrev_b32 {v(vL16)}, 4, {v(lane)}")
    A(f"v_and_b32 {v(20)}, 15, {v(lane)}")
    A(f"v_lshrrev_b32 {v(21)}, 4, {v(lane)}")
    A(f"v_bfe_u32 {v(22)}, {v(20)}, 1, 1")
    A(f"v_mov_b32 {v(vIDX)}, 0x44444444")
    A(f"v_mov_b32 {v(23)}, 0xeeeeeeee")
    A(f"v_cmp_eq_u32 vcc, 1, {v(22)}")
    A(f"v_cndmask_b32 {v(vIDX)}, {v(vIDX)}, {v(23)}, vcc")
    A(f"s_lshl_b32 {s(sT0)}, {s(sWAVE)}, 11")
    A(f"v_add_u32 {v(vW16)}, {s(sT0)}, {v(vL16)}")
    A(f"v_add_u32 {v(vLH)}, {L_MEMB}, {v(vL16)}")
    A(f"v_add_u32 {v(vVXA)}, {L_VXB}, {v(vW16)}")
    A(f"v_add_u32 {v(vLH)}, {L_MEMB}, {v(vL16)}")
    for p in (1,2,3):
        A(f"s_add_u32 {s(sT0)}, {s(sWAVE)}, {p}")
        A(f"s_and_b32 {s(sT0)}, {s(sT0)}, 3")
        A(f"s_lshl_b32 {s(sOFF+p)}, {s(sT0)}, 11")
    A(f"s_lshl_b32 {s(sOFF)}, {s(sWAVE)}, 11")
    A(f"v_mov_b32 {v(vZP)}, 0")
    A(f"v_mov_b32 {v(vZP1)}, 0")
    A(f"v_mov_b32 {v(vPF)}, 0")
    A(f"v_lshrrev_b32 {v(24)}, 2, {v(20)}")
    A(f"s_lshl_b32 {s(sT0)}, {s(sWAVE)}, 3")
    A(f"v_add_u32 {v(24)}, {s(sT0)}, {v(24)}")
    A(f"v_lshlrev_b32 {v(24)}, 13, {v(24)}")
    A(f"v_lshrrev_b32 {v(25)}, 1, {v(21)}")
    A(f"v_lshl_add_u32 {v(24)}, {v(25)}, 12, {v(24)}")
    A(f"v_and_b32 {v(25)}, 1, {v(21)}")
    A(f"v_and_b32 {v(26)}, 3, {v(20)}")
    A(f"v_lshl_add_u32 {v(25)}, {v(25)}, 2, {v(26)}")
    A(f"v_lshl_add_u32 {v(24)}, {v(25)}, 4, {v(24)}")
    A(f"s_lshl_b32 {s(sT0)}, {s(sRANK)}, 7")
    A(f"v_add_u32 {v(vPP)}, {s(sT0)}, {v(24)}")
    A(f"s_lshl_b32 {s(sT0)}, {s(sRANK)}, 13")
    A(f"s_lshl_b32 {s(sT0+1)}, {s(sWAVE)}, 12")
    A(f"s_add_u32 {s(sT0)}, {s(sT0)}, {s(sT0+1)}")
    A(f"v_add_u32 {v(vPG)}, {s(sT0)}, {v(vL16)}")
    A(f"v_bfe_u32 {v(24)}, {v(20)}, 2, 1")
    A(f"s_lshl_b32 {s(sT0)}, {s(sWAVE)}, 1")
    A(f"v_add_u32 {v(24)}, {s(sT0)}, {v(24)}")
    A(f"v_lshlrev_b32 {v(24)}, 2, {v(24)}")
    A(f"v_bfe_u32 {v(25)}, {v(20)}, 1, 1")
    A(f"v_lshl_add_u32 {v(24)}, {v(25)}, 1, {v(24)}")
    A(f"v_lshrrev_b32 {v(25)}, 1, {v(21)}")
    A(f"v_add_u32 {v(24)}, {v(24)}, {v(25)}")
    A(f"v_lshlrev_b32 {v(24)}, 4, {v(24)}")
    A(f"v_and_b32 {v(25)}, 1, {v(20)}")
    A(f"v_and_b32 {v(26)}, 1, {v(21)}")
    A(f"v_lshl_add_u32 {v(25)}, {v(25)}, 1, {v(26)}")
    A(f"v_lshl_add_u32 {v(24)}, {v(25)}, 2, {v(24)}")
    A(f"s_lshl_b32 {s(sT0)}, {s(sRANK)}, 8")
    A(f"v_add_u32 {v(vMP)}, {s(sT0)}, {v(24)}")
    A(f"v_lshlrev_b32 {v(24)}, 1, {v(20)}")
    A(f"v_lshrrev_b32 {v(25)}, 1, {v(21)}")
    A(f"v_lshlrev_b32 {v(25)}, 3, {v(25)}")
    A(f"v_xor_b32 {v(24)}, {v(24)}, {v(25)}")
    A(f"v_lshl_add_u32 {v(24)}, {v(21)}, 5, {v(24)}")
    A(f"v_lshlrev_b32 {v(24)}, 2, {v(24)}")
    A(f"s_lshl_b32 {s(sT0)}, {s(sWAVE)}, 10")
    A(f"s_add_u32 {s(sT0)}, {s(sT0)}, {L_MQK}")
    A(f"v_add_u32 {v(vMQW)}, {s(sT0)}, {v(24)}")
    A(f"v_bfe_u32 {v(24)}, {v(lane)}, 2, 2")
    A(f"v_and_b32 {v(25)}, 3, {v(lane)}")
    A(f"v_lshlrev_b32 {v(24)}, 1, {v(24)}")
    A(f"v_and_b32 {v(26)}, 1, {v(21)}")
    A(f"v_lshl_add_u32 {v(24)}, {v(26)}, 4, {v(24)}")
    A(f"v_lshrrev_b32 {v(26)}, 1, {v(25)}")
    A(f"v_lshlrev_b32 {v(26)}, 3, {v(26)}")
    A(f"v_xor_b32 {v(24)}, {v(24)}, {v(26)}")
    A(f"v_lshl_add_u32 {v(24)}, {v(25)}, 5, {v(24)}")
    A(f"v_lshrrev_b32 {v(26)}, 1, {v(21)}")
    A(f"v_lshl_add_u32 {v(24)}, {v(26)}, 7, {v(24)}")
    A(f"v_lshlrev_b32 {v(24)}, 2, {v(24)}")
    A(f"v_add_u32 {v(vMQR0)}, {L_MQK}, {v(24)}")
    A(f"v_xor_b32 {v(vMQR1)}, 32, {v(vMQR0)}")
    A(f"v_lshrrev_b32 {v(24)}, 2, {v(20)}")
    A(f"v_and_b32 {v(25)}, 1, {v(20)}")
    A(f"v_lshl_add_u32 {v(24)}, {v(24)}, 1, {v(25)}")
    A(f"v_mul_u32_u24 {v(24)}, 272, {v(24)}")
    A(f"v_lshl_add_u32 {v(24)}, {v(21)}, 3, {v(24)}")
    A(f"s_lshl_b32 {s(sT0)}, {s(sWAVE)}, 6")
    A(f"s_add_u32 {s(sT0)}, {s(sT0)}, {L_OB}")
    A(f"v_add_u32 {v(24)}, {s(sT0)}, {v(24)}")
    A(f"v_lshlrev_b32 {v(25)}, 3, {v(lane)}")
    A(f"v_add_u32 {v(25)}, {L_MQK}, {v(25)}")
    A(f"v_and_b32 {v(26)}, 2, {v(20)}")
    A(f"v_cmp_eq_u32 vcc, 2, {v(26)}")
    A(f"v_cndmask_b32 {v(vOW)}, {v(25)}, {v(24)}, vcc")
    A(f"v_lshrrev_b32 {v(24)}, 2, {v(20)}")
    A(f"v_and_b32 {v(25)}, 1, {v(20)}")
    A(f"v_lshl_add_u32 {v(24)}, {v(24)}, 1, {v(25)}")
    A(f"v_mul_u32_u24 {v(24)}, 272, {v(24)}")
    A(f"v_lshl_add_u32 {v(24)}, {v(21)}, 5, {v(24)}")
    A(f"v_bfe_u32 {v(25)}, {v(20)}, 1, 1")
    A(f"v_lshl_add_u32 {v(24)}, {v(25)}, 4, {v(24)}")
    A(f"v_add_u32 {v(vOR)}, {L_OB}, {v(24)}")
    A(f"s_lshl_b32 {s(sT0)}, {s(sWAVE)}, 13")
    A(f"v_add_u32 {v(vWO0)}, {s(sT0)}, {v(vL16)}")
    A(f"v_add_u32 {v(vWO1)}, 65536, {v(vWO0)}")
    A(f"v_mov_b32 {v(vZ)}, 0")
    A(f"v_mov_b32 {v(vPM)}, 0")
    A(f"s_lshl_b32 {s(sRL2)}, {s(sRANK)}, 8")
    A(f"s_add_u32 {s(sRLO)}, {s(sRL2)}, {L_MEMB}")
    A(f"s_mov_b32 {s(sMASK)}, 0")
    A(f"s_mov_b32 {s(sMASK+1)}, -1")
    A(f"s_mov_b32 {s(sSC)}, {f2u(SCALE_LOG2E):#x}")
    A(f"s_mov_b32 {s(sSC+1)}, {f2u(-SCALE_LOG2E):#x}")

def gen_init_comm(A, lane, st):
    A(f"s_add_u32 {s(sMEMc)}, {s(sWS)}, {WS_MEM}")
    A(f"s_addc_u32 {s(sMEMc+1)}, {s(sWS+1)}, 0")
    A(f"s_add_u32 {s(sPc)}, {s(sWS)}, {WS_P}")
    A(f"s_addc_u32 {s(sPc+1)}, {s(sWS+1)}, 0")
    A(f"s_add_u32 {s(sPc2)}, {s(sPc)}, 32768")
    A(f"s_addc_u32 {s(sPc2+1)}, {s(sPc+1)}, 0")
    for r in range(4): A(f"v_mov_b32 {v(32+r)}, -1")
    A(f"s_lshl_b32 {s(sT0)}, {s(sRANK)}, 13")
    A(f"v_add_u32 {v(24)}, {s(sT0)}, {v(vW16)}")
    A(f"global_store_dwordx4 {v(24)}, {v(32,4)}, {s(sPc,2)} {st}")
    A(f"global_store_dwordx4 {v(24)}, {v(32,4)}, {s(sPc,2)} offset:1024 {st}")
    for r in (96,97,98): A(f"v_mov_b32 {v(r)}, 0")
    skip = A.label("L_nomem0")
    A(f"s_cmp_lg_u32 {s(sWAVE)}, 0")
    A(f"s_cbranch_scc1 {skip}")
    A(f"v_lshrrev_b32 {v(24)}, 2, {v(lane)}")
    A(f"v_and_b32 {v(25)}, 3, {v(lane)}")
    A(f"v_lshrrev_b32 {v(26)}, 2, {v(24)}")
    A(f"v_and_b32 {v(27)}, 1, {v(24)}")
    A(f"v_lshl_add_u32 {v(26)}, {v(26)}, 1, {v(27)}")
    A(f"v_bfe_u32 {v(27)}, {v(24)}, 1, 1")
    A(f"v_lshlrev_b32 {v(27)}, 3, {v(27)}")
    A(f"v_lshl_add_u32 {v(27)}, {v(25)}, 1, {v(27)}")
    A(f"s_lshr_b32 {s(sT0)}, {s(sRANK)}, 2")
    A(f"s_lshl_b32 {s(sT0)}, {s(sT0)}, 6")
    A(f"s_and_b32 {s(sT0+1)}, {s(sRANK)}, 3")
    A(f"s_lshl_b32 {s(sT0+1)}, {s(sT0+1)}, 2")
    A(f"s_add_u32 {s(sT0)}, {s(sT0)}, {s(sT0+1)}")
    A(f"v_and_b32 {v(28)}, 3, {v(27)}")
    A(f"v_lshlrev_b32 {v(28)}, 4, {v(28)}")
    A(f"v_lshrrev_b32 {v(29)}, 2, {v(27)}")
    A(f"v_add_u32 {v(28)}, {v(28)}, {v(29)}")
    A(f"v_add_u32 {v(28)}, {s(sT0)}, {v(28)}")
    A(f"v_lshl_add_u32 {v(28)}, {v(26)}, 9, {v(28)}")
    A(f"v_lshlrev_b32 {v(28)}, 1, {v(28)}")
    A(f"global_load_ushort {v(96)}, {v(28)}, {s(60,2)}")
    A(f"global_load_ushort {v(97)}, {v(28)}, {s(60,2)} offset:32")
    A(f"v_lshlrev_b32 {v(98)}, 2, {v(lane)}")
    A(f"s_lshl_b32 {s(sT0)}, {s(sRANK)}, 8")
    A(f"v_add_u32 {v(98)}, {s(sT0)}, {v(98)}")
    A(f"v_add_u32 {v(24)}, 8192, {v(98)}")
    A(f"global_store_dword {v(24)}, {v(32)}, {s(sMEMc,2)} {st}")
    A(f"s_mov_b64 exec, 1")
    A(f"s_getreg_b32 {s(sT0)}, hwreg(HW_REG_XCC_ID, 0, 4)")
    A(f"s_lshl_b32 {s(sT0)}, 1, {s(sT0)}")
    A(f"v_mov_b32 {v(24)}, {DBG_XMASK}")
    A(f"v_mov_b32 {v(25)}, {s(sT0)}")
    A(f"global_atomic_or {v(24)}, {v(25)}, {s(sDBG,2)}")
    A(f"s_mov_b64 exec, -1")
    A(f"{skip}:")

def gen_weights(A, lane, st):
    A(f"v_and_b32 {v(20)}, 15, {v(lane)}")
    A(f"v_lshrrev_b32 {v(21)}, 4, {v(lane)}")
    A(f"v_lshlrev_b32 {v(24)}, 1, {v(21)}")
    A(f"v_xor_b32 {v(24)}, {v(24)}, {v(20)}")
    A(f"v_lshlrev_b32 {v(24)}, 4, {v(24)}")
    A(f"s_lshl_b32 {s(sT0)}, {s(sWAVE)}, 5")
    A(f"v_add_u32 {v(25)}, {s(sT0)}, {v(21)}")
    A(f"v_lshlrev_b32 {v(25)}, 13, {v(25)}")
    A(f"v_mov_b32 {v(30)}, {v(21)}")
    A(f"v_add_u32 {v(22)}, {v(25)}, {v(24)}")
    A(f"v_xor_b32 {v(23)}, 128, {v(22)}")
    A(f"s_and_b32 {s(sT0)}, {s(sWAVE)}, 1")
    A(f"s_lshl_b32 {s(sT0)}, {s(sT0)}, 7")
    A(f"v_xor_b32 {v(24)}, {s(sT0)}, {v(vL16)}")
    A(f"v_bfe_u32 {v(32)}, {v(lane)}, 2, 2")
    A(f"v_and_b32 {v(33)}, 3, {v(lane)}")
    A(f"v_and_b32 {v(34)}, 1, {v(32)}")
    A(f"v_lshrrev_b32 {v(35)}, 1, {v(32)}")
    A(f"v_and_b32 {v(36)}, 1, {v(30)}")
    A(f"v_lshrrev_b32 {v(37)}, 1, {v(30)}")
    A(f"v_lshlrev_b32 {v(38)}, 4, {v(34)}")
    A(f"v_lshl_add_u32 {v(38)}, {v(35)}, 1, {v(38)}")
    A(f"v_lshl_add_u32 {v(38)}, {v(37)}, 2, {v(38)}")
    A(f"v_add_u32 {v(38)}, {v(38)}, {v(36)}")
    A(f"v_lshlrev_b32 {v(39)}, 2, {v(34)}")
    A(f"v_lshl_add_u32 {v(39)}, {v(35)}, 1, {v(39)}")
    A(f"v_add_u32 {v(39)}, {v(39)}, {v(36)}")
    A(f"v_lshlrev_b32 {v(39)}, 1, {v(39)}")
    A(f"v_lshrrev_b32 {v(40)}, 1, {v(33)}")
    A(f"s_lshl_b32 {s(sT0)}, {s(sWAVE)}, 2")
    A(f"v_add_u32 {v(40)}, {s(sT0)}, {v(40)}")
    A(f"v_xor_b32 {v(40)}, {v(40)}, {v(39)}")
    A(f"v_lshlrev_b32 {v(40)}, 4, {v(40)}")
    A(f"v_lshl_add_u32 {v(40)}, {v(38)}, 8, {v(40)}")
    A(f"v_and_b32 {v(41)}, 1, {v(33)}")
    A(f"v_lshl_add_u32 {v(26)}, {v(41)}, 3, {v(40)}")
    A(f"v_xor_b32 {v(27)}, 32, {v(26)}")
    A(f"v_lshlrev_b32 {v(38)}, 4, {v(37)}")
    A(f"v_lshl_add_u32 {v(38)}, {v(35)}, 3, {v(38)}")
    A(f"v_lshl_add_u32 {v(38)}, {v(36)}, 2, {v(38)}")
    A(f"v_add_u32 {v(38)}, {v(38)}, {v(34)}")
    A(f"v_lshlrev_b32 {v(39)}, 3, {v(35)}")
    A(f"v_lshl_add_u32 {v(39)}, {v(36)}, 2, {v(39)}")
    A(f"v_lshl_add_u32 {v(39)}, {v(34)}, 1, {v(39)}")
    A(f"v_lshrrev_b32 {v(40)}, 1, {v(33)}")
    A(f"s_lshl_b32 {s(sT0)}, {s(sWAVE)}, 4")
    A(f"v_add_u32 {v(40)}, {s(sT0)}, {v(40)}")
    A(f"v_xor_b32 {v(40)}, {v(40)}, {v(39)}")
    A(f"v_lshlrev_b32 {v(40)}, 4, {v(40)}")
    A(f"v_lshl_add_u32 {v(40)}, {v(38)}, 10, {v(40)}")
    A(f"v_lshl_add_u32 {v(28)}, {v(41)}, 3, {v(40)}")
    A(f"s_lshl_b32 {s(sT0+1)}, {s(sWAVE)}, 13")
    done = A.label("L_wdone")
    labs = [A.label("L_wv") for _ in range(4)]
    for w in range(1,4):
        A(f"s_cmp_eq_u32 {s(sWAVE)}, {w}")
        A(f"s_cbranch_scc1 {labs[w]}")
    for w in range(4):
        A(f"{labs[w]}:")
        gen_startup(A, w, st)
        A(f"s_branch {done}")
    A(f"{done}:")

def delay(A, n):
    while n > 0:
        k = min(n, 16); A(f"s_nop {k-1}"); n -= k

sFL1=58; sFL2=54; sFMASK=56; sMODE=57

def chain_flag_wait_blocking(A, ptr_s):
    lab = A.label("L_cfw"); ok = A.label("L_cfwok")
    A(f"v_lshrrev_b32 {v(24)}, 2, {v(vL16)}")
    A(f"{lab}:")
    A(f"global_load_dword {v(25)}, {v(24)}, {s(ptr_s,2)} sc1")
    A(f"s_add_u32 {s(sSPIN)}, {s(sSPIN)}, 1")
    A(f"s_cmp_gt_u32 {s(sSPIN)}, 0x40000")
    A(f"s_cbranch_scc1 L_chain_abort")
    A("s_waitcnt vmcnt(0)")
    A(f"v_cmp_ne_u32 vcc, 0, {v(25)}")
    A(f"s_and_b32 {s(sT0)}, vcc_lo, {s(sFMASK)}")
    A(f"s_cmp_eq_u32 {s(sT0)}, {s(sFMASK)}")
    A(f"s_cbranch_scc1 {ok}")
    A("s_sleep 2")
    A(f"s_branch {lab}")
    A(f"{ok}:")

def gen_chain(A, nsteps=64, stamp=0, smode="", D1=10, D2=10, flags=False, force_slow=False, X=0, VA=4, DS=25, DP=35, D3=120, B0=1):
    st = "sc1" if flags else smode
    lane = 31
    if stamp == 1: A(f"s_memrealtime {s(80,2)}")
    gen_persistent(A, lane)
    gen_init_comm(A, lane, st)
    EARLY_FLAGS[0] = flags
    A(f"s_add_u32 {s(sFL1)}, {s(sWS)}, {WS_FLAGS}")
    A(f"s_addc_u32 {s(sFL1+1)}, {s(sWS+1)}, 0")
    gen_weights(A, lane, st)
    if stamp == 1: A(f"s_memrealtime {s(82,2)}")
    A(f"s_lshl_b32 {s(sT0)}, {s(sRANK)}, 13")
    A(f"s_add_u32 {s(sKX)}, {s(sWS)}, {s(sT0)}")
    A(f"s_addc_u32 {s(sKX+1)}, {s(sWS+1)}, 0")
    A(f"s_add_u32 {s(sVX)}, {s(sKX)}, {WS_VX}")
    A(f"s_addc_u32 {s(sVX+1)}, {s(sKX+1)}, 0")
    A(f"s_and_b32 {s(sT0)}, {s(sWAVE)}, 1")
    A(f"s_lshl_b32 {s(sT0)}, {s(sT0)}, 24")
    A(f"s_add_u32 {s(sPFK)}, {s(sKX)}, {s(sT0)}")
    A(f"s_addc_u32 {s(sPFK+1)}, {s(sKX+1)}, 0")
    A(f"s_add_u32 {s(sPFK)}, {s(sPFK)}, {32*8192}")
    A(f"s_addc_u32 {s(sPFK+1)}, {s(sPFK+1)}, 0")
    A(f"s_add_u32 {s(sKM)}, {s(sWS)}, {WS_MEMP}")
    A(f"s_addc_u32 {s(sKM+1)}, {s(sWS+1)}, 0")
    def kv_dma():
        return [f"s_add_u32 m0, {s(sOFF)}, {L_KXB}",
                f"global_load_lds_dwordx4 {v(vW16)}, {s(sKX,2)} sc1",
                f"global_load_lds_dwordx4 {v(vW16)}, {s(sKX,2)} offset:1024 sc1",
                f"s_add_u32 m0, {s(sOFF)}, {L_VXB}",
                f"global_load_lds_dwordx4 {v(vW16)}, {s(sVX,2)} sc1",
                f"global_load_lds_dwordx4 {v(vW16)}, {s(sVX,2)} offset:1024 sc1"]
    def kv_adv():
        A(f"s_add_u32 {s(sKX)}, {s(sKX)}, {32*8192}")
        A(f"s_addc_u32 {s(sKX+1)}, {s(sKX+1)}, 0")
        A(f"s_add_u32 {s(sVX)}, {s(sVX)}, {32*8192}")
        A(f"s_addc_u32 {s(sVX+1)}, {s(sVX+1)}, 0")
    A(f"s_mov_b32 {s(sSPIN)}, 0")
    A(f"s_mov_b32 {s(sFMK2)}, 0")
    if not flags:
        A(f"s_mov_b32 {s(sFMASK)}, 0")
        A(f"s_add_u32 {s(sPFK)}, {s(sPFK)}, {32*8192}")
        A(f"s_addc_u32 {s(sPFK+1)}, {s(sPFK+1)}, 0")
    if flags:
        A(f"s_lshr_b32 {s(sT0)}, {s(sRANK)}, 1")
        A(f"s_lshl_b32 {s(sFMASK)}, 0x10001, {s(sT0)}")
        lfi = A.label("L_cfi"); lfo = A.label("L_cfo")
        A(f"v_cmp_gt_u32 vcc, 256, {v(99)}")
        A(f"s_cbranch_vccz {lfo}")
        A("s_waitcnt vmcnt(0)")
        A(f"v_mov_b32 {v(101)}, 0")
        A(f"v_mov_b32 {v(24)}, {DBG_FINIT}")
        A(f"{lfi}:")
        A(f"global_load_dword {v(25)}, {v(24)}, {s(sDBG,2)} sc1")
        A(f"s_add_u32 {s(sSPIN)}, {s(sSPIN)}, 1")
        A(f"s_cmp_gt_u32 {s(sSPIN)}, 0x40000")
        A(f"s_cbranch_scc1 L_chain_abort")
        A("s_waitcnt vmcnt(0)")
        A(f"v_cmp_gt_u32 vcc, 256, {v(25)}")
        A(f"s_cbranch_vccnz {lfi}")
        A(f"{lfo}:")
    lw = A.label("L_winit"); lchk = A.label("L_wchk")
    A("s_waitcnt vmcnt(0)")
    A(f"s_branch {lchk}")
    A(f"{lw}:")
    A(f"global_load_dword {v(100)}, {v(104)}, {s(sDBG,2)} sc1")
    if flags:
        A(f"global_load_dword {v(101)}, {v(103)}, {s(sFL1,2)} sc1")
        A(f"global_load_dword {v(102)}, {v(103)}, {s(sFL1,2)} offset:1024 sc1")
        A(f"global_load_dword {v(vPF)}, {v(103)}, {s(sFL1,2)} offset:2048 sc1")
    A(f"s_add_u32 {s(sSPIN)}, {s(sSPIN)}, 1")
    A(f"s_cmp_gt_u32 {s(sSPIN)}, 0x40000")
    A(f"s_cbranch_scc1 L_chain_abort")
    A(f"s_waitcnt vmcnt(0)")
    A(f"{lchk}:")
    A(f"v_readlane_b32 {s(sT0)}, {v(100)}, 1")
    A(f"v_readlane_b32 {s(sMODE)}, {v(100)}, 3")
    A(f"s_cmp_lt_u32 {s(sT0)}, 32")
    A(f"s_cbranch_scc1 {lw}")
    if flags:
        A(f"v_cmp_ne_u32 vcc, 0, {v(101)}")
        A(f"s_and_b32 {s(sT0)}, vcc_lo, {s(sFMASK)}")
        A(f"v_cmp_ne_u32 vcc, 0, {v(102)}")
        A(f"s_and_b32 {s(sT0)}, {s(sT0)}, vcc_lo")
        A(f"s_cmp_eq_u32 {s(sT0)}, {s(sFMASK)}")
        A(f"s_cbranch_scc0 {lw}")
        A(f"s_add_u32 {s(sFL1)}, {s(sFL1)}, 3072")
        A(f"s_addc_u32 {s(sFL1+1)}, {s(sFL1+1)}, 0")
        A(f"s_mov_b32 {s(sFMK2)}, {s(sFMASK)}")
        A(f"s_add_u32 {s(sPFK)}, {s(sPFK)}, {32*8192}")
        A(f"s_addc_u32 {s(sPFK+1)}, {s(sPFK+1)}, 0")
        A(f"s_bcnt1_i32_b32 {s(sMODE)}, {s(sMODE)}")
        if force_slow: A(f"s_mov_b32 {s(sMODE)}, 2")
    for x in kv_dma(): A(x)
    kv_adv()
    if flags:
        cw = A.label("L_cw")
        A(f"s_cmp_lg_u32 {s(sWAVE)}, 0")
        A(f"s_cbranch_scc1 {cw}")
        A(f"v_mov_b32 {v(24)}, {DBG_CW}")
        A(f"v_mov_b32 {v(25)}, 1")
        A("s_mov_b64 exec, 1")
        A(f"global_atomic_add {v(24)}, {v(25)}, {s(sDBG,2)}")
        A("s_mov_b64 exec, -1")
        A(f"{cw}:")
    A(f"s_mov_b32 {s(sSTEP)}, 0")
    A(f"s_mov_b32 {s(sSPIN)}, 0")
    if stamp:
        A(f"s_memtime {s(sTS,2)}")
        A("s_waitcnt lgkmcnt(0)")
        if stamp == 1: A(f"s_memrealtime {s(84,2)}"); A("s_waitcnt lgkmcnt(0)")
        else:
            for k in range(26): A(f"s_mov_b32 {s(76+k)}, 0")
        A(f"s_mov_b32 {s(sTS+4)}, 0")
        A(f"s_mov_b32 {s(sTS+5)}, 0")
    def ts(k):
        if stamp == 2 and k < 13: A(f"s_memtime {s(76+2*k,2)}")
    def dump_stamps():
        if stamp == 2:
            lab = A.label("L_nodump")
            A(f"s_cmp_lg_u32 {s(sSTEP)}, 41")
            A(f"s_cbranch_scc1 {lab}")
            A("s_waitcnt lgkmcnt(0)")
            A(f"s_lshl_b32 {s(sT0)}, {s(sRANK)}, 2")
            A(f"s_add_u32 {s(sT0)}, {s(sT0)}, {s(sWAVE)}")
            A(f"s_lshl_b32 {s(sT0)}, {s(sT0)}, 6")
            A(f"s_add_u32 {s(sT0)}, {s(sT0)}, {WS_END_CHAIN + 0x4000}")
            A(f"v_mov_b32 {v(T0)}, {s(sT0)}")
            for k in range(13):
                A(f"v_mov_b32 {v(T0+1)}, {s(76+2*k)}")
                A(f"global_store_dword {v(T0)}, {v(T0+1)}, {s(sWS,2)} offset:{4*k}")
            A(f"{lab}:")

    K0,Q0,K1,Q1 = AQK, AQK+4, AQK+8, AQK+12
    V0,V1 = AV, AV+4
    QK = AQK
    PA = KXR
    def step_scalars():
        A(f"s_and_b32 {s(sPH)}, {s(sSTEP)}, 1")
        A(f"s_lshl_b32 {s(sT0+1)}, {s(sPH)}, 13")
        A(f"s_add_u32 {s(sT0+1)}, {s(sT0+1)}, {WS_MEM}")
        A(f"s_add_u32 {s(sMEMc)}, {s(sWS)}, {s(sT0+1)}")
        A(f"s_addc_u32 {s(sMEMc+1)}, {s(sWS+1)}, 0")
        A(f"s_xor_b32 {s(sT0+1)}, {s(sT0+1)}, 8192")
        A(f"s_add_u32 {s(sMEMn)}, {s(sWS)}, {s(sT0+1)}")
        A(f"s_addc_u32 {s(sMEMn+1)}, {s(sWS+1)}, 0")
    def zero_acc():
        A(f"v_mfma_f32_32x32x8_bf16 {v(AQK,16)}, {v(vZP,2)}, {v(vZP,2)}, 0")
        for r in range(AV, AV+8, 2): A(f"v_pk_mov_b32 {v(r,2)}, 0, 0")
        for p in range(4): A(f"v_add_u32 {v(S0+p)}, {s(sOFF+p)}, {v(vLH)}")

    FARN = {0:0, 2:3, 3:2}
    def step_body(st, sfx, far, slowpaths):
        L = lambda x: f"{x}{sfx}"
        A(f"{L('L_step')}:")
        ts(12)
        delay(A, D2)
        MR = S0
        MB = KXR
        def chk(base):
            A(f"v_max3_u32 {v(T0)}, {v(base)}, {v(base+1)}, {v(base+2)}")
            A(f"v_max3_u32 {v(T0+1)}, {v(base+3)}, {v(base+4)}, {v(base+5)}")
            A(f"v_max3_u32 {v(T0)}, {v(T0)}, {v(base+6)}, {v(base+7)}")
            A(f"v_max_u32 {v(T0)}, {v(T0)}, {v(T0+1)}")
            A(f"v_cmp_eq_u32 vcc, -1, {v(T0)}")
        def ldm(base):
            A(f"global_load_dwordx4 {v(base,4)}, {v(vW16)}, {s(sMEMc,2)} sc1")
            A(f"global_load_dwordx4 {v(base+4,4)}, {v(vW16)}, {s(sMEMc,2)} offset:1024 sc1")
        ldm(MA)
        delay(A, DS)
        A(f"{L('L_pollm')}:")
        ldm(MB)
        A("s_waitcnt vmcnt(2)")
        chk(MA)
        A(f"s_cbranch_vccz {L('L_gotm')}")
        ldm(MA)
        A(f"s_add_u32 {s(sSPIN)}, {s(sSPIN)}, 1")
        A(f"s_cmp_gt_u32 {s(sSPIN)}, 0x40000")
        A(f"s_cbranch_scc1 L_chain_abort")
        A("s_waitcnt vmcnt(2)")
        chk(MB)
        A(f"s_cbranch_vccnz {L('L_pollm2')}")
        for r in range(0,8,2): A(f"v_pk_mov_b32 {v(MA+r,2)}, {v(MB+r,2)}, {v(MB+r,2)} op_sel:[0,1]")
        A(f"s_branch {L('L_gotm2')}")
        A(f"{L('L_pollm2')}:")
        A(f"s_branch {L('L_pollm')}")
        A(f"{L('L_gotm')}:")
        A(f"{L('L_gotm2')}:")
        ts(0)
        A(f"ds_write_b128 {v(MR)}, {ma(0)}")
        A(smf(K0, ma(0), WK(0,0)))
        A(f"ds_write_b128 {v(MR)}, {ma(1)} offset:1024")
        A(smf(Q0, ma(0), WQ(0,0)))
        if far:
            fok = A.label("L_fok"); fs_ = f"L_fslow{sfx}"
            if flags:
                A(f"v_cmp_ne_u32 vcc, 0, {v(vPF)}")
                A(f"s_and_b32 {s(sT0)}, vcc_lo, {s(sFMK2)}")
                A(f"s_cmp_eq_u32 {s(sT0)}, {s(sFMK2)}")
                A(f"s_cbranch_scc0 {fs_}")
                A(f"{fok}:")
                slowpaths.append((fs_, fok))
            A(f"v_lshlrev_b32 {v(vPF)}, 3, {v(vL16)}")
            A(f"global_load_dword {v(vPF)}, {v(vPF)}, {s(sPFK,2)}")
        A(smf(K1, ma(0), WK(1,0)))
        if far:
            A(f"v_lshrrev_b32 {v(X0)}, 2, {v(vL16)}")
            A(f"global_load_dword {v(vPF)}, {v(X0)}, {s(sFL1,2)} sc1")
        A(smf(Q1, ma(0), WQ(1,0)))
        A(smf(V0, ma(0), WVf(0,0)))
        A(smf(V1, ma(0), WVf(1,0)))
        A("s_waitcnt lgkmcnt(0)")
        A("s_barrier")
        rds = []
        for p in range(3):
            rds.append(f"ds_read_b128 {ma(2*p+2)}, {v(MR+1+p)}")
            rds.append(f"ds_read_b128 {ma(2*p+3)}, {v(MR+1+p)} offset:1024")
        A(rds[0]); A(rds[1])
        own = [(K0,ma(1),WK(0,1)),(Q0,ma(1),WQ(0,1)),(K1,ma(1),WK(1,1)),(Q1,ma(1),WQ(1,1))]
        for i in range(4):
            A(smf(*own[i])); A(rds[i+2])
        A(smf(V0, ma(1), WVf(0,1)))
        A(smf(V1, ma(1), WVf(1,1)))
        kxq = [(t,ks) for ks in range(4) for t in range(2)]
        kxr = [f"ds_read_b128 {v(KXR+(t*4+ks)*4,4)}, {v(vLH)} offset:{L_KXB-L_MEMB+(t*4+ks)*1024}" for (t,ks) in kxq]
        kxr[0] = [f"s_waitcnt vmcnt({2 if far else 0})", kxr[0]]
        fill = [[],[],[],[],[],[],[],[]]
        if far == 2:
            fill.append([f"v_and_b32 {v(X0)}, 0xf0, {v(vL16)}"])
            fill.append([f"v_add_u32 {v(X0+1)}, {s(sRLO)}, {v(X0)}"])
            fill.append([f"ds_read_b128 {v(S1,4)}, {v(X0+1)}"])
            fill.append([f"v_add_u32 {v(X0+1)}, {s(sRL2)}, {v(X0)}"])
        if far == 2:
            pub = fill[8:]; fill = fill[:8]
            fill += [(x if isinstance(x,list) else [x]) for x in kxr] + pub
        else:
            fill += [(x if isinstance(x,list) else [x]) for x in kxr]
        A("s_waitcnt lgkmcnt(4)")
        g = 0
        for b in range(2,8):
            if b == 4:
                nrel = 0
                if far:
                    nrel = sum(1 for f in fill_done for x in f if x.startswith("ds_read"))
                A(f"s_waitcnt lgkmcnt({nrel})")
            order = ((K0,WK(0,b)),(Q0,WQ(0,b)),(K1,WK(1,b)),(Q1,WQ(1,b)))
            for n,(acc,W) in enumerate(order):
                if b == 2 and n == 0: fill_done = []
                A(smf(acc, ma(b), W))
                if fill:
                    f = fill.pop(0); fill_done.append(f)
                    for x in f: A(x)
        assert not fill, len(fill)
        ts(1)
        vq = [(t,b) for b in range(2,8) for t in range(2)]
        vi = [0]
        def vph(n=1):
            for _ in range(n):
                if vi[0] < len(vq):
                    t,b = vq[vi[0]]; vi[0] += 1
                    A(smf(V0+4*t, ma(b), WVf(t,b)))
        X_ = T0
        FB = [MA, MA+8, MA+16, MA+24, AV, AQK, AQK+8, 120]
        frags = [(j,b) for j in range(8) for b in range(2)]
        def wo_rd(fi, buf):
            j,b = frags[fi]; out = []
            for hx in range(2):
                q = 2*b + hx
                off = q*32768 + j*1024
                reg = vWO0 if off < 65536 else vWO1
                if off >= 65536: off -= 65536
                out.append(f"ds_read_b128 {v(FB[buf]+4*hx,4)}, {v(reg)} offset:{off}")
            return out
        vph(2)
        A(f"v_pk_add_f32 {v(K0,2)}, {v(K0,2)}, {v(K0+2,2)}")
        A(f"v_pk_add_f32 {v(Q0,2)}, {v(Q0,2)}, {v(Q0+2,2)}")
        A(f"v_pk_add_f32 {v(K1,2)}, {v(K1,2)}, {v(K1+2,2)}")
        A(f"v_cvt_pk_bf16_f32 {v(X_)}, {v(K0)}, {v(K0+1)}")
        A(f"v_cvt_pk_bf16_f32 {v(X_+1)}, {v(Q0)}, {v(Q0+1)}")
        A(f"v_pk_add_f32 {v(Q1,2)}, {v(Q1,2)}, {v(Q1+2,2)}")
        A(f"ds_write_b64 {v(vMQW)}, {v(X_,2)}")
        A(f"v_cvt_pk_bf16_f32 {v(X_+2)}, {v(K1)}, {v(K1+1)}")
        A(f"v_cvt_pk_bf16_f32 {v(X_+3)}, {v(Q1)}, {v(Q1+1)}")
        A(f"ds_write_b64 {v(vMQW)}, {v(X_+2,2)} offset:512")
        vph(VA)
        A("s_waitcnt lgkmcnt(0)")
        if far == 2:
            A("s_mov_b64 exec, 0xffff")
            A(f"global_store_dwordx4 {v(X0+1)}, {v(S1,4)}, {s(sKM,2)} sc1")
            A("s_mov_b64 exec, -1")
        A("s_barrier")
        for ks in range(4):
            A(f"ds_read_b64_tr_b16 {v(QK+4*ks,2)}, {v(vMQR0)} offset:{ks*1024}")
            A(f"ds_read_b64_tr_b16 {v(QK+4*ks+2,2)}, {v(vMQR1)} offset:{ks*1024}")
        vph(16)
        ts(2)
        VXO = KXR; B1 = KXR+8
        VMa = X0
        ONE = T0+2
        wr = wo_rd(0,0) + wo_rd(1,1) + wo_rd(2,2) + wo_rd(3,3)
        sf = {1: [wr[0]], 2: [wr[1]], 3: [wr[2]], 4: [wr[3]],
              5: [f"v_pk_add_f32 {v(V0,2)}, {v(V0,2)}, {v(V0+2,2)}"],
              6: [f"v_pk_add_f32 {v(V1,2)}, {v(V1,2)}, {v(V1+2,2)}", f"ds_read_b128 {v(KXR,4)}, {v(vVXA)}"],
              7: [f"v_cvt_pk_bf16_f32 {v(VMa)}, {v(V0)}, {v(V0+1)}", f"ds_read_b128 {v(KXR+4,4)}, {v(vVXA)} offset:1024"],
              8: [f"v_cvt_pk_bf16_f32 {v(VMa+1)}, {v(V1)}, {v(V1+1)}"],
              9: [f"v_cvt_pk_bf16_f32 {v(VMa+2)}, {v(V1)}, {v(V1+1)}"],
              10: [f"v_cvt_pk_bf16_f32 {v(VMa+3)}, {v(V0)}, {v(V0+1)}"],
              11: [wr[4]],
              0: [f"v_mov_b32 {v(ONE)}, 0x3f803f80"]}
        sf[8].append(f"v_mov_b32 {v(ONE+1)}, 0x3f803f80")
        g = 0
        for ks in range(4):
            if ks == 0: A(f"s_waitcnt lgkmcnt(4)")
            if ks == 2: A(f"s_waitcnt lgkmcnt(4)")
            c0 = "0" if ks == 0 else v(S0,4); c1 = "0" if ks == 0 else v(S1,4); cm = "0" if ks == 0 else v(SM,4)
            for mf in (f"v_mfma_f32_16x16x32_bf16 {v(S0,4)}, {v(KXR+ks*4,4)}, {v(QK+4*ks,4)}, {c0}",
                       f"v_mfma_f32_16x16x32_bf16 {v(S1,4)}, {v(KXR+16+ks*4,4)}, {v(QK+4*ks,4)}, {c1}",
                       f"v_mfma_f32_16x16x32_bf16 {v(SM,4)}, {v(QK+4*ks,4)}, {v(QK+4*ks,4)}, {cm}"):
                A(mf)
                for x in sf.get(g, []): A(x)
                g += 1
        ts(3)
        m1,m2 = T0, T0+1
        A(f"s_cmp_eq_u32 {s(sSTEP)}, {nsteps-1}")
        A(f"s_cbranch_scc1 L_chain_done")
        A(wr[5])
        A(f"v_max3_f32 {v(m1)}, {v(S0)}, {v(S0+1)}, {v(S0+2)}")
        A(f"v_max3_f32 {v(m2)}, {v(S0+3)}, {v(S1)}, {v(S1+1)}")
        A(f"v_max3_f32 {v(m1)}, {v(m1)}, {v(S1+2)}, {v(S1+3)}")
        A(f"v_max3_f32 {v(m2)}, {v(m2)}, {v(SM)}, {v(SM+1)}")
        A(f"v_max_f32 {v(m1)}, {v(m1)}, {v(m2)}")
        A(f"v_max_f32 {v(m2)}, {v(m1)}, {v(m2)}")
        A(wr[6])
        A(f"v_permlane16_swap_b32 {v(m1)}, {v(m2)}")
        A(f"v_max_f32 {v(m1)}, {v(m1)}, {v(m2)}")
        A(f"v_mov_b32 {v(m2)}, {v(m1)}")
        A(wr[7])
        A(f"v_permlane32_swap_b32 {v(m1)}, {v(m2)}")
        A(f"v_max_f32 {v(m1)}, {v(m1)}, {v(m2)}")
        A(f"v_mul_f32 {v(m1)}, {s(sSC+1)}, {v(m1)}")
        for r in (S0,S0+2,S1,S1+2,SM):
            A(f"v_pk_fma_f32 {v(r,2)}, {v(r,2)}, {s(sSC,2)}, {v(m1,2)} op_sel_hi:[1,0,0]")
        for r in (S0,S0+1,S0+2,S0+3): A(f"v_exp_f32 {v(r)}, {v(r)}")
        for r in (S1,S1+1): A(f"v_exp_f32 {v(r)}, {v(r)}")
        A(f"v_cvt_pk_bf16_f32 {v(B1)}, {v(S0)}, {v(S0+1)}")
        for r in (S1+2,S1+3): A(f"v_exp_f32 {v(r)}, {v(r)}")
        A(f"v_cvt_pk_bf16_f32 {v(B1+1)}, {v(S0+2)}, {v(S0+3)}")
        A(f"v_cvt_pk_bf16_f32 {v(B1+2)}, {v(S1)}, {v(S1+1)}")
        A(f"v_exp_f32 {v(SM)}, {v(SM)}")
        A(f"v_cvt_pk_bf16_f32 {v(B1+3)}, {v(S1+2)}, {v(S1+3)}")
        A(f"v_exp_f32 {v(SM+1)}, {v(SM+1)}")
        O0, O1 = KXR+16, KXR+20
        LS = SM
        A(f"v_cvt_pk_bf16_f32 {v(vPM)}, {v(SM)}, {v(SM+1)}")
        A("s_waitcnt lgkmcnt(4)")
        A(f"v_mfma_f32_16x16x16_bf16 {v(LS,4)}, {v(ONE,2)}, {v(B1,2)}, 0")
        A(f"v_mfma_f32_16x16x16_bf16 {v(LS,4)}, {v(ONE,2)}, {v(B1+2,2)}, {v(LS,4)}")
        A(f"v_mfma_f32_16x16x16_bf16 {v(LS,4)}, {v(ONE,2)}, {v(vPM,2)}, {v(LS,4)}")
        w4 = wo_rd(4,4)
        A(f"v_mfma_f32_16x16x32_bf16 {v(O0,4)}, {v(VXO,4)}, {v(B1,4)}, 0")
        A(w4[0])
        A(f"v_mfma_f32_16x16x32_bf16 {v(O1,4)}, {v(VXO+4,4)}, {v(B1,4)}, 0")
        A(w4[1])
        A(f"v_mfma_f32_16x16x16_bf16 {v(O0,4)}, {v(VMa,2)}, {v(vPM,2)}, {v(O0,4)}")
        A(f"v_rcp_f32 {v(m1)}, {v(LS)}")
        A(f"v_mfma_f32_16x16x16_bf16 {v(O1,4)}, {v(VMa+2,2)}, {v(vPM,2)}, {v(O1,4)}")
        for r in (O0,O0+2,O1,O1+2):
            A(f"v_pk_mul_f32 {v(r,2)}, {v(r,2)}, {v(m1,2)} op_sel_hi:[1,0]")
        OP = S0
        A(f"v_cvt_pk_bf16_f32 {v(OP)}, {v(O0)}, {v(O0+1)}")
        A(f"v_cvt_pk_bf16_f32 {v(OP+1)}, {v(O0+2)}, {v(O0+3)}")
        A(f"v_cvt_pk_bf16_f32 {v(OP+2)}, {v(O1)}, {v(O1+1)}")
        A(f"v_cvt_pk_bf16_f32 {v(OP+3)}, {v(O1+2)}, {v(O1+3)}")
        A(f"ds_write2_b64 {v(vOW)}, {v(OP,2)}, {v(OP+2,2)} offset0:0 offset1:4")
        ts(4)
        A(f"v_mfma_f32_32x32x8_bf16 {v(PA,16)}, {v(vZP,2)}, {v(vZP,2)}, 0")
        w5 = wo_rd(5,5) + wo_rd(6,6)
        A(w5[0]); A(w5[1])
        A(f"v_mfma_f32_32x32x8_bf16 {v(PA+16,16)}, {v(vZP,2)}, {v(vZP,2)}, 0")
        A(w5[2]); A(w5[3])
        A("s_waitcnt lgkmcnt(4)")
        A("s_barrier")
        OA = S0
        A(f"ds_read_b128 {v(OA,4)}, {v(vOR)}")
        A(f"ds_read_b128 {v(OA+4,4)}, {v(vOR)} offset:128")
        w7 = wo_rd(7,7)
        for x in w7: A(x)
        for x in kv_dma(): A(x)
        ts(5)
        A("s_waitcnt lgkmcnt(2)")
        issued = [7]; nxt = 8
        PK0 = X0
        for fi in range(16):
            j,b = frags[fi]
            buf = fi % 8
            if fi >= 7 and fi % 2 == 1:
                tgt = min(fi+1, 15)
                later = len(issued) - 1 - issued.index(tgt)
                A(f"s_waitcnt lgkmcnt({min(15,2*later)})")
            A(f"v_smfmac_f32_16x16x64_bf16 {v(PA+4*j,4)}, {v(OA+4*b,4)}, {v(FB[buf],8)}, {v(vIDX)}")
            if nxt < 16:
                for x in wo_rd(nxt, nxt % 8): A(x)
                issued.append(nxt); nxt += 1
            if b == 1 and j >= 1:
                jj = j-1
                dst = (PK0 + jj) if jj < 4 else (PA + jj - 4)
                A(f"v_pk_add_f32 {v(PA+4*jj,2)}, {v(PA+4*jj,2)}, {v(PA+4*jj+2,2)}")
                A(f"v_cvt_pk_bf16_f32 {v(dst)}, {v(PA+4*jj)}, {v(PA+4*jj+1)}")
                if jj == 3:
                    A(f"v_bfi_b32 {v(PK0)}, 1, {s(sPH)}, {v(PK0)}")
                    A(f"global_store_dwordx4 {v(vPP)}, {v(PK0,4)}, {s(sPc,2)} {st}")
        A(f"v_bfi_b32 {v(PA)}, 1, {s(sPH)}, {v(PA)}")
        A(f"v_pk_add_f32 {v(PA+28,2)}, {v(PA+28,2)}, {v(PA+30,2)}")
        A(f"v_cvt_pk_bf16_f32 {v(PA+3)}, {v(PA+28)}, {v(PA+29)}")
        A(f"global_store_dwordx4 {v(vPP)}, {v(PA,4)}, {s(sPc2,2)} {st}")
        ts(6)
        kv_adv()
        A(f"s_add_u32 {s(sSTEP)}, {s(sSTEP)}, 1")
        zero_acc()
        if not far:
            RS = MA
            A(f"v_bfe_u32 {v(MA+4)}, {v(vL16)}, 4, 3")
            A(f"v_mov_b32 {v(MA+5)}, 0x3f80")
            A(f"v_mov_b32 {v(MA+6)}, 0x3f800000")
            for d in range(4):
                A(f"v_cmp_eq_u32 vcc, {2*d}, {v(MA+4)}")
                A(f"v_cndmask_b32 {v(RS+d)}, 0, {v(MA+5)}, vcc")
                A(f"v_cmp_eq_u32 vcc, {2*d+1}, {v(MA+4)}")
                A(f"v_cndmask_b32 {v(RS+d)}, {v(RS+d)}, {v(MA+6)}, vcc")
            delay(A, D1)
            G = KXR+4
            RA = KXR+20
            GB = MA+8
            def ldp(base):
                for t in range(4):
                    A(f"global_load_dwordx4 {v(base+4*t,4)}, {v(vPG)}, {s(sPc,2)} offset:{t*1024} sc1")
            def chkp(base):
                A(f"v_bitop3_b32 {v(T0)}, {v(base)}, {v(base+4)}, {s(sPH)} bitop3:0x7e")
                A(f"v_bitop3_b32 {v(T0+1)}, {v(base+8)}, {v(base+12)}, {s(sPH)} bitop3:0x7e")
                A(f"v_bitop3_b32 {v(T0)}, {v(T0)}, {v(T0+1)}, 1 bitop3:0xa8")
                A(f"v_cmp_ne_u32 vcc, 0, {v(T0)}")
            def summ(base):
                for t in range(4):
                    c = "0" if t == 0 else v(RA,4)
                    A(f"v_mfma_f32_16x16x32_bf16 {v(RA,4)}, {v(RS,4)}, {v(base+4*t,4)}, {c}")
            ldp(G)
            delay(A, DP)
            A(f"{L('L_pollp')}:")
            ldp(GB)
            A("s_waitcnt vmcnt(4)")
            summ(G)
            chkp(G)
            A(f"s_cbranch_vccz {L('L_gotp')}")
            ldp(G)
            A(f"s_add_u32 {s(sSPIN)}, {s(sSPIN)}, 1")
            A(f"s_cmp_gt_u32 {s(sSPIN)}, 0x40000")
            A(f"s_cbranch_scc1 L_chain_abort")
            A("s_waitcnt vmcnt(4)")
            summ(GB)
            chkp(GB)
            A(f"s_cbranch_vccnz {L('L_pollp')}")
            A(f"{L('L_gotp')}:")
            ts(7)
            for r in range(4):
                A(f"v_add_f32_dpp {v(RA+r)}, {v(RA+r)}, {v(RA+r)} row_ror:8 row_mask:0xf bank_mask:0xf")
            A(f"v_cvt_pk_bf16_f32 {v(T0)}, {v(RA)}, {v(RA+2)}")
            A(f"v_cvt_pk_bf16_f32 {v(T0+1)}, {v(RA+1)}, {v(RA+3)}")
            A(f"v_cndmask_b32 {v(T0)}, {v(T0)}, {v(T0+1)}, {s(sMASK,2)}")
            A(f"global_store_dword {v(vMP)}, {v(T0)}, {s(sMEMn,2)} {st}")
            A(f"v_mov_b32 {v(T0+2)}, -1")
            A(f"global_store_dword {v(vMP)}, {v(T0+2)}, {s(sMEMc,2)} {st}")
            ts(8)
        if far:
            A(f"s_add_u32 {s(sKM)}, {s(sKM)}, 8192")
            A(f"s_addc_u32 {s(sKM+1)}, {s(sKM+1)}, 0")
            A(f"s_cmp_lt_u32 {s(sSTEP)}, {nsteps-2}")
            A(f"s_cselect_b32 {s(sT0)}, {32*8192}, 0")
            A(f"s_cselect_b32 {s(sT0+1)}, 1024, 0")
            A(f"s_cselect_b32 {s(sFMK2)}, {s(sFMASK)}, 0")
            A(f"s_add_u32 {s(sPFK)}, {s(sPFK)}, {s(sT0)}")
            A(f"s_addc_u32 {s(sPFK+1)}, {s(sPFK+1)}, 0")
            A(f"s_add_u32 {s(sFL1)}, {s(sFL1)}, {s(sT0+1)}")
            A(f"s_addc_u32 {s(sFL1+1)}, {s(sFL1+1)}, 0")
            A("s_waitcnt vmcnt(0)")
        dump_stamps()
        if stamp == 4 and far == 2:
            lab = A.label("L_nclk")
            A(f"s_cmp_lg_u32 {s(sRANK)}, 0"); A(f"s_cbranch_scc1 {lab}")
            A(f"s_memtime {s(76,2)}"); A(f"s_memrealtime {s(78,2)}"); A("s_waitcnt lgkmcnt(0)")
            A(f"s_lshl_b32 {s(sT0)}, {s(sSTEP)}, 3"); A(f"s_add_u32 {s(sT0)}, {s(sT0)}, {WS_END_CHAIN + 0x10000}")
            A(f"v_mov_b32 {v(T0)}, {s(sT0)}"); A(f"v_mov_b32 {v(T0+2)}, {s(76)}"); A(f"v_mov_b32 {v(T0+3)}, {s(78)}")
            A(f"global_store_dwordx2 {v(T0)}, {v(T0+2,2)}, {s(sWS,2)}")
            A(f"{lab}:")
        A(f"s_mov_b64 {s(sT0+2,2)}, {s(sMEMc,2)}")
        A(f"s_mov_b64 {s(sMEMc,2)}, {s(sMEMn,2)}")
        A(f"s_mov_b64 {s(sMEMn,2)}, {s(sT0+2,2)}")
        A(f"s_xor_b32 {s(sPH)}, {s(sPH)}, 1")
        if B0: A("s_barrier")
        elif far: delay(A, D3)
        A(f"s_branch {L('L_step')}")
    def slow_code(slowpaths):
        for (fs_, fok) in slowpaths:
            A(f"{fs_}:")
            A(f"v_lshrrev_b32 {v(X0)}, 2, {v(vL16)}")
            A(f"s_sub_u32 {s(sT0+2)}, {s(sFL1)}, 1024")
            A(f"s_subb_u32 {s(sT0+3)}, {s(sFL1+1)}, 0")
            A(f"global_load_dword {v(vPF)}, {v(X0)}, {s(sT0+2,2)} sc1")
            A(f"s_add_u32 {s(sSPIN)}, {s(sSPIN)}, 1")
            A(f"s_cmp_gt_u32 {s(sSPIN)}, 0x40000")
            A(f"s_cbranch_scc1 L_chain_abort")
            A("s_waitcnt vmcnt(0)")
            A(f"v_cmp_ne_u32 vcc, 0, {v(vPF)}")
            A(f"s_and_b32 {s(sT0)}, vcc_lo, {s(sFMK2)}")
            A(f"s_cmp_eq_u32 {s(sT0)}, {s(sFMK2)}")
            A(f"s_cbranch_scc1 {fok}")
            A("s_sleep 1")
            A(f"s_branch {fs_}")
    def main_loop(st, sfx):
        sp = []
        A(f"s_cmp_eq_u32 {s(sWAVE)}, 2")
        A(f"s_cbranch_scc1 L_step{sfx}_f2")
        A(f"s_cmp_eq_u32 {s(sWAVE)}, 3")
        A(f"s_cbranch_scc1 L_step{sfx}_f3")
        step_body(st, sfx+"_n", 0, sp)
        A.hist = []
        step_body(st, sfx+"_f2", 2, sp)
        A.hist = []
        step_body(st, sfx+"_f3", 3, sp)
        slow_code(sp)
    step_scalars(); zero_acc()
    A("s_barrier")
    if flags:
        A(f"s_cmp_lg_u32 {s(sMODE)}, 1")
        A("s_cbranch_scc1 L_main_slow")
        main_loop("", "_fast")
        A.hist = []
        A("L_main_slow:")
        main_loop("sc1", "_slow")
    else:
        main_loop(smode, "")
    A("L_chain_abort:")
    A(f"s_mov_b32 {s(sSTEP)}, 0xdead")
    A("s_branch L_chain_end")
    A("L_chain_done:")
    if flags:
        A(f"s_lshl_b32 {s(sT0)}, {s(sRANK)}, 12")
        A(f"s_add_u32 {s(sT0)}, {s(sT0)}, {63*32*4096}")
        A(f"s_add_u32 {s(sT0+2)}, {s(sWS)}, {s(sT0)}")
        A(f"s_addc_u32 {s(sT0+3)}, {s(sWS+1)}, 0")
        A(f"s_add_u32 {s(sT0+4)}, {s(sT0+2)}, {WS_VM}")
        A(f"s_addc_u32 {s(sT0+5)}, {s(sT0+3)}, 0")
        A(f"s_add_u32 {s(sT0+2)}, {s(sT0+2)}, {WS_KM}")
        A(f"s_addc_u32 {s(sT0+3)}, {s(sT0+3)}, 0")
        kl = [A.label("L_lk") for _ in range(5)]
        for w in range(1,4):
            A(f"s_cmp_eq_u32 {s(sWAVE)}, {w}")
            A(f"s_cbranch_scc1 {kl[w]}")
        for w in range(4):
            A(f"{kl[w]}:")
            A(f"global_store_dwordx4 {v(vL16)}, {v(AQK+4*w,4)}, {s(sT0+2,2)} offset:{w*1024} sc1")
            A(f"v_lshrrev_b32 {v(T0)}, 1, {v(vL16)}")
            A(f"global_store_dwordx2 {v(T0)}, {v(X0,2)}, {s(sT0+4,2)} offset:{w*512} sc1")
            A(f"s_branch {kl[4]}")
        A(f"{kl[4]}:")
        A("s_waitcnt vmcnt(0)")
        A("s_barrier")
        fin = A.label("L_cfin")
        A(f"s_cmp_lg_u32 {s(sWAVE)}, 0")
        A(f"s_cbranch_scc1 {fin}")
        A(f"s_lshl_b32 {s(sT0)}, {s(sRANK)}, 2")
        A(f"s_add_u32 {s(sT0)}, {s(sT0)}, {WS_FLAGS + 63*1024 + 256}")
        A(f"v_mov_b32 {v(T0)}, {s(sT0)}")
        A("s_mov_b64 exec, 1")
        A(f"global_store_dword {v(T0)}, {v(vIDX)}, {s(sWS,2)} sc1")
        A("s_mov_b64 exec, -1")
        A(f"{fin}:")
    A("L_chain_end:")
    if STARTUP_STAMPS:
        A("s_waitcnt lgkmcnt(0)")
        A(f"s_lshl_b32 {s(sT0)}, {s(sRANK)}, 2")
        A(f"s_add_u32 {s(sT0)}, {s(sT0)}, {s(sWAVE)}")
        A(f"s_lshl_b32 {s(sT0)}, {s(sT0)}, 6")
        A(f"s_add_u32 {s(sT0)}, {s(sT0)}, {WS_END_CHAIN + 0x4000}")
        A(f"v_mov_b32 {v(24)}, {s(sT0)}")
        for k in range(8):
            A(f"v_mov_b32 {v(25)}, {s(76+2*k)}")
            A(f"global_store_dword {v(24)}, {v(25)}, {s(sWS,2)} offset:{4*k}")
        A(f"s_getreg_b32 {s(sT0+1)}, hwreg(HW_REG_HW_ID)")
        A(f"v_mov_b32 {v(25)}, {s(sT0+1)}")
        A(f"global_store_dword {v(24)}, {v(25)}, {s(sWS,2)} offset:32")
    if stamp:
        A(f"s_lshl_b32 {s(sT0)}, {s(sRANK)}, 2")
        A(f"s_add_u32 {s(sT0)}, {s(sT0)}, {s(sWAVE)}")
        A(f"s_lshl_b32 {s(sT0)}, {s(sT0)}, 6")
        A(f"s_add_u32 {s(sT0)}, {s(sT0)}, {WS_END_CHAIN}")
        A(f"v_mov_b32 {v(24)}, {s(sT0)}")
        A(f"s_memtime {s(sTS+2,2)}")
        A("s_waitcnt lgkmcnt(0)")
        A(f"s_sub_u32 {s(sTS+2)}, {s(sTS+2)}, {s(sTS)}")
        A(f"v_mov_b32 {v(25)}, {s(sTS+2)}")
        A(f"global_store_dword {v(24)}, {v(25)}, {s(sWS,2)} offset:40")
        A(f"v_mov_b32 {v(25)}, {s(sSTEP)}")
        A(f"global_store_dword {v(24)}, {v(25)}, {s(sWS,2)} offset:44")
        A(f"v_mov_b32 {v(25)}, {s(sSPIN)}")
        A(f"global_store_dword {v(24)}, {v(25)}, {s(sWS,2)} offset:48")
        if stamp == 1:
            A(f"s_memrealtime {s(86,2)}"); A("s_waitcnt lgkmcnt(0)")
            for k in range(4):
                A(f"v_mov_b32 {v(25)}, {s(80+2*k)}")
                A(f"global_store_dword {v(24)}, {v(25)}, {s(sWS,2)} offset:{4*k}")
    A("s_waitcnt vmcnt(0)")

def gen_entry(A):
    A(f"s_load_dwordx2 {s(60,2)}, s[0:1], {KA_MEM0}")
    A(f"s_load_dwordx2 {s(62,2)}, s[0:1], {KA_WQ}")
    A(f"s_load_dwordx2 {s(64,2)}, s[0:1], {KA_WK}")
    A(f"s_load_dwordx2 {s(66,2)}, s[0:1], {KA_WV}")
    A(f"s_load_dwordx2 {s(68,2)}, s[0:1], {KA_WO}")
    A(f"s_load_dwordx2 {s(sDBG,2)}, s[0:1], {KA_DBG}")
    A(f"s_load_dwordx2 {s(sWS,2)}, s[0:1], {KA_WS}")
    A(f"s_getreg_b32 {s(sT0)}, hwreg(HW_REG_XCC_ID, 0, 4)")
    A("v_lshrrev_b32 v1, 6, v0")
    A(f"v_readfirstlane_b32 {s(sWAVE)}, v1")
    A("v_and_b32 v31, 63, v0")
    A("s_waitcnt lgkmcnt(0)")

def gen_standalone(stamp=0, **kw):
    A = Asm()
    name = "chain_kernel"
    A.raw("; @launch kernel=chain_kernel grid=(256,1,1) block=(256,1,1) lds=163840")
    A.raw('.amdgcn_target "amdgcn-amd-amdhsa--gfx950"')
    A.raw(kstart(name))
    gen_entry(A)
    A(f"s_cmp_lg_u32 {s(sT0)}, 0")
    A("s_cbranch_scc1 L_exit")
    A("s_cmp_ge_u32 s2, 256")
    A("s_cbranch_scc1 L_exit")
    A("v_mov_b32 v2, 0")
    A("v_mov_b32 v3, 1")
    A(f"v_mov_b32 v5, {L_MISC}")
    tk = "L_tk"
    A(f"s_cmp_lg_u32 {s(sWAVE)}, 0")
    A(f"s_cbranch_scc1 {tk}")
    A("s_mov_b64 exec, 1")
    A(f"global_atomic_add v4, v2, v3, {s(sDBG,2)} sc0")
    A("s_waitcnt vmcnt(0)")
    A("ds_write_b32 v5, v4")
    A("s_waitcnt lgkmcnt(0)")
    A("s_mov_b64 exec, -1")
    A(f"{tk}:")
    A("s_barrier")
    A("ds_read_b32 v4, v5")
    A("s_waitcnt lgkmcnt(0)")
    A(f"v_readfirstlane_b32 {s(sRANK)}, v4")
    A(f"s_cmp_ge_u32 {s(sRANK)}, 32")
    A("s_cbranch_scc1 L_exit")
    gen_chain(A, 64, stamp, **kw)
    A("L_exit:")
    A("s_endpgm")
    A.raw(kd(name))
    return A

if __name__ == "__main__":
    import sys
    kw = {}
    for x in sys.argv[3:]:
        k,val = x.split("="); kw[k] = int(val)
    A = gen_standalone(stamp=int(sys.argv[2]) if len(sys.argv)>2 else 0, **kw)
    open(sys.argv[1], "w").write(A.text())
    print("nops inserted:", A.nops, "lines", len(A.out))
```

```python
from asmlib import *
from layout import *
from engine import *
import struct
def f2u(x): return struct.unpack("<I", struct.pack("<f", x))[0]
LOG2E = 1.4426950408889634
sIN = 60


sFLG=46
wFV=30
wFL=254
USE_FLAGS=False
def flag_init_ptr(A):
    A(f"s_add_u32 {s(sFLG)}, {s(sWS)}, {WS_FLAGS}")
    A(f"s_addc_u32 {s(sFLG+1)}, {s(sWS+1)}, 0")
def flag_set(A, seg_s, row, idx_s=None, idx_c=0):
    lab = A.label("L_fs")
    A(f"s_cmp_lg_u32 {s(sWAVE)}, 0")
    A(f"s_cbranch_scc1 {lab}")
    A.cbegin()
    A(f"s_lshl_b32 {s(48)}, {s(seg_s)}, 10")
    if idx_s is not None:
        A(f"s_lshl_b32 {s(49)}, {s(idx_s)}, 2")
        A(f"s_add_u32 {s(48)}, {s(48)}, {s(49)}")
    A(f"s_add_u32 {s(48)}, {s(48)}, {row*256 + idx_c*4}")
    A(f"v_mov_b32 {v(wFL)}, {s(48)}")
    A(f"v_mov_b32 {v(wFL+1)}, 1")
    A("s_mov_b64 exec, 1")
    A(f"global_store_dword {v(wFL)}, {v(wFL+1)}, {s(sFLG,2)} sc1")
    A("s_mov_b64 exec, -1")
    A.cend()
    A(f"{lab}:")
def flag_wait(A, seg_s, row, mask_lo_s, mask_hi_s):
    lab = A.label("L_fw"); ok = A.label("L_fwok")
    A(f"s_lshl_b32 {s(48)}, {s(seg_s)}, 10")
    A(f"s_add_u32 {s(48)}, {s(48)}, {row*256}")
    A(f"v_lshlrev_b32 {v(wFL)}, 2, {v(wLANE)}")
    A(f"v_add_u32 {v(wFL)}, {s(48)}, {v(wFL)}")
    A(f"s_mov_b32 {s(49)}, 0")
    A(f"{lab}:")
    A(f"global_load_dword {v(wFL+1)}, {v(wFL)}, {s(sFLG,2)} sc1")
    A(f"s_add_u32 {s(49)}, {s(49)}, 1")
    A(f"s_cmp_gt_u32 {s(49)}, 0x20000")
    A(f"s_cbranch_scc1 {ok}")
    A("s_waitcnt vmcnt(0)")
    A(f"v_cmp_ne_u32 vcc, 0, {v(wFL+1)}")
    A(f"s_and_b32 {s(50)}, vcc_lo, {s(mask_lo_s)}")
    A(f"s_and_b32 {s(51)}, vcc_hi, {s(mask_hi_s)}")
    A(f"s_xor_b32 {s(50)}, {s(50)}, {s(mask_lo_s)}")
    A(f"s_xor_b32 {s(51)}, {s(51)}, {s(mask_hi_s)}")
    A(f"s_or_b32 {s(50)}, {s(50)}, {s(51)}")
    A(f"s_cmp_eq_u32 {s(50)}, 0")
    A(f"s_cbranch_scc1 {ok}")
    A("s_sleep 1")
    A(f"s_branch {lab}")
    A(f"{ok}:")
def wait_finit(A):
    lab = A.label("L_wfi"); ok = A.label("L_wfiok")
    A(f"s_cmp_lg_u32 {s(sWAVE)}, 0")
    A(f"s_cbranch_scc1 {ok}")
    A(f"v_mov_b32 {v(wFL)}, {DBG_FINIT}")
    A(f"s_mov_b32 {s(49)}, 0")
    A(f"{lab}:")
    A(f"global_load_dword {v(wFL+1)}, {v(wFL)}, {s(sDBG,2)} sc1")
    A(f"s_add_u32 {s(49)}, {s(49)}, 1")
    A(f"s_cmp_gt_u32 {s(49)}, 0x20000")
    A(f"s_cbranch_scc1 {ok}")
    A("s_waitcnt vmcnt(0)")
    A(f"v_cmp_gt_u32 vcc, 256, {v(wFL+1)}")
    A(f"s_cbranch_vccz {ok}")
    A("s_sleep 8")
    A(f"s_branch {lab}")
    A(f"{ok}:")
    A("s_barrier")

def load_ptrs(A):
    for reg,off in ((60,KA_X),(62,KA_WQ),(64,KA_WK),(66,KA_WV),(68,KA_WO),(70,KA_W1),(72,KA_W3),(74,KA_W2),(76,KA_GW),(78,KA_OUT),(sDBG,KA_DBG),(sWS,KA_WS)):
        A(f"s_load_dwordx2 {s(reg,2)}, s[0:1], {off}")
    A("v_lshrrev_b32 v1, 6, v0")
    A(f"v_readfirstlane_b32 {s(sWAVE)}, v1")
    A(f"v_and_b32 {v(wLANE)}, 63, v0")
    A(f"v_lshlrev_b32 {v(wL16)}, 4, {v(wLANE)}")
    A("s_waitcnt lgkmcnt(0)")

def dma_x_setup(A):
    A(f"s_and_b32 {s(sT)}, {s(sWAVE)}, 1")
    A(f"s_lshl_b32 {s(sT)}, {s(sT)}, 7")
    A(f"v_xor_b32 {v(wDM)}, {s(sT)}, {v(wL16)}")

def dma_x(A, slot_reg):
    A(f"s_lshl_b32 {s(sT)}, {s(sWAVE)}, 13")
    A(f"s_add_u32 {s(sT+4)}, {s(sAP)}, {s(sT)}")
    A(f"s_addc_u32 {s(sT+5)}, {s(sAP+1)}, 0")
    A(f"s_add_u32 {s(sT)}, {s(sT)}, {s(slot_reg)}")
    out = []
    for i in range(8):
        A(f"v_xor_b32 {v(wDM+1)}, {i*16}, {v(wDM)}")
        A(f"s_add_u32 m0, {s(sT)}, {i*1024}")
        A(f"global_load_lds_dwordx4 {v(wDM+1)}, {s(sT+4,2)}")
        if i < 7:
            A(f"s_add_u32 {s(sT+4)}, {s(sT+4)}, 1024")
            A(f"s_addc_u32 {s(sT+5)}, {s(sT+5)}, 0")

def dma_lin(A, slot_reg, nfrag=32, mod=""):
    per = nfrag // 4
    A(f"s_mul_i32 {s(sT)}, {s(sWAVE)}, {per*1024}")
    A(f"s_add_u32 {s(sT+4)}, {s(sAP)}, {s(sT)}")
    A(f"s_addc_u32 {s(sT+5)}, {s(sAP+1)}, 0")
    A(f"s_add_u32 {s(sT)}, {s(sT)}, {s(slot_reg)}")
    for i in range(0, per, 4):
        A(f"s_add_u32 m0, {s(sT)}, {i*1024}")
        for j in range(min(4, per-i)):
            A(f"global_load_lds_dwordx4 {v(wL16)}, {s(sT+4,2)} offset:{j*1024} {mod}")
        if i + 4 < per:
            A(f"s_add_u32 {s(sT+4)}, {s(sT+4)}, 4096")
            A(f"s_addc_u32 {s(sT+5)}, {s(sT+5)}, 0")

sSLOT=34; sCNT=35; sSL=36; sSTR=33

def epi_kq(A, st=""):
    E = wE
    for Tt in range(2):
        for hf in range(2):
            for d in range(4):
                r = wAC + 16*Tt + 8*hf + 2*d
                A(f"v_cvt_pk_bf16_f32 {v(E+8*Tt+4*hf+d)}, {v(r)}, {v(r+1)}")
            A(f"global_store_dwordx4 {v(E+20)}, {v(E+8*Tt+4*hf,4)}, {s(sOP,2)} offset:{Tt*1024+hf*512} {st}")

def epi_v(A, st=""):
    E = wE
    for Tt in range(2):
        for u in range(2):
            base = wAC + 16*Tt
            regs = [base+4*u, base+4*u+2, base+8+4*u, base+8+4*u+2]
            for d in range(4):
                A(f"v_cvt_pk_bf16_f32 {v(E+8*Tt+4*u+d)}, {v(regs[d])}, {v(regs[d]+1)}")
            A(f"global_store_dwordx4 {v(E+20)}, {v(E+8*Tt+4*u,4)}, {s(sOP,2)} offset:{Tt*2048+u*512} {st}")

def unpack2(A, dlo, dhi, src):
    A(f"v_lshlrev_b32 {v(dlo)}, 16, {v(src)}")
    A(f"v_and_b32 {v(dhi)}, 0xffff0000, {v(src)}")

def epi_ffn(A, st=""):
    E = wE
    G = wAC; U = wAC+16
    t = E+8
    for hf in range(2):
        for d in range(4):
            g = G + 8*hf + 2*d; u = U + 8*hf + 2*d
            A(f"v_cvt_pk_bf16_f32 {v(t)}, {v(g)}, {v(g+1)}")
            A(f"v_cvt_pk_bf16_f32 {v(t+1)}, {v(u)}, {v(u+1)}")
            unpack2(A, t+2, t+3, t)
            unpack2(A, t+6, t+7, t+1)
            A(f"v_pk_mul_f32 {v(t+4,2)}, {v(t+2,2)}, {s(40,2)}")
            A(f"v_exp_f32 {v(t+4)}, {v(t+4)}")
            A(f"v_exp_f32 {v(t+5)}, {v(t+5)}")
            A(f"v_pk_add_f32 {v(t+4,2)}, {v(t+4,2)}, {s(42,2)}")
            A(f"v_rcp_f32 {v(t+4)}, {v(t+4)}")
            A(f"v_rcp_f32 {v(t+5)}, {v(t+5)}")
            A(f"v_pk_mul_f32 {v(t+4,2)}, {v(t+4,2)}, {v(t+2,2)}")
            A(f"v_cvt_pk_bf16_f32 {v(t)}, {v(t+4)}, {v(t+5)}")
            unpack2(A, t+4, t+5, t)
            A(f"v_pk_mul_f32 {v(t+4,2)}, {v(t+4,2)}, {v(t+6,2)}")
            A(f"v_cvt_pk_bf16_f32 {v(E+4*hf+d)}, {v(t+4)}, {v(t+5)}")
        A(f"global_store_dwordx4 {v(wL16)}, {v(E+4*hf,4)}, {s(sOP,2)} offset:{hf*1024} {st}")

def epi_part(A, st=""):
    for Tt in range(2):
        for hq in range(4):
            r = wAC + 16*Tt + 4*hq
            off = Tt*4096 + hq*1024
            if off < 4096: A(f"global_store_dwordx4 {v(wL16)}, {v(r,4)}, {s(sOP,2)} offset:{off} {st}")
            else: A(f"global_store_dwordx4 {v(wDM)}, {v(r,4)}, {s(sOP,2)} offset:{off-4096} {st}")

PROF=False
WST=None
def pst(A,k):
    if PROF:
        A(f"s_memtime {s(90,2)}"); A("s_waitcnt lgkmcnt(0)")
        A(f"s_sub_u32 {s(92)}, {s(90)}, {s(93)}"); A(f"s_mov_b32 {s(93)}, {s(90)}"); A(f"s_add_u32 {s(94+k)}, {s(94+k)}, {s(92)}")
def seg_loop(A, kind, nseg_reg_init, seg_stride, ksteps=32, st=""):
    mode = "x"
    lab = A.label("L_seg")
    def set_ap():
        A(f"s_lshl_b32 {s(sT)}, {s(sSEG)}, 15")
        A(f"s_add_u32 {s(sAP)}, {s(60)}, {s(sT)}")
        A(f"s_addc_u32 {s(sAP+1)}, {s(61)}, 0")
    A(f"s_mov_b32 {s(sSLOT)}, 0")
    set_ap()
    dma_x(A, sSLOT)
    nst = 2 if kind == "ffn" else 4
    A(f"s_mov_b32 {s(52)}, -1")
    A(f"s_mov_b32 {s(53)}, -1")
    A("s_waitcnt vmcnt(0)")
    if PROF:
        for k in range(6): A(f"s_mov_b32 {s(94+k)}, 0")
        A(f"s_memtime {s(90,2)}"); A("s_waitcnt lgkmcnt(0)"); A(f"s_mov_b32 {s(93)}, {s(90)}")
    A(f"{lab}:")
    A(f"s_waitcnt vmcnt({nst})")
    A("s_barrier")
    pst(A,0)
    if USE_FLAGS:
        nf = A.label("L_nf")
        A(f"s_cmp_eq_u32 {s(52)}, -1")
        A(f"s_cbranch_scc1 {nf}")
        flag_set(A, 52, 0, idx_s=sSL)
        A(f"{nf}:")
        A(f"s_mov_b32 {s(52)}, {s(53)}")
        A(f"s_mov_b32 {s(53)}, {s(sSEG)}")
    if kind in ("k","q","v"):
        base = {"k":WS_KX,"q":WS_Q,"v":WS_VX}[kind]
        A(f"s_lshl_b32 {s(sT)}, {s(sSEG)}, 18")
        A(f"s_add_u32 {s(sT)}, {s(sT)}, {s(37)}")
        A(f"s_add_u32 {s(sT)}, {s(sT)}, {base}")
    else:
        A(f"s_mul_i32 {s(sT)}, {s(sSEG)}, {56*2048}")
        A(f"s_add_u32 {s(sT)}, {s(sT)}, {s(37)}")
        A(f"s_add_u32 {s(sT)}, {s(sT)}, {WS_H}")
    A(f"s_add_u32 {s(sOP)}, {s(sWS)}, {s(sT)}")
    A(f"s_addc_u32 {s(sOP+1)}, {s(sWS+1)}, 0")
    nx = A.label("L_nonext")
    A(f"s_add_u32 {s(sSEG)}, {s(sSEG)}, {s(sSTR)}")
    A(f"s_sub_u32 {s(sCNT)}, {s(sCNT)}, 1")
    A(f"s_xor_b32 {s(sSLOT)}, {s(sSLOT)}, 32768")
    A(f"s_cmp_eq_u32 {s(sCNT)}, 0")
    A(f"s_cbranch_scc1 {nx}")
    A.cbegin()
    set_ap()
    dma_x(A, sSLOT)
    A.cend()
    A(f"{nx}:")
    pst(A,1)
    mma_chunk(A, ksteps, mode, 0, transposed=(kind != "v"))
    pst(A,2)
    for b in range(8): A(f"v_xor_b32 {v(wAR+b)}, 32768, {v(wAR+b)}")
    if kind in ("k","q"): epi_kq(A, st)
    elif kind == "v": epi_v(A, st)
    else: epi_ffn(A, st)
    if USE_FLAGS:
        nfirst = A.label("L_nfirst")
        A(f"s_cmp_eq_u32 {s(52)}, -1")
        A(f"s_cbranch_scc0 {nfirst}")
        A(f"s_cmp_lt_u32 {s(53)}, 3")
        A(f"s_cbranch_scc0 {nfirst}")
        A("s_waitcnt vmcnt(0)")
        A("s_barrier")
        flag_set(A, 53, 0, idx_s=sSL)
        if WST: WST(5)
        A(f"{nfirst}:")
    pst(A,3)
    A(f"s_cmp_lg_u32 {s(sCNT)}, 0")
    A(f"s_cbranch_scc1 {lab}")
    if USE_FLAGS:
        A("s_waitcnt vmcnt(0)")
        A("s_barrier")
        nf2 = A.label("L_nf")
        A(f"s_cmp_eq_u32 {s(52)}, -1")
        A(f"s_cbranch_scc1 {nf2}")
        flag_set(A, 52, 0, idx_s=sSL)
        A(f"{nf2}:")
        flag_set(A, 53, 0, idx_s=sSL)

def gen_proj_body(A, st=""):
    done = A.label("L_pdone")
    lk, lv, lq, lf = [A.label(x) for x in ("L_pk","L_pv","L_pq","L_pf")]
    A(f"s_cmp_lt_u32 {s(sSL)}, 16"); A(f"s_cbranch_scc1 {lk}")
    A(f"s_cmp_lt_u32 {s(sSL)}, 32"); A(f"s_cbranch_scc1 {lv}")
    A(f"s_cmp_lt_u32 {s(sSL)}, 48"); A(f"s_cbranch_scc1 {lq}")
    A(f"s_branch {lf}")
    for kind,lab,first,ptr in (("k",lk,0,64),("v",lv,16,66),("q",lq,32,62)):
        A(f"{lab}:")
        A(f"s_sub_u32 {s(sT+6)}, {s(sSL)}, {first}")
        A(f"s_lshl_b32 {s(sT)}, {s(sT+6)}, 9")
        A(f"s_add_u32 {s(sWB)}, {s(ptr)}, {s(sT)}")
        A(f"s_addc_u32 {s(sWB+1)}, {s(ptr+1)}, 0")
        A(f"s_mov_b32 {s(sLDW)}, 8192")
        A(f"s_lshr_b32 {s(sT)}, {s(sWAVE)}, 1")
        A(f"s_lshl_b32 {s(sT+1)}, {s(sT+6)}, 1")
        A(f"s_add_u32 {s(sT)}, {s(sT)}, {s(sT+1)}")
        A(f"s_lshl_b32 {s(37)}, {s(sT)}, 13")
        A(f"s_and_b32 {s(sT)}, {s(sWAVE)}, 1")
        A(f"s_lshl_b32 {s(sT)}, {s(sT)}, {11 if kind != 'v' else 12}")
        A(f"s_add_u32 {s(37)}, {s(37)}, {s(sT)}")
        if WST: WST(3)
        load_weights(A, 32, ffn=False, sigma=(kind != "v"))
        if WST: WST(4)
        if USE_FLAGS: wait_finit(A)
        setup_a_addr(A, "x"); dma_x_setup(A)
        T = wT
        if kind != "v":
            A(f"v_bfe_u32 {v(T)}, {v(wLANE)}, 4, 1")
            A(f"v_lshrrev_b32 {v(T+1)}, 5, {v(wLANE)}")
            A(f"v_and_b32 {v(T+2)}, 15, {v(wLANE)}")
            A(f"v_lshl_add_u32 {v(T+1)}, {v(T+1)}, 4, {v(T+2)}")
            A(f"v_lshlrev_b32 {v(T+1)}, 4, {v(T+1)}")
            A(f"v_lshl_add_u32 {v(wE+20)}, {v(T)}, 12, {v(T+1)}")
        else:
            A(f"v_bfe_u32 {v(T)}, {v(wLANE)}, 4, 1")
            A(f"v_lshrrev_b32 {v(T+1)}, 5, {v(wLANE)}")
            A(f"v_and_b32 {v(T+2)}, 15, {v(wLANE)}")
            A(f"v_lshl_add_u32 {v(T+1)}, {v(T+1)}, 4, {v(T+2)}")
            A(f"v_lshlrev_b32 {v(T+1)}, 4, {v(T+1)}")
            A(f"v_lshl_add_u32 {v(wE+20)}, {v(T)}, 10, {v(T+1)}")
        seg_loop(A, kind, None, 4, 32, st)
        A(f"s_branch {done}")
    A(f"{lf}:")
    A(f"s_sub_u32 {s(sT+6)}, {s(sSL)}, 48")
    A(f"s_lshl_b32 {s(sT)}, {s(sT+6)}, 8")
    A(f"s_add_u32 {s(sWB)}, {s(70)}, {s(sT)}")
    A(f"s_addc_u32 {s(sWB+1)}, {s(71)}, 0")
    A(f"s_add_u32 {s(sWB2)}, {s(72)}, {s(sT)}")
    A(f"s_addc_u32 {s(sWB2+1)}, {s(73)}, 0")
    A(f"s_mov_b32 {s(sLDW)}, 3584")
    A(f"s_lshl_b32 {s(sT)}, {s(sT+6)}, 2")
    A(f"s_add_u32 {s(sT)}, {s(sT)}, {s(sWAVE)}")
    A(f"s_lshl_b32 {s(37)}, {s(sT)}, 11")
    A(f"s_mov_b32 {s(40)}, {f2u(-LOG2E):#x}"); A(f"s_mov_b32 {s(41)}, {f2u(-LOG2E):#x}")
    A(f"s_mov_b32 {s(42)}, 1.0"); A(f"s_mov_b32 {s(43)}, 1.0")
    load_weights(A, 32, ffn=True, sigma=True)
    if USE_FLAGS: wait_finit(A)
    setup_a_addr(A, "x"); dma_x_setup(A)
    seg_loop(A, "ffn", None, 4, 32, st)
    A(f"{done}:")

def gen_proj_kernel(A, name="proj_kernel"):
    A.raw(kstart(name))
    load_ptrs(A)
    A("s_cmp_ge_u32 s2, 248")
    A("s_cbranch_scc1 L_proj_exit")
    A(f"s_lshr_b32 {s(sSL)}, s2, 2")
    A(f"s_and_b32 {s(sSEG)}, s2, 3")
    A(f"s_mov_b32 {s(sCNT)}, 16")
    A(f"s_mov_b32 {s(sSTR)}, 4")
    if PROF:
        A(f"s_memtime {s(88,2)}"); A("s_waitcnt lgkmcnt(0)")
    gen_proj_body(A)
    if PROF:
        A(f"s_memtime {s(90,2)}"); A("s_waitcnt lgkmcnt(0)")
        A(f"s_sub_u32 {s(98)}, {s(90)}, {s(88)}")
        A(f"s_lshl_b32 {s(12)}, s2, 5"); A(f"s_add_u32 {s(12)}, {s(12)}, {WS_END_CHAIN}")
        A(f"v_mov_b32 v24, {s(12)}")
        for k in range(5):
            A(f"v_mov_b32 v25, {s(94+k)}"); A(f"global_store_dword v24, v25, {s(sWS,2)} offset:{4*k}")
        A("s_waitcnt vmcnt(0)")
    A("L_proj_exit:")
    A("s_endpgm")

def part_loop(A, ksteps, src, st="", seg_stride=1, pre=None):
    lab = A.label("L_seg")
    def set_ap():
        A(f"s_mul_i32 {s(sT)}, {s(sSEG)}, {56*2048}")
        A(f"s_add_u32 {s(sT)}, {s(sT)}, {s(37)}")
        A(f"s_add_u32 {s(sAP)}, {s(sWS)}, {s(sT)}")
        A(f"s_addc_u32 {s(sAP+1)}, {s(sWS+1)}, 0")
    mod = "sc1" if USE_FLAGS else ""
    A(f"s_mov_b32 {s(sSLOT)}, 0")
    if USE_FLAGS:
        wl = A.label("L_dw")
        A(f"s_mov_b32 {s(52)}, {s(sSEG)}")
        A(f"s_mov_b32 {s(53)}, {s(sCNT)}")
        A(f"{wl}:")
        flag_wait(A, 52, 0, 54, 55)
        A(f"s_add_u32 {s(52)}, {s(52)}, {seg_stride}")
        A(f"s_sub_u32 {s(53)}, {s(53)}, 1")
        A(f"s_cmp_lg_u32 {s(53)}, 0")
        A(f"s_cbranch_scc1 {wl}")
    set_ap()
    dma_lin(A, sSLOT, ksteps, mod)
    A(f"s_mov_b32 {s(52)}, -1")
    A(f"s_mov_b32 {s(53)}, -1")
    A("s_waitcnt vmcnt(0)")
    A(f"{lab}:")
    A("s_waitcnt vmcnt(8)")
    A("s_barrier")
    if USE_FLAGS:
        nf = A.label("L_nf")
        A(f"s_cmp_eq_u32 {s(52)}, -1")
        A(f"s_cbranch_scc1 {nf}")
        flag_set(A, 52, 1, idx_s=sSL, idx_c=FL2_PB)
        A(f"{nf}:")
        A(f"s_mov_b32 {s(52)}, {s(53)}")
        A(f"s_mov_b32 {s(53)}, {s(sSEG)}")
    A(f"s_lshl_b32 {s(sT)}, {s(sSEG)}, 16")
    A(f"s_add_u32 {s(sT)}, {s(sT)}, {s(38)}")
    A(f"s_add_u32 {s(sOP)}, {s(sWS)}, {s(sT)}")
    A(f"s_addc_u32 {s(sOP+1)}, {s(sWS+1)}, 0")
    nx = A.label("L_nonext")
    A(f"s_add_u32 {s(sSEG)}, {s(sSEG)}, {seg_stride}")
    A(f"s_sub_u32 {s(sCNT)}, {s(sCNT)}, 1")
    A(f"s_xor_b32 {s(sSLOT)}, {s(sSLOT)}, 32768")
    A(f"s_cmp_eq_u32 {s(sCNT)}, 0")
    A(f"s_cbranch_scc1 {nx}")
    A.cbegin()
    set_ap()
    dma_lin(A, sSLOT, ksteps, mod)
    A.cend()
    A(f"{nx}:")
    mma_chunk(A, ksteps, "f", 0, transposed=True)
    A(f"v_xor_b32 {v(wAR)}, 32768, {v(wAR)}")
    epi_part(A, st)
    A(f"s_cmp_lg_u32 {s(sCNT)}, 0")
    A(f"s_cbranch_scc1 {lab}")
    if USE_FLAGS:
        A("s_waitcnt vmcnt(0)")
        A("s_barrier")
        nf2 = A.label("L_nf")
        A(f"s_cmp_eq_u32 {s(52)}, -1")
        A(f"s_cbranch_scc1 {nf2}")
        flag_set(A, 52, 1, idx_s=sSL, idx_c=FL2_PB)
        A(f"{nf2}:")
        flag_set(A, 53, 1, idx_s=sSL, idx_c=FL2_PB)

def gen_down_body(A, seg_stride, st=""):
    done = A.label("L_ddone"); l3 = A.label("L_d3")
    A(f"s_lshr_b32 {s(sT+6)}, {s(sSL)}, 1")
    A(f"s_and_b32 {s(sT+7)}, {s(sSL)}, 1")
    A(f"s_lshl_b32 {s(sT)}, {s(sT+6)}, 19")
    A(f"s_lshl_b32 {s(sT+1)}, {s(sT+7)}, 9")
    A(f"s_add_u32 {s(sT)}, {s(sT)}, {s(sT+1)}")
    A(f"s_add_u32 {s(sWB)}, {s(74)}, {s(sT)}")
    A(f"s_addc_u32 {s(sWB+1)}, {s(75)}, 0")
    A(f"s_mov_b32 {s(sLDW)}, 1024")
    A(f"s_lshl_b32 {s(37)}, {s(sT+6)}, 15")
    A(f"s_add_u32 {s(37)}, {s(37)}, {WS_H}")
    A(f"s_lshl_b32 {s(38)}, {s(sT+6)}, 22")
    A(f"s_lshl_b32 {s(sT)}, {s(sT+7)}, 15")
    A(f"s_add_u32 {s(38)}, {s(38)}, {s(sT)}")
    A(f"s_lshl_b32 {s(sT)}, {s(sWAVE)}, 13")
    A(f"s_add_u32 {s(38)}, {s(38)}, {s(sT)}")
    A(f"s_add_u32 {s(38)}, {s(38)}, {WS_PB}")
    A(f"v_add_u32 {v(wDM)}, 4096, {v(wL16)}")
    A(f"s_mov_b32 {s(54)}, 0")
    A(f"s_lshl_b32 {s(sT)}, {s(sT+6)}, 2")
    A(f"s_add_u32 {s(sT)}, {s(sT)}, 16")
    A(f"s_lshl_b32 {s(55)}, 15, {s(sT)}")
    A(f"s_and_b32 {s(55)}, {s(55)}, 0x3fffffff")
    A(f"s_cmp_eq_u32 {s(sT+6)}, 3")
    A(f"s_cbranch_scc1 {l3}")
    for ksteps,lab in ((32,None),(16,l3)):
        if lab: A(f"{lab}:")
        load_weights(A, ksteps, ffn=False, sigma=True)
        setup_a_addr(A, "f")
        part_loop(A, ksteps, "h", st, seg_stride)
        A(f"s_branch {done}")
    A(f"{done}:")

def gen_down_kernel(A, name="down_kernel"):
    A.raw(kstart(name))
    load_ptrs(A)
    A("s_cmp_ge_u32 s2, 256")
    A("s_cbranch_scc1 L_down_exit")
    A(f"s_lshr_b32 {s(sSL)}, s2, 5")
    A(f"s_and_b32 {s(sSEG)}, s2, 31")
    A(f"s_mov_b32 {s(sCNT)}, 2")
    gen_down_body(A, 32)
    A("L_down_exit:")
    A("s_endpgm")

SCALE_LOG2E = (128.0 ** -0.5) * LOG2E
aQ=96; aKX=128; aKM=160; aVX=176; aVM=208
aS=216
aBI=236
aP=240
aT=252
aO=64
aOW=11
aM=12

def attn_loads(A, mod="", part=0):
    P = 44
    A(f"s_lshl_b32 {s(sT)}, {s(sSEG)}, 5")
    A(f"s_add_u32 {s(sT)}, {s(sT)}, {s(39)}")
    A(f"s_lshl_b32 {s(sT+1)}, {s(sT)}, 13")
    for (base, reg, n) in (((WS_Q,aQ,8),(WS_KX,aKX,8),(WS_VX,aVX,8)) if part in (0,1) else ()):
        A(f"s_add_u32 {s(sT+2)}, {s(sT+1)}, {base}")
        A(f"s_add_u32 {s(P)}, {s(sWS)}, {s(sT+2)}")
        A(f"s_addc_u32 {s(P+1)}, {s(sWS+1)}, 0")
        for i in range(n):
            if i == 4:
                A(f"s_add_u32 {s(P)}, {s(P)}, 4096")
                A(f"s_addc_u32 {s(P+1)}, {s(P+1)}, 0")
            A(f"global_load_dwordx4 {v(reg+4*i,4)}, {v(wL16)}, {s(P,2)} offset:{(i&3)*1024} {mod}")
    if part == 1: return
    A(f"s_lshl_b32 {s(sT+1)}, {s(sT)}, 12")
    A(f"s_add_u32 {s(sT+2)}, {s(sT+1)}, {WS_KM}")
    A(f"s_add_u32 {s(P)}, {s(sWS)}, {s(sT+2)}")
    A(f"s_addc_u32 {s(P+1)}, {s(sWS+1)}, 0")
    for i in range(4):
        A(f"global_load_dwordx4 {v(aKM+4*i,4)}, {v(wL16)}, {s(P,2)} offset:{i*1024} {mod}")
    A(f"s_add_u32 {s(sT+2)}, {s(sT+1)}, {WS_VM}")
    A(f"s_add_u32 {s(P)}, {s(sWS)}, {s(sT+2)}")
    A(f"s_addc_u32 {s(P+1)}, {s(sWS+1)}, 0")
    A(f"v_lshrrev_b32 {v(aM+18)}, 1, {v(wL16)}")
    for i in range(4):
        A(f"global_load_dwordx2 {v(aVM+2*i,2)}, {v(aM+18)}, {s(P,2)} offset:{i*512} {mod}")

def attn_setup(A):
    T = aM
    A(f"v_and_b32 {v(T)}, 15, {v(wLANE)}")
    A(f"v_lshrrev_b32 {v(T+1)}, 4, {v(wLANE)}")
    A(f"v_lshlrev_b32 {v(T+2)}, 2, {v(T+1)}")
    A(f"v_mov_b32 {v(T+4)}, 0xff000000")
    for r in range(4):
        A(f"v_add_u32 {v(T+3)}, {r}, {v(T+2)}")
        A(f"v_cmp_gt_u32 vcc, {v(T+3)}, {v(T)}")
        A(f"v_cndmask_b32 {v(aBI+r)}, 0, {v(T+4)}, vcc")
    A(f"v_mov_b32 {v(aP+2)}, 0"); A(f"v_mov_b32 {v(aP+3)}, 0")
    A(f"v_mov_b32 {v(aP+9)}, 0"); A(f"v_mov_b32 {v(aP+11)}, 0")
    A(f"v_lshrrev_b32 {v(T+2)}, 1, {v(T+1)}")
    A(f"v_lshl_add_u32 {v(T+2)}, {v(T+2)}, 5, {v(T)}")
    A(f"v_lshlrev_b32 {v(T+2)}, 4, {v(T+2)}")
    A(f"v_and_b32 {v(T+3)}, 1, {v(T+1)}")
    A(f"v_lshl_add_u32 {v(T+2)}, {v(T+3)}, 3, {v(T+2)}")
    A(f"s_lshl_b32 {s(sT)}, {s(sWAVE)}, 13")
    A(f"v_add_u32 {v(aOW)}, {s(sT)}, {v(T+2)}")
    A(f"s_mov_b32 {s(40)}, {f2u(SCALE_LOG2E):#x}")
    A(f"s_mov_b32 {s(41)}, {f2u(-SCALE_LOG2E):#x}")

def xlane(A, op, r, t):
    A(f"v_mov_b32 {v(t)}, {v(r)}")
    A(f"v_permlane16_swap_b32 {v(r)}, {v(t)}")
    A(f"{op} {v(r)}, {v(r)}, {v(t)}")
    A(f"v_mov_b32 {v(t)}, {v(r)}")
    A(f"v_permlane32_swap_b32 {v(r)}, {v(t)}")
    A(f"{op} {v(r)}, {v(r)}, {v(t)}")

def attention(A):
    S00,S01,S11,SM0,SM1 = aS, aS+4, aS+8, aS+12, aS+16
    def q(t,ks): return v(aQ+(t*4+ks)*4,4)
    def kx(t,ks): return v(aKX+(t*4+ks)*4,4)
    def km(ks): return v(aKM+4*ks,4)
    for ks in range(4):
        for (S,Aop,Bop,c0) in ((S00,kx(0,ks),q(0,ks),v(aBI,4)),(S01,kx(0,ks),q(1,ks),"0"),(S11,kx(1,ks),q(1,ks),v(aBI,4)),
                               (SM0,km(ks),q(0,ks),"0"),(SM1,km(ks),q(1,ks),"0")):
            c = c0 if ks == 0 else v(S,4)
            A(f"v_mfma_f32_16x16x32_bf16 {v(S,4)}, {Aop}, {Bop}, {c}")
    m0_,m1_,t0,t1 = aM, aM+1, aM+2, aM+3
    l0,l1 = aM+4, aM+5
    A(f"v_max3_f32 {v(m0_)}, {v(S00)}, {v(S00+1)}, {v(S00+2)}")
    A(f"v_max3_f32 {v(m0_)}, {v(m0_)}, {v(S00+3)}, {v(SM0)}")
    A(f"v_max_f32 {v(m0_)}, {v(m0_)}, {v(SM0+1)}")
    A(f"v_max3_f32 {v(m1_)}, {v(S01)}, {v(S01+1)}, {v(S01+2)}")
    A(f"v_max3_f32 {v(m1_)}, {v(m1_)}, {v(S01+3)}, {v(S11)}")
    A(f"v_max3_f32 {v(m1_)}, {v(m1_)}, {v(S11+1)}, {v(S11+2)}")
    A(f"v_max3_f32 {v(m1_)}, {v(m1_)}, {v(S11+3)}, {v(SM1)}")
    A(f"v_max_f32 {v(m1_)}, {v(m1_)}, {v(SM1+1)}")
    xlane(A, "v_max_f32", m0_, t0)
    xlane(A, "v_max_f32", m1_, t1)
    A(f"v_mul_f32 {v(m0_)}, {s(41)}, {v(m0_)}")
    A(f"v_mul_f32 {v(m1_)}, {s(41)}, {v(m1_)}")
    for (S,n,m) in ((S00,4,m0_),(SM0,2,m0_),(S01,4,m1_),(S11,4,m1_),(SM1,2,m1_)):
        for r in range(n):
            A(f"v_fma_f32 {v(S+r)}, {v(S+r)}, {s(40)}, {v(m)}")
            A(f"v_exp_f32 {v(S+r)}, {v(S+r)}")
    A(f"v_cvt_pk_bf16_f32 {v(aP)}, {v(S00)}, {v(S00+1)}")
    A(f"v_cvt_pk_bf16_f32 {v(aP+1)}, {v(S00+2)}, {v(S00+3)}")
    A(f"v_cvt_pk_bf16_f32 {v(aP+4)}, {v(S01)}, {v(S01+1)}")
    A(f"v_cvt_pk_bf16_f32 {v(aP+5)}, {v(S01+2)}, {v(S01+3)}")
    A(f"v_cvt_pk_bf16_f32 {v(aP+6)}, {v(S11)}, {v(S11+1)}")
    A(f"v_cvt_pk_bf16_f32 {v(aP+7)}, {v(S11+2)}, {v(S11+3)}")
    A(f"v_cvt_pk_bf16_f32 {v(aP+8)}, {v(SM0)}, {v(SM0+1)}")
    A(f"v_cvt_pk_bf16_f32 {v(aP+10)}, {v(SM1)}, {v(SM1+1)}")
    A(f"v_add_f32 {v(l0)}, {v(S00)}, {v(S00+1)}")
    for r in (S00+2,S00+3,SM0,SM0+1): A(f"v_add_f32 {v(l0)}, {v(l0)}, {v(r)}")
    A(f"v_add_f32 {v(l1)}, {v(S01)}, {v(S01+1)}")
    for r in (S01+2,S01+3,S11,S11+1,S11+2,S11+3,SM1,SM1+1): A(f"v_add_f32 {v(l1)}, {v(l1)}, {v(r)}")
    xlane(A, "v_add_f32", l0, t0)
    xlane(A, "v_add_f32", l1, t1)
    A(f"v_rcp_f32 {v(l0)}, {v(l0)}")
    A(f"v_rcp_f32 {v(l1)}, {v(l1)}")
    for th in range(2):
        Bx = v(aP+4*th,4); Bm = v(aP+8+2*th,2); l = (l0,l1)[th]
        for tau in range(8):
            vm = v(aVM+2*(tau>>1),2)
            A(f"v_mfma_f32_16x16x32_bf16 {v(aO+4*tau,4)}, {v(aVX+4*tau,4)}, {Bx}, 0")
        for tau in range(8):
            if tau & 1 == 0: a2 = v(aVM+2*(tau>>1),2)
            else: a2 = v(aM+8+2*(tau>>1),2)
            A(f"v_mfma_f32_16x16x16_bf16 {v(aO+4*tau,4)}, {a2}, {Bm}, {v(aO+4*tau,4)}")
        for tau in range(8):
            o = aO+4*tau
            for r in range(4): A(f"v_mul_f32 {v(o+r)}, {v(o+r)}, {v(l)}")
            A(f"v_cvt_pk_bf16_f32 {v(aM+16)}, {v(o)}, {v(o+1)}")
            A(f"v_cvt_pk_bf16_f32 {v(aM+17)}, {v(o+2)}, {v(o+3)}")
            A(f"ds_write_b64 {v(aOW)}, {v(aM+16,2)} offset:{tau*1024 + th*256}")

def attn_fix_vm(A):
    for i in range(4):
        A(f"v_mov_b32 {v(aM+8+2*i)}, {v(aVM+2*i+1)}")
        A(f"v_mov_b32 {v(aM+8+2*i+1)}, {v(aVM+2*i)}")

def gen_attn_body(A, seg_stride, st="", mod=""):
    A(f"s_lshr_b32 {s(sT+6)}, {s(sSL)}, 1")
    A(f"s_and_b32 {s(sT+7)}, {s(sSL)}, 1")
    A(f"s_lshl_b32 {s(sT)}, {s(sT+6)}, 19")
    A(f"s_lshl_b32 {s(sT+1)}, {s(sT+7)}, 9")
    A(f"s_add_u32 {s(sT)}, {s(sT)}, {s(sT+1)}")
    A(f"s_add_u32 {s(sWB)}, {s(68)}, {s(sT)}")
    A(f"s_addc_u32 {s(sWB+1)}, {s(69)}, 0")
    A(f"s_mov_b32 {s(sLDW)}, 1024")
    A(f"s_lshl_b32 {s(39)}, {s(sT+6)}, 2")
    A(f"s_add_u32 {s(39)}, {s(39)}, {s(sWAVE)}")
    A(f"s_lshl_b32 {s(38)}, {s(sT+6)}, 22")
    A(f"s_lshl_b32 {s(sT)}, {s(sT+7)}, 15")
    A(f"s_add_u32 {s(38)}, {s(38)}, {s(sT)}")
    A(f"s_lshl_b32 {s(sT)}, {s(sWAVE)}, 13")
    A(f"s_add_u32 {s(38)}, {s(38)}, {s(sT)}")
    A(f"s_add_u32 {s(38)}, {s(38)}, {WS_PA}")
    load_weights(A, 32, ffn=False, sigma=True)
    setup_a_addr(A, "f")
    A(f"v_add_u32 {v(wDM)}, 4096, {v(wL16)}")
    attn_setup(A)
    if USE_FLAGS:
        A(f"s_lshr_b32 {s(sT)}, {s(39)}, 1")
        A(f"s_lshl_b32 {s(54)}, 0x10001, {s(sT)}")
        A(f"s_lshl_b32 {s(55)}, 1, {s(sT)}")
        A(f"s_mov_b32 {s(56)}, {s(54)}")
        A(f"s_mov_b32 {s(57)}, 0")
        A(f"s_mov_b32 {s(52)}, -1")
    lab = A.label("L_aseg")
    A(f"{lab}:")
    if USE_FLAGS:
        flag_wait(A, sSEG, 0, 54, 55)
        attn_loads(A, mod, 1)
        A(f"s_lshl_b32 {s(56)}, 1, {s(39)}")
        A(f"s_cmp_eq_u32 {s(sSEG)}, 63")
        A(f"s_cselect_b32 {s(56)}, {s(56)}, {s(54)}")
        flag_wait(A, sSEG, 1, 56, 57)
        if WST: WST(3)
        attn_loads(A, mod, 2)
    else:
        attn_loads(A, mod)
    A(f"s_lshl_b32 {s(sT)}, {s(sSEG)}, 16")
    A(f"s_add_u32 {s(sT)}, {s(sT)}, {s(38)}")
    A(f"s_add_u32 {s(sOP)}, {s(sWS)}, {s(sT)}")
    A(f"s_addc_u32 {s(sOP+1)}, {s(sWS+1)}, 0")
    A("s_waitcnt vmcnt(0)")
    if WST and USE_FLAGS: WST(4)
    attn_fix_vm(A)
    attention(A)
    A("s_waitcnt lgkmcnt(0)")
    A("s_barrier")
    if WST and USE_FLAGS: WST(5)
    if USE_FLAGS:
        nf = A.label("L_nf")
        A(f"s_cmp_eq_u32 {s(52)}, -1")
        A(f"s_cbranch_scc1 {nf}")
        flag_set(A, 52, 1, idx_s=sSL, idx_c=FL2_PA)
        A(f"{nf}:")
        A(f"s_mov_b32 {s(52)}, {s(sSEG)}")
    mma_chunk(A, 32, "f", 0, transposed=True)
    A(f"v_xor_b32 {v(wAR)}, 32768, {v(wAR)}")
    A(f"v_xor_b32 {v(aOW)}, 32768, {v(aOW)}")
    if WST and USE_FLAGS: WST(6)
    epi_part(A, st)
    if USE_FLAGS:
        A("s_waitcnt vmcnt(0)")
        A("s_barrier")
        flag_set(A, 52, 1, idx_s=sSL, idx_c=FL2_PA)
        A(f"s_mov_b32 {s(52)}, -1")
    A(f"s_add_u32 {s(sSEG)}, {s(sSEG)}, {seg_stride}")
    A(f"s_sub_u32 {s(sCNT)}, {s(sCNT)}, 1")
    A(f"s_cmp_lg_u32 {s(sCNT)}, 0")
    A(f"s_cbranch_scc1 {lab}")


def gen_kvm_body(A):
    done = A.label("L_kvmdone"); lv = A.label("L_kvmv")
    A(f"s_cmp_ge_u32 {s(sSL)}, 16")
    A(f"s_cbranch_scc1 {lv}")
    for kind in ("k","v"):
        if kind == "v": A(f"{lv}:")
        ptr = 64 if kind == "k" else 66
        A(f"s_and_b32 {s(sT+6)}, {s(sSL)}, 15")
        A(f"s_lshl_b32 {s(sT)}, {s(sT+6)}, 9")
        A(f"s_add_u32 {s(sWB)}, {s(ptr)}, {s(sT)}")
        A(f"s_addc_u32 {s(sWB+1)}, {s(ptr+1)}, 0")
        A(f"s_mov_b32 {s(sLDW)}, 8192")
        A(f"s_lshr_b32 {s(sT)}, {s(sWAVE)}, 1")
        A(f"s_lshl_b32 {s(sT+1)}, {s(sT+6)}, 1")
        A(f"s_add_u32 {s(sT)}, {s(sT)}, {s(sT+1)}")
        A(f"s_lshl_b32 {s(37)}, {s(sT)}, 12")
        A(f"s_and_b32 {s(sT)}, {s(sWAVE)}, 1")
        A(f"s_lshl_b32 {s(sT)}, {s(sT)}, {11 if kind == 'k' else 10}")
        A(f"s_add_u32 {s(37)}, {s(37)}, {s(sT)}")
        load_weights(A, 32, ffn=False, sigma=(kind == "k"))
        setup_a_addr(A, "x")
        T = wT
        A(f"v_and_b32 {v(T)}, 15, {v(wLANE)}")
        A(f"v_lshrrev_b32 {v(T+1)}, 4, {v(wLANE)}")
        A(f"v_lshrrev_b32 {v(T+2)}, 2, {v(T)}")
        A(f"v_and_b32 {v(T+3)}, 1, {v(T)}")
        A(f"v_lshl_add_u32 {v(T+2)}, {v(T+2)}, 1, {v(T+3)}")
        A(f"v_bfe_u32 {v(T+3)}, {v(T)}, 1, 1")
        A(f"v_lshrrev_b32 {v(T+4)}, 1, {v(T+1)}")
        A(f"v_xor_b32 {v(T+4)}, {v(T+4)}, {v(T+2)}")
        A(f"v_lshlrev_b32 {v(T+4)}, 4, {v(T+4)}")
        A(f"v_lshl_add_u32 {v(T+4)}, {v(T+2)}, 10, {v(T+4)}")
        A(f"v_and_b32 {v(T+5)}, 1, {v(T+1)}")
        A(f"v_lshlrev_b32 {v(T+5)}, 3, {v(T+5)}")
        A(f"v_lshl_add_u32 {v(T+5)}, {v(T+3)}, 2, {v(T+5)}")
        A(f"v_add_u32 {v(T+4)}, {v(T+4)}, {v(T+5)}")
        A(f"s_lshl_b32 {s(sT)}, {s(sWAVE)}, 8")
        A(f"v_add_u32 {v(10)}, {s(sT)}, {v(T+4)}")
        A(f"s_lshl_b32 {s(sT)}, {s(sWAVE)}, 11")
        A(f"v_add_u32 {v(11)}, {s(sT)}, {v(wL16)}")
        if kind == "k":
            A(f"v_and_b32 {v(T)}, 7, {v(wLANE)}")
            A(f"v_lshrrev_b32 {v(T+1)}, 1, {v(T)}")
            A(f"v_and_b32 {v(T+2)}, 1, {v(T)}")
            A(f"v_lshl_add_u32 {v(T+1)}, {v(T+1)}, 2, {v(T+2)}")
            A(f"v_lshrrev_b32 {v(T+2)}, 5, {v(wLANE)}")
            A(f"v_lshl_add_u32 {v(T+1)}, {v(T+2)}, 4, {v(T+1)}")
            A(f"v_lshlrev_b32 {v(T+1)}, 4, {v(T+1)}")
            A(f"v_bfe_u32 {v(T+2)}, {v(wLANE)}, 3, 2")
            A(f"v_lshl_add_u32 {v(wE+20)}, {v(T+2)}, 17, {v(T+1)}")
        else:
            A(f"v_and_b32 {v(T)}, 15, {v(wLANE)}")
            A(f"v_bfe_u32 {v(T+1)}, {v(wLANE)}, 4, 1")
            A(f"v_lshrrev_b32 {v(T+2)}, 5, {v(wLANE)}")
            A(f"v_lshl_add_u32 {v(T+2)}, {v(T+2)}, 5, {v(T)}")
            A(f"v_lshlrev_b32 {v(T+2)}, 3, {v(T+2)}")
            A(f"v_lshl_add_u32 {v(wE+20)}, {v(T+1)}, 2, {v(T+2)}")
            for j in range(1,4): A(f"v_add_u32 {v(wE+20+j)}, {j*131072}, {v(wE+20)}")
        A(f"s_mov_b32 {s(sSEG)}, 0")
        A(f"s_add_u32 {s(sAP)}, {s(sWS)}, {WS_MEMP}")
        A(f"s_addc_u32 {s(sAP+1)}, {s(sWS+1)}, 0")
        lab = A.label("L_kvms")
        A(f"{lab}:")
        skip3 = A.label("L_kvm3")
        for q in range(4):
            pl = A.label("L_kvmp"); ok = A.label("L_kvmok")
            if q == 3:
                A(f"s_cmp_eq_u32 {s(sSEG)}, 60")
                A(f"s_cbranch_scc1 {skip3}")
            A(f"s_mov_b32 {s(49)}, 0")
            A(f"{pl}:")
            A(f"global_load_dwordx4 {v(32,4)}, {v(11)}, {s(sAP,2)} sc1")
            A(f"global_load_dwordx4 {v(36,4)}, {v(11)}, {s(sAP,2)} offset:1024 sc1")
            A(f"s_add_u32 {s(49)}, {s(49)}, 1")
            A(f"s_cmp_gt_u32 {s(49)}, 0x20000")
            A(f"s_cbranch_scc1 {ok}")
            A("s_waitcnt vmcnt(0)")
            A(f"v_max3_u32 {v(T)}, {v(32)}, {v(33)}, {v(34)}")
            A(f"v_max3_u32 {v(T+1)}, {v(35)}, {v(36)}, {v(37)}")
            A(f"v_max3_u32 {v(T)}, {v(T)}, {v(38)}, {v(39)}")
            A(f"v_max_u32 {v(T)}, {v(T)}, {v(T+1)}")
            A(f"v_cmp_eq_u32 vcc, -1, {v(T)}")
            A(f"s_cbranch_vccz {ok}")
            A("s_sleep 2")
            A(f"s_branch {pl}")
            A(f"{ok}:")
            A("s_waitcnt vmcnt(0)")
            A(f"v_xor_b32 {v(T+3)}, {(q&1)*128}, {v(10)}")
            A(f"v_add_u32 {v(T+3)}, {q*8192}, {v(T+3)}")
            for i in range(2):
                for qq in range(4):
                    A(f"v_xor_b32 {v(T+2)}, {(8*i+2*qq)*16}, {v(T+3)}")
                    for hi4 in range(2):
                        e8 = qq + 4*hi4
                        src = 32 + 4*i + (e8 >> 1)
                        op = "ds_write_b16_d16_hi" if (e8 & 1) else "ds_write_b16"
                        A(f"{op} {v(T+2)}, {v(src)} offset:{2*hi4}")
            A("s_waitcnt lgkmcnt(0)")
            A(f"s_add_u32 {s(sAP)}, {s(sAP)}, 8192")
            A(f"s_addc_u32 {s(sAP+1)}, {s(sAP+1)}, 0")
        A(f"{skip3}:")
        A("s_barrier")
        A(f"s_lshl_b32 {s(sT)}, {s(sSEG)}, 17")
        A(f"s_add_u32 {s(sT)}, {s(sT)}, {s(37)}")
        A(f"s_add_u32 {s(sT)}, {s(sT)}, {WS_KM if kind == 'k' else WS_VM}")
        A(f"s_add_u32 {s(sOP)}, {s(sWS)}, {s(sT)}")
        A(f"s_addc_u32 {s(sOP+1)}, {s(sWS+1)}, 0")
        mma_chunk(A, 32, "x", 0, transposed=(kind == "k"))
        for b in range(8): A(f"v_xor_b32 {v(wAR+b)}, 32768, {v(wAR+b)}")
        A(f"v_xor_b32 {v(10)}, 32768, {v(10)}")
        E = wE
        A(f"s_cmp_eq_u32 {s(sSEG)}, 60")
        A(f"s_cselect_b32 {s(50)}, 0x00ffffff, -1")
        if kind == "k":
            for Tt in range(2):
                for hf in range(2):
                    for d in range(4):
                        r = wAC + 16*Tt + 8*hf + 2*d
                        A(f"v_cvt_pk_bf16_f32 {v(E+8*Tt+4*hf+d)}, {v(r)}, {v(r+1)}")
            A(f"s_mov_b32 exec_lo, {s(50)}"); A(f"s_mov_b32 exec_hi, {s(50)}")
            for Tt in range(2):
                for hf in range(2):
                    A(f"global_store_dwordx4 {v(E+20)}, {v(E+8*Tt+4*hf,4)}, {s(sOP,2)} offset:{Tt*1024+hf*512} sc1")
            A("s_mov_b64 exec, -1")
        else:
            for Tt in range(2):
                for j in range(4):
                    r = wAC + 16*Tt + 4*j
                    A(f"v_cvt_pk_bf16_f32 {v(E+8*Tt+2*j)}, {v(r)}, {v(r+1)}")
                    A(f"v_cvt_pk_bf16_f32 {v(E+8*Tt+2*j+1)}, {v(r+2)}, {v(r+3)}")
                    sk = None
                    if j == 3:
                        sk = A.label("L_kv3"); A(f"s_cmp_eq_u32 {s(sSEG)}, 60"); A(f"s_cbranch_scc1 {sk}")
                    A(f"global_store_dword {v(E+20+j)}, {v(E+8*Tt+2*j)}, {s(sOP,2)} offset:{Tt*512} sc1")
                    A(f"global_store_dword {v(E+20+j)}, {v(E+8*Tt+2*j+1)}, {s(sOP,2)} offset:{Tt*512+128} sc1")
                    if sk: A(f"{sk}:")
        A("s_waitcnt vmcnt(0)")
        A("s_barrier")
        for q in range(4):
            sk = None
            if q == 3:
                sk = A.label("L_kf3"); A(f"s_cmp_eq_u32 {s(sSEG)}, 63"); A(f"s_cbranch_scc1 {sk}")
            flag_set(A, sSEG, 1, idx_s=sSL)
            if sk: A(f"{sk}:")
            A(f"s_add_u32 {s(sSEG)}, {s(sSEG)}, 1")
        A(f"s_cmp_lt_u32 {s(sSEG)}, 64")
        A(f"s_cbranch_scc1 {lab}")
        A(f"s_branch {done}")
    A(f"{done}:")

def gen_attn_kernel(A, name="attn_kernel"):
    A.raw(kstart(name))
    load_ptrs(A)
    A("s_cmp_ge_u32 s2, 256")
    A("s_cbranch_scc1 L_attn_exit")
    A(f"s_lshr_b32 {s(sSL)}, s2, 4")
    A(f"s_and_b32 {s(sSEG)}, s2, 15")
    A(f"s_mov_b32 {s(sCNT)}, 4")
    gen_attn_body(A, 16)
    A("L_attn_exit:")
    A("s_endpgm")

def gen_final_body(A, mod="", wait_pb=None, wait_pa=None):
    T = 12
    A(f"s_lshl_b32 {s(sT)}, {s(sWAVE)}, 6")
    A(f"v_add_u32 {v(T)}, {s(sT)}, {v(wLANE)}")
    A(f"v_lshrrev_b32 {v(T+1)}, 3, {v(T)}")
    A(f"v_and_b32 {v(T+2)}, 7, {v(T)}")
    A(f"v_lshlrev_b32 {v(T+3)}, 7, {v(T+2)}")
    A(f"v_lshl_add_u32 {v(T+4)}, {v(T+1)}, 10, {v(T+3)}")
    A(f"s_lshl_b32 {s(sT)}, {s(sSEG)}, 15")
    A(f"s_add_u32 {s(44)}, {s(60)}, {s(sT)}")
    A(f"s_addc_u32 {s(45)}, {s(61)}, 0")
    for i in range(8):
        A(f"global_load_dwordx4 {v(32+4*i,4)}, {v(T+4)}, {s(44,2)} offset:{16*i}")
        A(f"global_load_dwordx4 {v(64+4*i,4)}, {v(T+3)}, {s(76,2)} offset:{16*i}")
    A(f"s_lshr_b32 {s(sT)}, {s(sSL)}, 1")
    A(f"s_lshl_b32 {s(sT)}, {s(sT)}, 15")
    A(f"s_and_b32 {s(sT+1)}, {s(sSL)}, 1")
    A(f"s_lshl_b32 {s(sT+1)}, {s(sT+1)}, 12")
    A(f"s_add_u32 {s(sT)}, {s(sT)}, {s(sT+1)}")
    A(f"s_lshl_b32 {s(sT+1)}, {s(sWAVE)}, 13")
    A(f"s_add_u32 {s(sT)}, {s(sT)}, {s(sT+1)}")
    A(f"s_lshl_b32 {s(sT+1)}, {s(sSEG)}, 16")
    A(f"s_add_u32 {s(sT+2)}, {s(sT)}, {s(sT+1)}")
    A("s_waitcnt vmcnt(0)")
    A(f"v_mov_b32 {v(T+5)}, 0")
    for i in range(32):
        x = 32+i; g = 64+i
        A(f"v_lshlrev_b32 {v(T+6)}, 16, {v(x)}")
        A(f"v_and_b32 {v(T+7)}, 0xffff0000, {v(x)}")
        A(f"v_lshlrev_b32 {v(T+8)}, 16, {v(g)}")
        A(f"v_and_b32 {v(T+9)}, 0xffff0000, {v(g)}")
        A(f"v_mul_f32 {v(T+6)}, {v(T+6)}, {v(T+8)}")
        A(f"v_mul_f32 {v(T+7)}, {v(T+7)}, {v(T+9)}")
        A(f"v_cvt_pk_bf16_f32 {v(T+6)}, {v(T+6)}, {v(T+7)}")
        A(f"v_lshlrev_b32 {v(T+7)}, 16, {v(T+6)}")
        A(f"v_and_b32 {v(T+6)}, 0xffff0000, {v(T+6)}")
        A(f"v_add_f32 {v(T+5)}, {v(T+5)}, {v(T+7)}")
        A(f"v_add_f32 {v(T+5)}, {v(T+5)}, {v(T+6)}")
    A(f"v_add_f32_dpp {v(T+5)}, {v(T+5)}, {v(T+5)} quad_perm:[1,0,3,2] row_mask:0xf bank_mask:0xf")
    A(f"v_add_f32_dpp {v(T+5)}, {v(T+5)}, {v(T+5)} quad_perm:[2,3,0,1] row_mask:0xf bank_mask:0xf")
    A(f"v_add_f32_dpp {v(T+5)}, {v(T+5)}, {v(T+5)} row_half_mirror row_mask:0xf bank_mask:0xf")
    A(f"v_cvt_pk_bf16_f32 {v(T+5)}, {v(T+5)}, {v(T+5)}")
    A(f"v_lshlrev_b32 {v(T+5)}, 16, {v(T+5)}")
    A(f"v_mul_f32 {v(T+6)}, {f2u(-LOG2E):#x}, {v(T+5)}")
    A(f"v_exp_f32 {v(T+6)}, {v(T+6)}")
    A(f"v_add_f32 {v(T+6)}, 1.0, {v(T+6)}")
    A(f"v_rcp_f32 {v(T+6)}, {v(T+6)}")
    A(f"v_cvt_pk_bf16_f32 {v(T+6)}, {v(T+6)}, {v(T+6)}")
    A(f"v_lshlrev_b32 {v(T+6)}, 16, {v(T+6)}")
    A(f"v_lshlrev_b32 {v(T+7)}, 2, {v(T+1)}")
    A(f"v_add_u32 {v(T+7)}, 131072, {v(T+7)}")
    A(f"ds_write_b32 {v(T+7)}, {v(T+6)}")
    def load_parts(ps):
        for p in ps:
            base = (WS_PA + p*64*65536) if p < 8 else (WS_PB + (p-8)*64*65536)
            A(f"s_add_u32 {s(sT+3)}, {s(sT+2)}, {base}")
            A(f"s_add_u32 {s(44)}, {s(sWS)}, {s(sT+3)}")
            A(f"s_addc_u32 {s(45)}, {s(sWS+1)}, 0")
            for hq in range(4):
                A(f"global_load_dwordx4 {v(32+16*p+4*hq,4)}, {v(wL16)}, {s(44,2)} offset:{hq*1024} {mod}")
    if wait_pb: wait_pb()
    load_parts(range(8,12))
    A("s_waitcnt lgkmcnt(0)")
    A("s_barrier")
    A(f"v_and_b32 {v(T+7)}, 31, {v(wLANE)}")
    A(f"v_lshlrev_b32 {v(T+8)}, 2, {v(T+7)}")
    A(f"v_add_u32 {v(T+8)}, 131072, {v(T+8)}")
    A(f"ds_read_b32 {v(T+6)}, {v(T+8)}")
    if wait_pa: wait_pa()
    load_parts(range(0,8))
    A("s_waitcnt vmcnt(0) lgkmcnt(0)")
    A(f"v_sub_f32 {v(T+9)}, 1.0, {v(T+6)}")
    A(f"v_cvt_pk_bf16_f32 {v(T+9)}, {v(T+9)}, {v(T+9)}")
    A(f"v_lshlrev_b32 {v(T+9)}, 16, {v(T+9)}")
    for p in range(1,8):
        for r in range(0,16,2): A(f"v_pk_add_f32 {v(32+r,2)}, {v(32+r,2)}, {v(32+16*p+r,2)}")
    for p in range(9,12):
        for r in range(0,16,2): A(f"v_pk_add_f32 {v(160+r,2)}, {v(160+r,2)}, {v(32+16*p+r,2)}")
    for r in range(0,16,2):
        A(f"v_cvt_pk_bf16_f32 {v(T+10)}, {v(32+r)}, {v(32+r+1)}")
        A(f"v_cvt_pk_bf16_f32 {v(T+11)}, {v(160+r)}, {v(160+r+1)}")
        unpack2(A, 48, 49, T+10)
        unpack2(A, 50, 51, T+11)
        A(f"v_mul_f32 {v(48)}, {v(48)}, {v(T+6)}"); A(f"v_mul_f32 {v(49)}, {v(49)}, {v(T+6)}")
        A(f"v_mul_f32 {v(50)}, {v(50)}, {v(T+9)}"); A(f"v_mul_f32 {v(51)}, {v(51)}, {v(T+9)}")
        A(f"v_cvt_pk_bf16_f32 {v(T+10)}, {v(48)}, {v(49)}")
        A(f"v_cvt_pk_bf16_f32 {v(T+11)}, {v(50)}, {v(51)}")
        unpack2(A, 48, 49, T+10)
        unpack2(A, 50, 51, T+11)
        A(f"v_pk_add_f32 {v(48,2)}, {v(48,2)}, {v(50,2)}")
        A(f"v_cvt_pk_bf16_f32 {v(56 + r//2)}, {v(48)}, {v(49)}")
    A(f"s_lshr_b32 {s(sT)}, {s(sSL)}, 1")
    A(f"s_lshl_b32 {s(sT)}, {s(sT)}, 9")
    A(f"s_and_b32 {s(sT+1)}, {s(sSL)}, 1")
    A(f"s_lshl_b32 {s(sT+1)}, {s(sT+1)}, 6")
    A(f"s_add_u32 {s(sT)}, {s(sT)}, {s(sT+1)}")
    A(f"s_lshl_b32 {s(sT+1)}, {s(sWAVE)}, 7")
    A(f"s_add_u32 {s(sT)}, {s(sT)}, {s(sT+1)}")
    A(f"s_lshl_b32 {s(sT+1)}, {s(sSEG)}, 15")
    A(f"s_add_u32 {s(sT)}, {s(sT)}, {s(sT+1)}")
    A(f"s_add_u32 {s(44)}, {s(78)}, {s(sT)}")
    A(f"s_addc_u32 {s(45)}, {s(79)}, 0")
    A(f"v_lshrrev_b32 {v(T+8)}, 5, {v(wLANE)}")
    A(f"v_lshlrev_b32 {v(T+8)}, 4, {v(T+8)}")
    A(f"v_lshl_add_u32 {v(T+8)}, {v(T+7)}, 10, {v(T+8)}")
    A(f"global_store_dwordx4 {v(T+8)}, {v(56,4)}, {s(44,2)} {mod}")
    A(f"global_store_dwordx4 {v(T+8)}, {v(60,4)}, {s(44,2)} offset:32 {mod}")

def gen_final_kernel(A, name="final_kernel"):
    A.raw(kstart(name))
    load_ptrs(A)
    A("s_cmp_ge_u32 s2, 256")
    A("s_cbranch_scc1 L_fin_exit")
    A(f"s_lshr_b32 {s(sSEG)}, s2, 2")
    A(f"s_and_b32 {s(sSL)}, s2, 3")
    gen_final_body(A)
    A("L_fin_exit:")
    A("s_endpgm")

if __name__ == "__main__":
    import sys
    PROF = len(sys.argv) > 2
    A = Asm()
    names = ["proj_kernel","down_kernel","attn_kernel","final_kernel"]
    for n in names: A.raw(f"; @launch kernel={n} grid=(256,1,1) block=(256,1,1) lds=163840")
    A.raw('.amdgcn_target "amdgcn-amd-amdhsa--gfx950"')
    gen_proj_kernel(A); gen_down_kernel(A); gen_attn_kernel(A); gen_final_kernel(A)
    for n in names: A.raw(kd(n))
    open(sys.argv[1],"w").write(A.text())
    print("nops", A.nops, "lines", len(A.out))
```

```python
import sys
from asmlib import *
from layout import *
import chain10 as chain, workers as W
from engine import *
NAME = "gated_mix__memory_aug_recurrent_mem_tr__glu_gated_swiglu__prompt_kernel"
HDR = open("gated_mix__memory_aug_recurrent_mem_tr__glu_gated_swiglu__prompt.s.ref").read().split("; Override launch geometry")[0]

def gen(stamp=0, force_slow=False, wstamp=False, sst=0, dbgt=0, fake=0, wmod=0, **kw):
    chain.WMOD = ['sc1','nt',''][wmod]
    chain.STARTUP_STAMPS = bool(sst)
    W.USE_FLAGS = True
    A = Asm()
    A.raw(HDR.rstrip("\n"))
    A.raw("; @launch grid=(256,1,1) block=(256,1,1) lds=163840")
    A.raw('.amdgcn_target "amdgcn-amd-amdhsa--gfx950"')
    A.raw(kstart(NAME))
    A("s_cmp_ge_u32 s2, 256")
    A("s_cbranch_scc1 L_exit")
    if wstamp or dbgt: A("s_memrealtime s[94:95]")
    A(f"s_load_dwordx2 {s(6,2)}, s[0:1], {KA_DBG}")
    A(f"s_load_dwordx2 {s(4,2)}, s[0:1], {KA_WS}")
    A("s_getreg_b32 s12, hwreg(HW_REG_XCC_ID, 0, 4)")
    if fake == 1:
        A("s_and_b32 s13, s2, 15"); A("s_cmp_eq_u32 s13, 0"); A("s_cselect_b32 s12, 3, s12")
    if fake == 2:
        A("s_mov_b32 s12, 9")
    A("v_lshrrev_b32 v1, 6, v0")
    A("v_readfirstlane_b32 s8, v1")
    A("v_and_b32 v31, 63, v0")
    A("s_waitcnt lgkmcnt(0)")
    A("s_cmp_lg_u32 s8, 0")
    A("s_cbranch_scc0 L_w0")
    A("s_getpc_b64 s[16:17]")
    A("L_pc:")
    A("s_sub_u32 s18, s8, 1")
    A("s_mul_i32 s18, s18, 8192")
    A("s_add_u32 s16, s16, s18")
    A("s_addc_u32 s17, s17, 0")
    A("v_lshlrev_b32 v2, 7, v31")
    A("s_mov_b32 s19, (L_code_end - L_pc + 24575) / 24576")
    A("L_pfc:")
    A("global_load_dword a255, v2, s[16:17]")
    A("s_add_u32 s16, s16, 24576")
    A("s_addc_u32 s17, s17, 0")
    A("s_sub_u32 s19, s19, 1")
    A("s_cmp_lg_u32 s19, 0")
    A("s_cbranch_scc1 L_pfc")
    A("s_branch L_role")
    A("L_w0:")
    A("s_lshl_b32 s13, s12, 2")
    A(f"s_add_u32 s13, s13, {DBG_XCNT}")
    A("v_mov_b32 v2, s13")
    A("v_mov_b32 v3, 1")
    A("s_mov_b64 exec, 1")
    A("global_atomic_add v4, v2, v3, s[6:7] sc0")
    A("s_mov_b64 exec, -1")
    A("s_lshl_b32 s13, s2, 8")
    A(f"s_add_u32 s13, s13, {WS_FLAGS}")
    A("v_lshlrev_b32 v6, 2, v31")
    A("v_add_u32 v6, s13, v6")
    A("v_mov_b32 v7, 0")
    A("global_store_dword v6, v7, s[4:5] sc1")
    A("s_lshl_b32 s13, s2, 11")
    A(f"s_add_u32 s13, s13, {WS_MEMP}")
    A("v_lshlrev_b32 v6, 4, v31")
    A("v_add_u32 v6, s13, v6")
    for r in range(8,12): A(f"v_mov_b32 v{r}, -1")
    A("global_store_dwordx4 v6, v[8:11], s[4:5] sc1")
    A("global_store_dwordx4 v6, v[8:11], s[4:5] offset:1024 sc1")
    A("s_mov_b64 exec, 1")
    A("s_mov_b32 s20, 0")
    A("s_waitcnt vmcnt(3)")
    A("v_readfirstlane_b32 s15, v4")
    A("s_lshl_b32 s14, s12, 5")
    A("s_add_u32 s14, s14, s15")
    A("s_cmp_lt_u32 s15, 32")
    A("s_cbranch_scc0 L_ovf")
    A("s_cmp_lt_u32 s12, 8")
    A("s_cbranch_scc1 L_haverole")
    A("L_ovf:")
    A("s_waitcnt vmcnt(0)")
    A(f"v_mov_b32 v2, {DBG_FINIT}")
    A("global_atomic_add v2, v3, s[6:7]")
    A("s_mov_b32 s20, 1")
    A(f"v_mov_b32 v2, {DBG_FINIT}")
    A("s_mov_b32 s16, 0")
    A("L_ovfw:")
    A("global_load_dword v4, v2, s[6:7] sc1")
    A("s_add_u32 s16, s16, 1")
    A("s_mov_b32 s14, 0xffff")
    A("s_cmp_gt_u32 s16, 0x40000")
    A("s_cbranch_scc1 L_haverole")
    A("s_waitcnt vmcnt(0)")
    A("v_readfirstlane_b32 s17, v4")
    A("s_cmp_lt_u32 s17, 256")
    A("s_cbranch_scc1 L_ovfw")
    A(f"v_mov_b32 v2, {DBG_OVF}")
    A("global_atomic_add v4, v2, v3, s[6:7] sc0")
    A("s_waitcnt vmcnt(0)")
    A("v_readfirstlane_b32 s16, v4")
    A("s_mov_b32 s17, 0")
    A("L_ovfl:")
    A("s_lshl_b32 s13, s17, 2")
    A(f"s_add_u32 s13, s13, {DBG_XCNT}")
    A("v_mov_b32 v2, s13")
    A("global_load_dword v4, v2, s[6:7] sc1")
    A("s_waitcnt vmcnt(0)")
    A("v_readfirstlane_b32 s18, v4")
    A("s_min_u32 s18, s18, 32")
    A("s_sub_u32 s19, 32, s18")
    A("s_cmp_lt_u32 s16, s19")
    A("s_cbranch_scc1 L_ovfg")
    A("s_sub_u32 s16, s16, s19")
    A("s_add_u32 s17, s17, 1")
    A("s_cmp_lt_u32 s17, 8")
    A("s_cbranch_scc1 L_ovfl")
    A("s_mov_b32 s14, 0xffff")
    A("s_branch L_haverole")
    A("L_ovfg:")
    A("s_lshl_b32 s14, s17, 5")
    A("s_add_u32 s14, s14, s18")
    A("s_add_u32 s14, s14, s16")
    A("L_haverole:")
    A("v_mov_b32 v4, s14")
    A(f"v_mov_b32 v5, {L_MISC}")
    A("ds_write_b32 v5, v4")
    A("s_waitcnt lgkmcnt(0)")
    A("s_mov_b64 exec, -1")
    A("L_role:")
    A("s_barrier")
    A(f"v_mov_b32 v5, {L_MISC}")
    A("ds_read_b32 v4, v5")
    A("s_waitcnt lgkmcnt(0)")
    A("v_readfirstlane_b32 s14, v4")
    A("s_barrier")
    A("s_cmp_lg_u32 s8, 0")
    A("s_cbranch_scc1 L_cnt")
    A("s_cmp_lg_u32 s20, 0")
    A("s_cbranch_scc1 L_cnt")
    A("s_waitcnt vmcnt(0)")
    A(f"v_mov_b32 v2, {DBG_FINIT}")
    A("v_mov_b32 v3, 1")
    A("s_mov_b64 exec, 1")
    A("global_atomic_add v2, v3, s[6:7]")
    A("s_mov_b64 exec, -1")
    A("L_cnt:")
    A("s_cmp_ge_u32 s14, 256")
    A("s_cbranch_scc1 L_exit")
    A("s_cmp_ge_u32 s14, 32")
    A("s_cbranch_scc1 L_worker")
    A(f"s_mov_b32 {s(chain.sRANK)}, s14")
    A(f"s_load_dwordx2 {s(60,2)}, s[0:1], {KA_MEM0}")
    A(f"s_load_dwordx2 {s(62,2)}, s[0:1], {KA_WQ}")
    A(f"s_load_dwordx2 {s(64,2)}, s[0:1], {KA_WK}")
    A(f"s_load_dwordx2 {s(66,2)}, s[0:1], {KA_WV}")
    A(f"s_load_dwordx2 {s(68,2)}, s[0:1], {KA_WO}")
    A("s_waitcnt lgkmcnt(0)")
    chain.gen_chain(A, 64, 1 if dbgt else stamp, flags=True, force_slow=force_slow, **kw)
    if dbgt:
        A("s_cmp_lg_u32 s9, 0"); A("s_cbranch_scc1 L_dt1"); A("s_cmp_lg_u32 s8, 0"); A("s_cbranch_scc1 L_dt1")
        A("s_memrealtime s[86:87]"); A("s_waitcnt lgkmcnt(0)")
        for k,r in enumerate((80,82,84,86)):
            A(f"s_sub_u32 s12, s{r}, s94"); A("v_mov_b32 v25, s12"); A(f"v_mov_b32 v24, {32+4*k}")
            A("global_store_dword v24, v25, s[6:7]")
        A("s_waitcnt vmcnt(0)")
        A("L_dt1:")
    A("s_endpgm")
    A.hist = []
    A("L_worker:")
    A("s_sub_u32 s58, s14, 32")
    W.load_ptrs(A)
    W.flag_init_ptr(A)
    def wst(k):
        if wstamp:
            A(f"s_memrealtime {s(80+2*k,2)}")
    W.WST = wst if wstamp else None
    wst(0)
    def wait_cw():
        lab = A.label("L_wcw"); ok = A.label("L_wcwok")
        A("s_cmp_lg_u32 s8, 0")
        A(f"s_cbranch_scc1 {ok}")
        A(f"v_mov_b32 v254, {DBG_CW}")
        A("s_mov_b32 s49, 0")
        A(f"{lab}:")
        A("s_sleep 40")
        A("global_load_dword v255, v254, s[6:7] sc1")
        A("s_add_u32 s49, s49, 1")
        A("s_cmp_gt_u32 s49, 0x4000")
        A(f"s_cbranch_scc1 {ok}")
        A("s_waitcnt vmcnt(0)")
        A("v_cmp_gt_u32 vcc, 32, v255")
        A(f"s_cbranch_vccnz {lab}")
        A(f"{ok}:")
        A("s_barrier")
    A("s_cmp_lt_u32 s58, 128")
    A("s_cbranch_scc0 L_w1b")
    A(f"s_lshr_b32 {s(W.sSL)}, s58, 2")
    A("s_and_b32 s12, s58, 3")
    A("s_cmp_eq_u32 s12, 0")
    A("s_cbranch_scc0 L_w1p")
    A(f"s_and_b32 s12, {s(W.sSL)}, 15")
    A("s_lshl_b32 s12, s12, 18")
    A("s_lshl_b32 s13, s8, 16")
    A("s_add_u32 s12, s12, s13")
    A(f"s_cmp_lt_u32 {s(W.sSL)}, 16")
    A("s_cselect_b32 s14, s62, s68")
    A("s_cselect_b32 s15, s63, s69")
    A("s_add_u32 s14, s14, s12")
    A("s_addc_u32 s15, s15, 0")
    for i in range(60):
        A(f"global_load_dwordx4 v[{32+4*(i%48)}:{35+4*(i%48)}], v1, s[14:15]")
        A("s_add_u32 s14, s14, 1024")
        A("s_addc_u32 s15, s15, 0")
    for i in range(4):
        A(f"global_load_dwordx4 v[{32+4*i}:{35+4*i}], v1, s[14:15] offset:{i*1024}")
    A("s_waitcnt vmcnt(0)")
    wait_cw()
    W.wait_finit(A)
    W.gen_kvm_body(A)
    A("s_branch L_wend")
    A("L_w1p:")
    A(f"s_sub_u32 {s(sSEG)}, s12, 1")
    A("s_branch L_w1go")
    A("L_w1b:")
    A("s_cmp_lt_u32 s58, 218")
    A("s_cbranch_scc0 L_w2")
    wait_cw()
    A("s_sub_u32 s12, s58, 128")
    A("s_mul_i32 s13, s12, 21846")
    A("s_lshr_b32 s13, s13, 16")
    A(f"s_add_u32 {s(W.sSL)}, s13, 32")
    A("s_mul_i32 s13, s13, 3")
    A(f"s_sub_u32 {s(sSEG)}, s12, s13")
    A("L_w1go:")
    A(f"s_mov_b32 {s(W.sSTR)}, 3")
    A(f"s_cmp_eq_u32 {s(sSEG)}, 0")
    A(f"s_cselect_b32 {s(W.sCNT)}, 22, 21")
    W.gen_proj_body(A, st="sc1")
    A("L_w2:")
    W.wait_finit(A)
    wst(1)
    A("s_barrier")
    A("s_cmp_lt_u32 s58, 128")
    A("s_cbranch_scc1 L_w3")
    A("s_cmp_lt_u32 s58, 160")
    A("s_cbranch_scc0 L_w4")
    A("s_sub_u32 s12, s58, 128")
    A(f"s_lshr_b32 {s(W.sSL)}, s12, 2")
    A(f"s_and_b32 {s(sSEG)}, s12, 3")
    A(f"s_mov_b32 {s(W.sCNT)}, 16")
    W.gen_down_body(A, 4, st="sc1")
    A("s_branch L_wend")
    A("L_w3:")
    A("s_lshr_b32 s12, s58, 2")
    A("s_mul_i32 s12, s12, 3")
    A("s_and_b32 s13, s58, 3")
    A("s_add_u32 s12, s12, s13")
    A("s_sub_u32 s12, s12, 1")
    A(f"s_and_b32 {s(W.sSL)}, s12, 15")
    A(f"s_lshr_b32 {s(sSEG)}, s12, 4")
    A(f"s_cmp_lt_u32 {s(sSEG)}, 4")
    A(f"s_cselect_b32 {s(W.sCNT)}, 11, 10")
    W.gen_attn_body(A, 6, st="sc1", mod="sc1")
    A("s_branch L_wend")
    A("L_w4:")
    A("s_sub_u32 s59, s58, 160")
    A("L_w4loop:")
    A(f"s_lshr_b32 {s(sSEG)}, s59, 2")
    A(f"s_and_b32 {s(W.sSL)}, s59, 3")
    A(f"s_lshr_b32 s12, {s(W.sSL)}, 1")
    A("s_lshl_b32 s55, 0x550000, s12")
    A("s_lshl_b32 s57, 0x5555, s12")
    A("s_mov_b32 s54, 0")
    W.gen_final_body(A, mod="sc1", wait_pb=lambda: W.flag_wait(A, sSEG, 1, 54, 55), wait_pa=lambda: W.flag_wait(A, sSEG, 1, 54, 57))
    A("s_barrier")
    A("s_add_u32 s59, s59, 64")
    A("s_cmp_lt_u32 s59, 256")
    A("s_cbranch_scc1 L_w4loop")
    A("L_wend:")
    if dbgt:
        A("s_memrealtime s[86:87]"); A("s_waitcnt lgkmcnt(0)")
        A("s_sub_u32 s12, s86, s94"); A("v_mov_b32 v25, s12"); A("v_mov_b32 v24, 48")
        A("s_mov_b64 exec, 1"); A("global_atomic_umax v24, v25, s[6:7]"); A("s_mov_b64 exec, -1")
    wst(2)
    if wstamp:
        A("s_waitcnt lgkmcnt(0)")
        A("s_lshl_b32 s12, s58, 5")
        A(f"s_add_u32 s12, s12, {WS_END_CHAIN + 0x8000}")
        A("v_mov_b32 v24, s12")
        for k in range(3):
            A(f"v_mov_b32 v25, {s(80+2*k)}")
            A(f"global_store_dword v24, v25, s[4:5] offset:{4*k}")
        A("v_mov_b32 v25, s94")
        A("global_store_dword v24, v25, s[4:5] offset:12")
        for k in range(3,7):
            A(f"v_mov_b32 v25, {s(80+2*k)}")
            A(f"global_store_dword v24, v25, s[4:5] offset:{4*(k+1)}")
    A("s_waitcnt vmcnt(0)")
    A("L_exit:")
    A("s_endpgm")
    A.raw("L_code_end:")
    A.raw(".fill 6144, 4, 0xbf800000")
    A.raw(kd(NAME))
    return A

if __name__ == "__main__":
    kw = {}
    for x in sys.argv[2:]:
        k,val = x.split("="); kw[k] = int(val)
    A = gen(**kw)
    open(sys.argv[1], "w").write(A.text())
    print("nops", A.nops, "lines", len(A.out), "bytes", len(A.text()))
```

```python
from asmlib import *
from layout import *
from engine import *
import struct
def f2u(x): return struct.unpack("<I", struct.pack("<f", x))[0]
LOG2E = 1.4426950408889634
sIN = 60


sFLG=46
wFV=30
wFL=254
USE_FLAGS=False
def flag_init_ptr(A):
    A(f"s_add_u32 {s(sFLG)}, {s(sWS)}, {WS_FLAGS}")
    A(f"s_addc_u32 {s(sFLG+1)}, {s(sWS+1)}, 0")
def flag_set(A, seg_s, row, idx_s=None, idx_c=0):
    lab = A.label("L_fs")
    A(f"s_cmp_lg_u32 {s(sWAVE)}, 0")
    A(f"s_cbranch_scc1 {lab}")
    A.cbegin()
    A(f"s_lshl_b32 {s(48)}, {s(seg_s)}, 10")
    if idx_s is not None:
        A(f"s_lshl_b32 {s(49)}, {s(idx_s)}, 2")
        A(f"s_add_u32 {s(48)}, {s(48)}, {s(49)}")
    A(f"s_add_u32 {s(48)}, {s(48)}, {row*256 + idx_c*4}")
    A(f"v_mov_b32 {v(wFL)}, {s(48)}")
    A(f"v_mov_b32 {v(wFL+1)}, 1")
    A("s_mov_b64 exec, 1")
    A(f"global_store_dword {v(wFL)}, {v(wFL+1)}, {s(sFLG,2)} sc1")
    A("s_mov_b64 exec, -1")
    A.cend()
    A(f"{lab}:")
def flag_wait(A, seg_s, row, mask_lo_s, mask_hi_s, sleep=2):
    lab = A.label("L_fw"); ok = A.label("L_fwok")
    A(f"s_cmp_lg_u32 {s(sWAVE)}, 0")
    A(f"s_cbranch_scc1 {ok}")
    A(f"s_lshl_b32 {s(48)}, {s(seg_s)}, 10")
    A(f"s_add_u32 {s(48)}, {s(48)}, {row*256}")
    A(f"v_lshlrev_b32 {v(wFL)}, 2, {v(wLANE)}")
    A(f"v_add_u32 {v(wFL)}, {s(48)}, {v(wFL)}")
    A(f"s_mov_b32 {s(49)}, 0")
    A(f"{lab}:")
    A(f"global_load_dword {v(wFL+1)}, {v(wFL)}, {s(sFLG,2)} sc1")
    A(f"s_add_u32 {s(49)}, {s(49)}, 1")
    A(f"s_cmp_gt_u32 {s(49)}, 0x20000")
    A(f"s_cbranch_scc1 {ok}")
    A("s_waitcnt vmcnt(0)")
    A(f"v_cmp_ne_u32 vcc, 0, {v(wFL+1)}")
    A(f"s_and_b32 {s(50)}, vcc_lo, {s(mask_lo_s)}")
    A(f"s_and_b32 {s(51)}, vcc_hi, {s(mask_hi_s)}")
    A(f"s_xor_b32 {s(50)}, {s(50)}, {s(mask_lo_s)}")
    A(f"s_xor_b32 {s(51)}, {s(51)}, {s(mask_hi_s)}")
    A(f"s_or_b32 {s(50)}, {s(50)}, {s(51)}")
    A(f"s_cmp_eq_u32 {s(50)}, 0")
    A(f"s_cbranch_scc1 {ok}")
    A(f"s_sleep {sleep}")
    A(f"s_branch {lab}")
    A(f"{ok}:")
    A("s_barrier")
def wait_finit(A):
    lab = A.label("L_wfi"); ok = A.label("L_wfiok")
    A(f"s_cmp_lg_u32 {s(sWAVE)}, 0")
    A(f"s_cbranch_scc1 {ok}")
    A(f"v_mov_b32 {v(wFL)}, {DBG_FINIT}")
    A(f"s_mov_b32 {s(49)}, 0")
    A(f"{lab}:")
    A(f"global_load_dword {v(wFL+1)}, {v(wFL)}, {s(sDBG,2)} sc1")
    A(f"s_add_u32 {s(49)}, {s(49)}, 1")
    A(f"s_cmp_gt_u32 {s(49)}, 0x20000")
    A(f"s_cbranch_scc1 {ok}")
    A("s_waitcnt vmcnt(0)")
    A(f"v_cmp_gt_u32 vcc, 256, {v(wFL+1)}")
    A(f"s_cbranch_vccz {ok}")
    A("s_sleep 8")
    A(f"s_branch {lab}")
    A(f"{ok}:")
    A("s_barrier")

def load_ptrs(A):
    for reg,off in ((60,KA_X),(62,KA_WQ),(64,KA_WK),(66,KA_WV),(68,KA_WO),(70,KA_W1),(72,KA_W3),(74,KA_W2),(76,KA_GW),(78,KA_OUT),(sDBG,KA_DBG),(sWS,KA_WS)):
        A(f"s_load_dwordx2 {s(reg,2)}, s[0:1], {off}")
    A("v_lshrrev_b32 v1, 6, v0")
    A(f"v_readfirstlane_b32 {s(sWAVE)}, v1")
    A(f"v_and_b32 {v(wLANE)}, 63, v0")
    A(f"v_lshlrev_b32 {v(wL16)}, 4, {v(wLANE)}")
    A("s_waitcnt lgkmcnt(0)")

def dma_x_setup(A):
    A(f"s_and_b32 {s(sT)}, {s(sWAVE)}, 1")
    A(f"s_lshl_b32 {s(sT)}, {s(sT)}, 7")
    A(f"v_xor_b32 {v(wDM)}, {s(sT)}, {v(wL16)}")

def dma_x(A, slot_reg):
    A(f"s_lshl_b32 {s(sT)}, {s(sWAVE)}, 13")
    A(f"s_add_u32 {s(sT+4)}, {s(sAP)}, {s(sT)}")
    A(f"s_addc_u32 {s(sT+5)}, {s(sAP+1)}, 0")
    A(f"s_add_u32 {s(sT)}, {s(sT)}, {s(slot_reg)}")
    out = []
    for i in range(8):
        A(f"v_xor_b32 {v(wDM+1)}, {i*16}, {v(wDM)}")
        A(f"s_add_u32 m0, {s(sT)}, {i*1024}")
        A(f"global_load_lds_dwordx4 {v(wDM+1)}, {s(sT+4,2)}")
        if i < 7:
            A(f"s_add_u32 {s(sT+4)}, {s(sT+4)}, 1024")
            A(f"s_addc_u32 {s(sT+5)}, {s(sT+5)}, 0")

def dma_lin(A, slot_reg, nfrag=32, mod=""):
    per = nfrag // 4
    A(f"s_mul_i32 {s(sT)}, {s(sWAVE)}, {per*1024}")
    A(f"s_add_u32 {s(sT+4)}, {s(sAP)}, {s(sT)}")
    A(f"s_addc_u32 {s(sT+5)}, {s(sAP+1)}, 0")
    A(f"s_add_u32 {s(sT)}, {s(sT)}, {s(slot_reg)}")
    for i in range(0, per, 4):
        A(f"s_add_u32 m0, {s(sT)}, {i*1024}")
        for j in range(min(4, per-i)):
            A(f"global_load_lds_dwordx4 {v(wL16)}, {s(sT+4,2)} offset:{j*1024} {mod}")
        if i + 4 < per:
            A(f"s_add_u32 {s(sT+4)}, {s(sT+4)}, 4096")
            A(f"s_addc_u32 {s(sT+5)}, {s(sT+5)}, 0")

sSLOT=34; sCNT=35; sSL=36; sSTR=33

def epi_kq(A, st=""):
    E = wE
    for Tt in range(2):
        for hf in range(2):
            for d in range(4):
                r = wAC + 16*Tt + 8*hf + 2*d
                A(f"v_cvt_pk_bf16_f32 {v(E+8*Tt+4*hf+d)}, {v(r)}, {v(r+1)}")
            A(f"global_store_dwordx4 {v(E+20)}, {v(E+8*Tt+4*hf,4)}, {s(sOP,2)} offset:{Tt*1024+hf*512} {st}")

def epi_v(A, st=""):
    E = wE
    for Tt in range(2):
        for u in range(2):
            base = wAC + 16*Tt
            regs = [base+4*u, base+4*u+2, base+8+4*u, base+8+4*u+2]
            for d in range(4):
                A(f"v_cvt_pk_bf16_f32 {v(E+8*Tt+4*u+d)}, {v(regs[d])}, {v(regs[d]+1)}")
            A(f"global_store_dwordx4 {v(E+20)}, {v(E+8*Tt+4*u,4)}, {s(sOP,2)} offset:{Tt*2048+u*512} {st}")

def unpack2(A, dlo, dhi, src):
    A(f"v_lshlrev_b32 {v(dlo)}, 16, {v(src)}")
    A(f"v_and_b32 {v(dhi)}, 0xffff0000, {v(src)}")

def epi_ffn(A, st=""):
    E = wE
    G = wAC; U = wAC+16
    t = E+8
    for hf in range(2):
        for d in range(4):
            g = G + 8*hf + 2*d; u = U + 8*hf + 2*d
            A(f"v_cvt_pk_bf16_f32 {v(t)}, {v(g)}, {v(g+1)}")
            A(f"v_cvt_pk_bf16_f32 {v(t+1)}, {v(u)}, {v(u+1)}")
            unpack2(A, t+2, t+3, t)
            unpack2(A, t+6, t+7, t+1)
            A(f"v_pk_mul_f32 {v(t+4,2)}, {v(t+2,2)}, {s(40,2)}")
            A(f"v_exp_f32 {v(t+4)}, {v(t+4)}")
            A(f"v_exp_f32 {v(t+5)}, {v(t+5)}")
            A(f"v_pk_add_f32 {v(t+4,2)}, {v(t+4,2)}, {s(42,2)}")
            A(f"v_rcp_f32 {v(t+4)}, {v(t+4)}")
            A(f"v_rcp_f32 {v(t+5)}, {v(t+5)}")
            A(f"v_pk_mul_f32 {v(t+4,2)}, {v(t+4,2)}, {v(t+2,2)}")
            A(f"v_cvt_pk_bf16_f32 {v(t)}, {v(t+4)}, {v(t+5)}")
            unpack2(A, t+4, t+5, t)
            A(f"v_pk_mul_f32 {v(t+4,2)}, {v(t+4,2)}, {v(t+6,2)}")
            A(f"v_cvt_pk_bf16_f32 {v(E+4*hf+d)}, {v(t+4)}, {v(t+5)}")
        A(f"global_store_dwordx4 {v(wL16)}, {v(E+4*hf,4)}, {s(sOP,2)} offset:{hf*1024} {st}")

def epi_part(A, st=""):
    for Tt in range(2):
        for hq in range(4):
            r = wAC + 16*Tt + 4*hq
            off = Tt*4096 + hq*1024
            if off < 4096: A(f"global_store_dwordx4 {v(wL16)}, {v(r,4)}, {s(sOP,2)} offset:{off} {st}")
            else: A(f"global_store_dwordx4 {v(wDM)}, {v(r,4)}, {s(sOP,2)} offset:{off-4096} {st}")

PROF=False
WST=None
def pst(A,k):
    if PROF:
        A(f"s_memtime {s(90,2)}"); A("s_waitcnt lgkmcnt(0)")
        A(f"s_sub_u32 {s(92)}, {s(90)}, {s(93)}"); A(f"s_mov_b32 {s(93)}, {s(90)}"); A(f"s_add_u32 {s(94+k)}, {s(94+k)}, {s(92)}")
def seg_loop(A, kind, nseg_reg_init, seg_stride, ksteps=32, st=""):
    mode = "x"
    lab = A.label("L_seg")
    def set_ap():
        A(f"s_lshl_b32 {s(sT)}, {s(sSEG)}, 15")
        A(f"s_add_u32 {s(sAP)}, {s(60)}, {s(sT)}")
        A(f"s_addc_u32 {s(sAP+1)}, {s(61)}, 0")
    A(f"s_mov_b32 {s(sSLOT)}, 0")
    set_ap()
    dma_x(A, sSLOT)
    nst = 2 if kind == "ffn" else 4
    A(f"s_mov_b32 {s(52)}, -1")
    A(f"s_mov_b32 {s(53)}, -1")
    A("s_waitcnt vmcnt(0)")
    if PROF:
        for k in range(6): A(f"s_mov_b32 {s(94+k)}, 0")
        A(f"s_memtime {s(90,2)}"); A("s_waitcnt lgkmcnt(0)"); A(f"s_mov_b32 {s(93)}, {s(90)}")
    A(f"{lab}:")
    A(f"s_waitcnt vmcnt({nst})")
    A("s_barrier")
    pst(A,0)
    if USE_FLAGS:
        nf = A.label("L_nf")
        A(f"s_cmp_eq_u32 {s(52)}, -1")
        A(f"s_cbranch_scc1 {nf}")
        flag_set(A, 52, 0, idx_s=sSL)
        A(f"{nf}:")
        A(f"s_mov_b32 {s(52)}, {s(53)}")
        A(f"s_mov_b32 {s(53)}, {s(sSEG)}")
    if kind in ("k","q","v"):
        base = {"k":WS_KX,"q":WS_Q,"v":WS_VX}[kind]
        A(f"s_lshl_b32 {s(sT)}, {s(sSEG)}, 18")
        A(f"s_add_u32 {s(sT)}, {s(sT)}, {s(37)}")
        A(f"s_add_u32 {s(sT)}, {s(sT)}, {base}")
    else:
        A(f"s_mul_i32 {s(sT)}, {s(sSEG)}, {56*2048}")
        A(f"s_add_u32 {s(sT)}, {s(sT)}, {s(37)}")
        A(f"s_add_u32 {s(sT)}, {s(sT)}, {WS_H}")
    A(f"s_add_u32 {s(sOP)}, {s(sWS)}, {s(sT)}")
    A(f"s_addc_u32 {s(sOP+1)}, {s(sWS+1)}, 0")
    nx = A.label("L_nonext")
    A(f"s_add_u32 {s(sSEG)}, {s(sSEG)}, {s(sSTR)}")
    A(f"s_sub_u32 {s(sCNT)}, {s(sCNT)}, 1")
    A(f"s_xor_b32 {s(sSLOT)}, {s(sSLOT)}, 32768")
    A(f"s_cmp_eq_u32 {s(sCNT)}, 0")
    A(f"s_cbranch_scc1 {nx}")
    A.cbegin()
    set_ap()
    dma_x(A, sSLOT)
    A.cend()
    A(f"{nx}:")
    pst(A,1)
    mma_chunk(A, ksteps, mode, 0, transposed=(kind != "v"))
    pst(A,2)
    for b in range(8): A(f"v_xor_b32 {v(wAR+b)}, 32768, {v(wAR+b)}")
    if kind in ("k","q"): epi_kq(A, st)
    elif kind == "v": epi_v(A, st)
    else: epi_ffn(A, st)
    if USE_FLAGS:
        nfirst = A.label("L_nfirst")
        A(f"s_cmp_eq_u32 {s(52)}, -1")
        A(f"s_cbranch_scc0 {nfirst}")
        A(f"s_cmp_lt_u32 {s(53)}, 3")
        A(f"s_cbranch_scc0 {nfirst}")
        A("s_waitcnt vmcnt(0)")
        A("s_barrier")
        flag_set(A, 53, 0, idx_s=sSL)
        if WST: WST(5)
        A(f"{nfirst}:")
    pst(A,3)
    A(f"s_cmp_lg_u32 {s(sCNT)}, 0")
    A(f"s_cbranch_scc1 {lab}")
    if USE_FLAGS:
        A("s_waitcnt vmcnt(0)")
        A("s_barrier")
        nf2 = A.label("L_nf")
        A(f"s_cmp_eq_u32 {s(52)}, -1")
        A(f"s_cbranch_scc1 {nf2}")
        flag_set(A, 52, 0, idx_s=sSL)
        A(f"{nf2}:")
        flag_set(A, 53, 0, idx_s=sSL)

def gen_proj_body(A, st=""):
    done = A.label("L_pdone")
    lk, lv, lq, lf = [A.label(x) for x in ("L_pk","L_pv","L_pq","L_pf")]
    A(f"s_cmp_lt_u32 {s(sSL)}, 16"); A(f"s_cbranch_scc1 {lk}")
    A(f"s_cmp_lt_u32 {s(sSL)}, 32"); A(f"s_cbranch_scc1 {lv}")
    A(f"s_cmp_lt_u32 {s(sSL)}, 48"); A(f"s_cbranch_scc1 {lq}")
    A(f"s_branch {lf}")
    for kind,lab,first,ptr in (("k",lk,0,64),("v",lv,16,66),("q",lq,32,62)):
        A(f"{lab}:")
        A(f"s_sub_u32 {s(sT+6)}, {s(sSL)}, {first}")
        A(f"s_lshl_b32 {s(sT)}, {s(sT+6)}, 9")
        A(f"s_add_u32 {s(sWB)}, {s(ptr)}, {s(sT)}")
        A(f"s_addc_u32 {s(sWB+1)}, {s(ptr+1)}, 0")
        A(f"s_mov_b32 {s(sLDW)}, 8192")
        A(f"s_lshr_b32 {s(sT)}, {s(sWAVE)}, 1")
        A(f"s_lshl_b32 {s(sT+1)}, {s(sT+6)}, 1")
        A(f"s_add_u32 {s(sT)}, {s(sT)}, {s(sT+1)}")
        A(f"s_lshl_b32 {s(37)}, {s(sT)}, 13")
        A(f"s_and_b32 {s(sT)}, {s(sWAVE)}, 1")
        A(f"s_lshl_b32 {s(sT)}, {s(sT)}, {11 if kind != 'v' else 12}")
        A(f"s_add_u32 {s(37)}, {s(37)}, {s(sT)}")
        if WST: WST(3)
        load_weights(A, 32, ffn=False, sigma=(kind != "v"))
        if WST: WST(4)
        if USE_FLAGS: wait_finit(A)
        setup_a_addr(A, "x"); dma_x_setup(A)
        T = wT
        if kind != "v":
            A(f"v_bfe_u32 {v(T)}, {v(wLANE)}, 4, 1")
            A(f"v_lshrrev_b32 {v(T+1)}, 5, {v(wLANE)}")
            A(f"v_and_b32 {v(T+2)}, 15, {v(wLANE)}")
            A(f"v_lshl_add_u32 {v(T+1)}, {v(T+1)}, 4, {v(T+2)}")
            A(f"v_lshlrev_b32 {v(T+1)}, 4, {v(T+1)}")
            A(f"v_lshl_add_u32 {v(wE+20)}, {v(T)}, 12, {v(T+1)}")
        else:
            A(f"v_bfe_u32 {v(T)}, {v(wLANE)}, 4, 1")
            A(f"v_lshrrev_b32 {v(T+1)}, 5, {v(wLANE)}")
            A(f"v_and_b32 {v(T+2)}, 15, {v(wLANE)}")
            A(f"v_lshl_add_u32 {v(T+1)}, {v(T+1)}, 4, {v(T+2)}")
            A(f"v_lshlrev_b32 {v(T+1)}, 4, {v(T+1)}")
            A(f"v_lshl_add_u32 {v(wE+20)}, {v(T)}, 10, {v(T+1)}")
        seg_loop(A, kind, None, 4, 32, st)
        A(f"s_branch {done}")
    A(f"{lf}:")
    A(f"s_sub_u32 {s(sT+6)}, {s(sSL)}, 48")
    A(f"s_lshl_b32 {s(sT)}, {s(sT+6)}, 8")
    A(f"s_add_u32 {s(sWB)}, {s(70)}, {s(sT)}")
    A(f"s_addc_u32 {s(sWB+1)}, {s(71)}, 0")
    A(f"s_add_u32 {s(sWB2)}, {s(72)}, {s(sT)}")
    A(f"s_addc_u32 {s(sWB2+1)}, {s(73)}, 0")
    A(f"s_mov_b32 {s(sLDW)}, 3584")
    A(f"s_lshl_b32 {s(sT)}, {s(sT+6)}, 2")
    A(f"s_add_u32 {s(sT)}, {s(sT)}, {s(sWAVE)}")
    A(f"s_lshl_b32 {s(37)}, {s(sT)}, 11")
    A(f"s_mov_b32 {s(40)}, {f2u(-LOG2E):#x}"); A(f"s_mov_b32 {s(41)}, {f2u(-LOG2E):#x}")
    A(f"s_mov_b32 {s(42)}, 1.0"); A(f"s_mov_b32 {s(43)}, 1.0")
    load_weights(A, 32, ffn=True, sigma=True)
    if USE_FLAGS: wait_finit(A)
    setup_a_addr(A, "x"); dma_x_setup(A)
    seg_loop(A, "ffn", None, 4, 32, st)
    A(f"{done}:")

def gen_proj_kernel(A, name="proj_kernel"):
    A.raw(kstart(name))
    load_ptrs(A)
    A("s_cmp_ge_u32 s2, 248")
    A("s_cbranch_scc1 L_proj_exit")
    A(f"s_lshr_b32 {s(sSL)}, s2, 2")
    A(f"s_and_b32 {s(sSEG)}, s2, 3")
    A(f"s_mov_b32 {s(sCNT)}, 16")
    A(f"s_mov_b32 {s(sSTR)}, 4")
    if PROF:
        A(f"s_memtime {s(88,2)}"); A("s_waitcnt lgkmcnt(0)")
    gen_proj_body(A)
    if PROF:
        A(f"s_memtime {s(90,2)}"); A("s_waitcnt lgkmcnt(0)")
        A(f"s_sub_u32 {s(98)}, {s(90)}, {s(88)}")
        A(f"s_lshl_b32 {s(12)}, s2, 5"); A(f"s_add_u32 {s(12)}, {s(12)}, {WS_END_CHAIN}")
        A(f"v_mov_b32 v24, {s(12)}")
        for k in range(5):
            A(f"v_mov_b32 v25, {s(94+k)}"); A(f"global_store_dword v24, v25, {s(sWS,2)} offset:{4*k}")
        A("s_waitcnt vmcnt(0)")
    A("L_proj_exit:")
    A("s_endpgm")

def part_loop(A, ksteps, src, st="", seg_stride=1, pre=None):
    lab = A.label("L_seg")
    def set_ap():
        A(f"s_mul_i32 {s(sT)}, {s(sSEG)}, {56*2048}")
        A(f"s_add_u32 {s(sT)}, {s(sT)}, {s(37)}")
        A(f"s_add_u32 {s(sAP)}, {s(sWS)}, {s(sT)}")
        A(f"s_addc_u32 {s(sAP+1)}, {s(sWS+1)}, 0")
    mod = "sc1" if USE_FLAGS else ""
    A(f"s_mov_b32 {s(sSLOT)}, 0")
    if USE_FLAGS:
        wl = A.label("L_dw")
        A(f"s_mov_b32 {s(52)}, {s(sSEG)}")
        A(f"s_mov_b32 {s(53)}, {s(sCNT)}")
        A(f"{wl}:")
        flag_wait(A, 52, 0, 54, 55)
        A(f"s_add_u32 {s(52)}, {s(52)}, {seg_stride}")
        A(f"s_sub_u32 {s(53)}, {s(53)}, 1")
        A(f"s_cmp_lg_u32 {s(53)}, 0")
        A(f"s_cbranch_scc1 {wl}")
    set_ap()
    dma_lin(A, sSLOT, ksteps, mod)
    A(f"s_mov_b32 {s(52)}, -1")
    A(f"s_mov_b32 {s(53)}, -1")
    A("s_waitcnt vmcnt(0)")
    A(f"{lab}:")
    A("s_waitcnt vmcnt(8)")
    A("s_barrier")
    if USE_FLAGS:
        nf = A.label("L_nf")
        A(f"s_cmp_eq_u32 {s(52)}, -1")
        A(f"s_cbranch_scc1 {nf}")
        flag_set(A, 52, 1, idx_s=sSL, idx_c=FL2_PB)
        A(f"{nf}:")
        A(f"s_mov_b32 {s(52)}, {s(53)}")
        A(f"s_mov_b32 {s(53)}, {s(sSEG)}")
    A(f"s_lshl_b32 {s(sT)}, {s(sSEG)}, 16")
    A(f"s_add_u32 {s(sT)}, {s(sT)}, {s(38)}")
    A(f"s_add_u32 {s(sOP)}, {s(sWS)}, {s(sT)}")
    A(f"s_addc_u32 {s(sOP+1)}, {s(sWS+1)}, 0")
    nx = A.label("L_nonext")
    A(f"s_add_u32 {s(sSEG)}, {s(sSEG)}, {seg_stride}")
    A(f"s_sub_u32 {s(sCNT)}, {s(sCNT)}, 1")
    A(f"s_xor_b32 {s(sSLOT)}, {s(sSLOT)}, 32768")
    A(f"s_cmp_eq_u32 {s(sCNT)}, 0")
    A(f"s_cbranch_scc1 {nx}")
    A.cbegin()
    set_ap()
    dma_lin(A, sSLOT, ksteps, mod)
    A.cend()
    A(f"{nx}:")
    mma_chunk(A, ksteps, "f", 0, transposed=True)
    A(f"v_xor_b32 {v(wAR)}, 32768, {v(wAR)}")
    epi_part(A, st)
    A(f"s_cmp_lg_u32 {s(sCNT)}, 0")
    A(f"s_cbranch_scc1 {lab}")
    if USE_FLAGS:
        A("s_waitcnt vmcnt(0)")
        A("s_barrier")
        nf2 = A.label("L_nf")
        A(f"s_cmp_eq_u32 {s(52)}, -1")
        A(f"s_cbranch_scc1 {nf2}")
        flag_set(A, 52, 1, idx_s=sSL, idx_c=FL2_PB)
        A(f"{nf2}:")
        flag_set(A, 53, 1, idx_s=sSL, idx_c=FL2_PB)

def gen_down_body(A, seg_stride, st=""):
    done = A.label("L_ddone"); l3 = A.label("L_d3")
    A(f"s_lshr_b32 {s(sT+6)}, {s(sSL)}, 1")
    A(f"s_and_b32 {s(sT+7)}, {s(sSL)}, 1")
    A(f"s_lshl_b32 {s(sT)}, {s(sT+6)}, 19")
    A(f"s_lshl_b32 {s(sT+1)}, {s(sT+7)}, 9")
    A(f"s_add_u32 {s(sT)}, {s(sT)}, {s(sT+1)}")
    A(f"s_add_u32 {s(sWB)}, {s(74)}, {s(sT)}")
    A(f"s_addc_u32 {s(sWB+1)}, {s(75)}, 0")
    A(f"s_mov_b32 {s(sLDW)}, 1024")
    A(f"s_lshl_b32 {s(37)}, {s(sT+6)}, 15")
    A(f"s_add_u32 {s(37)}, {s(37)}, {WS_H}")
    A(f"s_lshl_b32 {s(38)}, {s(sT+6)}, 22")
    A(f"s_lshl_b32 {s(sT)}, {s(sT+7)}, 15")
    A(f"s_add_u32 {s(38)}, {s(38)}, {s(sT)}")
    A(f"s_lshl_b32 {s(sT)}, {s(sWAVE)}, 13")
    A(f"s_add_u32 {s(38)}, {s(38)}, {s(sT)}")
    A(f"s_add_u32 {s(38)}, {s(38)}, {WS_PB}")
    A(f"v_add_u32 {v(wDM)}, 4096, {v(wL16)}")
    A(f"s_mov_b32 {s(54)}, 0")
    A(f"s_lshl_b32 {s(sT)}, {s(sT+6)}, 2")
    A(f"s_add_u32 {s(sT)}, {s(sT)}, 16")
    A(f"s_lshl_b32 {s(55)}, 15, {s(sT)}")
    A(f"s_and_b32 {s(55)}, {s(55)}, 0x3fffffff")
    A(f"s_cmp_eq_u32 {s(sT+6)}, 3")
    A(f"s_cbranch_scc1 {l3}")
    for ksteps,lab in ((32,None),(16,l3)):
        if lab: A(f"{lab}:")
        load_weights(A, ksteps, ffn=False, sigma=True)
        setup_a_addr(A, "f")
        part_loop(A, ksteps, "h", st, seg_stride)
        A(f"s_branch {done}")
    A(f"{done}:")

def gen_down_kernel(A, name="down_kernel"):
    A.raw(kstart(name))
    load_ptrs(A)
    A("s_cmp_ge_u32 s2, 256")
    A("s_cbranch_scc1 L_down_exit")
    A(f"s_lshr_b32 {s(sSL)}, s2, 5")
    A(f"s_and_b32 {s(sSEG)}, s2, 31")
    A(f"s_mov_b32 {s(sCNT)}, 2")
    gen_down_body(A, 32)
    A("L_down_exit:")
    A("s_endpgm")

SCALE_LOG2E = (128.0 ** -0.5) * LOG2E
aQ=96; aKX=128; aKM=160; aVX=176; aVM=208
aS=216
aBI=236
aP=240
aT=252
aO=64
aOW=11
aM=12

def attn_loads(A, mod="", part=0):
    P = 44
    A(f"s_lshl_b32 {s(sT)}, {s(sSEG)}, 5")
    A(f"s_add_u32 {s(sT)}, {s(sT)}, {s(39)}")
    A(f"s_lshl_b32 {s(sT+1)}, {s(sT)}, 13")
    for (base, reg, n) in (((WS_Q,aQ,8),(WS_KX,aKX,8),(WS_VX,aVX,8)) if part in (0,1) else ()):
        A(f"s_add_u32 {s(sT+2)}, {s(sT+1)}, {base}")
        A(f"s_add_u32 {s(P)}, {s(sWS)}, {s(sT+2)}")
        A(f"s_addc_u32 {s(P+1)}, {s(sWS+1)}, 0")
        for i in range(n):
            if i == 4:
                A(f"s_add_u32 {s(P)}, {s(P)}, 4096")
                A(f"s_addc_u32 {s(P+1)}, {s(P+1)}, 0")
            A(f"global_load_dwordx4 {v(reg+4*i,4)}, {v(wL16)}, {s(P,2)} offset:{(i&3)*1024} {mod}")
    if part == 1: return
    A(f"s_lshl_b32 {s(sT+1)}, {s(sT)}, 12")
    A(f"s_add_u32 {s(sT+2)}, {s(sT+1)}, {WS_KM}")
    A(f"s_add_u32 {s(P)}, {s(sWS)}, {s(sT+2)}")
    A(f"s_addc_u32 {s(P+1)}, {s(sWS+1)}, 0")
    for i in range(4):
        A(f"global_load_dwordx4 {v(aKM+4*i,4)}, {v(wL16)}, {s(P,2)} offset:{i*1024} {mod}")
    A(f"s_add_u32 {s(sT+2)}, {s(sT+1)}, {WS_VM}")
    A(f"s_add_u32 {s(P)}, {s(sWS)}, {s(sT+2)}")
    A(f"s_addc_u32 {s(P+1)}, {s(sWS+1)}, 0")
    A(f"v_lshrrev_b32 {v(aM+18)}, 1, {v(wL16)}")
    for i in range(4):
        A(f"global_load_dwordx2 {v(aVM+2*i,2)}, {v(aM+18)}, {s(P,2)} offset:{i*512} {mod}")

def attn_setup(A):
    T = aM
    A(f"v_and_b32 {v(T)}, 15, {v(wLANE)}")
    A(f"v_lshrrev_b32 {v(T+1)}, 4, {v(wLANE)}")
    A(f"v_lshlrev_b32 {v(T+2)}, 2, {v(T+1)}")
    A(f"v_mov_b32 {v(T+4)}, 0xff000000")
    for r in range(4):
        A(f"v_add_u32 {v(T+3)}, {r}, {v(T+2)}")
        A(f"v_cmp_gt_u32 vcc, {v(T+3)}, {v(T)}")
        A(f"v_cndmask_b32 {v(aBI+r)}, 0, {v(T+4)}, vcc")
    A(f"v_mov_b32 {v(aP+2)}, 0"); A(f"v_mov_b32 {v(aP+3)}, 0")
    A(f"v_mov_b32 {v(aP+9)}, 0"); A(f"v_mov_b32 {v(aP+11)}, 0")
    A(f"v_lshrrev_b32 {v(T+2)}, 1, {v(T+1)}")
    A(f"v_lshl_add_u32 {v(T+2)}, {v(T+2)}, 5, {v(T)}")
    A(f"v_lshlrev_b32 {v(T+2)}, 4, {v(T+2)}")
    A(f"v_and_b32 {v(T+3)}, 1, {v(T+1)}")
    A(f"v_lshl_add_u32 {v(T+2)}, {v(T+3)}, 3, {v(T+2)}")
    A(f"s_lshl_b32 {s(sT)}, {s(sWAVE)}, 13")
    A(f"v_add_u32 {v(aOW)}, {s(sT)}, {v(T+2)}")
    A(f"s_mov_b32 {s(40)}, {f2u(SCALE_LOG2E):#x}")
    A(f"s_mov_b32 {s(41)}, {f2u(-SCALE_LOG2E):#x}")

def xlane(A, op, r, t):
    A(f"v_mov_b32 {v(t)}, {v(r)}")
    A(f"v_permlane16_swap_b32 {v(r)}, {v(t)}")
    A(f"{op} {v(r)}, {v(r)}, {v(t)}")
    A(f"v_mov_b32 {v(t)}, {v(r)}")
    A(f"v_permlane32_swap_b32 {v(r)}, {v(t)}")
    A(f"{op} {v(r)}, {v(r)}, {v(t)}")

def attention(A):
    S00,S01,S11,SM0,SM1 = aS, aS+4, aS+8, aS+12, aS+16
    def q(t,ks): return v(aQ+(t*4+ks)*4,4)
    def kx(t,ks): return v(aKX+(t*4+ks)*4,4)
    def km(ks): return v(aKM+4*ks,4)
    for ks in range(4):
        for (S,Aop,Bop,c0) in ((S00,kx(0,ks),q(0,ks),v(aBI,4)),(S01,kx(0,ks),q(1,ks),"0"),(S11,kx(1,ks),q(1,ks),v(aBI,4)),
                               (SM0,km(ks),q(0,ks),"0"),(SM1,km(ks),q(1,ks),"0")):
            c = c0 if ks == 0 else v(S,4)
            A(f"v_mfma_f32_16x16x32_bf16 {v(S,4)}, {Aop}, {Bop}, {c}")
    m0_,m1_,t0,t1 = aM, aM+1, aM+2, aM+3
    l0,l1 = aM+4, aM+5
    A(f"v_max3_f32 {v(m0_)}, {v(S00)}, {v(S00+1)}, {v(S00+2)}")
    A(f"v_max3_f32 {v(m0_)}, {v(m0_)}, {v(S00+3)}, {v(SM0)}")
    A(f"v_max_f32 {v(m0_)}, {v(m0_)}, {v(SM0+1)}")
    A(f"v_max3_f32 {v(m1_)}, {v(S01)}, {v(S01+1)}, {v(S01+2)}")
    A(f"v_max3_f32 {v(m1_)}, {v(m1_)}, {v(S01+3)}, {v(S11)}")
    A(f"v_max3_f32 {v(m1_)}, {v(m1_)}, {v(S11+1)}, {v(S11+2)}")
    A(f"v_max3_f32 {v(m1_)}, {v(m1_)}, {v(S11+3)}, {v(SM1)}")
    A(f"v_max_f32 {v(m1_)}, {v(m1_)}, {v(SM1+1)}")
    xlane(A, "v_max_f32", m0_, t0)
    xlane(A, "v_max_f32", m1_, t1)
    A(f"v_mul_f32 {v(m0_)}, {s(41)}, {v(m0_)}")
    A(f"v_mul_f32 {v(m1_)}, {s(41)}, {v(m1_)}")
    for (S,n,m) in ((S00,4,m0_),(SM0,2,m0_),(S01,4,m1_),(S11,4,m1_),(SM1,2,m1_)):
        for r in range(n):
            A(f"v_fma_f32 {v(S+r)}, {v(S+r)}, {s(40)}, {v(m)}")
            A(f"v_exp_f32 {v(S+r)}, {v(S+r)}")
    A(f"v_cvt_pk_bf16_f32 {v(aP)}, {v(S00)}, {v(S00+1)}")
    A(f"v_cvt_pk_bf16_f32 {v(aP+1)}, {v(S00+2)}, {v(S00+3)}")
    A(f"v_cvt_pk_bf16_f32 {v(aP+4)}, {v(S01)}, {v(S01+1)}")
    A(f"v_cvt_pk_bf16_f32 {v(aP+5)}, {v(S01+2)}, {v(S01+3)}")
    A(f"v_cvt_pk_bf16_f32 {v(aP+6)}, {v(S11)}, {v(S11+1)}")
    A(f"v_cvt_pk_bf16_f32 {v(aP+7)}, {v(S11+2)}, {v(S11+3)}")
    A(f"v_cvt_pk_bf16_f32 {v(aP+8)}, {v(SM0)}, {v(SM0+1)}")
    A(f"v_cvt_pk_bf16_f32 {v(aP+10)}, {v(SM1)}, {v(SM1+1)}")
    A(f"v_add_f32 {v(l0)}, {v(S00)}, {v(S00+1)}")
    for r in (S00+2,S00+3,SM0,SM0+1): A(f"v_add_f32 {v(l0)}, {v(l0)}, {v(r)}")
    A(f"v_add_f32 {v(l1)}, {v(S01)}, {v(S01+1)}")
    for r in (S01+2,S01+3,S11,S11+1,S11+2,S11+3,SM1,SM1+1): A(f"v_add_f32 {v(l1)}, {v(l1)}, {v(r)}")
    xlane(A, "v_add_f32", l0, t0)
    xlane(A, "v_add_f32", l1, t1)
    A(f"v_rcp_f32 {v(l0)}, {v(l0)}")
    A(f"v_rcp_f32 {v(l1)}, {v(l1)}")
    for th in range(2):
        Bx = v(aP+4*th,4); Bm = v(aP+8+2*th,2); l = (l0,l1)[th]
        for tau in range(8):
            vm = v(aVM+2*(tau>>1),2)
            A(f"v_mfma_f32_16x16x32_bf16 {v(aO+4*tau,4)}, {v(aVX+4*tau,4)}, {Bx}, 0")
        for tau in range(8):
            if tau & 1 == 0: a2 = v(aVM+2*(tau>>1),2)
            else: a2 = v(aM+8+2*(tau>>1),2)
            A(f"v_mfma_f32_16x16x16_bf16 {v(aO+4*tau,4)}, {a2}, {Bm}, {v(aO+4*tau,4)}")
        for tau in range(8):
            o = aO+4*tau
            for r in range(4): A(f"v_mul_f32 {v(o+r)}, {v(o+r)}, {v(l)}")
            A(f"v_cvt_pk_bf16_f32 {v(aM+16)}, {v(o)}, {v(o+1)}")
            A(f"v_cvt_pk_bf16_f32 {v(aM+17)}, {v(o+2)}, {v(o+3)}")
            A(f"ds_write_b64 {v(aOW)}, {v(aM+16,2)} offset:{tau*1024 + th*256}")

def attn_fix_vm(A):
    for i in range(4):
        A(f"v_mov_b32 {v(aM+8+2*i)}, {v(aVM+2*i+1)}")
        A(f"v_mov_b32 {v(aM+8+2*i+1)}, {v(aVM+2*i)}")

def gen_attn_body(A, seg_stride, st="", mod=""):
    A(f"s_lshr_b32 {s(sT+6)}, {s(sSL)}, 1")
    A(f"s_and_b32 {s(sT+7)}, {s(sSL)}, 1")
    A(f"s_lshl_b32 {s(sT)}, {s(sT+6)}, 19")
    A(f"s_lshl_b32 {s(sT+1)}, {s(sT+7)}, 9")
    A(f"s_add_u32 {s(sT)}, {s(sT)}, {s(sT+1)}")
    A(f"s_add_u32 {s(sWB)}, {s(68)}, {s(sT)}")
    A(f"s_addc_u32 {s(sWB+1)}, {s(69)}, 0")
    A(f"s_mov_b32 {s(sLDW)}, 1024")
    A(f"s_lshl_b32 {s(39)}, {s(sT+6)}, 2")
    A(f"s_add_u32 {s(39)}, {s(39)}, {s(sWAVE)}")
    A(f"s_lshl_b32 {s(38)}, {s(sT+6)}, 22")
    A(f"s_lshl_b32 {s(sT)}, {s(sT+7)}, 15")
    A(f"s_add_u32 {s(38)}, {s(38)}, {s(sT)}")
    A(f"s_lshl_b32 {s(sT)}, {s(sWAVE)}, 13")
    A(f"s_add_u32 {s(38)}, {s(38)}, {s(sT)}")
    A(f"s_add_u32 {s(38)}, {s(38)}, {WS_PA}")
    load_weights(A, 32, ffn=False, sigma=True)
    setup_a_addr(A, "f")
    A(f"v_add_u32 {v(wDM)}, 4096, {v(wL16)}")
    attn_setup(A)
    if USE_FLAGS:
        A(f"s_lshr_b32 {s(sT)}, {s(sSL)}, 1")
        A(f"s_lshl_b32 {s(sT)}, {s(sT)}, 1")
        A(f"s_lshl_b32 {s(54)}, 0x30003, {s(sT)}")
        A(f"s_lshl_b32 {s(55)}, 3, {s(sT)}")
        A(f"s_lshl_b32 {s(sT)}, {s(sT)}, 1")
        A(f"s_lshl_b32 {s(59)}, 15, {s(sT)}")
        A(f"s_mov_b32 {s(57)}, 0")
        A(f"s_mov_b32 {s(52)}, -1")
    lab = A.label("L_aseg")
    A(f"{lab}:")
    if USE_FLAGS:
        flag_wait(A, sSEG, 0, 54, 55)
        attn_loads(A, mod, 1)
        A(f"s_cmp_eq_u32 {s(sSEG)}, 63")
        A(f"s_cselect_b32 {s(56)}, {s(59)}, {s(54)}")
        flag_wait(A, sSEG, 1, 56, 57)
        if WST: WST(3)
        attn_loads(A, mod, 2)
    else:
        attn_loads(A, mod)
    A(f"s_lshl_b32 {s(sT)}, {s(sSEG)}, 16")
    A(f"s_add_u32 {s(sT)}, {s(sT)}, {s(38)}")
    A(f"s_add_u32 {s(sOP)}, {s(sWS)}, {s(sT)}")
    A(f"s_addc_u32 {s(sOP+1)}, {s(sWS+1)}, 0")
    A("s_waitcnt vmcnt(0)")
    if WST and USE_FLAGS: WST(4)
    attn_fix_vm(A)
    attention(A)
    A("s_waitcnt lgkmcnt(0)")
    A("s_barrier")
    if WST and USE_FLAGS: WST(5)
    if USE_FLAGS:
        nf = A.label("L_nf")
        A(f"s_cmp_eq_u32 {s(52)}, -1")
        A(f"s_cbranch_scc1 {nf}")
        flag_set(A, 52, 1, idx_s=sSL, idx_c=FL2_PA)
        A(f"{nf}:")
        A(f"s_mov_b32 {s(52)}, {s(sSEG)}")
    mma_chunk(A, 32, "f", 0, transposed=True)
    A(f"v_xor_b32 {v(wAR)}, 32768, {v(wAR)}")
    A(f"v_xor_b32 {v(aOW)}, 32768, {v(aOW)}")
    if WST and USE_FLAGS: WST(6)
    epi_part(A, st)
    if USE_FLAGS:
        A("s_waitcnt vmcnt(0)")
        A("s_barrier")
        flag_set(A, 52, 1, idx_s=sSL, idx_c=FL2_PA)
        A(f"s_mov_b32 {s(52)}, -1")
    A(f"s_add_u32 {s(sSEG)}, {s(sSEG)}, {seg_stride}")
    A(f"s_sub_u32 {s(sCNT)}, {s(sCNT)}, 1")
    A(f"s_cmp_lg_u32 {s(sCNT)}, 0")
    A(f"s_cbranch_scc1 {lab}")


def gen_kvm_body(A):
    done = A.label("L_kvmdone"); lv = A.label("L_kvmv")
    A(f"s_cmp_ge_u32 {s(sSL)}, 16")
    A(f"s_cbranch_scc1 {lv}")
    for kind in ("k","v"):
        if kind == "v": A(f"{lv}:")
        ptr = 64 if kind == "k" else 66
        A(f"s_and_b32 {s(sT+6)}, {s(sSL)}, 15")
        A(f"s_lshl_b32 {s(sT)}, {s(sT+6)}, 9")
        A(f"s_add_u32 {s(sWB)}, {s(ptr)}, {s(sT)}")
        A(f"s_addc_u32 {s(sWB+1)}, {s(ptr+1)}, 0")
        A(f"s_mov_b32 {s(sLDW)}, 8192")
        A(f"s_lshr_b32 {s(sT)}, {s(sWAVE)}, 1")
        A(f"s_lshl_b32 {s(sT+1)}, {s(sT+6)}, 1")
        A(f"s_add_u32 {s(sT)}, {s(sT)}, {s(sT+1)}")
        A(f"s_lshl_b32 {s(37)}, {s(sT)}, 12")
        A(f"s_and_b32 {s(sT)}, {s(sWAVE)}, 1")
        A(f"s_lshl_b32 {s(sT)}, {s(sT)}, {11 if kind == 'k' else 10}")
        A(f"s_add_u32 {s(37)}, {s(37)}, {s(sT)}")
        load_weights(A, 32, ffn=False, sigma=(kind == "k"))
        setup_a_addr(A, "x")
        T = wT
        A(f"v_and_b32 {v(T)}, 15, {v(wLANE)}")
        A(f"v_lshrrev_b32 {v(T+1)}, 4, {v(wLANE)}")
        A(f"v_lshrrev_b32 {v(T+2)}, 2, {v(T)}")
        A(f"v_and_b32 {v(T+3)}, 1, {v(T)}")
        A(f"v_lshl_add_u32 {v(T+2)}, {v(T+2)}, 1, {v(T+3)}")
        A(f"v_bfe_u32 {v(T+3)}, {v(T)}, 1, 1")
        A(f"v_lshrrev_b32 {v(T+4)}, 1, {v(T+1)}")
        A(f"v_xor_b32 {v(T+4)}, {v(T+4)}, {v(T+2)}")
        A(f"v_lshlrev_b32 {v(T+4)}, 4, {v(T+4)}")
        A(f"v_lshl_add_u32 {v(T+4)}, {v(T+2)}, 10, {v(T+4)}")
        A(f"v_and_b32 {v(T+5)}, 1, {v(T+1)}")
        A(f"v_lshlrev_b32 {v(T+5)}, 3, {v(T+5)}")
        A(f"v_lshl_add_u32 {v(T+5)}, {v(T+3)}, 2, {v(T+5)}")
        A(f"v_add_u32 {v(T+4)}, {v(T+4)}, {v(T+5)}")
        A(f"s_lshl_b32 {s(sT)}, {s(sWAVE)}, 8")
        A(f"v_add_u32 {v(10)}, {s(sT)}, {v(T+4)}")
        A(f"s_lshl_b32 {s(sT)}, {s(sWAVE)}, 11")
        A(f"v_add_u32 {v(11)}, {s(sT)}, {v(wL16)}")
        if kind == "k":
            A(f"v_and_b32 {v(T)}, 7, {v(wLANE)}")
            A(f"v_lshrrev_b32 {v(T+1)}, 1, {v(T)}")
            A(f"v_and_b32 {v(T+2)}, 1, {v(T)}")
            A(f"v_lshl_add_u32 {v(T+1)}, {v(T+1)}, 2, {v(T+2)}")
            A(f"v_lshrrev_b32 {v(T+2)}, 5, {v(wLANE)}")
            A(f"v_lshl_add_u32 {v(T+1)}, {v(T+2)}, 4, {v(T+1)}")
            A(f"v_lshlrev_b32 {v(T+1)}, 4, {v(T+1)}")
            A(f"v_bfe_u32 {v(T+2)}, {v(wLANE)}, 3, 2")
            A(f"v_lshl_add_u32 {v(wE+20)}, {v(T+2)}, 17, {v(T+1)}")
        else:
            A(f"v_and_b32 {v(T)}, 15, {v(wLANE)}")
            A(f"v_bfe_u32 {v(T+1)}, {v(wLANE)}, 4, 1")
            A(f"v_lshrrev_b32 {v(T+2)}, 5, {v(wLANE)}")
            A(f"v_lshl_add_u32 {v(T+2)}, {v(T+2)}, 5, {v(T)}")
            A(f"v_lshlrev_b32 {v(T+2)}, 3, {v(T+2)}")
            A(f"v_lshl_add_u32 {v(wE+20)}, {v(T+1)}, 2, {v(T+2)}")
            for j in range(1,4): A(f"v_add_u32 {v(wE+20+j)}, {j*131072}, {v(wE+20)}")
        A(f"s_mov_b32 {s(sSEG)}, 0")
        A(f"s_add_u32 {s(sAP)}, {s(sWS)}, {WS_MEMP}")
        A(f"s_addc_u32 {s(sAP+1)}, {s(sWS+1)}, 0")
        lab = A.label("L_kvms")
        A(f"{lab}:")
        skip3 = A.label("L_kvm3")
        for q in range(4):
            pl = A.label("L_kvmp"); ok = A.label("L_kvmok")
            if q == 3:
                A(f"s_cmp_eq_u32 {s(sSEG)}, 60")
                A(f"s_cbranch_scc1 {skip3}")
            A(f"s_mov_b32 {s(49)}, 0")
            A(f"{pl}:")
            A(f"global_load_dwordx4 {v(32,4)}, {v(11)}, {s(sAP,2)} sc1")
            A(f"global_load_dwordx4 {v(36,4)}, {v(11)}, {s(sAP,2)} offset:1024 sc1")
            A(f"s_add_u32 {s(49)}, {s(49)}, 1")
            A(f"s_cmp_gt_u32 {s(49)}, 0x20000")
            A(f"s_cbranch_scc1 {ok}")
            A("s_waitcnt vmcnt(0)")
            A(f"v_max3_u32 {v(T)}, {v(32)}, {v(33)}, {v(34)}")
            A(f"v_max3_u32 {v(T+1)}, {v(35)}, {v(36)}, {v(37)}")
            A(f"v_max3_u32 {v(T)}, {v(T)}, {v(38)}, {v(39)}")
            A(f"v_max_u32 {v(T)}, {v(T)}, {v(T+1)}")
            A(f"v_cmp_eq_u32 vcc, -1, {v(T)}")
            A(f"s_cbranch_vccz {ok}")
            A("s_sleep 2")
            A(f"s_branch {pl}")
            A(f"{ok}:")
            A("s_waitcnt vmcnt(0)")
            A(f"v_xor_b32 {v(T+3)}, {(q&1)*128}, {v(10)}")
            A(f"v_add_u32 {v(T+3)}, {q*8192}, {v(T+3)}")
            for i in range(2):
                for qq in range(4):
                    A(f"v_xor_b32 {v(T+2)}, {(8*i+2*qq)*16}, {v(T+3)}")
                    for hi4 in range(2):
                        e8 = qq + 4*hi4
                        src = 32 + 4*i + (e8 >> 1)
                        op = "ds_write_b16_d16_hi" if (e8 & 1) else "ds_write_b16"
                        A(f"{op} {v(T+2)}, {v(src)} offset:{2*hi4}")
            A("s_waitcnt lgkmcnt(0)")
            A(f"s_add_u32 {s(sAP)}, {s(sAP)}, 8192")
            A(f"s_addc_u32 {s(sAP+1)}, {s(sAP+1)}, 0")
        A(f"{skip3}:")
        A("s_barrier")
        A(f"s_lshl_b32 {s(sT)}, {s(sSEG)}, 17")
        A(f"s_add_u32 {s(sT)}, {s(sT)}, {s(37)}")
        A(f"s_add_u32 {s(sT)}, {s(sT)}, {WS_KM if kind == 'k' else WS_VM}")
        A(f"s_add_u32 {s(sOP)}, {s(sWS)}, {s(sT)}")
        A(f"s_addc_u32 {s(sOP+1)}, {s(sWS+1)}, 0")
        mma_chunk(A, 32, "x", 0, transposed=(kind == "k"))
        for b in range(8): A(f"v_xor_b32 {v(wAR+b)}, 32768, {v(wAR+b)}")
        A(f"v_xor_b32 {v(10)}, 32768, {v(10)}")
        E = wE
        A(f"s_cmp_eq_u32 {s(sSEG)}, 60")
        A(f"s_cselect_b32 {s(50)}, 0x00ffffff, -1")
        if kind == "k":
            for Tt in range(2):
                for hf in range(2):
                    for d in range(4):
                        r = wAC + 16*Tt + 8*hf + 2*d
                        A(f"v_cvt_pk_bf16_f32 {v(E+8*Tt+4*hf+d)}, {v(r)}, {v(r+1)}")
            A(f"s_mov_b32 exec_lo, {s(50)}"); A(f"s_mov_b32 exec_hi, {s(50)}")
            for Tt in range(2):
                for hf in range(2):
                    A(f"global_store_dwordx4 {v(E+20)}, {v(E+8*Tt+4*hf,4)}, {s(sOP,2)} offset:{Tt*1024+hf*512} sc1")
            A("s_mov_b64 exec, -1")
        else:
            for Tt in range(2):
                for j in range(4):
                    r = wAC + 16*Tt + 4*j
                    A(f"v_cvt_pk_bf16_f32 {v(E+8*Tt+2*j)}, {v(r)}, {v(r+1)}")
                    A(f"v_cvt_pk_bf16_f32 {v(E+8*Tt+2*j+1)}, {v(r+2)}, {v(r+3)}")
                    sk = None
                    if j == 3:
                        sk = A.label("L_kv3"); A(f"s_cmp_eq_u32 {s(sSEG)}, 60"); A(f"s_cbranch_scc1 {sk}")
                    A(f"global_store_dword {v(E+20+j)}, {v(E+8*Tt+2*j)}, {s(sOP,2)} offset:{Tt*512} sc1")
                    A(f"global_store_dword {v(E+20+j)}, {v(E+8*Tt+2*j+1)}, {s(sOP,2)} offset:{Tt*512+128} sc1")
                    if sk: A(f"{sk}:")
        A("s_waitcnt vmcnt(0)")
        A("s_barrier")
        for q in range(4):
            sk = None
            if q == 3:
                sk = A.label("L_kf3"); A(f"s_cmp_eq_u32 {s(sSEG)}, 63"); A(f"s_cbranch_scc1 {sk}")
            flag_set(A, sSEG, 1, idx_s=sSL)
            if sk: A(f"{sk}:")
            A(f"s_add_u32 {s(sSEG)}, {s(sSEG)}, 1")
        A(f"s_cmp_lt_u32 {s(sSEG)}, 64")
        A(f"s_cbranch_scc1 {lab}")
        A(f"s_branch {done}")
    A(f"{done}:")

def gen_attn_kernel(A, name="attn_kernel"):
    A.raw(kstart(name))
    load_ptrs(A)
    A("s_cmp_ge_u32 s2, 256")
    A("s_cbranch_scc1 L_attn_exit")
    A(f"s_lshr_b32 {s(sSL)}, s2, 4")
    A(f"s_and_b32 {s(sSEG)}, s2, 15")
    A(f"s_mov_b32 {s(sCNT)}, 4")
    gen_attn_body(A, 16)
    A("L_attn_exit:")
    A("s_endpgm")

def gen_final_body(A, mod="", wait_pb=None, wait_pa=None):
    T = 12
    A(f"s_lshl_b32 {s(sT)}, {s(sWAVE)}, 6")
    A(f"v_add_u32 {v(T)}, {s(sT)}, {v(wLANE)}")
    A(f"v_lshrrev_b32 {v(T+1)}, 3, {v(T)}")
    A(f"v_and_b32 {v(T+2)}, 7, {v(T)}")
    A(f"v_lshlrev_b32 {v(T+3)}, 7, {v(T+2)}")
    A(f"v_lshl_add_u32 {v(T+4)}, {v(T+1)}, 10, {v(T+3)}")
    A(f"s_lshl_b32 {s(sT)}, {s(sSEG)}, 15")
    A(f"s_add_u32 {s(44)}, {s(60)}, {s(sT)}")
    A(f"s_addc_u32 {s(45)}, {s(61)}, 0")
    for i in range(8):
        A(f"global_load_dwordx4 {v(32+4*i,4)}, {v(T+4)}, {s(44,2)} offset:{16*i}")
        A(f"global_load_dwordx4 {v(64+4*i,4)}, {v(T+3)}, {s(76,2)} offset:{16*i}")
    A(f"s_lshr_b32 {s(sT)}, {s(sSL)}, 1")
    A(f"s_lshl_b32 {s(sT)}, {s(sT)}, 15")
    A(f"s_and_b32 {s(sT+1)}, {s(sSL)}, 1")
    A(f"s_lshl_b32 {s(sT+1)}, {s(sT+1)}, 12")
    A(f"s_add_u32 {s(sT)}, {s(sT)}, {s(sT+1)}")
    A(f"s_lshl_b32 {s(sT+1)}, {s(sWAVE)}, 13")
    A(f"s_add_u32 {s(sT)}, {s(sT)}, {s(sT+1)}")
    A(f"s_lshl_b32 {s(sT+1)}, {s(sSEG)}, 16")
    A(f"s_add_u32 {s(sT+2)}, {s(sT)}, {s(sT+1)}")
    A("s_waitcnt vmcnt(0)")
    A(f"v_mov_b32 {v(T+5)}, 0")
    for i in range(32):
        x = 32+i; g = 64+i
        A(f"v_lshlrev_b32 {v(T+6)}, 16, {v(x)}")
        A(f"v_and_b32 {v(T+7)}, 0xffff0000, {v(x)}")
        A(f"v_lshlrev_b32 {v(T+8)}, 16, {v(g)}")
        A(f"v_and_b32 {v(T+9)}, 0xffff0000, {v(g)}")
        A(f"v_mul_f32 {v(T+6)}, {v(T+6)}, {v(T+8)}")
        A(f"v_mul_f32 {v(T+7)}, {v(T+7)}, {v(T+9)}")
        A(f"v_cvt_pk_bf16_f32 {v(T+6)}, {v(T+6)}, {v(T+7)}")
        A(f"v_lshlrev_b32 {v(T+7)}, 16, {v(T+6)}")
        A(f"v_and_b32 {v(T+6)}, 0xffff0000, {v(T+6)}")
        A(f"v_add_f32 {v(T+5)}, {v(T+5)}, {v(T+7)}")
        A(f"v_add_f32 {v(T+5)}, {v(T+5)}, {v(T+6)}")
    A(f"v_add_f32_dpp {v(T+5)}, {v(T+5)}, {v(T+5)} quad_perm:[1,0,3,2] row_mask:0xf bank_mask:0xf")
    A(f"v_add_f32_dpp {v(T+5)}, {v(T+5)}, {v(T+5)} quad_perm:[2,3,0,1] row_mask:0xf bank_mask:0xf")
    A(f"v_add_f32_dpp {v(T+5)}, {v(T+5)}, {v(T+5)} row_half_mirror row_mask:0xf bank_mask:0xf")
    A(f"v_cvt_pk_bf16_f32 {v(T+5)}, {v(T+5)}, {v(T+5)}")
    A(f"v_lshlrev_b32 {v(T+5)}, 16, {v(T+5)}")
    A(f"v_mul_f32 {v(T+6)}, {f2u(-LOG2E):#x}, {v(T+5)}")
    A(f"v_exp_f32 {v(T+6)}, {v(T+6)}")
    A(f"v_add_f32 {v(T+6)}, 1.0, {v(T+6)}")
    A(f"v_rcp_f32 {v(T+6)}, {v(T+6)}")
    A(f"v_cvt_pk_bf16_f32 {v(T+6)}, {v(T+6)}, {v(T+6)}")
    A(f"v_lshlrev_b32 {v(T+6)}, 16, {v(T+6)}")
    A(f"v_lshlrev_b32 {v(T+7)}, 2, {v(T+1)}")
    A(f"v_add_u32 {v(T+7)}, 131072, {v(T+7)}")
    A(f"ds_write_b32 {v(T+7)}, {v(T+6)}")
    def load_parts(ps):
        for p in ps:
            base = (WS_PA + p*64*65536) if p < 8 else (WS_PB + (p-8)*64*65536)
            A(f"s_add_u32 {s(sT+3)}, {s(sT+2)}, {base}")
            A(f"s_add_u32 {s(44)}, {s(sWS)}, {s(sT+3)}")
            A(f"s_addc_u32 {s(45)}, {s(sWS+1)}, 0")
            for hq in range(4):
                A(f"global_load_dwordx4 {v(32+16*p+4*hq,4)}, {v(wL16)}, {s(44,2)} offset:{hq*1024} {mod}")
    if wait_pb: wait_pb()
    load_parts(range(8,12))
    A("s_waitcnt lgkmcnt(0)")
    A("s_barrier")
    A(f"v_and_b32 {v(T+7)}, 31, {v(wLANE)}")
    A(f"v_lshlrev_b32 {v(T+8)}, 2, {v(T+7)}")
    A(f"v_add_u32 {v(T+8)}, 131072, {v(T+8)}")
    A(f"ds_read_b32 {v(T+6)}, {v(T+8)}")
    if wait_pa: wait_pa()
    load_parts(range(0,8))
    A("s_waitcnt vmcnt(0) lgkmcnt(0)")
    A(f"v_sub_f32 {v(T+9)}, 1.0, {v(T+6)}")
    A(f"v_cvt_pk_bf16_f32 {v(T+9)}, {v(T+9)}, {v(T+9)}")
    A(f"v_lshlrev_b32 {v(T+9)}, 16, {v(T+9)}")
    for p in range(1,8):
        for r in range(0,16,2): A(f"v_pk_add_f32 {v(32+r,2)}, {v(32+r,2)}, {v(32+16*p+r,2)}")
    for p in range(9,12):
        for r in range(0,16,2): A(f"v_pk_add_f32 {v(160+r,2)}, {v(160+r,2)}, {v(32+16*p+r,2)}")
    for r in range(0,16,2):
        A(f"v_cvt_pk_bf16_f32 {v(T+10)}, {v(32+r)}, {v(32+r+1)}")
        A(f"v_cvt_pk_bf16_f32 {v(T+11)}, {v(160+r)}, {v(160+r+1)}")
        unpack2(A, 48, 49, T+10)
        unpack2(A, 50, 51, T+11)
        A(f"v_mul_f32 {v(48)}, {v(48)}, {v(T+6)}"); A(f"v_mul_f32 {v(49)}, {v(49)}, {v(T+6)}")
        A(f"v_mul_f32 {v(50)}, {v(50)}, {v(T+9)}"); A(f"v_mul_f32 {v(51)}, {v(51)}, {v(T+9)}")
        A(f"v_cvt_pk_bf16_f32 {v(T+10)}, {v(48)}, {v(49)}")
        A(f"v_cvt_pk_bf16_f32 {v(T+11)}, {v(50)}, {v(51)}")
        unpack2(A, 48, 49, T+10)
        unpack2(A, 50, 51, T+11)
        A(f"v_pk_add_f32 {v(48,2)}, {v(48,2)}, {v(50,2)}")
        A(f"v_cvt_pk_bf16_f32 {v(56 + r//2)}, {v(48)}, {v(49)}")
    A(f"s_lshr_b32 {s(sT)}, {s(sSL)}, 1")
    A(f"s_lshl_b32 {s(sT)}, {s(sT)}, 9")
    A(f"s_and_b32 {s(sT+1)}, {s(sSL)}, 1")
    A(f"s_lshl_b32 {s(sT+1)}, {s(sT+1)}, 6")
    A(f"s_add_u32 {s(sT)}, {s(sT)}, {s(sT+1)}")
    A(f"s_lshl_b32 {s(sT+1)}, {s(sWAVE)}, 7")
    A(f"s_add_u32 {s(sT)}, {s(sT)}, {s(sT+1)}")
    A(f"s_lshl_b32 {s(sT+1)}, {s(sSEG)}, 15")
    A(f"s_add_u32 {s(sT)}, {s(sT)}, {s(sT+1)}")
    A(f"s_add_u32 {s(44)}, {s(78)}, {s(sT)}")
    A(f"s_addc_u32 {s(45)}, {s(79)}, 0")
    A(f"v_lshrrev_b32 {v(T+8)}, 5, {v(wLANE)}")
    A(f"v_lshlrev_b32 {v(T+8)}, 4, {v(T+8)}")
    A(f"v_lshl_add_u32 {v(T+8)}, {v(T+7)}, 10, {v(T+8)}")
    A(f"global_store_dwordx4 {v(T+8)}, {v(56,4)}, {s(44,2)} {mod}")
    A(f"global_store_dwordx4 {v(T+8)}, {v(60,4)}, {s(44,2)} offset:32 {mod}")

def gen_final_kernel(A, name="final_kernel"):
    A.raw(kstart(name))
    load_ptrs(A)
    A("s_cmp_ge_u32 s2, 256")
    A("s_cbranch_scc1 L_fin_exit")
    A(f"s_lshr_b32 {s(sSEG)}, s2, 2")
    A(f"s_and_b32 {s(sSL)}, s2, 3")
    gen_final_body(A)
    A("L_fin_exit:")
    A("s_endpgm")

if __name__ == "__main__":
    import sys
    PROF = len(sys.argv) > 2
    A = Asm()
    names = ["proj_kernel","down_kernel","attn_kernel","final_kernel"]
    for n in names: A.raw(f"; @launch kernel={n} grid=(256,1,1) block=(256,1,1) lds=163840")
    A.raw('.amdgcn_target "amdgcn-amd-amdhsa--gfx950"')
    gen_proj_kernel(A); gen_down_kernel(A); gen_attn_kernel(A); gen_final_kernel(A)
    for n in names: A.raw(kd(n))
    open(sys.argv[1],"w").write(A.text())
    print("nops", A.nops, "lines", len(A.out))
```

```python
from asmlib import *
from layout import *
import struct
def f2u(x): return struct.unpack("<I", struct.pack("<f", x))[0]
SCALE_LOG2E = (128.0 ** -0.5) * 1.4426950408889634

vL16,vIDX,vW16,vLH,vVXA,vPF,vZP,vZP1,vPP,vPG,vMP,vMQW,vMQR0,vMQR1,vOW,vOR,vWO0,vWO1,vPM,vZ = range(20)
X0=20
S0=24; S1=28; SM=120
MA=32
KXR=64
AQK=96
AV=112
T0=124
WV=128
def WQ(t,b): return a(0+(t*8+b)*8, 8)
def WK(t,b): return a(128+(t*8+b)*8, 8)
def WVf(t,b): return v(WV+(t*8+b)*8, 8)
def ma(b): return v(MA+4*b,4)
sWS=4; sDBG=6; sWAVE=8; sRANK=9; sSTEP=10; sT0=12
sMRD=20
sMEMn=24; sMEMc=26; sPc=28; sPc2=30; sKX=32; sVX=34; sKM=36; sVM=38; sSC=40
sSPIN=42; sPH=43; sW=44; sMASK=46; sPFK=48; sOFF=50
sIN=60
sTS=70

def smf(acc, A_, B_): return f"v_smfmac_f32_16x16x64_bf16 {v(acc,4)}, {A_}, {B_}, {v(vIDX)}"

STARTUP_STAMPS = False
WO_FIRST = True
WMOD = "sc1"
EARLY_FLAGS = [False]
L_SCR = 131072

def raw_regs(mat, qq, w):
    out = []
    for bl in range(2):
        bp = (2*qq + bl - 2*w) % 8
        for t in range(2):
            base = (t*8+bp)*8
            for h in range(2):
                if mat == 0: out.append(a(base+4*h, 4))
                elif mat == 1: out.append(a(128+base+4*h, 4))
                else: out.append(v(WV+base+4*h, 4))
    return out

def gen_startup_issue(A, chunk, w):
    if chunk < 12:
        mat = chunk // 4; qq = chunk % 4
        wreg = [62, 64, 66][mat]
        A(f"s_lshl_b32 {s(sT0)}, {s(sRANK)}, 8")
        A(f"s_add_u32 {s(sW)}, {s(wreg)}, {s(sT0)}")
        A(f"s_addc_u32 {s(sW+1)}, {s(wreg+1)}, 0")
        A(f"s_add_u32 {s(sW)}, {s(sW)}, {qq*128*8192}")
        A(f"s_addc_u32 {s(sW+1)}, {s(sW+1)}, 0")
        rr = raw_regs(mat, qq, w)
        for i in range(8):
            A(f"global_load_dwordx4 {rr[i]}, {v(22 + (i>>2))}, {s(sW,2)} {WMOD}")
            if i < 7:
                A(f"s_add_u32 {s(sW)}, {s(sW)}, {4*8192}")
                A(f"s_addc_u32 {s(sW+1)}, {s(sW+1)}, 0")
    else:
        qq = chunk - 12
        A(f"s_lshl_b32 {s(sT0)}, {s(sRANK)}, 17")
        A(f"s_add_u32 {s(sW)}, {s(68)}, {s(sT0)}")
        A(f"s_addc_u32 {s(sW+1)}, {s(69)}, 0")
        A(f"s_lshl_b32 {s(sT0)}, {s(sWAVE)}, 13")
        A(f"s_add_u32 {s(sT0)}, {s(sT0)}, {qq*32*1024}")
        A(f"s_add_u32 {s(sW)}, {s(sW)}, {s(sT0)}")
        A(f"s_addc_u32 {s(sW+1)}, {s(sW+1)}, 0")
        for i in range(8):
            f = (4*((i>>2)&1) + 2*(i&1))*16
            A(f"v_xor_b32 {v(25)}, {f}, {v(24)}")
            A(f"s_add_u32 m0, {s(sT0+1)}, {qq*32768 + i*1024}")
            A(f"global_load_lds_dwordx4 {v(25)}, {s(sW,2)} {WMOD}")
            if i < 7:
                A(f"s_add_u32 {s(sW)}, {s(sW)}, 1024")
                A(f"s_addc_u32 {s(sW+1)}, {s(sW+1)}, 0")

def gen_startup(A, w, st):
    DEPTH = 7
    A(f"s_lshl_b32 {s(sT0)}, {s(sWAVE)}, 13")
    A(f"s_add_u32 {s(sT0)}, {s(sT0)}, {L_SCR}")
    A(f"v_add_u32 {v(21)}, {s(sT0)}, {v(vL16)}")
    A(f"v_add_u32 {v(26)}, {L_SCR}, {v(26)}")
    A(f"v_add_u32 {v(27)}, {L_SCR}, {v(27)}")
    order = [12,13,14,15] + list(range(12)) if WO_FIRST else list(range(16))
    for i in range(DEPTH): gen_startup_issue(A, order[i], w)
    A(f"v_mov_b32 {v(99)}, {DBG_FINIT}")
    A(f"global_load_dword {v(99)}, {v(99)}, {s(sDBG,2)} sc1")
    for i in range(16):
        c = order[i]
        left = min(DEPTH-1, 15 - i)
        extra = (1 if i < 7 else 0) + ((4 if EARLY_FLAGS[0] else 1) if i >= 14 else 0)
        A(f"s_waitcnt vmcnt({8*left + extra})")
        if STARTUP_STAMPS and i % 2 == 1: A(f"s_memrealtime {s(76+i-1,2)}")
        if i == 0 and w == 0:
            A(f"v_lshl_or_b32 {v(96)}, {v(97)}, 16, {v(96)}")
            A(f"global_store_dword {v(98)}, {v(96)}, {s(sMEMc,2)} {st}")
        if c < 12:
            mat = c // 4; qq = c % 4
            rr = raw_regs(mat, qq, w)
            for k in range(8):
                A(f"ds_write_b128 {v(21)}, {rr[k]} offset:{k*1024}")
            A("s_waitcnt lgkmcnt(0)")
            A("s_barrier")
            for bl in range(2):
                bp = (2*qq + bl - 2*w) % 8
                for t in range(2):
                    for x in range(4):
                        off = (64*bl + 32*(x&1) + 8*(x>>1))*256
                        if mat == 0: dst = a(0+(t*8+bp)*8 + 2*x, 2)
                        elif mat == 1: dst = a(128+(t*8+bp)*8 + 2*x, 2)
                        else: dst = v(WV+(t*8+bp)*8 + 2*x, 2)
                        A(f"ds_read_b64_tr_b16 {dst}, {v(26+t)} offset:{off}")
            if i + DEPTH < 16: gen_startup_issue(A, order[i + DEPTH], w)
            A("s_waitcnt lgkmcnt(0)")
            A("s_barrier")
        else:
            slot = c - 12
            A("s_barrier")
            A(f"v_add_u32 {v(29)}, {slot*32768}, {v(28)}")
            for j in range(8):
                A(f"v_xor_b32 {v(30)}, {2*j*16}, {v(29)}")
                for xl in range(2):
                    A(f"ds_read_b64_tr_b16 {v(32+4*j+2*xl,2)}, {v(30)} offset:{2*xl*1024}")
            if i + DEPTH < 16: gen_startup_issue(A, order[i + DEPTH], w)
            A("s_waitcnt lgkmcnt(0)")
            A("s_barrier")
            for j in range(8):
                base = slot*32768 + j*1024
                if base < 65536: A(f"ds_write_b128 {v(vWO0)}, {v(32+4*j,4)} offset:{base}")
                else: A(f"ds_write_b128 {v(vWO1)}, {v(32+4*j,4)} offset:{base-65536}")
        if i == 13:
            A(f"v_lshrrev_b32 {v(104)}, 2, {v(vL16)}")
            A(f"v_and_b32 {v(104)}, 0x1c, {v(104)}")
            A(f"v_bfe_u32 {v(103)}, {v(vL16)}, 4, 1")
            A(f"v_lshl_add_u32 {v(103)}, {v(103)}, 11, {s(sFL2)}")
            A(f"v_add_u32 {v(105)}, 16384, {v(103)}")
            A(f"v_add_u32 {v(106)}, 32768, {v(103)}")
            A(f"global_load_dword {v(100)}, {v(104)}, {s(sDBG,2)} sc1")
            if EARLY_FLAGS[0]:
                A(f"global_load_dword {v(101)}, {v(103)}, {s(sFL1,2)} sc1")
                A(f"global_load_dword {v(102)}, {v(105)}, {s(sFL1,2)} sc1")
                A(f"global_load_dword {v(vPF)}, {v(106)}, {s(sFL1,2)} sc1")
        if i == 7 and w == 0:
            A(f"v_mov_b32 {v(96)}, 4")
            A(f"v_mov_b32 {v(97)}, 1")
            A("s_mov_b64 exec, 1")
            A(f"global_atomic_add {v(96)}, {v(97)}, {s(sDBG,2)}")
            A("s_mov_b64 exec, -1")
    A("s_waitcnt lgkmcnt(0)")
    A("s_barrier")

sKX2=20; sRLO=22; sRL2=23; sFMK2=11
def gen_persistent(A, lane):
    A(f"v_lshlrev_b32 {v(vL16)}, 4, {v(lane)}")
    A(f"v_and_b32 {v(20)}, 15, {v(lane)}")
    A(f"v_lshrrev_b32 {v(21)}, 4, {v(lane)}")
    A(f"v_bfe_u32 {v(22)}, {v(20)}, 1, 1")
    A(f"v_mov_b32 {v(vIDX)}, 0x44444444")
    A(f"v_mov_b32 {v(23)}, 0xeeeeeeee")
    A(f"v_cmp_eq_u32 vcc, 1, {v(22)}")
    A(f"v_cndmask_b32 {v(vIDX)}, {v(vIDX)}, {v(23)}, vcc")
    A(f"s_lshl_b32 {s(sT0)}, {s(sWAVE)}, 11")
    A(f"v_add_u32 {v(vW16)}, {s(sT0)}, {v(vL16)}")
    A(f"v_add_u32 {v(vLH)}, {L_MEMB}, {v(vL16)}")
    A(f"v_add_u32 {v(vVXA)}, {L_VXB}, {v(vW16)}")
    A(f"v_add_u32 {v(vLH)}, {L_MEMB}, {v(vL16)}")
    for p in (1,2,3):
        A(f"s_add_u32 {s(sT0)}, {s(sWAVE)}, {p}")
        A(f"s_and_b32 {s(sT0)}, {s(sT0)}, 3")
        A(f"s_lshl_b32 {s(sOFF+p)}, {s(sT0)}, 11")
    A(f"s_lshl_b32 {s(sOFF)}, {s(sWAVE)}, 11")
    A(f"v_mov_b32 {v(vZP)}, 0")
    A(f"v_mov_b32 {v(vZP1)}, 0")
    A(f"v_mov_b32 {v(vPF)}, 0")
    A(f"v_lshrrev_b32 {v(24)}, 2, {v(20)}")
    A(f"s_lshl_b32 {s(sT0)}, {s(sWAVE)}, 3")
    A(f"v_add_u32 {v(24)}, {s(sT0)}, {v(24)}")
    A(f"v_lshlrev_b32 {v(24)}, 13, {v(24)}")
    A(f"v_lshrrev_b32 {v(25)}, 1, {v(21)}")
    A(f"v_lshl_add_u32 {v(24)}, {v(25)}, 12, {v(24)}")
    A(f"v_and_b32 {v(25)}, 1, {v(21)}")
    A(f"v_and_b32 {v(26)}, 3, {v(20)}")
    A(f"v_lshl_add_u32 {v(25)}, {v(25)}, 2, {v(26)}")
    A(f"v_lshl_add_u32 {v(24)}, {v(25)}, 4, {v(24)}")
    A(f"s_lshl_b32 {s(sT0)}, {s(sRANK)}, 7")
    A(f"v_add_u32 {v(vPP)}, {s(sT0)}, {v(24)}")
    A(f"s_lshl_b32 {s(sT0)}, {s(sRANK)}, 13")
    A(f"s_lshl_b32 {s(sT0+1)}, {s(sWAVE)}, 12")
    A(f"s_add_u32 {s(sT0)}, {s(sT0)}, {s(sT0+1)}")
    A(f"v_add_u32 {v(vPG)}, {s(sT0)}, {v(vL16)}")
    A(f"v_bfe_u32 {v(24)}, {v(20)}, 2, 1")
    A(f"s_lshl_b32 {s(sT0)}, {s(sWAVE)}, 1")
    A(f"v_add_u32 {v(24)}, {s(sT0)}, {v(24)}")
    A(f"v_lshlrev_b32 {v(24)}, 2, {v(24)}")
    A(f"v_bfe_u32 {v(25)}, {v(20)}, 1, 1")
    A(f"v_lshl_add_u32 {v(24)}, {v(25)}, 1, {v(24)}")
    A(f"v_lshrrev_b32 {v(25)}, 1, {v(21)}")
    A(f"v_add_u32 {v(24)}, {v(24)}, {v(25)}")
    A(f"v_lshlrev_b32 {v(24)}, 4, {v(24)}")
    A(f"v_and_b32 {v(25)}, 1, {v(20)}")
    A(f"v_and_b32 {v(26)}, 1, {v(21)}")
    A(f"v_lshl_add_u32 {v(25)}, {v(25)}, 1, {v(26)}")
    A(f"v_lshl_add_u32 {v(24)}, {v(25)}, 2, {v(24)}")
    A(f"s_lshl_b32 {s(sT0)}, {s(sRANK)}, 8")
    A(f"v_add_u32 {v(vMP)}, {s(sT0)}, {v(24)}")
    A(f"v_lshlrev_b32 {v(24)}, 1, {v(20)}")
    A(f"v_lshrrev_b32 {v(25)}, 1, {v(21)}")
    A(f"v_lshlrev_b32 {v(25)}, 3, {v(25)}")
    A(f"v_xor_b32 {v(24)}, {v(24)}, {v(25)}")
    A(f"v_lshl_add_u32 {v(24)}, {v(21)}, 5, {v(24)}")
    A(f"v_lshlrev_b32 {v(24)}, 2, {v(24)}")
    A(f"s_lshl_b32 {s(sT0)}, {s(sWAVE)}, 10")
    A(f"s_add_u32 {s(sT0)}, {s(sT0)}, {L_MQK}")
    A(f"v_add_u32 {v(vMQW)}, {s(sT0)}, {v(24)}")
    A(f"v_bfe_u32 {v(24)}, {v(lane)}, 2, 2")
    A(f"v_and_b32 {v(25)}, 3, {v(lane)}")
    A(f"v_lshlrev_b32 {v(24)}, 1, {v(24)}")
    A(f"v_and_b32 {v(26)}, 1, {v(21)}")
    A(f"v_lshl_add_u32 {v(24)}, {v(26)}, 4, {v(24)}")
    A(f"v_lshrrev_b32 {v(26)}, 1, {v(25)}")
    A(f"v_lshlrev_b32 {v(26)}, 3, {v(26)}")
    A(f"v_xor_b32 {v(24)}, {v(24)}, {v(26)}")
    A(f"v_lshl_add_u32 {v(24)}, {v(25)}, 5, {v(24)}")
    A(f"v_lshrrev_b32 {v(26)}, 1, {v(21)}")
    A(f"v_lshl_add_u32 {v(24)}, {v(26)}, 7, {v(24)}")
    A(f"v_lshlrev_b32 {v(24)}, 2, {v(24)}")
    A(f"v_add_u32 {v(vMQR0)}, {L_MQK}, {v(24)}")
    A(f"v_xor_b32 {v(vMQR1)}, 32, {v(vMQR0)}")
    A(f"v_lshrrev_b32 {v(24)}, 2, {v(20)}")
    A(f"v_and_b32 {v(25)}, 1, {v(20)}")
    A(f"v_lshl_add_u32 {v(24)}, {v(24)}, 1, {v(25)}")
    A(f"v_mul_u32_u24 {v(24)}, 272, {v(24)}")
    A(f"v_lshl_add_u32 {v(24)}, {v(21)}, 3, {v(24)}")
    A(f"s_lshl_b32 {s(sT0)}, {s(sWAVE)}, 6")
    A(f"s_add_u32 {s(sT0)}, {s(sT0)}, {L_OB}")
    A(f"v_add_u32 {v(24)}, {s(sT0)}, {v(24)}")
    A(f"v_lshlrev_b32 {v(25)}, 3, {v(lane)}")
    A(f"v_add_u32 {v(25)}, {L_MQK}, {v(25)}")
    A(f"v_and_b32 {v(26)}, 2, {v(20)}")
    A(f"v_cmp_eq_u32 vcc, 2, {v(26)}")
    A(f"v_cndmask_b32 {v(vOW)}, {v(25)}, {v(24)}, vcc")
    A(f"v_lshrrev_b32 {v(24)}, 2, {v(20)}")
    A(f"v_and_b32 {v(25)}, 1, {v(20)}")
    A(f"v_lshl_add_u32 {v(24)}, {v(24)}, 1, {v(25)}")
    A(f"v_mul_u32_u24 {v(24)}, 272, {v(24)}")
    A(f"v_lshl_add_u32 {v(24)}, {v(21)}, 5, {v(24)}")
    A(f"v_bfe_u32 {v(25)}, {v(20)}, 1, 1")
    A(f"v_lshl_add_u32 {v(24)}, {v(25)}, 4, {v(24)}")
    A(f"v_add_u32 {v(vOR)}, {L_OB}, {v(24)}")
    A(f"s_lshl_b32 {s(sT0)}, {s(sWAVE)}, 13")
    A(f"v_add_u32 {v(vWO0)}, {s(sT0)}, {v(vL16)}")
    A(f"v_add_u32 {v(vWO1)}, 65536, {v(vWO0)}")
    A(f"v_mov_b32 {v(vZ)}, 0")
    A(f"v_mov_b32 {v(vPM)}, 0")
    A(f"s_lshl_b32 {s(sRL2)}, {s(sRANK)}, 8")
    A(f"s_add_u32 {s(sRLO)}, {s(sRL2)}, {L_MEMB}")
    A(f"s_mov_b32 {s(sMASK)}, 0")
    A(f"s_mov_b32 {s(sMASK+1)}, -1")
    A(f"s_mov_b32 {s(sSC)}, {f2u(SCALE_LOG2E):#x}")
    A(f"s_mov_b32 {s(sSC+1)}, {f2u(-SCALE_LOG2E):#x}")

def gen_init_comm(A, lane, st):
    A(f"s_add_u32 {s(sMEMc)}, {s(sWS)}, {WS_MEM}")
    A(f"s_addc_u32 {s(sMEMc+1)}, {s(sWS+1)}, 0")
    A(f"s_add_u32 {s(sPc)}, {s(sWS)}, {WS_P}")
    A(f"s_addc_u32 {s(sPc+1)}, {s(sWS+1)}, 0")
    A(f"s_add_u32 {s(sPc2)}, {s(sPc)}, 32768")
    A(f"s_addc_u32 {s(sPc2+1)}, {s(sPc+1)}, 0")
    for r in range(4): A(f"v_mov_b32 {v(32+r)}, -1")
    A(f"s_lshl_b32 {s(sT0)}, {s(sRANK)}, 13")
    A(f"v_add_u32 {v(24)}, {s(sT0)}, {v(vW16)}")
    A(f"global_store_dwordx4 {v(24)}, {v(32,4)}, {s(sPc,2)} {st}")
    A(f"global_store_dwordx4 {v(24)}, {v(32,4)}, {s(sPc,2)} offset:1024 {st}")
    for r in (96,97,98): A(f"v_mov_b32 {v(r)}, 0")
    skip = A.label("L_nomem0")
    A(f"s_cmp_lg_u32 {s(sWAVE)}, 0")
    A(f"s_cbranch_scc1 {skip}")
    A(f"v_lshrrev_b32 {v(24)}, 2, {v(lane)}")
    A(f"v_and_b32 {v(25)}, 3, {v(lane)}")
    A(f"v_lshrrev_b32 {v(26)}, 2, {v(24)}")
    A(f"v_and_b32 {v(27)}, 1, {v(24)}")
    A(f"v_lshl_add_u32 {v(26)}, {v(26)}, 1, {v(27)}")
    A(f"v_bfe_u32 {v(27)}, {v(24)}, 1, 1")
    A(f"v_lshlrev_b32 {v(27)}, 3, {v(27)}")
    A(f"v_lshl_add_u32 {v(27)}, {v(25)}, 1, {v(27)}")
    A(f"s_lshr_b32 {s(sT0)}, {s(sRANK)}, 2")
    A(f"s_lshl_b32 {s(sT0)}, {s(sT0)}, 6")
    A(f"s_and_b32 {s(sT0+1)}, {s(sRANK)}, 3")
    A(f"s_lshl_b32 {s(sT0+1)}, {s(sT0+1)}, 2")
    A(f"s_add_u32 {s(sT0)}, {s(sT0)}, {s(sT0+1)}")
    A(f"v_and_b32 {v(28)}, 3, {v(27)}")
    A(f"v_lshlrev_b32 {v(28)}, 4, {v(28)}")
    A(f"v_lshrrev_b32 {v(29)}, 2, {v(27)}")
    A(f"v_add_u32 {v(28)}, {v(28)}, {v(29)}")
    A(f"v_add_u32 {v(28)}, {s(sT0)}, {v(28)}")
    A(f"v_lshl_add_u32 {v(28)}, {v(26)}, 9, {v(28)}")
    A(f"v_lshlrev_b32 {v(28)}, 1, {v(28)}")
    A(f"global_load_ushort {v(96)}, {v(28)}, {s(60,2)}")
    A(f"global_load_ushort {v(97)}, {v(28)}, {s(60,2)} offset:32")
    A(f"v_lshlrev_b32 {v(98)}, 2, {v(lane)}")
    A(f"s_lshl_b32 {s(sT0)}, {s(sRANK)}, 8")
    A(f"v_add_u32 {v(98)}, {s(sT0)}, {v(98)}")
    A(f"v_add_u32 {v(24)}, 8192, {v(98)}")
    A(f"global_store_dword {v(24)}, {v(32)}, {s(sMEMc,2)} {st}")
    A(f"s_mov_b64 exec, 1")
    A(f"s_getreg_b32 {s(sT0)}, hwreg(HW_REG_XCC_ID, 0, 4)")
    A(f"s_lshl_b32 {s(sT0)}, 1, {s(sT0)}")
    A(f"v_mov_b32 {v(24)}, {DBG_XMASK}")
    A(f"v_mov_b32 {v(25)}, {s(sT0)}")
    A(f"global_atomic_or {v(24)}, {v(25)}, {s(sDBG,2)}")
    A(f"s_mov_b64 exec, -1")
    A(f"{skip}:")

def gen_weights(A, lane, st):
    A(f"v_and_b32 {v(20)}, 15, {v(lane)}")
    A(f"v_lshrrev_b32 {v(21)}, 4, {v(lane)}")
    A(f"v_lshlrev_b32 {v(24)}, 1, {v(21)}")
    A(f"v_xor_b32 {v(24)}, {v(24)}, {v(20)}")
    A(f"v_lshlrev_b32 {v(24)}, 4, {v(24)}")
    A(f"s_lshl_b32 {s(sT0)}, {s(sWAVE)}, 5")
    A(f"v_add_u32 {v(25)}, {s(sT0)}, {v(21)}")
    A(f"v_lshlrev_b32 {v(25)}, 13, {v(25)}")
    A(f"v_mov_b32 {v(30)}, {v(21)}")
    A(f"v_add_u32 {v(22)}, {v(25)}, {v(24)}")
    A(f"v_xor_b32 {v(23)}, 128, {v(22)}")
    A(f"s_and_b32 {s(sT0)}, {s(sWAVE)}, 1")
    A(f"s_lshl_b32 {s(sT0)}, {s(sT0)}, 7")
    A(f"v_xor_b32 {v(24)}, {s(sT0)}, {v(vL16)}")
    A(f"v_bfe_u32 {v(32)}, {v(lane)}, 2, 2")
    A(f"v_and_b32 {v(33)}, 3, {v(lane)}")
    A(f"v_and_b32 {v(34)}, 1, {v(32)}")
    A(f"v_lshrrev_b32 {v(35)}, 1, {v(32)}")
    A(f"v_and_b32 {v(36)}, 1, {v(30)}")
    A(f"v_lshrrev_b32 {v(37)}, 1, {v(30)}")
    A(f"v_lshlrev_b32 {v(38)}, 4, {v(34)}")
    A(f"v_lshl_add_u32 {v(38)}, {v(35)}, 1, {v(38)}")
    A(f"v_lshl_add_u32 {v(38)}, {v(37)}, 2, {v(38)}")
    A(f"v_add_u32 {v(38)}, {v(38)}, {v(36)}")
    A(f"v_lshlrev_b32 {v(39)}, 2, {v(34)}")
    A(f"v_lshl_add_u32 {v(39)}, {v(35)}, 1, {v(39)}")
    A(f"v_add_u32 {v(39)}, {v(39)}, {v(36)}")
    A(f"v_lshlrev_b32 {v(39)}, 1, {v(39)}")
    A(f"v_lshrrev_b32 {v(40)}, 1, {v(33)}")
    A(f"s_lshl_b32 {s(sT0)}, {s(sWAVE)}, 2")
    A(f"v_add_u32 {v(40)}, {s(sT0)}, {v(40)}")
    A(f"v_xor_b32 {v(40)}, {v(40)}, {v(39)}")
    A(f"v_lshlrev_b32 {v(40)}, 4, {v(40)}")
    A(f"v_lshl_add_u32 {v(40)}, {v(38)}, 8, {v(40)}")
    A(f"v_and_b32 {v(41)}, 1, {v(33)}")
    A(f"v_lshl_add_u32 {v(26)}, {v(41)}, 3, {v(40)}")
    A(f"v_xor_b32 {v(27)}, 32, {v(26)}")
    A(f"v_lshlrev_b32 {v(38)}, 4, {v(37)}")
    A(f"v_lshl_add_u32 {v(38)}, {v(35)}, 3, {v(38)}")
    A(f"v_lshl_add_u32 {v(38)}, {v(36)}, 2, {v(38)}")
    A(f"v_add_u32 {v(38)}, {v(38)}, {v(34)}")
    A(f"v_lshlrev_b32 {v(39)}, 3, {v(35)}")
    A(f"v_lshl_add_u32 {v(39)}, {v(36)}, 2, {v(39)}")
    A(f"v_lshl_add_u32 {v(39)}, {v(34)}, 1, {v(39)}")
    A(f"v_lshrrev_b32 {v(40)}, 1, {v(33)}")
    A(f"s_lshl_b32 {s(sT0)}, {s(sWAVE)}, 4")
    A(f"v_add_u32 {v(40)}, {s(sT0)}, {v(40)}")
    A(f"v_xor_b32 {v(40)}, {v(40)}, {v(39)}")
    A(f"v_lshlrev_b32 {v(40)}, 4, {v(40)}")
    A(f"v_lshl_add_u32 {v(40)}, {v(38)}, 10, {v(40)}")
    A(f"v_lshl_add_u32 {v(28)}, {v(41)}, 3, {v(40)}")
    A(f"s_lshl_b32 {s(sT0+1)}, {s(sWAVE)}, 13")
    done = A.label("L_wdone")
    labs = [A.label("L_wv") for _ in range(4)]
    for w in range(1,4):
        A(f"s_cmp_eq_u32 {s(sWAVE)}, {w}")
        A(f"s_cbranch_scc1 {labs[w]}")
    for w in range(4):
        A(f"{labs[w]}:")
        gen_startup(A, w, st)
        A(f"s_branch {done}")
    A(f"{done}:")

def delay(A, n):
    while n > 0:
        k = min(n, 16); A(f"s_nop {k-1}"); n -= k

sFL1=58; sFL2=54; sFMASK=56; sMODE=57

def chain_flag_wait_blocking(A, ptr_s):
    lab = A.label("L_cfw"); ok = A.label("L_cfwok")
    A(f"v_lshrrev_b32 {v(24)}, 2, {v(vL16)}")
    A(f"{lab}:")
    A(f"global_load_dword {v(25)}, {v(24)}, {s(ptr_s,2)} sc1")
    A(f"s_add_u32 {s(sSPIN)}, {s(sSPIN)}, 1")
    A(f"s_cmp_gt_u32 {s(sSPIN)}, 0x40000")
    A(f"s_cbranch_scc1 L_chain_abort")
    A("s_waitcnt vmcnt(0)")
    A(f"v_cmp_ne_u32 vcc, 0, {v(25)}")
    A(f"s_and_b32 {s(sT0)}, vcc_lo, {s(sFMASK)}")
    A(f"s_cmp_eq_u32 {s(sT0)}, {s(sFMASK)}")
    A(f"s_cbranch_scc1 {ok}")
    A("s_sleep 2")
    A(f"s_branch {lab}")
    A(f"{ok}:")

def gen_chain(A, nsteps=64, stamp=0, smode="", D1=10, D2=10, flags=False, force_slow=False, X=0, VA=4, DS=25, DP=35, D3=120, B0=1):
    st = "sc1" if flags else smode
    lane = 31
    if stamp == 1: A(f"s_memrealtime {s(80,2)}")
    gen_persistent(A, lane)
    gen_init_comm(A, lane, st)
    EARLY_FLAGS[0] = flags
    A(f"s_lshr_b32 {s(sFL2)}, {s(sRANK)}, 1")
    A(f"s_lshl_b32 {s(sFL2)}, {s(sFL2)}, 7")
    A(f"s_add_u32 {s(sFL1)}, {s(sWS)}, {WS_FLAGS}")
    A(f"s_addc_u32 {s(sFL1+1)}, {s(sWS+1)}, 0")
    gen_weights(A, lane, st)
    if stamp == 1: A(f"s_memrealtime {s(82,2)}")
    A(f"s_lshl_b32 {s(sT0)}, {s(sRANK)}, 13")
    A(f"s_add_u32 {s(sKX)}, {s(sWS)}, {s(sT0)}")
    A(f"s_addc_u32 {s(sKX+1)}, {s(sWS+1)}, 0")
    A(f"s_add_u32 {s(sVX)}, {s(sKX)}, {WS_VX}")
    A(f"s_addc_u32 {s(sVX+1)}, {s(sKX+1)}, 0")
    A(f"s_and_b32 {s(sT0)}, {s(sWAVE)}, 1")
    A(f"s_lshl_b32 {s(sT0)}, {s(sT0)}, 24")
    A(f"s_add_u32 {s(sPFK)}, {s(sKX)}, {s(sT0)}")
    A(f"s_addc_u32 {s(sPFK+1)}, {s(sKX+1)}, 0")
    A(f"s_add_u32 {s(sPFK)}, {s(sPFK)}, {32*8192}")
    A(f"s_addc_u32 {s(sPFK+1)}, {s(sPFK+1)}, 0")
    A(f"s_add_u32 {s(sKM)}, {s(sWS)}, {WS_MEMP}")
    A(f"s_addc_u32 {s(sKM+1)}, {s(sWS+1)}, 0")
    def kv_dma():
        return [f"s_add_u32 m0, {s(sOFF)}, {L_KXB}",
                f"global_load_lds_dwordx4 {v(vW16)}, {s(sKX,2)} sc1",
                f"global_load_lds_dwordx4 {v(vW16)}, {s(sKX,2)} offset:1024 sc1",
                f"s_add_u32 m0, {s(sOFF)}, {L_VXB}",
                f"global_load_lds_dwordx4 {v(vW16)}, {s(sVX,2)} sc1",
                f"global_load_lds_dwordx4 {v(vW16)}, {s(sVX,2)} offset:1024 sc1"]
    def kv_adv():
        A(f"s_add_u32 {s(sKX)}, {s(sKX)}, {32*8192}")
        A(f"s_addc_u32 {s(sKX+1)}, {s(sKX+1)}, 0")
        A(f"s_add_u32 {s(sVX)}, {s(sVX)}, {32*8192}")
        A(f"s_addc_u32 {s(sVX+1)}, {s(sVX+1)}, 0")
    A(f"s_mov_b32 {s(sSPIN)}, 0")
    A(f"s_mov_b32 {s(sFMK2)}, 0")
    if not flags:
        A(f"s_mov_b32 {s(sFMASK)}, 0")
        A(f"s_add_u32 {s(sPFK)}, {s(sPFK)}, {32*8192}")
        A(f"s_addc_u32 {s(sPFK+1)}, {s(sPFK+1)}, 0")
    if flags:
        A(f"s_mov_b32 {s(sFMASK)}, -1")
        lfi = A.label("L_cfi"); lfo = A.label("L_cfo")
        A(f"v_cmp_gt_u32 vcc, 256, {v(99)}")
        A(f"s_cbranch_vccz {lfo}")
        A("s_waitcnt vmcnt(0)")
        A(f"v_mov_b32 {v(101)}, 0")
        A(f"v_mov_b32 {v(24)}, {DBG_FINIT}")
        A(f"{lfi}:")
        A(f"global_load_dword {v(25)}, {v(24)}, {s(sDBG,2)} sc1")
        A(f"s_add_u32 {s(sSPIN)}, {s(sSPIN)}, 1")
        A(f"s_cmp_gt_u32 {s(sSPIN)}, 0x40000")
        A(f"s_cbranch_scc1 L_chain_abort")
        A("s_waitcnt vmcnt(0)")
        A(f"v_cmp_gt_u32 vcc, 256, {v(25)}")
        A(f"s_cbranch_vccnz {lfi}")
        A(f"{lfo}:")
    lw = A.label("L_winit"); lchk = A.label("L_wchk")
    A("s_waitcnt vmcnt(0)")
    A(f"s_branch {lchk}")
    A(f"{lw}:")
    A(f"global_load_dword {v(100)}, {v(104)}, {s(sDBG,2)} sc1")
    if flags:
        A(f"global_load_dword {v(101)}, {v(103)}, {s(sFL1,2)} sc1")
        A(f"global_load_dword {v(102)}, {v(105)}, {s(sFL1,2)} sc1")
        A(f"global_load_dword {v(vPF)}, {v(106)}, {s(sFL1,2)} sc1")
    A(f"s_add_u32 {s(sSPIN)}, {s(sSPIN)}, 1")
    A(f"s_cmp_gt_u32 {s(sSPIN)}, 0x40000")
    A(f"s_cbranch_scc1 L_chain_abort")
    A(f"s_waitcnt vmcnt(0)")
    A(f"{lchk}:")
    A(f"v_readlane_b32 {s(sT0)}, {v(100)}, 1")
    A(f"v_readlane_b32 {s(sMODE)}, {v(100)}, 3")
    A(f"s_cmp_lt_u32 {s(sT0)}, 32")
    A(f"s_cbranch_scc1 {lw}")
    if flags:
        A(f"v_cmp_ne_u32 vcc, 0, {v(101)}")
        A(f"s_and_b32 {s(sT0)}, vcc_lo, {s(sFMASK)}")
        A(f"v_cmp_ne_u32 vcc, 0, {v(102)}")
        A(f"s_and_b32 {s(sT0)}, {s(sT0)}, vcc_lo")
        A(f"s_cmp_eq_u32 {s(sT0)}, {s(sFMASK)}")
        A(f"s_cbranch_scc0 {lw}")
        A(f"s_add_u32 {s(sFL1)}, {s(sFL1)}, {3*16384}")
        A(f"s_addc_u32 {s(sFL1+1)}, {s(sFL1+1)}, 0")
        A(f"s_mov_b32 {s(sFMK2)}, {s(sFMASK)}")
        A(f"s_add_u32 {s(sPFK)}, {s(sPFK)}, {32*8192}")
        A(f"s_addc_u32 {s(sPFK+1)}, {s(sPFK+1)}, 0")
        A(f"s_bcnt1_i32_b32 {s(sMODE)}, {s(sMODE)}")
        if force_slow: A(f"s_mov_b32 {s(sMODE)}, 2")
    for x in kv_dma(): A(x)
    kv_adv()
    if flags:
        cw = A.label("L_cw")
        A(f"s_cmp_lg_u32 {s(sWAVE)}, 0")
        A(f"s_cbranch_scc1 {cw}")
        A(f"v_mov_b32 {v(24)}, {DBG_CW}")
        A(f"v_mov_b32 {v(25)}, 1")
        A("s_mov_b64 exec, 1")
        A(f"global_atomic_add {v(24)}, {v(25)}, {s(sDBG,2)}")
        A("s_mov_b64 exec, -1")
        A(f"{cw}:")
    A(f"s_mov_b32 {s(sSTEP)}, 0")
    A(f"s_mov_b32 {s(sSPIN)}, 0")
    if stamp:
        A(f"s_memtime {s(sTS,2)}")
        A("s_waitcnt lgkmcnt(0)")
        if stamp == 1: A(f"s_memrealtime {s(84,2)}"); A("s_waitcnt lgkmcnt(0)")
        else:
            for k in range(26): A(f"s_mov_b32 {s(76+k)}, 0")
        A(f"s_mov_b32 {s(sTS+4)}, 0")
        A(f"s_mov_b32 {s(sTS+5)}, 0")
    def ts(k):
        if stamp == 2 and k < 13: A(f"s_memtime {s(76+2*k,2)}")
    def dump_stamps():
        if stamp == 2:
            lab = A.label("L_nodump")
            A(f"s_cmp_lg_u32 {s(sSTEP)}, 41")
            A(f"s_cbranch_scc1 {lab}")
            A("s_waitcnt lgkmcnt(0)")
            A(f"s_lshl_b32 {s(sT0)}, {s(sRANK)}, 2")
            A(f"s_add_u32 {s(sT0)}, {s(sT0)}, {s(sWAVE)}")
            A(f"s_lshl_b32 {s(sT0)}, {s(sT0)}, 6")
            A(f"s_add_u32 {s(sT0)}, {s(sT0)}, {WS_END_CHAIN + 0x4000}")
            A(f"v_mov_b32 {v(T0)}, {s(sT0)}")
            for k in range(13):
                A(f"v_mov_b32 {v(T0+1)}, {s(76+2*k)}")
                A(f"global_store_dword {v(T0)}, {v(T0+1)}, {s(sWS,2)} offset:{4*k}")
            A(f"{lab}:")

    K0,Q0,K1,Q1 = AQK, AQK+4, AQK+8, AQK+12
    V0,V1 = AV, AV+4
    QK = AQK
    PA = KXR
    def step_scalars():
        A(f"s_and_b32 {s(sPH)}, {s(sSTEP)}, 1")
        A(f"s_lshl_b32 {s(sT0+1)}, {s(sPH)}, 13")
        A(f"s_add_u32 {s(sT0+1)}, {s(sT0+1)}, {WS_MEM}")
        A(f"s_add_u32 {s(sMEMc)}, {s(sWS)}, {s(sT0+1)}")
        A(f"s_addc_u32 {s(sMEMc+1)}, {s(sWS+1)}, 0")
        A(f"s_xor_b32 {s(sT0+1)}, {s(sT0+1)}, 8192")
        A(f"s_add_u32 {s(sMEMn)}, {s(sWS)}, {s(sT0+1)}")
        A(f"s_addc_u32 {s(sMEMn+1)}, {s(sWS+1)}, 0")
    def zero_acc():
        A(f"v_mfma_f32_32x32x8_bf16 {v(AQK,16)}, {v(vZP,2)}, {v(vZP,2)}, 0")
        for r in range(AV, AV+8, 2): A(f"v_pk_mov_b32 {v(r,2)}, 0, 0")
        for p in range(4): A(f"v_add_u32 {v(S0+p)}, {s(sOFF+p)}, {v(vLH)}")

    FARN = {0:0, 2:3, 3:2}
    def step_body(st, sfx, far, slowpaths):
        L = lambda x: f"{x}{sfx}"
        A(f"{L('L_step')}:")
        ts(12)
        delay(A, D2)
        MR = S0
        MB = KXR
        def chk(base):
            A(f"v_max3_u32 {v(T0)}, {v(base)}, {v(base+1)}, {v(base+2)}")
            A(f"v_max3_u32 {v(T0+1)}, {v(base+3)}, {v(base+4)}, {v(base+5)}")
            A(f"v_max3_u32 {v(T0)}, {v(T0)}, {v(base+6)}, {v(base+7)}")
            A(f"v_max_u32 {v(T0)}, {v(T0)}, {v(T0+1)}")
            A(f"v_cmp_eq_u32 vcc, -1, {v(T0)}")
        def ldm(base):
            A(f"global_load_dwordx4 {v(base,4)}, {v(vW16)}, {s(sMEMc,2)} sc1")
            A(f"global_load_dwordx4 {v(base+4,4)}, {v(vW16)}, {s(sMEMc,2)} offset:1024 sc1")
        ldm(MA)
        delay(A, DS)
        A(f"{L('L_pollm')}:")
        ldm(MB)
        A("s_waitcnt vmcnt(2)")
        chk(MA)
        A(f"s_cbranch_vccz {L('L_gotm')}")
        ldm(MA)
        A(f"s_add_u32 {s(sSPIN)}, {s(sSPIN)}, 1")
        A(f"s_cmp_gt_u32 {s(sSPIN)}, 0x40000")
        A(f"s_cbranch_scc1 L_chain_abort")
        A("s_waitcnt vmcnt(2)")
        chk(MB)
        A(f"s_cbranch_vccnz {L('L_pollm2')}")
        for r in range(0,8,2): A(f"v_pk_mov_b32 {v(MA+r,2)}, {v(MB+r,2)}, {v(MB+r,2)} op_sel:[0,1]")
        A(f"s_branch {L('L_gotm2')}")
        A(f"{L('L_pollm2')}:")
        A(f"s_branch {L('L_pollm')}")
        A(f"{L('L_gotm')}:")
        A(f"{L('L_gotm2')}:")
        ts(0)
        A(f"ds_write_b128 {v(MR)}, {ma(0)}")
        A(smf(K0, ma(0), WK(0,0)))
        A(f"ds_write_b128 {v(MR)}, {ma(1)} offset:1024")
        A(smf(Q0, ma(0), WQ(0,0)))
        if far:
            fok = A.label("L_fok"); fs_ = f"L_fslow{sfx}"
            if flags:
                A(f"v_cmp_ne_u32 vcc, 0, {v(vPF)}")
                A(f"s_and_b32 {s(sT0)}, vcc_lo, {s(sFMK2)}")
                A(f"s_cmp_eq_u32 {s(sT0)}, {s(sFMK2)}")
                A(f"s_cbranch_scc0 {fs_}")
                A(f"{fok}:")
                slowpaths.append((fs_, fok))
            A(f"v_lshlrev_b32 {v(vPF)}, 3, {v(vL16)}")
            A(f"global_load_dword {v(vPF)}, {v(vPF)}, {s(sPFK,2)}")
        A(smf(K1, ma(0), WK(1,0)))
        if far:
            A(f"v_bfe_u32 {v(X0)}, {v(vL16)}, 4, 1")
            A(f"v_lshl_add_u32 {v(X0)}, {v(X0)}, 11, {s(sFL2)}")
            A(f"global_load_dword {v(vPF)}, {v(X0)}, {s(sFL1,2)} sc1")
        A(smf(Q1, ma(0), WQ(1,0)))
        A(smf(V0, ma(0), WVf(0,0)))
        A(smf(V1, ma(0), WVf(1,0)))
        A("s_waitcnt lgkmcnt(0)")
        A("s_barrier")
        rds = []
        for p in range(3):
            rds.append(f"ds_read_b128 {ma(2*p+2)}, {v(MR+1+p)}")
            rds.append(f"ds_read_b128 {ma(2*p+3)}, {v(MR+1+p)} offset:1024")
        A(rds[0]); A(rds[1])
        own = [(K0,ma(1),WK(0,1)),(Q0,ma(1),WQ(0,1)),(K1,ma(1),WK(1,1)),(Q1,ma(1),WQ(1,1))]
        for i in range(4):
            A(smf(*own[i])); A(rds[i+2])
        A(smf(V0, ma(1), WVf(0,1)))
        A(smf(V1, ma(1), WVf(1,1)))
        kxq = [(t,ks) for ks in range(4) for t in range(2)]
        kxr = [f"ds_read_b128 {v(KXR+(t*4+ks)*4,4)}, {v(vLH)} offset:{L_KXB-L_MEMB+(t*4+ks)*1024}" for (t,ks) in kxq]
        kxr[0] = [f"s_waitcnt vmcnt({2 if far else 0})", kxr[0]]
        fill = [[],[],[],[],[],[],[],[]]
        if far == 2:
            fill.append([f"v_and_b32 {v(X0)}, 0xf0, {v(vL16)}"])
            fill.append([f"v_add_u32 {v(X0+1)}, {s(sRLO)}, {v(X0)}"])
            fill.append([f"ds_read_b128 {v(S1,4)}, {v(X0+1)}"])
            fill.append([f"v_add_u32 {v(X0+1)}, {s(sRL2)}, {v(X0)}"])
        if far == 2:
            pub = fill[8:]; fill = fill[:8]
            fill += [(x if isinstance(x,list) else [x]) for x in kxr] + pub
        else:
            fill += [(x if isinstance(x,list) else [x]) for x in kxr]
        A("s_waitcnt lgkmcnt(4)")
        g = 0
        for b in range(2,8):
            if b == 4:
                nrel = 0
                if far:
                    nrel = sum(1 for f in fill_done for x in f if x.startswith("ds_read"))
                A(f"s_waitcnt lgkmcnt({nrel})")
            order = ((K0,WK(0,b)),(Q0,WQ(0,b)),(K1,WK(1,b)),(Q1,WQ(1,b)))
            for n,(acc,W) in enumerate(order):
                if b == 2 and n == 0: fill_done = []
                A(smf(acc, ma(b), W))
                if fill:
                    f = fill.pop(0); fill_done.append(f)
                    for x in f: A(x)
        assert not fill, len(fill)
        ts(1)
        vq = [(t,b) for b in range(2,8) for t in range(2)]
        vi = [0]
        def vph(n=1):
            for _ in range(n):
                if vi[0] < len(vq):
                    t,b = vq[vi[0]]; vi[0] += 1
                    A(smf(V0+4*t, ma(b), WVf(t,b)))
        X_ = T0
        FB = [MA, MA+8, MA+16, MA+24, AV, AQK, AQK+8, 120]
        frags = [(j,b) for j in range(8) for b in range(2)]
        def wo_rd(fi, buf):
            j,b = frags[fi]; out = []
            for hx in range(2):
                q = 2*b + hx
                off = q*32768 + j*1024
                reg = vWO0 if off < 65536 else vWO1
                if off >= 65536: off -= 65536
                out.append(f"ds_read_b128 {v(FB[buf]+4*hx,4)}, {v(reg)} offset:{off}")
            return out
        vph(2)
        A(f"v_pk_add_f32 {v(K0,2)}, {v(K0,2)}, {v(K0+2,2)}")
        A(f"v_pk_add_f32 {v(Q0,2)}, {v(Q0,2)}, {v(Q0+2,2)}")
        A(f"v_pk_add_f32 {v(K1,2)}, {v(K1,2)}, {v(K1+2,2)}")
        A(f"v_cvt_pk_bf16_f32 {v(X_)}, {v(K0)}, {v(K0+1)}")
        A(f"v_cvt_pk_bf16_f32 {v(X_+1)}, {v(Q0)}, {v(Q0+1)}")
        A(f"v_pk_add_f32 {v(Q1,2)}, {v(Q1,2)}, {v(Q1+2,2)}")
        A(f"ds_write_b64 {v(vMQW)}, {v(X_,2)}")
        A(f"v_cvt_pk_bf16_f32 {v(X_+2)}, {v(K1)}, {v(K1+1)}")
        A(f"v_cvt_pk_bf16_f32 {v(X_+3)}, {v(Q1)}, {v(Q1+1)}")
        A(f"ds_write_b64 {v(vMQW)}, {v(X_+2,2)} offset:512")
        vph(VA)
        A("s_waitcnt lgkmcnt(0)")
        if far == 2:
            A("s_mov_b64 exec, 0xffff")
            A(f"global_store_dwordx4 {v(X0+1)}, {v(S1,4)}, {s(sKM,2)} sc1")
            A("s_mov_b64 exec, -1")
        A("s_barrier")
        for ks in range(4):
            A(f"ds_read_b64_tr_b16 {v(QK+4*ks,2)}, {v(vMQR0)} offset:{ks*1024}")
            A(f"ds_read_b64_tr_b16 {v(QK+4*ks+2,2)}, {v(vMQR1)} offset:{ks*1024}")
        vph(16)
        ts(2)
        VXO = KXR; B1 = KXR+8
        VMa = X0
        ONE = T0+2
        wr = wo_rd(0,0) + wo_rd(1,1) + wo_rd(2,2) + wo_rd(3,3)
        sf = {1: [wr[0]], 2: [wr[1]], 3: [wr[2]], 4: [wr[3]],
              5: [f"v_pk_add_f32 {v(V0,2)}, {v(V0,2)}, {v(V0+2,2)}"],
              6: [f"v_pk_add_f32 {v(V1,2)}, {v(V1,2)}, {v(V1+2,2)}", f"ds_read_b128 {v(KXR,4)}, {v(vVXA)}"],
              7: [f"v_cvt_pk_bf16_f32 {v(VMa)}, {v(V0)}, {v(V0+1)}", f"ds_read_b128 {v(KXR+4,4)}, {v(vVXA)} offset:1024"],
              8: [f"v_cvt_pk_bf16_f32 {v(VMa+1)}, {v(V1)}, {v(V1+1)}"],
              9: [f"v_cvt_pk_bf16_f32 {v(VMa+2)}, {v(V1)}, {v(V1+1)}"],
              10: [f"v_cvt_pk_bf16_f32 {v(VMa+3)}, {v(V0)}, {v(V0+1)}"],
              11: [wr[4]],
              0: [f"v_mov_b32 {v(ONE)}, 0x3f803f80"]}
        sf[8].append(f"v_mov_b32 {v(ONE+1)}, 0x3f803f80")
        g = 0
        for ks in range(4):
            if ks == 0: A(f"s_waitcnt lgkmcnt(4)")
            if ks == 2: A(f"s_waitcnt lgkmcnt(4)")
            c0 = "0" if ks == 0 else v(S0,4); c1 = "0" if ks == 0 else v(S1,4); cm = "0" if ks == 0 else v(SM,4)
            for mf in (f"v_mfma_f32_16x16x32_bf16 {v(S0,4)}, {v(KXR+ks*4,4)}, {v(QK+4*ks,4)}, {c0}",
                       f"v_mfma_f32_16x16x32_bf16 {v(S1,4)}, {v(KXR+16+ks*4,4)}, {v(QK+4*ks,4)}, {c1}",
                       f"v_mfma_f32_16x16x32_bf16 {v(SM,4)}, {v(QK+4*ks,4)}, {v(QK+4*ks,4)}, {cm}"):
                A(mf)
                for x in sf.get(g, []): A(x)
                g += 1
        ts(3)
        m1,m2 = T0, T0+1
        A(f"s_cmp_eq_u32 {s(sSTEP)}, {nsteps-1}")
        A(f"s_cbranch_scc1 L_chain_done")
        A(wr[5])
        A(f"v_max3_f32 {v(m1)}, {v(S0)}, {v(S0+1)}, {v(S0+2)}")
        A(f"v_max3_f32 {v(m2)}, {v(S0+3)}, {v(S1)}, {v(S1+1)}")
        A(f"v_max3_f32 {v(m1)}, {v(m1)}, {v(S1+2)}, {v(S1+3)}")
        A(f"v_max3_f32 {v(m2)}, {v(m2)}, {v(SM)}, {v(SM+1)}")
        A(f"v_max_f32 {v(m1)}, {v(m1)}, {v(m2)}")
        A(f"v_max_f32 {v(m2)}, {v(m1)}, {v(m2)}")
        A(wr[6])
        A(f"v_permlane16_swap_b32 {v(m1)}, {v(m2)}")
        A(f"v_max_f32 {v(m1)}, {v(m1)}, {v(m2)}")
        A(f"v_mov_b32 {v(m2)}, {v(m1)}")
        A(wr[7])
        A(f"v_permlane32_swap_b32 {v(m1)}, {v(m2)}")
        A(f"v_max_f32 {v(m1)}, {v(m1)}, {v(m2)}")
        A(f"v_mul_f32 {v(m1)}, {s(sSC+1)}, {v(m1)}")
        for r in (S0,S0+2,S1,S1+2,SM):
            A(f"v_pk_fma_f32 {v(r,2)}, {v(r,2)}, {s(sSC,2)}, {v(m1,2)} op_sel_hi:[1,0,0]")
        for r in (S0,S0+1,S0+2,S0+3): A(f"v_exp_f32 {v(r)}, {v(r)}")
        for r in (S1,S1+1): A(f"v_exp_f32 {v(r)}, {v(r)}")
        A(f"v_cvt_pk_bf16_f32 {v(B1)}, {v(S0)}, {v(S0+1)}")
        for r in (S1+2,S1+3): A(f"v_exp_f32 {v(r)}, {v(r)}")
        A(f"v_cvt_pk_bf16_f32 {v(B1+1)}, {v(S0+2)}, {v(S0+3)}")
        A(f"v_cvt_pk_bf16_f32 {v(B1+2)}, {v(S1)}, {v(S1+1)}")
        A(f"v_exp_f32 {v(SM)}, {v(SM)}")
        A(f"v_cvt_pk_bf16_f32 {v(B1+3)}, {v(S1+2)}, {v(S1+3)}")
        A(f"v_exp_f32 {v(SM+1)}, {v(SM+1)}")
        O0, O1 = KXR+16, KXR+20
        LS = SM
        A(f"v_cvt_pk_bf16_f32 {v(vPM)}, {v(SM)}, {v(SM+1)}")
        A("s_waitcnt lgkmcnt(4)")
        A(f"v_mfma_f32_16x16x16_bf16 {v(LS,4)}, {v(ONE,2)}, {v(B1,2)}, 0")
        A(f"v_mfma_f32_16x16x16_bf16 {v(LS,4)}, {v(ONE,2)}, {v(B1+2,2)}, {v(LS,4)}")
        A(f"v_mfma_f32_16x16x16_bf16 {v(LS,4)}, {v(ONE,2)}, {v(vPM,2)}, {v(LS,4)}")
        w4 = wo_rd(4,4)
        A(f"v_mfma_f32_16x16x32_bf16 {v(O0,4)}, {v(VXO,4)}, {v(B1,4)}, 0")
        A(w4[0])
        A(f"v_mfma_f32_16x16x32_bf16 {v(O1,4)}, {v(VXO+4,4)}, {v(B1,4)}, 0")
        A(w4[1])
        A(f"v_mfma_f32_16x16x16_bf16 {v(O0,4)}, {v(VMa,2)}, {v(vPM,2)}, {v(O0,4)}")
        A(f"v_rcp_f32 {v(m1)}, {v(LS)}")
        A(f"v_mfma_f32_16x16x16_bf16 {v(O1,4)}, {v(VMa+2,2)}, {v(vPM,2)}, {v(O1,4)}")
        for r in (O0,O0+2,O1,O1+2):
            A(f"v_pk_mul_f32 {v(r,2)}, {v(r,2)}, {v(m1,2)} op_sel_hi:[1,0]")
        OP = S0
        A(f"v_cvt_pk_bf16_f32 {v(OP)}, {v(O0)}, {v(O0+1)}")
        A(f"v_cvt_pk_bf16_f32 {v(OP+1)}, {v(O0+2)}, {v(O0+3)}")
        A(f"v_cvt_pk_bf16_f32 {v(OP+2)}, {v(O1)}, {v(O1+1)}")
        A(f"v_cvt_pk_bf16_f32 {v(OP+3)}, {v(O1+2)}, {v(O1+3)}")
        A(f"ds_write2_b64 {v(vOW)}, {v(OP,2)}, {v(OP+2,2)} offset0:0 offset1:4")
        ts(4)
        A(f"v_mfma_f32_32x32x8_bf16 {v(PA,16)}, {v(vZP,2)}, {v(vZP,2)}, 0")
        w5 = wo_rd(5,5) + wo_rd(6,6)
        A(w5[0]); A(w5[1])
        A(f"v_mfma_f32_32x32x8_bf16 {v(PA+16,16)}, {v(vZP,2)}, {v(vZP,2)}, 0")
        A(w5[2]); A(w5[3])
        A("s_waitcnt lgkmcnt(4)")
        A("s_barrier")
        OA = S0
        A(f"ds_read_b128 {v(OA,4)}, {v(vOR)}")
        A(f"ds_read_b128 {v(OA+4,4)}, {v(vOR)} offset:128")
        w7 = wo_rd(7,7)
        for x in w7: A(x)
        for x in kv_dma(): A(x)
        ts(5)
        A("s_waitcnt lgkmcnt(2)")
        issued = [7]; nxt = 8
        PK0 = X0
        for fi in range(16):
            j,b = frags[fi]
            buf = fi % 8
            if fi >= 7 and fi % 2 == 1:
                tgt = min(fi+1, 15)
                later = len(issued) - 1 - issued.index(tgt)
                A(f"s_waitcnt lgkmcnt({min(15,2*later)})")
            A(f"v_smfmac_f32_16x16x64_bf16 {v(PA+4*j,4)}, {v(OA+4*b,4)}, {v(FB[buf],8)}, {v(vIDX)}")
            if nxt < 16:
                for x in wo_rd(nxt, nxt % 8): A(x)
                issued.append(nxt); nxt += 1
            if b == 1 and j >= 1:
                jj = j-1
                dst = (PK0 + jj) if jj < 4 else (PA + jj - 4)
                A(f"v_pk_add_f32 {v(PA+4*jj,2)}, {v(PA+4*jj,2)}, {v(PA+4*jj+2,2)}")
                A(f"v_cvt_pk_bf16_f32 {v(dst)}, {v(PA+4*jj)}, {v(PA+4*jj+1)}")
                if jj == 3:
                    A(f"v_bfi_b32 {v(PK0)}, 1, {s(sPH)}, {v(PK0)}")
                    A(f"global_store_dwordx4 {v(vPP)}, {v(PK0,4)}, {s(sPc,2)} {st}")
        A(f"v_bfi_b32 {v(PA)}, 1, {s(sPH)}, {v(PA)}")
        A(f"v_pk_add_f32 {v(PA+28,2)}, {v(PA+28,2)}, {v(PA+30,2)}")
        A(f"v_cvt_pk_bf16_f32 {v(PA+3)}, {v(PA+28)}, {v(PA+29)}")
        A(f"global_store_dwordx4 {v(vPP)}, {v(PA,4)}, {s(sPc2,2)} {st}")
        ts(6)
        kv_adv()
        A(f"s_add_u32 {s(sSTEP)}, {s(sSTEP)}, 1")
        zero_acc()
        if not far:
            RS = MA
            A(f"v_bfe_u32 {v(MA+4)}, {v(vL16)}, 4, 3")
            A(f"v_mov_b32 {v(MA+5)}, 0x3f80")
            A(f"v_mov_b32 {v(MA+6)}, 0x3f800000")
            for d in range(4):
                A(f"v_cmp_eq_u32 vcc, {2*d}, {v(MA+4)}")
                A(f"v_cndmask_b32 {v(RS+d)}, 0, {v(MA+5)}, vcc")
                A(f"v_cmp_eq_u32 vcc, {2*d+1}, {v(MA+4)}")
                A(f"v_cndmask_b32 {v(RS+d)}, {v(RS+d)}, {v(MA+6)}, vcc")
            delay(A, D1)
            G = KXR+4
            RA = KXR+20
            GB = MA+8
            def ldp(base):
                for t in range(4):
                    A(f"global_load_dwordx4 {v(base+4*t,4)}, {v(vPG)}, {s(sPc,2)} offset:{t*1024} sc1")
            def chkp(base):
                A(f"v_bitop3_b32 {v(T0)}, {v(base)}, {v(base+4)}, {s(sPH)} bitop3:0x7e")
                A(f"v_bitop3_b32 {v(T0+1)}, {v(base+8)}, {v(base+12)}, {s(sPH)} bitop3:0x7e")
                A(f"v_bitop3_b32 {v(T0)}, {v(T0)}, {v(T0+1)}, 1 bitop3:0xa8")
                A(f"v_cmp_ne_u32 vcc, 0, {v(T0)}")
            def summ(base):
                for t in range(4):
                    c = "0" if t == 0 else v(RA,4)
                    A(f"v_mfma_f32_16x16x32_bf16 {v(RA,4)}, {v(RS,4)}, {v(base+4*t,4)}, {c}")
            ldp(G)
            delay(A, DP)
            A(f"{L('L_pollp')}:")
            ldp(GB)
            A("s_waitcnt vmcnt(4)")
            summ(G)
            chkp(G)
            A(f"s_cbranch_vccz {L('L_gotp')}")
            ldp(G)
            A(f"s_add_u32 {s(sSPIN)}, {s(sSPIN)}, 1")
            A(f"s_cmp_gt_u32 {s(sSPIN)}, 0x40000")
            A(f"s_cbranch_scc1 L_chain_abort")
            A("s_waitcnt vmcnt(4)")
            summ(GB)
            chkp(GB)
            A(f"s_cbranch_vccnz {L('L_pollp')}")
            A(f"{L('L_gotp')}:")
            ts(7)
            for r in range(4):
                A(f"v_add_f32_dpp {v(RA+r)}, {v(RA+r)}, {v(RA+r)} row_ror:8 row_mask:0xf bank_mask:0xf")
            A(f"v_cvt_pk_bf16_f32 {v(T0)}, {v(RA)}, {v(RA+2)}")
            A(f"v_cvt_pk_bf16_f32 {v(T0+1)}, {v(RA+1)}, {v(RA+3)}")
            A(f"v_cndmask_b32 {v(T0)}, {v(T0)}, {v(T0+1)}, {s(sMASK,2)}")
            A(f"global_store_dword {v(vMP)}, {v(T0)}, {s(sMEMn,2)} {st}")
            A(f"v_mov_b32 {v(T0+2)}, -1")
            A(f"global_store_dword {v(vMP)}, {v(T0+2)}, {s(sMEMc,2)} {st}")
            ts(8)
        if far:
            A(f"s_add_u32 {s(sKM)}, {s(sKM)}, 8192")
            A(f"s_addc_u32 {s(sKM+1)}, {s(sKM+1)}, 0")
            A(f"s_cmp_lt_u32 {s(sSTEP)}, {nsteps-2}")
            A(f"s_cselect_b32 {s(sT0)}, {32*8192}, 0")
            A(f"s_cselect_b32 {s(sT0+1)}, 16384, 0")
            A(f"s_cselect_b32 {s(sFMK2)}, {s(sFMASK)}, 0")
            A(f"s_add_u32 {s(sPFK)}, {s(sPFK)}, {s(sT0)}")
            A(f"s_addc_u32 {s(sPFK+1)}, {s(sPFK+1)}, 0")
            A(f"s_add_u32 {s(sFL1)}, {s(sFL1)}, {s(sT0+1)}")
            A(f"s_addc_u32 {s(sFL1+1)}, {s(sFL1+1)}, 0")
            A("s_waitcnt vmcnt(0)")
        dump_stamps()
        if stamp == 4 and far == 2:
            lab = A.label("L_nclk")
            A(f"s_cmp_lg_u32 {s(sRANK)}, 0"); A(f"s_cbranch_scc1 {lab}")
            A(f"s_memtime {s(76,2)}"); A(f"s_memrealtime {s(78,2)}"); A("s_waitcnt lgkmcnt(0)")
            A(f"s_lshl_b32 {s(sT0)}, {s(sSTEP)}, 3"); A(f"s_add_u32 {s(sT0)}, {s(sT0)}, {WS_END_CHAIN + 0x10000}")
            A(f"v_mov_b32 {v(T0)}, {s(sT0)}"); A(f"v_mov_b32 {v(T0+2)}, {s(76)}"); A(f"v_mov_b32 {v(T0+3)}, {s(78)}")
            A(f"global_store_dwordx2 {v(T0)}, {v(T0+2,2)}, {s(sWS,2)}")
            A(f"{lab}:")
        A(f"s_mov_b64 {s(sT0+2,2)}, {s(sMEMc,2)}")
        A(f"s_mov_b64 {s(sMEMc,2)}, {s(sMEMn,2)}")
        A(f"s_mov_b64 {s(sMEMn,2)}, {s(sT0+2,2)}")
        A(f"s_xor_b32 {s(sPH)}, {s(sPH)}, 1")
        if B0: A("s_barrier")
        elif far: delay(A, D3)
        A(f"s_branch {L('L_step')}")
    def slow_code(slowpaths):
        for (fs_, fok) in slowpaths:
            A(f"{fs_}:")
            A(f"v_bfe_u32 {v(X0)}, {v(vL16)}, 4, 1")
            A(f"v_lshl_add_u32 {v(X0)}, {v(X0)}, 11, {s(sFL2)}")
            A(f"s_sub_u32 {s(sT0+2)}, {s(sFL1)}, 16384")
            A(f"s_subb_u32 {s(sT0+3)}, {s(sFL1+1)}, 0")
            A(f"global_load_dword {v(vPF)}, {v(X0)}, {s(sT0+2,2)} sc1")
            A(f"s_add_u32 {s(sSPIN)}, {s(sSPIN)}, 1")
            A(f"s_cmp_gt_u32 {s(sSPIN)}, 0x40000")
            A(f"s_cbranch_scc1 L_chain_abort")
            A("s_waitcnt vmcnt(0)")
            A(f"v_cmp_ne_u32 vcc, 0, {v(vPF)}")
            A(f"s_and_b32 {s(sT0)}, vcc_lo, {s(sFMK2)}")
            A(f"s_cmp_eq_u32 {s(sT0)}, {s(sFMK2)}")
            A(f"s_cbranch_scc1 {fok}")
            A("s_sleep 1")
            A(f"s_branch {fs_}")
    def main_loop(st, sfx):
        sp = []
        A(f"s_cmp_eq_u32 {s(sWAVE)}, 2")
        A(f"s_cbranch_scc1 L_step{sfx}_f2")
        A(f"s_cmp_eq_u32 {s(sWAVE)}, 3")
        A(f"s_cbranch_scc1 L_step{sfx}_f3")
        step_body(st, sfx+"_n", 0, sp)
        A.hist = []
        step_body(st, sfx+"_f2", 2, sp)
        A.hist = []
        step_body(st, sfx+"_f3", 3, sp)
        slow_code(sp)
    step_scalars(); zero_acc()
    A("s_barrier")
    if flags:
        A(f"s_cmp_lg_u32 {s(sMODE)}, 1")
        A("s_cbranch_scc1 L_main_slow")
        main_loop("", "_fast")
        A.hist = []
        A("L_main_slow:")
        main_loop("sc1", "_slow")
    else:
        main_loop(smode, "")
    A("L_chain_abort:")
    A(f"s_mov_b32 {s(sSTEP)}, 0xdead")
    A("s_branch L_chain_end")
    A("L_chain_done:")
    if flags:
        A(f"s_lshl_b32 {s(sT0)}, {s(sRANK)}, 12")
        A(f"s_add_u32 {s(sT0)}, {s(sT0)}, {63*32*4096}")
        A(f"s_add_u32 {s(sT0+2)}, {s(sWS)}, {s(sT0)}")
        A(f"s_addc_u32 {s(sT0+3)}, {s(sWS+1)}, 0")
        A(f"s_add_u32 {s(sT0+4)}, {s(sT0+2)}, {WS_VM}")
        A(f"s_addc_u32 {s(sT0+5)}, {s(sT0+3)}, 0")
        A(f"s_add_u32 {s(sT0+2)}, {s(sT0+2)}, {WS_KM}")
        A(f"s_addc_u32 {s(sT0+3)}, {s(sT0+3)}, 0")
        kl = [A.label("L_lk") for _ in range(5)]
        for w in range(1,4):
            A(f"s_cmp_eq_u32 {s(sWAVE)}, {w}")
            A(f"s_cbranch_scc1 {kl[w]}")
        for w in range(4):
            A(f"{kl[w]}:")
            A(f"global_store_dwordx4 {v(vL16)}, {v(AQK+4*w,4)}, {s(sT0+2,2)} offset:{w*1024} sc1")
            A(f"v_lshrrev_b32 {v(T0)}, 1, {v(vL16)}")
            A(f"global_store_dwordx2 {v(T0)}, {v(X0,2)}, {s(sT0+4,2)} offset:{w*512} sc1")
            A(f"s_branch {kl[4]}")
        A(f"{kl[4]}:")
        A("s_waitcnt vmcnt(0)")
        A("s_barrier")
        fin = A.label("L_cfin")
        A(f"s_cmp_lg_u32 {s(sWAVE)}, 0")
        A(f"s_cbranch_scc1 {fin}")
        A(f"s_lshl_b32 {s(sT0)}, {s(sRANK)}, 7")
        A(f"s_add_u32 {s(sT0)}, {s(sT0)}, {WS_FLAGS + 63*16384 + 8192}")
        A(f"v_mov_b32 {v(T0)}, {s(sT0)}")
        A("s_mov_b64 exec, 1")
        A(f"global_store_dword {v(T0)}, {v(vIDX)}, {s(sWS,2)} sc1")
        A("s_mov_b64 exec, -1")
        A(f"{fin}:")
    A("L_chain_end:")
    if STARTUP_STAMPS:
        A("s_waitcnt lgkmcnt(0)")
        A(f"s_lshl_b32 {s(sT0)}, {s(sRANK)}, 2")
        A(f"s_add_u32 {s(sT0)}, {s(sT0)}, {s(sWAVE)}")
        A(f"s_lshl_b32 {s(sT0)}, {s(sT0)}, 6")
        A(f"s_add_u32 {s(sT0)}, {s(sT0)}, {WS_END_CHAIN + 0x4000}")
        A(f"v_mov_b32 {v(24)}, {s(sT0)}")
        for k in range(8):
            A(f"v_mov_b32 {v(25)}, {s(76+2*k)}")
            A(f"global_store_dword {v(24)}, {v(25)}, {s(sWS,2)} offset:{4*k}")
        A(f"s_getreg_b32 {s(sT0+1)}, hwreg(HW_REG_HW_ID)")
        A(f"v_mov_b32 {v(25)}, {s(sT0+1)}")
        A(f"global_store_dword {v(24)}, {v(25)}, {s(sWS,2)} offset:32")
    if stamp:
        A(f"s_lshl_b32 {s(sT0)}, {s(sRANK)}, 2")
        A(f"s_add_u32 {s(sT0)}, {s(sT0)}, {s(sWAVE)}")
        A(f"s_lshl_b32 {s(sT0)}, {s(sT0)}, 6")
        A(f"s_add_u32 {s(sT0)}, {s(sT0)}, {WS_END_CHAIN}")
        A(f"v_mov_b32 {v(24)}, {s(sT0)}")
        A(f"s_memtime {s(sTS+2,2)}")
        A("s_waitcnt lgkmcnt(0)")
        A(f"s_sub_u32 {s(sTS+2)}, {s(sTS+2)}, {s(sTS)}")
        A(f"v_mov_b32 {v(25)}, {s(sTS+2)}")
        A(f"global_store_dword {v(24)}, {v(25)}, {s(sWS,2)} offset:40")
        A(f"v_mov_b32 {v(25)}, {s(sSTEP)}")
        A(f"global_store_dword {v(24)}, {v(25)}, {s(sWS,2)} offset:44")
        A(f"v_mov_b32 {v(25)}, {s(sSPIN)}")
        A(f"global_store_dword {v(24)}, {v(25)}, {s(sWS,2)} offset:48")
        if stamp == 1:
            A(f"s_memrealtime {s(86,2)}"); A("s_waitcnt lgkmcnt(0)")
            for k in range(4):
                A(f"v_mov_b32 {v(25)}, {s(80+2*k)}")
                A(f"global_store_dword {v(24)}, {v(25)}, {s(sWS,2)} offset:{4*k}")
    A("s_waitcnt vmcnt(0)")

def gen_entry(A):
    A(f"s_load_dwordx2 {s(60,2)}, s[0:1], {KA_MEM0}")
    A(f"s_load_dwordx2 {s(62,2)}, s[0:1], {KA_WQ}")
    A(f"s_load_dwordx2 {s(64,2)}, s[0:1], {KA_WK}")
    A(f"s_load_dwordx2 {s(66,2)}, s[0:1], {KA_WV}")
    A(f"s_load_dwordx2 {s(68,2)}, s[0:1], {KA_WO}")
    A(f"s_load_dwordx2 {s(sDBG,2)}, s[0:1], {KA_DBG}")
    A(f"s_load_dwordx2 {s(sWS,2)}, s[0:1], {KA_WS}")
    A(f"s_getreg_b32 {s(sT0)}, hwreg(HW_REG_XCC_ID, 0, 4)")
    A("v_lshrrev_b32 v1, 6, v0")
    A(f"v_readfirstlane_b32 {s(sWAVE)}, v1")
    A("v_and_b32 v31, 63, v0")
    A("s_waitcnt lgkmcnt(0)")

def gen_standalone(stamp=0, **kw):
    A = Asm()
    name = "chain_kernel"
    A.raw("; @launch kernel=chain_kernel grid=(256,1,1) block=(256,1,1) lds=163840")
    A.raw('.amdgcn_target "amdgcn-amd-amdhsa--gfx950"')
    A.raw(kstart(name))
    gen_entry(A)
    A(f"s_cmp_lg_u32 {s(sT0)}, 0")
    A("s_cbranch_scc1 L_exit")
    A("s_cmp_ge_u32 s2, 256")
    A("s_cbranch_scc1 L_exit")
    A("v_mov_b32 v2, 0")
    A("v_mov_b32 v3, 1")
    A(f"v_mov_b32 v5, {L_MISC}")
    tk = "L_tk"
    A(f"s_cmp_lg_u32 {s(sWAVE)}, 0")
    A(f"s_cbranch_scc1 {tk}")
    A("s_mov_b64 exec, 1")
    A(f"global_atomic_add v4, v2, v3, {s(sDBG,2)} sc0")
    A("s_waitcnt vmcnt(0)")
    A("ds_write_b32 v5, v4")
    A("s_waitcnt lgkmcnt(0)")
    A("s_mov_b64 exec, -1")
    A(f"{tk}:")
    A("s_barrier")
    A("ds_read_b32 v4, v5")
    A("s_waitcnt lgkmcnt(0)")
    A(f"v_readfirstlane_b32 {s(sRANK)}, v4")
    A(f"s_cmp_ge_u32 {s(sRANK)}, 32")
    A("s_cbranch_scc1 L_exit")
    gen_chain(A, 64, stamp, **kw)
    A("L_exit:")
    A("s_endpgm")
    A.raw(kd(name))
    return A

if __name__ == "__main__":
    import sys
    kw = {}
    for x in sys.argv[3:]:
        k,val = x.split("="); kw[k] = int(val)
    A = gen_standalone(stamp=int(sys.argv[2]) if len(sys.argv)>2 else 0, **kw)
    open(sys.argv[1], "w").write(A.text())
    print("nops inserted:", A.nops, "lines", len(A.out))
```

```python
from asmlib import *
from layout import *
from engine import *
import struct
def f2u(x): return struct.unpack("<I", struct.pack("<f", x))[0]
LOG2E = 1.4426950408889634
sIN = 60


sFLG=46
wFV=30
wFL=254
USE_FLAGS=False
def flag_init_ptr(A):
    A(f"s_add_u32 {s(sFLG)}, {s(sWS)}, {WS_FLAGS}")
    A(f"s_addc_u32 {s(sFLG+1)}, {s(sWS+1)}, 0")
def flag_set(A, seg_s, row, idx_s=None, idx_c=0):
    lab = A.label("L_fs")
    A(f"s_cmp_lg_u32 {s(sWAVE)}, 0")
    A(f"s_cbranch_scc1 {lab}")
    A.cbegin()
    A(f"s_lshl_b32 {s(48)}, {s(seg_s)}, 14")
    if idx_s is not None:
        A(f"s_lshl_b32 {s(49)}, {s(idx_s)}, 7")
        A(f"s_add_u32 {s(48)}, {s(48)}, {s(49)}")
    A(f"s_add_u32 {s(48)}, {s(48)}, {row*8192 + idx_c*128}")
    A(f"v_mov_b32 {v(wFL)}, {s(48)}")
    A(f"v_mov_b32 {v(wFL+1)}, 1")
    A("s_mov_b64 exec, 1")
    A(f"global_store_dword {v(wFL)}, {v(wFL+1)}, {s(sFLG,2)} sc1")
    A("s_mov_b64 exec, -1")
    A.cend()
    A(f"{lab}:")
def flag_wait(A, seg_s, row, mask_lo_s, mask_hi_s, sleep=2):
    lab = A.label("L_fw"); ok = A.label("L_fwok")
    A(f"s_cmp_lg_u32 {s(sWAVE)}, 0")
    A(f"s_cbranch_scc1 {ok}")
    A(f"s_lshl_b32 {s(48)}, {s(seg_s)}, 14")
    A(f"s_add_u32 {s(48)}, {s(48)}, {row*8192}")
    A(f"v_lshlrev_b32 {v(wFL)}, 7, {v(wLANE)}")
    A(f"v_add_u32 {v(wFL)}, {s(48)}, {v(wFL)}")
    A(f"s_mov_b32 {s(49)}, 0")
    ok2 = A.label("L_fwok2")
    A(f"s_mov_b32 exec_lo, {s(mask_lo_s)}")
    A(f"s_mov_b32 exec_hi, {s(mask_hi_s)}")
    A(f"{lab}:")
    A(f"global_load_dword {v(wFL+1)}, {v(wFL)}, {s(sFLG,2)} sc1")
    A(f"s_add_u32 {s(49)}, {s(49)}, 1")
    A(f"s_cmp_gt_u32 {s(49)}, 0x20000")
    A(f"s_cbranch_scc1 {ok2}")
    A("s_waitcnt vmcnt(0)")
    A(f"v_cmp_ne_u32 vcc, 0, {v(wFL+1)}")
    A(f"s_and_b32 {s(50)}, vcc_lo, {s(mask_lo_s)}")
    A(f"s_and_b32 {s(51)}, vcc_hi, {s(mask_hi_s)}")
    A(f"s_xor_b32 {s(50)}, {s(50)}, {s(mask_lo_s)}")
    A(f"s_xor_b32 {s(51)}, {s(51)}, {s(mask_hi_s)}")
    A(f"s_or_b32 {s(50)}, {s(50)}, {s(51)}")
    A(f"s_cmp_eq_u32 {s(50)}, 0")
    A(f"s_cbranch_scc1 {ok2}")
    A(f"s_sleep {sleep}")
    A(f"s_branch {lab}")
    A(f"{ok2}:")
    A("s_mov_b64 exec, -1")
    A(f"{ok}:")
    A("s_barrier")
def wait_finit(A):
    lab = A.label("L_wfi"); ok = A.label("L_wfiok")
    A(f"s_cmp_lg_u32 {s(sWAVE)}, 0")
    A(f"s_cbranch_scc1 {ok}")
    A(f"v_mov_b32 {v(wFL)}, {DBG_FINIT}")
    A(f"s_mov_b32 {s(49)}, 0")
    A(f"{lab}:")
    A(f"global_load_dword {v(wFL+1)}, {v(wFL)}, {s(sDBG,2)} sc1")
    A(f"s_add_u32 {s(49)}, {s(49)}, 1")
    A(f"s_cmp_gt_u32 {s(49)}, 0x20000")
    A(f"s_cbranch_scc1 {ok}")
    A("s_waitcnt vmcnt(0)")
    A(f"v_cmp_gt_u32 vcc, 256, {v(wFL+1)}")
    A(f"s_cbranch_vccz {ok}")
    A("s_sleep 8")
    A(f"s_branch {lab}")
    A(f"{ok}:")
    A("s_barrier")

def load_ptrs(A):
    for reg,off in ((60,KA_X),(62,KA_WQ),(64,KA_WK),(66,KA_WV),(68,KA_WO),(70,KA_W1),(72,KA_W3),(74,KA_W2),(76,KA_GW),(78,KA_OUT),(sDBG,KA_DBG),(sWS,KA_WS)):
        A(f"s_load_dwordx2 {s(reg,2)}, s[0:1], {off}")
    A("v_lshrrev_b32 v1, 6, v0")
    A(f"v_readfirstlane_b32 {s(sWAVE)}, v1")
    A(f"v_and_b32 {v(wLANE)}, 63, v0")
    A(f"v_lshlrev_b32 {v(wL16)}, 4, {v(wLANE)}")
    A("s_waitcnt lgkmcnt(0)")

def dma_x_setup(A):
    A(f"s_and_b32 {s(sT)}, {s(sWAVE)}, 1")
    A(f"s_lshl_b32 {s(sT)}, {s(sT)}, 7")
    A(f"v_xor_b32 {v(wDM)}, {s(sT)}, {v(wL16)}")

def dma_x(A, slot_reg):
    A(f"s_lshl_b32 {s(sT)}, {s(sWAVE)}, 13")
    A(f"s_add_u32 {s(sT+4)}, {s(sAP)}, {s(sT)}")
    A(f"s_addc_u32 {s(sT+5)}, {s(sAP+1)}, 0")
    A(f"s_add_u32 {s(sT)}, {s(sT)}, {s(slot_reg)}")
    out = []
    for i in range(8):
        A(f"v_xor_b32 {v(wDM+1)}, {i*16}, {v(wDM)}")
        A(f"s_add_u32 m0, {s(sT)}, {i*1024}")
        A(f"global_load_lds_dwordx4 {v(wDM+1)}, {s(sT+4,2)}")
        if i < 7:
            A(f"s_add_u32 {s(sT+4)}, {s(sT+4)}, 1024")
            A(f"s_addc_u32 {s(sT+5)}, {s(sT+5)}, 0")

def dma_lin(A, slot_reg, nfrag=32, mod=""):
    per = nfrag // 4
    A(f"s_mul_i32 {s(sT)}, {s(sWAVE)}, {per*1024}")
    A(f"s_add_u32 {s(sT+4)}, {s(sAP)}, {s(sT)}")
    A(f"s_addc_u32 {s(sT+5)}, {s(sAP+1)}, 0")
    A(f"s_add_u32 {s(sT)}, {s(sT)}, {s(slot_reg)}")
    for i in range(0, per, 4):
        A(f"s_add_u32 m0, {s(sT)}, {i*1024}")
        for j in range(min(4, per-i)):
            A(f"global_load_lds_dwordx4 {v(wL16)}, {s(sT+4,2)} offset:{j*1024} {mod}")
        if i + 4 < per:
            A(f"s_add_u32 {s(sT+4)}, {s(sT+4)}, 4096")
            A(f"s_addc_u32 {s(sT+5)}, {s(sT+5)}, 0")

sSLOT=34; sCNT=35; sSL=36; sSTR=33

def epi_kq(A, st=""):
    E = wE
    for Tt in range(2):
        for hf in range(2):
            for d in range(4):
                r = wAC + 16*Tt + 8*hf + 2*d
                A(f"v_cvt_pk_bf16_f32 {v(E+8*Tt+4*hf+d)}, {v(r)}, {v(r+1)}")
            A(f"global_store_dwordx4 {v(E+20)}, {v(E+8*Tt+4*hf,4)}, {s(sOP,2)} offset:{Tt*1024+hf*512} {st}")

def epi_v(A, st=""):
    E = wE
    for Tt in range(2):
        for u in range(2):
            base = wAC + 16*Tt
            regs = [base+4*u, base+4*u+2, base+8+4*u, base+8+4*u+2]
            for d in range(4):
                A(f"v_cvt_pk_bf16_f32 {v(E+8*Tt+4*u+d)}, {v(regs[d])}, {v(regs[d]+1)}")
            A(f"global_store_dwordx4 {v(E+20)}, {v(E+8*Tt+4*u,4)}, {s(sOP,2)} offset:{Tt*2048+u*512} {st}")

def unpack2(A, dlo, dhi, src):
    A(f"v_lshlrev_b32 {v(dlo)}, 16, {v(src)}")
    A(f"v_and_b32 {v(dhi)}, 0xffff0000, {v(src)}")

def epi_ffn(A, st=""):
    E = wE
    G = wAC; U = wAC+16
    t = E+8
    for hf in range(2):
        for d in range(4):
            g = G + 8*hf + 2*d; u = U + 8*hf + 2*d
            A(f"v_cvt_pk_bf16_f32 {v(t)}, {v(g)}, {v(g+1)}")
            A(f"v_cvt_pk_bf16_f32 {v(t+1)}, {v(u)}, {v(u+1)}")
            unpack2(A, t+2, t+3, t)
            unpack2(A, t+6, t+7, t+1)
            A(f"v_pk_mul_f32 {v(t+4,2)}, {v(t+2,2)}, {s(40,2)}")
            A(f"v_exp_f32 {v(t+4)}, {v(t+4)}")
            A(f"v_exp_f32 {v(t+5)}, {v(t+5)}")
            A(f"v_pk_add_f32 {v(t+4,2)}, {v(t+4,2)}, {s(42,2)}")
            A(f"v_rcp_f32 {v(t+4)}, {v(t+4)}")
            A(f"v_rcp_f32 {v(t+5)}, {v(t+5)}")
            A(f"v_pk_mul_f32 {v(t+4,2)}, {v(t+4,2)}, {v(t+2,2)}")
            A(f"v_cvt_pk_bf16_f32 {v(t)}, {v(t+4)}, {v(t+5)}")
            unpack2(A, t+4, t+5, t)
            A(f"v_pk_mul_f32 {v(t+4,2)}, {v(t+4,2)}, {v(t+6,2)}")
            A(f"v_cvt_pk_bf16_f32 {v(E+4*hf+d)}, {v(t+4)}, {v(t+5)}")
        A(f"global_store_dwordx4 {v(wL16)}, {v(E+4*hf,4)}, {s(sOP,2)} offset:{hf*1024} {st}")

def epi_part(A, st=""):
    for Tt in range(2):
        for hq in range(4):
            r = wAC + 16*Tt + 4*hq
            off = Tt*4096 + hq*1024
            if off < 4096: A(f"global_store_dwordx4 {v(wL16)}, {v(r,4)}, {s(sOP,2)} offset:{off} {st}")
            else: A(f"global_store_dwordx4 {v(wDM)}, {v(r,4)}, {s(sOP,2)} offset:{off-4096} {st}")

PROF=False
WST=None
def pst(A,k):
    if PROF:
        A(f"s_memtime {s(90,2)}"); A("s_waitcnt lgkmcnt(0)")
        A(f"s_sub_u32 {s(92)}, {s(90)}, {s(93)}"); A(f"s_mov_b32 {s(93)}, {s(90)}"); A(f"s_add_u32 {s(94+k)}, {s(94+k)}, {s(92)}")
def seg_loop(A, kind, nseg_reg_init, seg_stride, ksteps=32, st=""):
    mode = "x"
    lab = A.label("L_seg")
    def set_ap():
        A(f"s_lshl_b32 {s(sT)}, {s(sSEG)}, 15")
        A(f"s_add_u32 {s(sAP)}, {s(60)}, {s(sT)}")
        A(f"s_addc_u32 {s(sAP+1)}, {s(61)}, 0")
    A(f"s_mov_b32 {s(sSLOT)}, 0")
    set_ap()
    dma_x(A, sSLOT)
    nst = 2 if kind == "ffn" else 4
    A(f"s_mov_b32 {s(52)}, -1")
    A(f"s_mov_b32 {s(53)}, -1")
    A("s_waitcnt vmcnt(0)")
    if PROF:
        for k in range(6): A(f"s_mov_b32 {s(94+k)}, 0")
        A(f"s_memtime {s(90,2)}"); A("s_waitcnt lgkmcnt(0)"); A(f"s_mov_b32 {s(93)}, {s(90)}")
    A(f"{lab}:")
    A(f"s_waitcnt vmcnt({nst})")
    A("s_barrier")
    pst(A,0)
    if USE_FLAGS:
        nf = A.label("L_nf")
        A(f"s_cmp_eq_u32 {s(52)}, -1")
        A(f"s_cbranch_scc1 {nf}")
        flag_set(A, 52, 0, idx_s=sSL)
        A(f"{nf}:")
        A(f"s_mov_b32 {s(52)}, {s(53)}")
        A(f"s_mov_b32 {s(53)}, {s(sSEG)}")
    if kind in ("k","q","v"):
        base = {"k":WS_KX,"q":WS_Q,"v":WS_VX}[kind]
        A(f"s_lshl_b32 {s(sT)}, {s(sSEG)}, 18")
        A(f"s_add_u32 {s(sT)}, {s(sT)}, {s(37)}")
        A(f"s_add_u32 {s(sT)}, {s(sT)}, {base}")
    else:
        A(f"s_mul_i32 {s(sT)}, {s(sSEG)}, {56*2048}")
        A(f"s_add_u32 {s(sT)}, {s(sT)}, {s(37)}")
        A(f"s_add_u32 {s(sT)}, {s(sT)}, {WS_H}")
    A(f"s_add_u32 {s(sOP)}, {s(sWS)}, {s(sT)}")
    A(f"s_addc_u32 {s(sOP+1)}, {s(sWS+1)}, 0")
    nx = A.label("L_nonext")
    A(f"s_add_u32 {s(sSEG)}, {s(sSEG)}, {s(sSTR)}")
    A(f"s_sub_u32 {s(sCNT)}, {s(sCNT)}, 1")
    A(f"s_xor_b32 {s(sSLOT)}, {s(sSLOT)}, 32768")
    A(f"s_cmp_eq_u32 {s(sCNT)}, 0")
    A(f"s_cbranch_scc1 {nx}")
    A.cbegin()
    set_ap()
    dma_x(A, sSLOT)
    A.cend()
    A(f"{nx}:")
    pst(A,1)
    mma_chunk(A, ksteps, mode, 0, transposed=(kind != "v"))
    pst(A,2)
    for b in range(8): A(f"v_xor_b32 {v(wAR+b)}, 32768, {v(wAR+b)}")
    if kind in ("k","q"): epi_kq(A, st)
    elif kind == "v": epi_v(A, st)
    else: epi_ffn(A, st)
    if USE_FLAGS:
        nfirst = A.label("L_nfirst")
        A(f"s_cmp_eq_u32 {s(52)}, -1")
        A(f"s_cbranch_scc0 {nfirst}")
        A(f"s_cmp_lt_u32 {s(53)}, 3")
        A(f"s_cbranch_scc0 {nfirst}")
        A("s_waitcnt vmcnt(0)")
        A("s_barrier")
        flag_set(A, 53, 0, idx_s=sSL)
        if WST: WST(5)
        A(f"{nfirst}:")
    pst(A,3)
    A(f"s_cmp_lg_u32 {s(sCNT)}, 0")
    A(f"s_cbranch_scc1 {lab}")
    if USE_FLAGS:
        A("s_waitcnt vmcnt(0)")
        A("s_barrier")
        nf2 = A.label("L_nf")
        A(f"s_cmp_eq_u32 {s(52)}, -1")
        A(f"s_cbranch_scc1 {nf2}")
        flag_set(A, 52, 0, idx_s=sSL)
        A(f"{nf2}:")
        flag_set(A, 53, 0, idx_s=sSL)

def gen_proj_body(A, st=""):
    done = A.label("L_pdone")
    lk, lv, lq, lf = [A.label(x) for x in ("L_pk","L_pv","L_pq","L_pf")]
    A(f"s_cmp_lt_u32 {s(sSL)}, 16"); A(f"s_cbranch_scc1 {lk}")
    A(f"s_cmp_lt_u32 {s(sSL)}, 32"); A(f"s_cbranch_scc1 {lv}")
    A(f"s_cmp_lt_u32 {s(sSL)}, 48"); A(f"s_cbranch_scc1 {lq}")
    A(f"s_branch {lf}")
    for kind,lab,first,ptr in (("k",lk,0,64),("v",lv,16,66),("q",lq,32,62)):
        A(f"{lab}:")
        A(f"s_sub_u32 {s(sT+6)}, {s(sSL)}, {first}")
        A(f"s_lshl_b32 {s(sT)}, {s(sT+6)}, 9")
        A(f"s_add_u32 {s(sWB)}, {s(ptr)}, {s(sT)}")
        A(f"s_addc_u32 {s(sWB+1)}, {s(ptr+1)}, 0")
        A(f"s_mov_b32 {s(sLDW)}, 8192")
        A(f"s_lshr_b32 {s(sT)}, {s(sWAVE)}, 1")
        A(f"s_lshl_b32 {s(sT+1)}, {s(sT+6)}, 1")
        A(f"s_add_u32 {s(sT)}, {s(sT)}, {s(sT+1)}")
        A(f"s_lshl_b32 {s(37)}, {s(sT)}, 13")
        A(f"s_and_b32 {s(sT)}, {s(sWAVE)}, 1")
        A(f"s_lshl_b32 {s(sT)}, {s(sT)}, {11 if kind != 'v' else 12}")
        A(f"s_add_u32 {s(37)}, {s(37)}, {s(sT)}")
        if WST: WST(3)
        load_weights(A, 32, ffn=False, sigma=(kind != "v"))
        if WST: WST(4)
        if USE_FLAGS: wait_finit(A)
        setup_a_addr(A, "x"); dma_x_setup(A)
        T = wT
        if kind != "v":
            A(f"v_bfe_u32 {v(T)}, {v(wLANE)}, 4, 1")
            A(f"v_lshrrev_b32 {v(T+1)}, 5, {v(wLANE)}")
            A(f"v_and_b32 {v(T+2)}, 15, {v(wLANE)}")
            A(f"v_lshl_add_u32 {v(T+1)}, {v(T+1)}, 4, {v(T+2)}")
            A(f"v_lshlrev_b32 {v(T+1)}, 4, {v(T+1)}")
            A(f"v_lshl_add_u32 {v(wE+20)}, {v(T)}, 12, {v(T+1)}")
        else:
            A(f"v_bfe_u32 {v(T)}, {v(wLANE)}, 4, 1")
            A(f"v_lshrrev_b32 {v(T+1)}, 5, {v(wLANE)}")
            A(f"v_and_b32 {v(T+2)}, 15, {v(wLANE)}")
            A(f"v_lshl_add_u32 {v(T+1)}, {v(T+1)}, 4, {v(T+2)}")
            A(f"v_lshlrev_b32 {v(T+1)}, 4, {v(T+1)}")
            A(f"v_lshl_add_u32 {v(wE+20)}, {v(T)}, 10, {v(T+1)}")
        seg_loop(A, kind, None, 4, 32, st)
        A(f"s_branch {done}")
    A(f"{lf}:")
    A(f"s_sub_u32 {s(sT+6)}, {s(sSL)}, 48")
    A(f"s_lshl_b32 {s(sT)}, {s(sT+6)}, 8")
    A(f"s_add_u32 {s(sWB)}, {s(70)}, {s(sT)}")
    A(f"s_addc_u32 {s(sWB+1)}, {s(71)}, 0")
    A(f"s_add_u32 {s(sWB2)}, {s(72)}, {s(sT)}")
    A(f"s_addc_u32 {s(sWB2+1)}, {s(73)}, 0")
    A(f"s_mov_b32 {s(sLDW)}, 3584")
    A(f"s_lshl_b32 {s(sT)}, {s(sT+6)}, 2")
    A(f"s_add_u32 {s(sT)}, {s(sT)}, {s(sWAVE)}")
    A(f"s_lshl_b32 {s(37)}, {s(sT)}, 11")
    A(f"s_mov_b32 {s(40)}, {f2u(-LOG2E):#x}"); A(f"s_mov_b32 {s(41)}, {f2u(-LOG2E):#x}")
    A(f"s_mov_b32 {s(42)}, 1.0"); A(f"s_mov_b32 {s(43)}, 1.0")
    load_weights(A, 32, ffn=True, sigma=True)
    if USE_FLAGS: wait_finit(A)
    setup_a_addr(A, "x"); dma_x_setup(A)
    seg_loop(A, "ffn", None, 4, 32, st)
    A(f"{done}:")

def gen_proj_kernel(A, name="proj_kernel"):
    A.raw(kstart(name))
    load_ptrs(A)
    A("s_cmp_ge_u32 s2, 248")
    A("s_cbranch_scc1 L_proj_exit")
    A(f"s_lshr_b32 {s(sSL)}, s2, 2")
    A(f"s_and_b32 {s(sSEG)}, s2, 3")
    A(f"s_mov_b32 {s(sCNT)}, 16")
    A(f"s_mov_b32 {s(sSTR)}, 4")
    if PROF:
        A(f"s_memtime {s(88,2)}"); A("s_waitcnt lgkmcnt(0)")
    gen_proj_body(A)
    if PROF:
        A(f"s_memtime {s(90,2)}"); A("s_waitcnt lgkmcnt(0)")
        A(f"s_sub_u32 {s(98)}, {s(90)}, {s(88)}")
        A(f"s_lshl_b32 {s(12)}, s2, 5"); A(f"s_add_u32 {s(12)}, {s(12)}, {WS_END_CHAIN}")
        A(f"v_mov_b32 v24, {s(12)}")
        for k in range(5):
            A(f"v_mov_b32 v25, {s(94+k)}"); A(f"global_store_dword v24, v25, {s(sWS,2)} offset:{4*k}")
        A("s_waitcnt vmcnt(0)")
    A("L_proj_exit:")
    A("s_endpgm")

def part_loop(A, ksteps, src, st="", seg_stride=1, pre=None):
    lab = A.label("L_seg")
    def set_ap():
        A(f"s_mul_i32 {s(sT)}, {s(sSEG)}, {56*2048}")
        A(f"s_add_u32 {s(sT)}, {s(sT)}, {s(37)}")
        A(f"s_add_u32 {s(sAP)}, {s(sWS)}, {s(sT)}")
        A(f"s_addc_u32 {s(sAP+1)}, {s(sWS+1)}, 0")
    mod = "sc1" if USE_FLAGS else ""
    A(f"s_mov_b32 {s(sSLOT)}, 0")
    if USE_FLAGS:
        wl = A.label("L_dw")
        A(f"s_mov_b32 {s(52)}, {s(sSEG)}")
        A(f"s_mov_b32 {s(53)}, {s(sCNT)}")
        A(f"{wl}:")
        flag_wait(A, 52, 0, 54, 55)
        A(f"s_add_u32 {s(52)}, {s(52)}, {seg_stride}")
        A(f"s_sub_u32 {s(53)}, {s(53)}, 1")
        A(f"s_cmp_lg_u32 {s(53)}, 0")
        A(f"s_cbranch_scc1 {wl}")
    set_ap()
    dma_lin(A, sSLOT, ksteps, mod)
    A(f"s_mov_b32 {s(52)}, -1")
    A(f"s_mov_b32 {s(53)}, -1")
    A("s_waitcnt vmcnt(0)")
    A(f"{lab}:")
    A("s_waitcnt vmcnt(8)")
    A("s_barrier")
    if USE_FLAGS:
        nf = A.label("L_nf")
        A(f"s_cmp_eq_u32 {s(52)}, -1")
        A(f"s_cbranch_scc1 {nf}")
        flag_set(A, 52, 1, idx_s=sSL, idx_c=FL2_PB)
        A(f"{nf}:")
        A(f"s_mov_b32 {s(52)}, {s(53)}")
        A(f"s_mov_b32 {s(53)}, {s(sSEG)}")
    A(f"s_lshl_b32 {s(sT)}, {s(sSEG)}, 16")
    A(f"s_add_u32 {s(sT)}, {s(sT)}, {s(38)}")
    A(f"s_add_u32 {s(sOP)}, {s(sWS)}, {s(sT)}")
    A(f"s_addc_u32 {s(sOP+1)}, {s(sWS+1)}, 0")
    nx = A.label("L_nonext")
    A(f"s_add_u32 {s(sSEG)}, {s(sSEG)}, {seg_stride}")
    A(f"s_sub_u32 {s(sCNT)}, {s(sCNT)}, 1")
    A(f"s_xor_b32 {s(sSLOT)}, {s(sSLOT)}, 32768")
    A(f"s_cmp_eq_u32 {s(sCNT)}, 0")
    A(f"s_cbranch_scc1 {nx}")
    A.cbegin()
    set_ap()
    dma_lin(A, sSLOT, ksteps, mod)
    A.cend()
    A(f"{nx}:")
    mma_chunk(A, ksteps, "f", 0, transposed=True)
    A(f"v_xor_b32 {v(wAR)}, 32768, {v(wAR)}")
    epi_part(A, st)
    A(f"s_cmp_lg_u32 {s(sCNT)}, 0")
    A(f"s_cbranch_scc1 {lab}")
    if USE_FLAGS:
        A("s_waitcnt vmcnt(0)")
        A("s_barrier")
        nf2 = A.label("L_nf")
        A(f"s_cmp_eq_u32 {s(52)}, -1")
        A(f"s_cbranch_scc1 {nf2}")
        flag_set(A, 52, 1, idx_s=sSL, idx_c=FL2_PB)
        A(f"{nf2}:")
        flag_set(A, 53, 1, idx_s=sSL, idx_c=FL2_PB)

def gen_down_body(A, seg_stride, st=""):
    done = A.label("L_ddone"); l3 = A.label("L_d3")
    A(f"s_lshr_b32 {s(sT+6)}, {s(sSL)}, 1")
    A(f"s_and_b32 {s(sT+7)}, {s(sSL)}, 1")
    A(f"s_lshl_b32 {s(sT)}, {s(sT+6)}, 19")
    A(f"s_lshl_b32 {s(sT+1)}, {s(sT+7)}, 9")
    A(f"s_add_u32 {s(sT)}, {s(sT)}, {s(sT+1)}")
    A(f"s_add_u32 {s(sWB)}, {s(74)}, {s(sT)}")
    A(f"s_addc_u32 {s(sWB+1)}, {s(75)}, 0")
    A(f"s_mov_b32 {s(sLDW)}, 1024")
    A(f"s_lshl_b32 {s(37)}, {s(sT+6)}, 15")
    A(f"s_add_u32 {s(37)}, {s(37)}, {WS_H}")
    A(f"s_lshl_b32 {s(38)}, {s(sT+6)}, 22")
    A(f"s_lshl_b32 {s(sT)}, {s(sT+7)}, 15")
    A(f"s_add_u32 {s(38)}, {s(38)}, {s(sT)}")
    A(f"s_lshl_b32 {s(sT)}, {s(sWAVE)}, 13")
    A(f"s_add_u32 {s(38)}, {s(38)}, {s(sT)}")
    A(f"s_add_u32 {s(38)}, {s(38)}, {WS_PB}")
    A(f"v_add_u32 {v(wDM)}, 4096, {v(wL16)}")
    A(f"s_mov_b32 {s(54)}, 0")
    A(f"s_lshl_b32 {s(sT)}, {s(sT+6)}, 2")
    A(f"s_add_u32 {s(sT)}, {s(sT)}, 16")
    A(f"s_lshl_b32 {s(55)}, 15, {s(sT)}")
    A(f"s_and_b32 {s(55)}, {s(55)}, 0x3fffffff")
    A(f"s_cmp_eq_u32 {s(sT+6)}, 3")
    A(f"s_cbranch_scc1 {l3}")
    for ksteps,lab in ((32,None),(16,l3)):
        if lab: A(f"{lab}:")
        load_weights(A, ksteps, ffn=False, sigma=True)
        setup_a_addr(A, "f")
        part_loop(A, ksteps, "h", st, seg_stride)
        A(f"s_branch {done}")
    A(f"{done}:")

def gen_down_kernel(A, name="down_kernel"):
    A.raw(kstart(name))
    load_ptrs(A)
    A("s_cmp_ge_u32 s2, 256")
    A("s_cbranch_scc1 L_down_exit")
    A(f"s_lshr_b32 {s(sSL)}, s2, 5")
    A(f"s_and_b32 {s(sSEG)}, s2, 31")
    A(f"s_mov_b32 {s(sCNT)}, 2")
    gen_down_body(A, 32)
    A("L_down_exit:")
    A("s_endpgm")

SCALE_LOG2E = (128.0 ** -0.5) * LOG2E
aQ=96; aKX=128; aKM=160; aVX=176; aVM=208
aS=216
aBI=236
aP=240
aT=252
aO=64
aOW=11
aM=12

def attn_loads(A, mod="", part=0):
    P = 44
    A(f"s_lshl_b32 {s(sT)}, {s(sSEG)}, 5")
    A(f"s_add_u32 {s(sT)}, {s(sT)}, {s(39)}")
    A(f"s_lshl_b32 {s(sT+1)}, {s(sT)}, 13")
    for (base, reg, n) in (((WS_Q,aQ,8),(WS_KX,aKX,8),(WS_VX,aVX,8)) if part in (0,1) else ()):
        A(f"s_add_u32 {s(sT+2)}, {s(sT+1)}, {base}")
        A(f"s_add_u32 {s(P)}, {s(sWS)}, {s(sT+2)}")
        A(f"s_addc_u32 {s(P+1)}, {s(sWS+1)}, 0")
        for i in range(n):
            if i == 4:
                A(f"s_add_u32 {s(P)}, {s(P)}, 4096")
                A(f"s_addc_u32 {s(P+1)}, {s(P+1)}, 0")
            A(f"global_load_dwordx4 {v(reg+4*i,4)}, {v(wL16)}, {s(P,2)} offset:{(i&3)*1024} {mod}")
    if part == 1: return
    A(f"s_lshl_b32 {s(sT+1)}, {s(sT)}, 12")
    A(f"s_add_u32 {s(sT+2)}, {s(sT+1)}, {WS_KM}")
    A(f"s_add_u32 {s(P)}, {s(sWS)}, {s(sT+2)}")
    A(f"s_addc_u32 {s(P+1)}, {s(sWS+1)}, 0")
    for i in range(4):
        A(f"global_load_dwordx4 {v(aKM+4*i,4)}, {v(wL16)}, {s(P,2)} offset:{i*1024} {mod}")
    A(f"s_add_u32 {s(sT+2)}, {s(sT+1)}, {WS_VM}")
    A(f"s_add_u32 {s(P)}, {s(sWS)}, {s(sT+2)}")
    A(f"s_addc_u32 {s(P+1)}, {s(sWS+1)}, 0")
    A(f"v_lshrrev_b32 {v(aM+18)}, 1, {v(wL16)}")
    for i in range(4):
        A(f"global_load_dwordx2 {v(aVM+2*i,2)}, {v(aM+18)}, {s(P,2)} offset:{i*512} {mod}")

def attn_setup(A):
    T = aM
    A(f"v_and_b32 {v(T)}, 15, {v(wLANE)}")
    A(f"v_lshrrev_b32 {v(T+1)}, 4, {v(wLANE)}")
    A(f"v_lshlrev_b32 {v(T+2)}, 2, {v(T+1)}")
    A(f"v_mov_b32 {v(T+4)}, 0xff000000")
    for r in range(4):
        A(f"v_add_u32 {v(T+3)}, {r}, {v(T+2)}")
        A(f"v_cmp_gt_u32 vcc, {v(T+3)}, {v(T)}")
        A(f"v_cndmask_b32 {v(aBI+r)}, 0, {v(T+4)}, vcc")
    A(f"v_mov_b32 {v(aP+2)}, 0"); A(f"v_mov_b32 {v(aP+3)}, 0")
    A(f"v_mov_b32 {v(aP+9)}, 0"); A(f"v_mov_b32 {v(aP+11)}, 0")
    A(f"v_lshrrev_b32 {v(T+2)}, 1, {v(T+1)}")
    A(f"v_lshl_add_u32 {v(T+2)}, {v(T+2)}, 5, {v(T)}")
    A(f"v_lshlrev_b32 {v(T+2)}, 4, {v(T+2)}")
    A(f"v_and_b32 {v(T+3)}, 1, {v(T+1)}")
    A(f"v_lshl_add_u32 {v(T+2)}, {v(T+3)}, 3, {v(T+2)}")
    A(f"s_lshl_b32 {s(sT)}, {s(sWAVE)}, 13")
    A(f"v_add_u32 {v(aOW)}, {s(sT)}, {v(T+2)}")
    A(f"s_mov_b32 {s(40)}, {f2u(SCALE_LOG2E):#x}")
    A(f"s_mov_b32 {s(41)}, {f2u(-SCALE_LOG2E):#x}")

def xlane(A, op, r, t):
    A(f"v_mov_b32 {v(t)}, {v(r)}")
    A(f"v_permlane16_swap_b32 {v(r)}, {v(t)}")
    A(f"{op} {v(r)}, {v(r)}, {v(t)}")
    A(f"v_mov_b32 {v(t)}, {v(r)}")
    A(f"v_permlane32_swap_b32 {v(r)}, {v(t)}")
    A(f"{op} {v(r)}, {v(r)}, {v(t)}")

def attention(A):
    S00,S01,S11,SM0,SM1 = aS, aS+4, aS+8, aS+12, aS+16
    def q(t,ks): return v(aQ+(t*4+ks)*4,4)
    def kx(t,ks): return v(aKX+(t*4+ks)*4,4)
    def km(ks): return v(aKM+4*ks,4)
    for ks in range(4):
        for (S,Aop,Bop,c0) in ((S00,kx(0,ks),q(0,ks),v(aBI,4)),(S01,kx(0,ks),q(1,ks),"0"),(S11,kx(1,ks),q(1,ks),v(aBI,4)),
                               (SM0,km(ks),q(0,ks),"0"),(SM1,km(ks),q(1,ks),"0")):
            c = c0 if ks == 0 else v(S,4)
            A(f"v_mfma_f32_16x16x32_bf16 {v(S,4)}, {Aop}, {Bop}, {c}")
    m0_,m1_,t0,t1 = aM, aM+1, aM+2, aM+3
    l0,l1 = aM+4, aM+5
    A(f"v_max3_f32 {v(m0_)}, {v(S00)}, {v(S00+1)}, {v(S00+2)}")
    A(f"v_max3_f32 {v(m0_)}, {v(m0_)}, {v(S00+3)}, {v(SM0)}")
    A(f"v_max_f32 {v(m0_)}, {v(m0_)}, {v(SM0+1)}")
    A(f"v_max3_f32 {v(m1_)}, {v(S01)}, {v(S01+1)}, {v(S01+2)}")
    A(f"v_max3_f32 {v(m1_)}, {v(m1_)}, {v(S01+3)}, {v(S11)}")
    A(f"v_max3_f32 {v(m1_)}, {v(m1_)}, {v(S11+1)}, {v(S11+2)}")
    A(f"v_max3_f32 {v(m1_)}, {v(m1_)}, {v(S11+3)}, {v(SM1)}")
    A(f"v_max_f32 {v(m1_)}, {v(m1_)}, {v(SM1+1)}")
    xlane(A, "v_max_f32", m0_, t0)
    xlane(A, "v_max_f32", m1_, t1)
    A(f"v_mul_f32 {v(m0_)}, {s(41)}, {v(m0_)}")
    A(f"v_mul_f32 {v(m1_)}, {s(41)}, {v(m1_)}")
    for (S,n,m) in ((S00,4,m0_),(SM0,2,m0_),(S01,4,m1_),(S11,4,m1_),(SM1,2,m1_)):
        for r in range(n):
            A(f"v_fma_f32 {v(S+r)}, {v(S+r)}, {s(40)}, {v(m)}")
            A(f"v_exp_f32 {v(S+r)}, {v(S+r)}")
    A(f"v_cvt_pk_bf16_f32 {v(aP)}, {v(S00)}, {v(S00+1)}")
    A(f"v_cvt_pk_bf16_f32 {v(aP+1)}, {v(S00+2)}, {v(S00+3)}")
    A(f"v_cvt_pk_bf16_f32 {v(aP+4)}, {v(S01)}, {v(S01+1)}")
    A(f"v_cvt_pk_bf16_f32 {v(aP+5)}, {v(S01+2)}, {v(S01+3)}")
    A(f"v_cvt_pk_bf16_f32 {v(aP+6)}, {v(S11)}, {v(S11+1)}")
    A(f"v_cvt_pk_bf16_f32 {v(aP+7)}, {v(S11+2)}, {v(S11+3)}")
    A(f"v_cvt_pk_bf16_f32 {v(aP+8)}, {v(SM0)}, {v(SM0+1)}")
    A(f"v_cvt_pk_bf16_f32 {v(aP+10)}, {v(SM1)}, {v(SM1+1)}")
    A(f"v_add_f32 {v(l0)}, {v(S00)}, {v(S00+1)}")
    for r in (S00+2,S00+3,SM0,SM0+1): A(f"v_add_f32 {v(l0)}, {v(l0)}, {v(r)}")
    A(f"v_add_f32 {v(l1)}, {v(S01)}, {v(S01+1)}")
    for r in (S01+2,S01+3,S11,S11+1,S11+2,S11+3,SM1,SM1+1): A(f"v_add_f32 {v(l1)}, {v(l1)}, {v(r)}")
    xlane(A, "v_add_f32", l0, t0)
    xlane(A, "v_add_f32", l1, t1)
    A(f"v_rcp_f32 {v(l0)}, {v(l0)}")
    A(f"v_rcp_f32 {v(l1)}, {v(l1)}")
    for th in range(2):
        Bx = v(aP+4*th,4); Bm = v(aP+8+2*th,2); l = (l0,l1)[th]
        for tau in range(8):
            vm = v(aVM+2*(tau>>1),2)
            A(f"v_mfma_f32_16x16x32_bf16 {v(aO+4*tau,4)}, {v(aVX+4*tau,4)}, {Bx}, 0")
        for tau in range(8):
            if tau & 1 == 0: a2 = v(aVM+2*(tau>>1),2)
            else: a2 = v(aM+8+2*(tau>>1),2)
            A(f"v_mfma_f32_16x16x16_bf16 {v(aO+4*tau,4)}, {a2}, {Bm}, {v(aO+4*tau,4)}")
        for tau in range(8):
            o = aO+4*tau
            for r in range(4): A(f"v_mul_f32 {v(o+r)}, {v(o+r)}, {v(l)}")
            A(f"v_cvt_pk_bf16_f32 {v(aM+16)}, {v(o)}, {v(o+1)}")
            A(f"v_cvt_pk_bf16_f32 {v(aM+17)}, {v(o+2)}, {v(o+3)}")
            A(f"ds_write_b64 {v(aOW)}, {v(aM+16,2)} offset:{tau*1024 + th*256}")

def attn_fix_vm(A):
    for i in range(4):
        A(f"v_mov_b32 {v(aM+8+2*i)}, {v(aVM+2*i+1)}")
        A(f"v_mov_b32 {v(aM+8+2*i+1)}, {v(aVM+2*i)}")

def gen_attn_body(A, seg_stride, st="", mod=""):
    A(f"s_lshr_b32 {s(sT+6)}, {s(sSL)}, 1")
    A(f"s_and_b32 {s(sT+7)}, {s(sSL)}, 1")
    A(f"s_lshl_b32 {s(sT)}, {s(sT+6)}, 19")
    A(f"s_lshl_b32 {s(sT+1)}, {s(sT+7)}, 9")
    A(f"s_add_u32 {s(sT)}, {s(sT)}, {s(sT+1)}")
    A(f"s_add_u32 {s(sWB)}, {s(68)}, {s(sT)}")
    A(f"s_addc_u32 {s(sWB+1)}, {s(69)}, 0")
    A(f"s_mov_b32 {s(sLDW)}, 1024")
    A(f"s_lshl_b32 {s(39)}, {s(sT+6)}, 2")
    A(f"s_add_u32 {s(39)}, {s(39)}, {s(sWAVE)}")
    A(f"s_lshl_b32 {s(38)}, {s(sT+6)}, 22")
    A(f"s_lshl_b32 {s(sT)}, {s(sT+7)}, 15")
    A(f"s_add_u32 {s(38)}, {s(38)}, {s(sT)}")
    A(f"s_lshl_b32 {s(sT)}, {s(sWAVE)}, 13")
    A(f"s_add_u32 {s(38)}, {s(38)}, {s(sT)}")
    A(f"s_add_u32 {s(38)}, {s(38)}, {WS_PA}")
    load_weights(A, 32, ffn=False, sigma=True)
    setup_a_addr(A, "f")
    A(f"v_add_u32 {v(wDM)}, 4096, {v(wL16)}")
    attn_setup(A)
    if USE_FLAGS:
        A(f"s_lshr_b32 {s(sT)}, {s(sSL)}, 1")
        A(f"s_lshl_b32 {s(sT)}, {s(sT)}, 1")
        A(f"s_lshl_b32 {s(54)}, 0x30003, {s(sT)}")
        A(f"s_lshl_b32 {s(55)}, 3, {s(sT)}")
        A(f"s_lshl_b32 {s(sT)}, {s(sT)}, 1")
        A(f"s_lshl_b32 {s(59)}, 15, {s(sT)}")
        A(f"s_mov_b32 {s(57)}, 0")
        A(f"s_mov_b32 {s(52)}, -1")
    lab = A.label("L_aseg")
    A(f"{lab}:")
    if USE_FLAGS:
        flag_wait(A, sSEG, 0, 54, 55)
        attn_loads(A, mod, 1)
        A(f"s_cmp_eq_u32 {s(sSEG)}, 63")
        A(f"s_cselect_b32 {s(56)}, {s(59)}, {s(54)}")
        flag_wait(A, sSEG, 1, 56, 57)
        if WST: WST(3)
        attn_loads(A, mod, 2)
    else:
        attn_loads(A, mod)
    A(f"s_lshl_b32 {s(sT)}, {s(sSEG)}, 16")
    A(f"s_add_u32 {s(sT)}, {s(sT)}, {s(38)}")
    A(f"s_add_u32 {s(sOP)}, {s(sWS)}, {s(sT)}")
    A(f"s_addc_u32 {s(sOP+1)}, {s(sWS+1)}, 0")
    A("s_waitcnt vmcnt(0)")
    if WST and USE_FLAGS: WST(4)
    attn_fix_vm(A)
    attention(A)
    A("s_waitcnt lgkmcnt(0)")
    A("s_barrier")
    if WST and USE_FLAGS: WST(5)
    if USE_FLAGS:
        nf = A.label("L_nf")
        A(f"s_cmp_eq_u32 {s(52)}, -1")
        A(f"s_cbranch_scc1 {nf}")
        flag_set(A, 52, 1, idx_s=sSL, idx_c=FL2_PA)
        A(f"{nf}:")
        A(f"s_mov_b32 {s(52)}, {s(sSEG)}")
    mma_chunk(A, 32, "f", 0, transposed=True)
    A(f"v_xor_b32 {v(wAR)}, 32768, {v(wAR)}")
    A(f"v_xor_b32 {v(aOW)}, 32768, {v(aOW)}")
    if WST and USE_FLAGS: WST(6)
    epi_part(A, st)
    if USE_FLAGS:
        A("s_waitcnt vmcnt(0)")
        A("s_barrier")
        flag_set(A, 52, 1, idx_s=sSL, idx_c=FL2_PA)
        A(f"s_mov_b32 {s(52)}, -1")
    A(f"s_add_u32 {s(sSEG)}, {s(sSEG)}, {seg_stride}")
    A(f"s_sub_u32 {s(sCNT)}, {s(sCNT)}, 1")
    A(f"s_cmp_lg_u32 {s(sCNT)}, 0")
    A(f"s_cbranch_scc1 {lab}")


def gen_kvm_body(A):
    done = A.label("L_kvmdone"); lv = A.label("L_kvmv")
    A(f"s_cmp_ge_u32 {s(sSL)}, 16")
    A(f"s_cbranch_scc1 {lv}")
    for kind in ("k","v"):
        if kind == "v": A(f"{lv}:")
        ptr = 64 if kind == "k" else 66
        A(f"s_and_b32 {s(sT+6)}, {s(sSL)}, 15")
        A(f"s_lshl_b32 {s(sT)}, {s(sT+6)}, 9")
        A(f"s_add_u32 {s(sWB)}, {s(ptr)}, {s(sT)}")
        A(f"s_addc_u32 {s(sWB+1)}, {s(ptr+1)}, 0")
        A(f"s_mov_b32 {s(sLDW)}, 8192")
        A(f"s_lshr_b32 {s(sT)}, {s(sWAVE)}, 1")
        A(f"s_lshl_b32 {s(sT+1)}, {s(sT+6)}, 1")
        A(f"s_add_u32 {s(sT)}, {s(sT)}, {s(sT+1)}")
        A(f"s_lshl_b32 {s(37)}, {s(sT)}, 12")
        A(f"s_and_b32 {s(sT)}, {s(sWAVE)}, 1")
        A(f"s_lshl_b32 {s(sT)}, {s(sT)}, {11 if kind == 'k' else 10}")
        A(f"s_add_u32 {s(37)}, {s(37)}, {s(sT)}")
        load_weights(A, 32, ffn=False, sigma=(kind == "k"))
        setup_a_addr(A, "x")
        T = wT
        A(f"v_and_b32 {v(T)}, 15, {v(wLANE)}")
        A(f"v_lshrrev_b32 {v(T+1)}, 4, {v(wLANE)}")
        A(f"v_lshrrev_b32 {v(T+2)}, 2, {v(T)}")
        A(f"v_and_b32 {v(T+3)}, 1, {v(T)}")
        A(f"v_lshl_add_u32 {v(T+2)}, {v(T+2)}, 1, {v(T+3)}")
        A(f"v_bfe_u32 {v(T+3)}, {v(T)}, 1, 1")
        A(f"v_lshrrev_b32 {v(T+4)}, 1, {v(T+1)}")
        A(f"v_xor_b32 {v(T+4)}, {v(T+4)}, {v(T+2)}")
        A(f"v_lshlrev_b32 {v(T+4)}, 4, {v(T+4)}")
        A(f"v_lshl_add_u32 {v(T+4)}, {v(T+2)}, 10, {v(T+4)}")
        A(f"v_and_b32 {v(T+5)}, 1, {v(T+1)}")
        A(f"v_lshlrev_b32 {v(T+5)}, 3, {v(T+5)}")
        A(f"v_lshl_add_u32 {v(T+5)}, {v(T+3)}, 2, {v(T+5)}")
        A(f"v_add_u32 {v(T+4)}, {v(T+4)}, {v(T+5)}")
        A(f"s_lshl_b32 {s(sT)}, {s(sWAVE)}, 8")
        A(f"v_add_u32 {v(10)}, {s(sT)}, {v(T+4)}")
        A(f"s_lshl_b32 {s(sT)}, {s(sWAVE)}, 11")
        A(f"v_add_u32 {v(11)}, {s(sT)}, {v(wL16)}")
        if kind == "k":
            A(f"v_and_b32 {v(T)}, 7, {v(wLANE)}")
            A(f"v_lshrrev_b32 {v(T+1)}, 1, {v(T)}")
            A(f"v_and_b32 {v(T+2)}, 1, {v(T)}")
            A(f"v_lshl_add_u32 {v(T+1)}, {v(T+1)}, 2, {v(T+2)}")
            A(f"v_lshrrev_b32 {v(T+2)}, 5, {v(wLANE)}")
            A(f"v_lshl_add_u32 {v(T+1)}, {v(T+2)}, 4, {v(T+1)}")
            A(f"v_lshlrev_b32 {v(T+1)}, 4, {v(T+1)}")
            A(f"v_bfe_u32 {v(T+2)}, {v(wLANE)}, 3, 2")
            A(f"v_lshl_add_u32 {v(wE+20)}, {v(T+2)}, 17, {v(T+1)}")
        else:
            A(f"v_and_b32 {v(T)}, 15, {v(wLANE)}")
            A(f"v_bfe_u32 {v(T+1)}, {v(wLANE)}, 4, 1")
            A(f"v_lshrrev_b32 {v(T+2)}, 5, {v(wLANE)}")
            A(f"v_lshl_add_u32 {v(T+2)}, {v(T+2)}, 5, {v(T)}")
            A(f"v_lshlrev_b32 {v(T+2)}, 3, {v(T+2)}")
            A(f"v_lshl_add_u32 {v(wE+20)}, {v(T+1)}, 2, {v(T+2)}")
            for j in range(1,4): A(f"v_add_u32 {v(wE+20+j)}, {j*131072}, {v(wE+20)}")
        A(f"s_mov_b32 {s(sSEG)}, 0")
        A(f"s_add_u32 {s(sAP)}, {s(sWS)}, {WS_MEMP}")
        A(f"s_addc_u32 {s(sAP+1)}, {s(sWS+1)}, 0")
        lab = A.label("L_kvms")
        A(f"{lab}:")
        skip3 = A.label("L_kvm3")
        for q in range(4):
            pl = A.label("L_kvmp"); ok = A.label("L_kvmok")
            if q == 3:
                A(f"s_cmp_eq_u32 {s(sSEG)}, 60")
                A(f"s_cbranch_scc1 {skip3}")
            A(f"s_mov_b32 {s(49)}, 0")
            A(f"{pl}:")
            A(f"global_load_dwordx4 {v(32,4)}, {v(11)}, {s(sAP,2)} sc1")
            A(f"global_load_dwordx4 {v(36,4)}, {v(11)}, {s(sAP,2)} offset:1024 sc1")
            A(f"s_add_u32 {s(49)}, {s(49)}, 1")
            A(f"s_cmp_gt_u32 {s(49)}, 0x20000")
            A(f"s_cbranch_scc1 {ok}")
            A("s_waitcnt vmcnt(0)")
            A(f"v_max3_u32 {v(T)}, {v(32)}, {v(33)}, {v(34)}")
            A(f"v_max3_u32 {v(T+1)}, {v(35)}, {v(36)}, {v(37)}")
            A(f"v_max3_u32 {v(T)}, {v(T)}, {v(38)}, {v(39)}")
            A(f"v_max_u32 {v(T)}, {v(T)}, {v(T+1)}")
            A(f"v_cmp_eq_u32 vcc, -1, {v(T)}")
            A(f"s_cbranch_vccz {ok}")
            A("s_sleep 2")
            A(f"s_branch {pl}")
            A(f"{ok}:")
            A("s_waitcnt vmcnt(0)")
            A(f"v_xor_b32 {v(T+3)}, {(q&1)*128}, {v(10)}")
            A(f"v_add_u32 {v(T+3)}, {q*8192}, {v(T+3)}")
            for i in range(2):
                for qq in range(4):
                    A(f"v_xor_b32 {v(T+2)}, {(8*i+2*qq)*16}, {v(T+3)}")
                    for hi4 in range(2):
                        e8 = qq + 4*hi4
                        src = 32 + 4*i + (e8 >> 1)
                        op = "ds_write_b16_d16_hi" if (e8 & 1) else "ds_write_b16"
                        A(f"{op} {v(T+2)}, {v(src)} offset:{2*hi4}")
            A("s_waitcnt lgkmcnt(0)")
            A(f"s_add_u32 {s(sAP)}, {s(sAP)}, 8192")
            A(f"s_addc_u32 {s(sAP+1)}, {s(sAP+1)}, 0")
        A(f"{skip3}:")
        A("s_barrier")
        A(f"s_lshl_b32 {s(sT)}, {s(sSEG)}, 17")
        A(f"s_add_u32 {s(sT)}, {s(sT)}, {s(37)}")
        A(f"s_add_u32 {s(sT)}, {s(sT)}, {WS_KM if kind == 'k' else WS_VM}")
        A(f"s_add_u32 {s(sOP)}, {s(sWS)}, {s(sT)}")
        A(f"s_addc_u32 {s(sOP+1)}, {s(sWS+1)}, 0")
        mma_chunk(A, 32, "x", 0, transposed=(kind == "k"))
        for b in range(8): A(f"v_xor_b32 {v(wAR+b)}, 32768, {v(wAR+b)}")
        A(f"v_xor_b32 {v(10)}, 32768, {v(10)}")
        E = wE
        A(f"s_cmp_eq_u32 {s(sSEG)}, 60")
        A(f"s_cselect_b32 {s(50)}, 0x00ffffff, -1")
        if kind == "k":
            for Tt in range(2):
                for hf in range(2):
                    for d in range(4):
                        r = wAC + 16*Tt + 8*hf + 2*d
                        A(f"v_cvt_pk_bf16_f32 {v(E+8*Tt+4*hf+d)}, {v(r)}, {v(r+1)}")
            A(f"s_mov_b32 exec_lo, {s(50)}"); A(f"s_mov_b32 exec_hi, {s(50)}")
            for Tt in range(2):
                for hf in range(2):
                    A(f"global_store_dwordx4 {v(E+20)}, {v(E+8*Tt+4*hf,4)}, {s(sOP,2)} offset:{Tt*1024+hf*512} sc1")
            A("s_mov_b64 exec, -1")
        else:
            for Tt in range(2):
                for j in range(4):
                    r = wAC + 16*Tt + 4*j
                    A(f"v_cvt_pk_bf16_f32 {v(E+8*Tt+2*j)}, {v(r)}, {v(r+1)}")
                    A(f"v_cvt_pk_bf16_f32 {v(E+8*Tt+2*j+1)}, {v(r+2)}, {v(r+3)}")
                    sk = None
                    if j == 3:
                        sk = A.label("L_kv3"); A(f"s_cmp_eq_u32 {s(sSEG)}, 60"); A(f"s_cbranch_scc1 {sk}")
                    A(f"global_store_dword {v(E+20+j)}, {v(E+8*Tt+2*j)}, {s(sOP,2)} offset:{Tt*512} sc1")
                    A(f"global_store_dword {v(E+20+j)}, {v(E+8*Tt+2*j+1)}, {s(sOP,2)} offset:{Tt*512+128} sc1")
                    if sk: A(f"{sk}:")
        A("s_waitcnt vmcnt(0)")
        A("s_barrier")
        for q in range(4):
            sk = None
            if q == 3:
                sk = A.label("L_kf3"); A(f"s_cmp_eq_u32 {s(sSEG)}, 63"); A(f"s_cbranch_scc1 {sk}")
            flag_set(A, sSEG, 1, idx_s=sSL)
            if sk: A(f"{sk}:")
            A(f"s_add_u32 {s(sSEG)}, {s(sSEG)}, 1")
        A(f"s_cmp_lt_u32 {s(sSEG)}, 64")
        A(f"s_cbranch_scc1 {lab}")
        A(f"s_branch {done}")
    A(f"{done}:")

def gen_attn_kernel(A, name="attn_kernel"):
    A.raw(kstart(name))
    load_ptrs(A)
    A("s_cmp_ge_u32 s2, 256")
    A("s_cbranch_scc1 L_attn_exit")
    A(f"s_lshr_b32 {s(sSL)}, s2, 4")
    A(f"s_and_b32 {s(sSEG)}, s2, 15")
    A(f"s_mov_b32 {s(sCNT)}, 4")
    gen_attn_body(A, 16)
    A("L_attn_exit:")
    A("s_endpgm")

def gen_final_body(A, mod="", wait_pb=None, wait_pa=None):
    T = 12
    A(f"s_lshl_b32 {s(sT)}, {s(sWAVE)}, 6")
    A(f"v_add_u32 {v(T)}, {s(sT)}, {v(wLANE)}")
    A(f"v_lshrrev_b32 {v(T+1)}, 3, {v(T)}")
    A(f"v_and_b32 {v(T+2)}, 7, {v(T)}")
    A(f"v_lshlrev_b32 {v(T+3)}, 7, {v(T+2)}")
    A(f"v_lshl_add_u32 {v(T+4)}, {v(T+1)}, 10, {v(T+3)}")
    A(f"s_lshl_b32 {s(sT)}, {s(sSEG)}, 15")
    A(f"s_add_u32 {s(44)}, {s(60)}, {s(sT)}")
    A(f"s_addc_u32 {s(45)}, {s(61)}, 0")
    for i in range(8):
        A(f"global_load_dwordx4 {v(32+4*i,4)}, {v(T+4)}, {s(44,2)} offset:{16*i}")
        A(f"global_load_dwordx4 {v(64+4*i,4)}, {v(T+3)}, {s(76,2)} offset:{16*i}")
    A(f"s_lshr_b32 {s(sT)}, {s(sSL)}, 1")
    A(f"s_lshl_b32 {s(sT)}, {s(sT)}, 15")
    A(f"s_and_b32 {s(sT+1)}, {s(sSL)}, 1")
    A(f"s_lshl_b32 {s(sT+1)}, {s(sT+1)}, 12")
    A(f"s_add_u32 {s(sT)}, {s(sT)}, {s(sT+1)}")
    A(f"s_lshl_b32 {s(sT+1)}, {s(sWAVE)}, 13")
    A(f"s_add_u32 {s(sT)}, {s(sT)}, {s(sT+1)}")
    A(f"s_lshl_b32 {s(sT+1)}, {s(sSEG)}, 16")
    A(f"s_add_u32 {s(sT+2)}, {s(sT)}, {s(sT+1)}")
    A("s_waitcnt vmcnt(0)")
    A(f"v_mov_b32 {v(T+5)}, 0")
    for i in range(32):
        x = 32+i; g = 64+i
        A(f"v_lshlrev_b32 {v(T+6)}, 16, {v(x)}")
        A(f"v_and_b32 {v(T+7)}, 0xffff0000, {v(x)}")
        A(f"v_lshlrev_b32 {v(T+8)}, 16, {v(g)}")
        A(f"v_and_b32 {v(T+9)}, 0xffff0000, {v(g)}")
        A(f"v_mul_f32 {v(T+6)}, {v(T+6)}, {v(T+8)}")
        A(f"v_mul_f32 {v(T+7)}, {v(T+7)}, {v(T+9)}")
        A(f"v_cvt_pk_bf16_f32 {v(T+6)}, {v(T+6)}, {v(T+7)}")
        A(f"v_lshlrev_b32 {v(T+7)}, 16, {v(T+6)}")
        A(f"v_and_b32 {v(T+6)}, 0xffff0000, {v(T+6)}")
        A(f"v_add_f32 {v(T+5)}, {v(T+5)}, {v(T+7)}")
        A(f"v_add_f32 {v(T+5)}, {v(T+5)}, {v(T+6)}")
    A(f"v_add_f32_dpp {v(T+5)}, {v(T+5)}, {v(T+5)} quad_perm:[1,0,3,2] row_mask:0xf bank_mask:0xf")
    A(f"v_add_f32_dpp {v(T+5)}, {v(T+5)}, {v(T+5)} quad_perm:[2,3,0,1] row_mask:0xf bank_mask:0xf")
    A(f"v_add_f32_dpp {v(T+5)}, {v(T+5)}, {v(T+5)} row_half_mirror row_mask:0xf bank_mask:0xf")
    A(f"v_cvt_pk_bf16_f32 {v(T+5)}, {v(T+5)}, {v(T+5)}")
    A(f"v_lshlrev_b32 {v(T+5)}, 16, {v(T+5)}")
    A(f"v_mul_f32 {v(T+6)}, {f2u(-LOG2E):#x}, {v(T+5)}")
    A(f"v_exp_f32 {v(T+6)}, {v(T+6)}")
    A(f"v_add_f32 {v(T+6)}, 1.0, {v(T+6)}")
    A(f"v_rcp_f32 {v(T+6)}, {v(T+6)}")
    A(f"v_cvt_pk_bf16_f32 {v(T+6)}, {v(T+6)}, {v(T+6)}")
    A(f"v_lshlrev_b32 {v(T+6)}, 16, {v(T+6)}")
    A(f"v_lshlrev_b32 {v(T+7)}, 2, {v(T+1)}")
    A(f"v_add_u32 {v(T+7)}, 131072, {v(T+7)}")
    A(f"ds_write_b32 {v(T+7)}, {v(T+6)}")
    def load_parts(ps):
        for p in ps:
            base = (WS_PA + p*64*65536) if p < 8 else (WS_PB + (p-8)*64*65536)
            A(f"s_add_u32 {s(sT+3)}, {s(sT+2)}, {base}")
            A(f"s_add_u32 {s(44)}, {s(sWS)}, {s(sT+3)}")
            A(f"s_addc_u32 {s(45)}, {s(sWS+1)}, 0")
            for hq in range(4):
                A(f"global_load_dwordx4 {v(32+16*p+4*hq,4)}, {v(wL16)}, {s(44,2)} offset:{hq*1024} {mod}")
    if wait_pb: wait_pb()
    load_parts(range(8,12))
    A("s_waitcnt lgkmcnt(0)")
    A("s_barrier")
    A(f"v_and_b32 {v(T+7)}, 31, {v(wLANE)}")
    A(f"v_lshlrev_b32 {v(T+8)}, 2, {v(T+7)}")
    A(f"v_add_u32 {v(T+8)}, 131072, {v(T+8)}")
    A(f"ds_read_b32 {v(T+6)}, {v(T+8)}")
    if wait_pa: wait_pa()
    load_parts(range(0,8))
    A("s_waitcnt vmcnt(0) lgkmcnt(0)")
    A(f"v_sub_f32 {v(T+9)}, 1.0, {v(T+6)}")
    A(f"v_cvt_pk_bf16_f32 {v(T+9)}, {v(T+9)}, {v(T+9)}")
    A(f"v_lshlrev_b32 {v(T+9)}, 16, {v(T+9)}")
    for p in range(1,8):
        for r in range(0,16,2): A(f"v_pk_add_f32 {v(32+r,2)}, {v(32+r,2)}, {v(32+16*p+r,2)}")
    for p in range(9,12):
        for r in range(0,16,2): A(f"v_pk_add_f32 {v(160+r,2)}, {v(160+r,2)}, {v(32+16*p+r,2)}")
    for r in range(0,16,2):
        A(f"v_cvt_pk_bf16_f32 {v(T+10)}, {v(32+r)}, {v(32+r+1)}")
        A(f"v_cvt_pk_bf16_f32 {v(T+11)}, {v(160+r)}, {v(160+r+1)}")
        unpack2(A, 48, 49, T+10)
        unpack2(A, 50, 51, T+11)
        A(f"v_mul_f32 {v(48)}, {v(48)}, {v(T+6)}"); A(f"v_mul_f32 {v(49)}, {v(49)}, {v(T+6)}")
        A(f"v_mul_f32 {v(50)}, {v(50)}, {v(T+9)}"); A(f"v_mul_f32 {v(51)}, {v(51)}, {v(T+9)}")
        A(f"v_cvt_pk_bf16_f32 {v(T+10)}, {v(48)}, {v(49)}")
        A(f"v_cvt_pk_bf16_f32 {v(T+11)}, {v(50)}, {v(51)}")
        unpack2(A, 48, 49, T+10)
        unpack2(A, 50, 51, T+11)
        A(f"v_pk_add_f32 {v(48,2)}, {v(48,2)}, {v(50,2)}")
        A(f"v_cvt_pk_bf16_f32 {v(56 + r//2)}, {v(48)}, {v(49)}")
    A(f"s_lshr_b32 {s(sT)}, {s(sSL)}, 1")
    A(f"s_lshl_b32 {s(sT)}, {s(sT)}, 9")
    A(f"s_and_b32 {s(sT+1)}, {s(sSL)}, 1")
    A(f"s_lshl_b32 {s(sT+1)}, {s(sT+1)}, 6")
    A(f"s_add_u32 {s(sT)}, {s(sT)}, {s(sT+1)}")
    A(f"s_lshl_b32 {s(sT+1)}, {s(sWAVE)}, 7")
    A(f"s_add_u32 {s(sT)}, {s(sT)}, {s(sT+1)}")
    A(f"s_lshl_b32 {s(sT+1)}, {s(sSEG)}, 15")
    A(f"s_add_u32 {s(sT)}, {s(sT)}, {s(sT+1)}")
    A(f"s_add_u32 {s(44)}, {s(78)}, {s(sT)}")
    A(f"s_addc_u32 {s(45)}, {s(79)}, 0")
    A(f"v_lshrrev_b32 {v(T+8)}, 5, {v(wLANE)}")
    A(f"v_lshlrev_b32 {v(T+8)}, 4, {v(T+8)}")
    A(f"v_lshl_add_u32 {v(T+8)}, {v(T+7)}, 10, {v(T+8)}")
    A(f"global_store_dwordx4 {v(T+8)}, {v(56,4)}, {s(44,2)} {mod}")
    A(f"global_store_dwordx4 {v(T+8)}, {v(60,4)}, {s(44,2)} offset:32 {mod}")

def gen_final_kernel(A, name="final_kernel"):
    A.raw(kstart(name))
    load_ptrs(A)
    A("s_cmp_ge_u32 s2, 256")
    A("s_cbranch_scc1 L_fin_exit")
    A(f"s_lshr_b32 {s(sSEG)}, s2, 2")
    A(f"s_and_b32 {s(sSL)}, s2, 3")
    gen_final_body(A)
    A("L_fin_exit:")
    A("s_endpgm")

if __name__ == "__main__":
    import sys
    PROF = len(sys.argv) > 2
    A = Asm()
    names = ["proj_kernel","down_kernel","attn_kernel","final_kernel"]
    for n in names: A.raw(f"; @launch kernel={n} grid=(256,1,1) block=(256,1,1) lds=163840")
    A.raw('.amdgcn_target "amdgcn-amd-amdhsa--gfx950"')
    gen_proj_kernel(A); gen_down_kernel(A); gen_attn_kernel(A); gen_final_kernel(A)
    for n in names: A.raw(kd(n))
    open(sys.argv[1],"w").write(A.text())
    print("nops", A.nops, "lines", len(A.out))
```

```python
import sys
from asmlib import *
from layout import *
import chain10 as chain, workers as W
from engine import *
NAME = "gated_mix__memory_aug_recurrent_mem_tr__glu_gated_swiglu__prompt_kernel"
HDR = open("gated_mix__memory_aug_recurrent_mem_tr__glu_gated_swiglu__prompt.s.ref").read().split("; Override launch geometry")[0]

def gen(stamp=0, force_slow=False, wstamp=False, sst=0, dbgt=0, fake=0, wmod=0, **kw):
    chain.WMOD = ['sc1','nt',''][wmod]
    chain.STARTUP_STAMPS = bool(sst)
    W.USE_FLAGS = True
    A = Asm()
    A.raw(HDR.rstrip("\n"))
    A.raw("; @launch grid=(256,1,1) block=(256,1,1) lds=163840")
    A.raw('.amdgcn_target "amdgcn-amd-amdhsa--gfx950"')
    A.raw(kstart(NAME))
    A("s_cmp_ge_u32 s2, 256")
    A("s_cbranch_scc1 L_exit")
    if wstamp or dbgt: A("s_memrealtime s[94:95]")
    A(f"s_load_dwordx2 {s(6,2)}, s[0:1], {KA_DBG}")
    A(f"s_load_dwordx2 {s(4,2)}, s[0:1], {KA_WS}")
    A("s_getreg_b32 s12, hwreg(HW_REG_XCC_ID, 0, 4)")
    if fake == 1:
        A("s_and_b32 s13, s2, 15"); A("s_cmp_eq_u32 s13, 0"); A("s_cselect_b32 s12, 3, s12")
    if fake == 2:
        A("s_mov_b32 s12, 9")
    A("v_lshrrev_b32 v1, 6, v0")
    A("v_readfirstlane_b32 s8, v1")
    A("v_and_b32 v31, 63, v0")
    A("s_waitcnt lgkmcnt(0)")
    A("s_cmp_lg_u32 s8, 0")
    A("s_cbranch_scc0 L_w0")
    A("s_getpc_b64 s[16:17]")
    A("L_pc:")
    A("s_sub_u32 s18, s8, 1")
    A("s_mul_i32 s18, s18, 8192")
    A("s_add_u32 s16, s16, s18")
    A("s_addc_u32 s17, s17, 0")
    A("v_lshlrev_b32 v2, 7, v31")
    A("s_mov_b32 s19, (L_code_end - L_pc + 24575) / 24576")
    A("L_pfc:")
    A("global_load_dword a255, v2, s[16:17]")
    A("s_add_u32 s16, s16, 24576")
    A("s_addc_u32 s17, s17, 0")
    A("s_sub_u32 s19, s19, 1")
    A("s_cmp_lg_u32 s19, 0")
    A("s_cbranch_scc1 L_pfc")
    A("s_branch L_role")
    A("L_w0:")
    A("s_lshl_b32 s13, s12, 2")
    A(f"s_add_u32 s13, s13, {DBG_XCNT}")
    A("v_mov_b32 v2, s13")
    A("v_mov_b32 v3, 1")
    A("s_mov_b64 exec, 1")
    A("global_atomic_add v4, v2, v3, s[6:7] sc0")
    A("s_mov_b64 exec, -1")
    A("s_lshl_b32 s13, s2, 12")
    A(f"s_add_u32 s13, s13, {WS_FLAGS}")
    A("v_lshlrev_b32 v6, 7, v31")
    A("v_add_u32 v6, s13, v6")
    A("v_mov_b32 v7, 0")
    A("s_mov_b64 exec, 0xffffffff")
    A("global_store_dword v6, v7, s[4:5] sc1")
    A("s_mov_b64 exec, -1")
    A("s_lshl_b32 s13, s2, 11")
    A(f"s_add_u32 s13, s13, {WS_MEMP}")
    A("v_lshlrev_b32 v6, 4, v31")
    A("v_add_u32 v6, s13, v6")
    for r in range(8,12): A(f"v_mov_b32 v{r}, -1")
    A("global_store_dwordx4 v6, v[8:11], s[4:5] sc1")
    A("global_store_dwordx4 v6, v[8:11], s[4:5] offset:1024 sc1")
    A("s_mov_b64 exec, 1")
    A("s_mov_b32 s20, 0")
    A("s_waitcnt vmcnt(3)")
    A("v_readfirstlane_b32 s15, v4")
    A("s_lshl_b32 s14, s12, 5")
    A("s_add_u32 s14, s14, s15")
    A("s_cmp_lt_u32 s15, 32")
    A("s_cbranch_scc0 L_ovf")
    A("s_cmp_lt_u32 s12, 8")
    A("s_cbranch_scc1 L_haverole")
    A("L_ovf:")
    A("s_waitcnt vmcnt(0)")
    A(f"v_mov_b32 v2, {DBG_FINIT}")
    A("global_atomic_add v2, v3, s[6:7]")
    A("s_mov_b32 s20, 1")
    A(f"v_mov_b32 v2, {DBG_FINIT}")
    A("s_mov_b32 s16, 0")
    A("L_ovfw:")
    A("global_load_dword v4, v2, s[6:7] sc1")
    A("s_add_u32 s16, s16, 1")
    A("s_mov_b32 s14, 0xffff")
    A("s_cmp_gt_u32 s16, 0x40000")
    A("s_cbranch_scc1 L_haverole")
    A("s_waitcnt vmcnt(0)")
    A("v_readfirstlane_b32 s17, v4")
    A("s_cmp_lt_u32 s17, 256")
    A("s_cbranch_scc1 L_ovfw")
    A(f"v_mov_b32 v2, {DBG_OVF}")
    A("global_atomic_add v4, v2, v3, s[6:7] sc0")
    A("s_waitcnt vmcnt(0)")
    A("v_readfirstlane_b32 s16, v4")
    A("s_mov_b32 s17, 0")
    A("L_ovfl:")
    A("s_lshl_b32 s13, s17, 2")
    A(f"s_add_u32 s13, s13, {DBG_XCNT}")
    A("v_mov_b32 v2, s13")
    A("global_load_dword v4, v2, s[6:7] sc1")
    A("s_waitcnt vmcnt(0)")
    A("v_readfirstlane_b32 s18, v4")
    A("s_min_u32 s18, s18, 32")
    A("s_sub_u32 s19, 32, s18")
    A("s_cmp_lt_u32 s16, s19")
    A("s_cbranch_scc1 L_ovfg")
    A("s_sub_u32 s16, s16, s19")
    A("s_add_u32 s17, s17, 1")
    A("s_cmp_lt_u32 s17, 8")
    A("s_cbranch_scc1 L_ovfl")
    A("s_mov_b32 s14, 0xffff")
    A("s_branch L_haverole")
    A("L_ovfg:")
    A("s_lshl_b32 s14, s17, 5")
    A("s_add_u32 s14, s14, s18")
    A("s_add_u32 s14, s14, s16")
    A("L_haverole:")
    A("v_mov_b32 v4, s14")
    A(f"v_mov_b32 v5, {L_MISC}")
    A("ds_write_b32 v5, v4")
    A("s_waitcnt lgkmcnt(0)")
    A("s_mov_b64 exec, -1")
    A("L_role:")
    A("s_barrier")
    A(f"v_mov_b32 v5, {L_MISC}")
    A("ds_read_b32 v4, v5")
    A("s_waitcnt lgkmcnt(0)")
    A("v_readfirstlane_b32 s14, v4")
    A("s_barrier")
    A("s_cmp_lg_u32 s8, 0")
    A("s_cbranch_scc1 L_cnt")
    A("s_cmp_lg_u32 s20, 0")
    A("s_cbranch_scc1 L_cnt")
    A("s_waitcnt vmcnt(0)")
    A(f"v_mov_b32 v2, {DBG_FINIT}")
    A("v_mov_b32 v3, 1")
    A("s_mov_b64 exec, 1")
    A("global_atomic_add v2, v3, s[6:7]")
    A("s_mov_b64 exec, -1")
    A("L_cnt:")
    A("s_cmp_ge_u32 s14, 256")
    A("s_cbranch_scc1 L_exit")
    A("s_cmp_ge_u32 s14, 32")
    A("s_cbranch_scc1 L_worker")
    A(f"s_mov_b32 {s(chain.sRANK)}, s14")
    A(f"s_load_dwordx2 {s(60,2)}, s[0:1], {KA_MEM0}")
    A(f"s_load_dwordx2 {s(62,2)}, s[0:1], {KA_WQ}")
    A(f"s_load_dwordx2 {s(64,2)}, s[0:1], {KA_WK}")
    A(f"s_load_dwordx2 {s(66,2)}, s[0:1], {KA_WV}")
    A(f"s_load_dwordx2 {s(68,2)}, s[0:1], {KA_WO}")
    A("s_waitcnt lgkmcnt(0)")
    chain.gen_chain(A, 64, 1 if dbgt else stamp, flags=True, force_slow=force_slow, **kw)
    if dbgt:
        A("s_cmp_lg_u32 s9, 0"); A("s_cbranch_scc1 L_dt1"); A("s_cmp_lg_u32 s8, 0"); A("s_cbranch_scc1 L_dt1")
        A("s_memrealtime s[86:87]"); A("s_waitcnt lgkmcnt(0)")
        for k,r in enumerate((80,82,84,86)):
            A(f"s_sub_u32 s12, s{r}, s94"); A("v_mov_b32 v25, s12"); A(f"v_mov_b32 v24, {32+4*k}")
            A("global_store_dword v24, v25, s[6:7]")
        A("s_waitcnt vmcnt(0)")
        A("L_dt1:")
    A("s_endpgm")
    A.hist = []
    A("L_worker:")
    A("s_sub_u32 s58, s14, 32")
    W.load_ptrs(A)
    W.flag_init_ptr(A)
    def wst(k):
        if wstamp:
            A(f"s_memrealtime {s(80+2*k,2)}")
    W.WST = wst if wstamp else None
    wst(0)
    def wait_cw():
        lab = A.label("L_wcw"); ok = A.label("L_wcwok")
        A("s_cmp_lg_u32 s8, 0")
        A(f"s_cbranch_scc1 {ok}")
        A(f"v_mov_b32 v254, {DBG_CW}")
        A("s_mov_b32 s49, 0")
        A(f"{lab}:")
        A("s_sleep 40")
        A("global_load_dword v255, v254, s[6:7] sc1")
        A("s_add_u32 s49, s49, 1")
        A("s_cmp_gt_u32 s49, 0x4000")
        A(f"s_cbranch_scc1 {ok}")
        A("s_waitcnt vmcnt(0)")
        A("v_cmp_gt_u32 vcc, 32, v255")
        A(f"s_cbranch_vccnz {lab}")
        A(f"{ok}:")
        A("s_barrier")
    A("s_cmp_lt_u32 s58, 128")
    A("s_cbranch_scc0 L_w1b")
    A(f"s_lshr_b32 {s(W.sSL)}, s58, 2")
    A("s_and_b32 s12, s58, 3")
    A("s_cmp_eq_u32 s12, 0")
    A("s_cbranch_scc0 L_w1p")
    A(f"s_and_b32 s12, {s(W.sSL)}, 15")
    A("s_lshl_b32 s12, s12, 18")
    A("s_lshl_b32 s13, s8, 16")
    A("s_add_u32 s12, s12, s13")
    A(f"s_cmp_lt_u32 {s(W.sSL)}, 16")
    A("s_cselect_b32 s14, s62, s68")
    A("s_cselect_b32 s15, s63, s69")
    A("s_add_u32 s14, s14, s12")
    A("s_addc_u32 s15, s15, 0")
    for i in range(60):
        A(f"global_load_dwordx4 v[{32+4*(i%48)}:{35+4*(i%48)}], v1, s[14:15]")
        A("s_add_u32 s14, s14, 1024")
        A("s_addc_u32 s15, s15, 0")
    for i in range(4):
        A(f"global_load_dwordx4 v[{32+4*i}:{35+4*i}], v1, s[14:15] offset:{i*1024}")
    A("s_waitcnt vmcnt(0)")
    wait_cw()
    W.wait_finit(A)
    W.gen_kvm_body(A)
    A("s_branch L_wend")
    A("L_w1p:")
    A(f"s_sub_u32 {s(sSEG)}, s12, 1")
    A("s_branch L_w1go")
    A("L_w1b:")
    A("s_cmp_lt_u32 s58, 218")
    A("s_cbranch_scc0 L_w2")
    wait_cw()
    A("s_sub_u32 s12, s58, 128")
    A("s_mul_i32 s13, s12, 21846")
    A("s_lshr_b32 s13, s13, 16")
    A(f"s_add_u32 {s(W.sSL)}, s13, 32")
    A("s_mul_i32 s13, s13, 3")
    A(f"s_sub_u32 {s(sSEG)}, s12, s13")
    A("L_w1go:")
    A(f"s_mov_b32 {s(W.sSTR)}, 3")
    A(f"s_cmp_eq_u32 {s(sSEG)}, 0")
    A(f"s_cselect_b32 {s(W.sCNT)}, 22, 21")
    W.gen_proj_body(A, st="sc1")
    A("L_w2:")
    W.wait_finit(A)
    wst(1)
    A("s_barrier")
    A("s_cmp_lt_u32 s58, 128")
    A("s_cbranch_scc1 L_w3")
    A("s_cmp_lt_u32 s58, 160")
    A("s_cbranch_scc0 L_w4")
    A("s_sub_u32 s12, s58, 128")
    A(f"s_lshr_b32 {s(W.sSL)}, s12, 2")
    A(f"s_and_b32 {s(sSEG)}, s12, 3")
    A(f"s_mov_b32 {s(W.sCNT)}, 16")
    W.gen_down_body(A, 4, st="sc1")
    A("s_branch L_wend")
    A("L_w3:")
    A("s_lshr_b32 s12, s58, 2")
    A("s_mul_i32 s12, s12, 3")
    A("s_and_b32 s13, s58, 3")
    A("s_add_u32 s12, s12, s13")
    A("s_sub_u32 s12, s12, 1")
    A(f"s_and_b32 {s(W.sSL)}, s12, 15")
    A(f"s_lshr_b32 {s(sSEG)}, s12, 4")
    A(f"s_cmp_lt_u32 {s(sSEG)}, 4")
    A(f"s_cselect_b32 {s(W.sCNT)}, 11, 10")
    W.gen_attn_body(A, 6, st="sc1", mod="sc1")
    A("s_branch L_wend")
    A("L_w4:")
    A("s_sub_u32 s59, s58, 160")
    A("L_w4loop:")
    A(f"s_lshr_b32 {s(sSEG)}, s59, 2")
    A(f"s_and_b32 {s(W.sSL)}, s59, 3")
    A(f"s_lshr_b32 s12, {s(W.sSL)}, 1")
    A("s_lshl_b32 s55, 0x550000, s12")
    A("s_lshl_b32 s57, 0x5555, s12")
    A("s_mov_b32 s54, 0")
    W.gen_final_body(A, mod="sc1", wait_pb=lambda: W.flag_wait(A, sSEG, 1, 54, 55), wait_pa=lambda: W.flag_wait(A, sSEG, 1, 54, 57))
    A("s_barrier")
    A("s_add_u32 s59, s59, 64")
    A("s_cmp_lt_u32 s59, 256")
    A("s_cbranch_scc1 L_w4loop")
    A("L_wend:")
    if dbgt:
        A("s_memrealtime s[86:87]"); A("s_waitcnt lgkmcnt(0)")
        A("s_sub_u32 s12, s86, s94"); A("v_mov_b32 v25, s12"); A("v_mov_b32 v24, 48")
        A("s_mov_b64 exec, 1"); A("global_atomic_umax v24, v25, s[6:7]"); A("s_mov_b64 exec, -1")
    wst(2)
    if wstamp:
        A("s_waitcnt lgkmcnt(0)")
        A("s_lshl_b32 s12, s58, 5")
        A(f"s_add_u32 s12, s12, {WS_END_CHAIN + 0x8000}")
        A("v_mov_b32 v24, s12")
        for k in range(3):
            A(f"v_mov_b32 v25, {s(80+2*k)}")
            A(f"global_store_dword v24, v25, s[4:5] offset:{4*k}")
        A("v_mov_b32 v25, s94")
        A("global_store_dword v24, v25, s[4:5] offset:12")
        for k in range(3,7):
            A(f"v_mov_b32 v25, {s(80+2*k)}")
            A(f"global_store_dword v24, v25, s[4:5] offset:{4*(k+1)}")
    A("s_waitcnt vmcnt(0)")
    A("L_exit:")
    A("s_endpgm")
    A.raw("L_code_end:")
    A.raw(".fill 6144, 4, 0xbf800000")
    A.raw(kd(NAME))
    return A

if __name__ == "__main__":
    kw = {}
    for x in sys.argv[2:]:
        k,val = x.split("="); kw[k] = int(val)
    A = gen(**kw)
    open(sys.argv[1], "w").write(A.text())
    print("nops", A.nops, "lines", len(A.out), "bytes", len(A.text()))
```

```python
from asmlib import *
from layout import *
import struct
def f2u(x): return struct.unpack("<I", struct.pack("<f", x))[0]
SCALE_LOG2E = (128.0 ** -0.5) * 1.4426950408889634

vL16,vIDX,vW16,vLH,vVXA,vPF,vZP,vZP1,vPP,vPG,vMP,vMQW,vMQR0,vMQR1,vOW,vOR,vWO0,vWO1,vPM,vZ = range(20)
X0=20
S0=24; S1=28; SM=120
MA=32
KXR=64
AQK=96
AV=112
T0=124
WV=128
def WQ(t,b): return a(0+(t*8+b)*8, 8)
def WK(t,b): return a(128+(t*8+b)*8, 8)
def WVf(t,b): return v(WV+(t*8+b)*8, 8)
def ma(b): return v(MA+4*b,4)
sWS=4; sDBG=6; sWAVE=8; sRANK=9; sSTEP=10; sT0=12
sMRD=20
sMEMn=24; sMEMc=26; sPc=28; sPc2=30; sKX=32; sVX=34; sKM=36; sVM=38; sSC=40
sSPIN=42; sPH=43; sW=44; sMASK=46; sPFK=48; sOFF=50
sIN=60
sTS=70

def smf(acc, A_, B_): return f"v_smfmac_f32_16x16x64_bf16 {v(acc,4)}, {A_}, {B_}, {v(vIDX)}"

STARTUP_STAMPS = False
WO_FIRST = True
ALIGN = None
WMOD = "sc1"
EARLY_FLAGS = [False]
L_SCR = 131072

def raw_regs(mat, qq, w):
    out = []
    for bl in range(2):
        bp = (2*qq + bl - 2*w) % 8
        for t in range(2):
            base = (t*8+bp)*8
            for h in range(2):
                if mat == 0: out.append(a(base+4*h, 4))
                elif mat == 1: out.append(a(128+base+4*h, 4))
                else: out.append(v(WV+base+4*h, 4))
    return out

def gen_startup_issue(A, chunk, w):
    if chunk < 12:
        mat = chunk // 4; qq = chunk % 4
        wreg = [62, 64, 66][mat]
        A(f"s_lshl_b32 {s(sT0)}, {s(sRANK)}, 8")
        A(f"s_add_u32 {s(sW)}, {s(wreg)}, {s(sT0)}")
        A(f"s_addc_u32 {s(sW+1)}, {s(wreg+1)}, 0")
        A(f"s_add_u32 {s(sW)}, {s(sW)}, {qq*128*8192}")
        A(f"s_addc_u32 {s(sW+1)}, {s(sW+1)}, 0")
        rr = raw_regs(mat, qq, w)
        for i in range(8):
            A(f"global_load_dwordx4 {rr[i]}, {v(22 + (i>>2))}, {s(sW,2)} {WMOD}")
            if i < 7:
                A(f"s_add_u32 {s(sW)}, {s(sW)}, {4*8192}")
                A(f"s_addc_u32 {s(sW+1)}, {s(sW+1)}, 0")
    else:
        qq = chunk - 12
        A(f"s_lshl_b32 {s(sT0)}, {s(sRANK)}, 17")
        A(f"s_add_u32 {s(sW)}, {s(68)}, {s(sT0)}")
        A(f"s_addc_u32 {s(sW+1)}, {s(69)}, 0")
        A(f"s_lshl_b32 {s(sT0)}, {s(sWAVE)}, 13")
        A(f"s_add_u32 {s(sT0)}, {s(sT0)}, {qq*32*1024}")
        A(f"s_add_u32 {s(sW)}, {s(sW)}, {s(sT0)}")
        A(f"s_addc_u32 {s(sW+1)}, {s(sW+1)}, 0")
        for i in range(8):
            f = (4*((i>>2)&1) + 2*(i&1))*16
            A(f"v_xor_b32 {v(25)}, {f}, {v(24)}")
            A(f"s_add_u32 m0, {s(sT0+1)}, {qq*32768 + i*1024}")
            A(f"global_load_lds_dwordx4 {v(25)}, {s(sW,2)} {WMOD}")
            if i < 7:
                A(f"s_add_u32 {s(sW)}, {s(sW)}, 1024")
                A(f"s_addc_u32 {s(sW+1)}, {s(sW+1)}, 0")

def gen_startup(A, w, st):
    DEPTH = 7
    A(f"s_lshl_b32 {s(sT0)}, {s(sWAVE)}, 13")
    A(f"s_add_u32 {s(sT0)}, {s(sT0)}, {L_SCR}")
    A(f"v_add_u32 {v(21)}, {s(sT0)}, {v(vL16)}")
    A(f"v_add_u32 {v(26)}, {L_SCR}, {v(26)}")
    A(f"v_add_u32 {v(27)}, {L_SCR}, {v(27)}")
    order = [12,13,14,15] + list(range(12)) if WO_FIRST else list(range(16))
    for i in range(DEPTH): gen_startup_issue(A, order[i], w)
    A(f"v_mov_b32 {v(99)}, {DBG_FINIT}")
    A(f"global_load_dword {v(99)}, {v(99)}, {s(sDBG,2)} sc1")
    for i in range(16):
        c = order[i]
        left = min(DEPTH-1, 15 - i)
        extra = (1 if i < 7 else 0) + ((4 if EARLY_FLAGS[0] else 1) if i >= 14 else 0)
        A(f"s_waitcnt vmcnt({8*left + extra})")
        if STARTUP_STAMPS and i % 2 == 1: A(f"s_memrealtime {s(76+i-1,2)}")
        if i == 0 and w == 0:
            A(f"v_lshl_or_b32 {v(96)}, {v(97)}, 16, {v(96)}")
            A(f"global_store_dword {v(98)}, {v(96)}, {s(sMEMc,2)} {st}")
        if c < 12:
            mat = c // 4; qq = c % 4
            rr = raw_regs(mat, qq, w)
            for k in range(8):
                A(f"ds_write_b128 {v(21)}, {rr[k]} offset:{k*1024}")
            A("s_waitcnt lgkmcnt(0)")
            A("s_barrier")
            for bl in range(2):
                bp = (2*qq + bl - 2*w) % 8
                for t in range(2):
                    for x in range(4):
                        off = (64*bl + 32*(x&1) + 8*(x>>1))*256
                        if mat == 0: dst = a(0+(t*8+bp)*8 + 2*x, 2)
                        elif mat == 1: dst = a(128+(t*8+bp)*8 + 2*x, 2)
                        else: dst = v(WV+(t*8+bp)*8 + 2*x, 2)
                        A(f"ds_read_b64_tr_b16 {dst}, {v(26+t)} offset:{off}")
            if i + DEPTH < 16: gen_startup_issue(A, order[i + DEPTH], w)
            A("s_waitcnt lgkmcnt(0)")
            A("s_barrier")
        else:
            slot = c - 12
            A("s_barrier")
            A(f"v_add_u32 {v(29)}, {slot*32768}, {v(28)}")
            for j in range(8):
                A(f"v_xor_b32 {v(30)}, {2*j*16}, {v(29)}")
                for xl in range(2):
                    A(f"ds_read_b64_tr_b16 {v(32+4*j+2*xl,2)}, {v(30)} offset:{2*xl*1024}")
            if i + DEPTH < 16: gen_startup_issue(A, order[i + DEPTH], w)
            A("s_waitcnt lgkmcnt(0)")
            A("s_barrier")
            for j in range(8):
                base = slot*32768 + j*1024
                if base < 65536: A(f"ds_write_b128 {v(vWO0)}, {v(32+4*j,4)} offset:{base}")
                else: A(f"ds_write_b128 {v(vWO1)}, {v(32+4*j,4)} offset:{base-65536}")
        if i == 13:
            A(f"v_lshrrev_b32 {v(104)}, 2, {v(vL16)}")
            A(f"v_and_b32 {v(104)}, 0x1c, {v(104)}")
            A(f"v_bfe_u32 {v(103)}, {v(vL16)}, 4, 1")
            A(f"v_lshl_add_u32 {v(103)}, {v(103)}, 11, {s(sFL2)}")
            A(f"v_add_u32 {v(105)}, 16384, {v(103)}")
            A(f"v_add_u32 {v(106)}, 32768, {v(103)}")
            A(f"global_load_dword {v(100)}, {v(104)}, {s(sDBG,2)} sc1")
            if EARLY_FLAGS[0]:
                A(f"global_load_dword {v(101)}, {v(103)}, {s(sFL1,2)} sc1")
                A(f"global_load_dword {v(102)}, {v(105)}, {s(sFL1,2)} sc1")
                A(f"global_load_dword {v(vPF)}, {v(106)}, {s(sFL1,2)} sc1")
        if i == 7 and w == 0:
            A(f"v_mov_b32 {v(96)}, 4")
            A(f"v_mov_b32 {v(97)}, 1")
            A("s_mov_b64 exec, 1")
            A(f"global_atomic_add {v(96)}, {v(97)}, {s(sDBG,2)}")
            A("s_mov_b64 exec, -1")
    A("s_waitcnt lgkmcnt(0)")
    A("s_barrier")

sKX2=20; sRLO=22; sRL2=23; sFMK2=11
def gen_persistent(A, lane):
    A(f"v_lshlrev_b32 {v(vL16)}, 4, {v(lane)}")
    A(f"v_and_b32 {v(20)}, 15, {v(lane)}")
    A(f"v_lshrrev_b32 {v(21)}, 4, {v(lane)}")
    A(f"v_bfe_u32 {v(22)}, {v(20)}, 1, 1")
    A(f"v_mov_b32 {v(vIDX)}, 0x44444444")
    A(f"v_mov_b32 {v(23)}, 0xeeeeeeee")
    A(f"v_cmp_eq_u32 vcc, 1, {v(22)}")
    A(f"v_cndmask_b32 {v(vIDX)}, {v(vIDX)}, {v(23)}, vcc")
    A(f"s_lshl_b32 {s(sT0)}, {s(sWAVE)}, 11")
    A(f"v_add_u32 {v(vW16)}, {s(sT0)}, {v(vL16)}")
    A(f"v_add_u32 {v(vLH)}, {L_MEMB}, {v(vL16)}")
    A(f"v_add_u32 {v(vVXA)}, {L_VXB}, {v(vW16)}")
    A(f"v_add_u32 {v(vLH)}, {L_MEMB}, {v(vL16)}")
    for p in (1,2,3):
        A(f"s_add_u32 {s(sT0)}, {s(sWAVE)}, {p}")
        A(f"s_and_b32 {s(sT0)}, {s(sT0)}, 3")
        A(f"s_lshl_b32 {s(sOFF+p)}, {s(sT0)}, 11")
    A(f"s_lshl_b32 {s(sOFF)}, {s(sWAVE)}, 11")
    A(f"v_mov_b32 {v(vZP)}, 0")
    A(f"v_mov_b32 {v(vZP1)}, 0")
    A(f"v_mov_b32 {v(vPF)}, 0")
    A(f"v_lshrrev_b32 {v(24)}, 2, {v(20)}")
    A(f"s_lshl_b32 {s(sT0)}, {s(sWAVE)}, 3")
    A(f"v_add_u32 {v(24)}, {s(sT0)}, {v(24)}")
    A(f"v_lshlrev_b32 {v(24)}, 13, {v(24)}")
    A(f"v_lshrrev_b32 {v(25)}, 1, {v(21)}")
    A(f"v_lshl_add_u32 {v(24)}, {v(25)}, 12, {v(24)}")
    A(f"v_and_b32 {v(25)}, 1, {v(21)}")
    A(f"v_and_b32 {v(26)}, 3, {v(20)}")
    A(f"v_lshl_add_u32 {v(25)}, {v(25)}, 2, {v(26)}")
    A(f"v_lshl_add_u32 {v(24)}, {v(25)}, 4, {v(24)}")
    A(f"s_lshl_b32 {s(sT0)}, {s(sRANK)}, 7")
    A(f"v_add_u32 {v(vPP)}, {s(sT0)}, {v(24)}")
    A(f"s_lshl_b32 {s(sT0)}, {s(sRANK)}, 13")
    A(f"s_lshl_b32 {s(sT0+1)}, {s(sWAVE)}, 12")
    A(f"s_add_u32 {s(sT0)}, {s(sT0)}, {s(sT0+1)}")
    A(f"v_add_u32 {v(vPG)}, {s(sT0)}, {v(vL16)}")
    A(f"v_bfe_u32 {v(24)}, {v(20)}, 2, 1")
    A(f"s_lshl_b32 {s(sT0)}, {s(sWAVE)}, 1")
    A(f"v_add_u32 {v(24)}, {s(sT0)}, {v(24)}")
    A(f"v_lshlrev_b32 {v(24)}, 2, {v(24)}")
    A(f"v_bfe_u32 {v(25)}, {v(20)}, 1, 1")
    A(f"v_lshl_add_u32 {v(24)}, {v(25)}, 1, {v(24)}")
    A(f"v_lshrrev_b32 {v(25)}, 1, {v(21)}")
    A(f"v_add_u32 {v(24)}, {v(24)}, {v(25)}")
    A(f"v_lshlrev_b32 {v(24)}, 4, {v(24)}")
    A(f"v_and_b32 {v(25)}, 1, {v(20)}")
    A(f"v_and_b32 {v(26)}, 1, {v(21)}")
    A(f"v_lshl_add_u32 {v(25)}, {v(25)}, 1, {v(26)}")
    A(f"v_lshl_add_u32 {v(24)}, {v(25)}, 2, {v(24)}")
    A(f"s_lshl_b32 {s(sT0)}, {s(sRANK)}, 8")
    A(f"v_add_u32 {v(vMP)}, {s(sT0)}, {v(24)}")
    A(f"v_lshlrev_b32 {v(24)}, 1, {v(20)}")
    A(f"v_lshrrev_b32 {v(25)}, 1, {v(21)}")
    A(f"v_lshlrev_b32 {v(25)}, 3, {v(25)}")
    A(f"v_xor_b32 {v(24)}, {v(24)}, {v(25)}")
    A(f"v_lshl_add_u32 {v(24)}, {v(21)}, 5, {v(24)}")
    A(f"v_lshlrev_b32 {v(24)}, 2, {v(24)}")
    A(f"s_lshl_b32 {s(sT0)}, {s(sWAVE)}, 10")
    A(f"s_add_u32 {s(sT0)}, {s(sT0)}, {L_MQK}")
    A(f"v_add_u32 {v(vMQW)}, {s(sT0)}, {v(24)}")
    A(f"v_bfe_u32 {v(24)}, {v(lane)}, 2, 2")
    A(f"v_and_b32 {v(25)}, 3, {v(lane)}")
    A(f"v_lshlrev_b32 {v(24)}, 1, {v(24)}")
    A(f"v_and_b32 {v(26)}, 1, {v(21)}")
    A(f"v_lshl_add_u32 {v(24)}, {v(26)}, 4, {v(24)}")
    A(f"v_lshrrev_b32 {v(26)}, 1, {v(25)}")
    A(f"v_lshlrev_b32 {v(26)}, 3, {v(26)}")
    A(f"v_xor_b32 {v(24)}, {v(24)}, {v(26)}")
    A(f"v_lshl_add_u32 {v(24)}, {v(25)}, 5, {v(24)}")
    A(f"v_lshrrev_b32 {v(26)}, 1, {v(21)}")
    A(f"v_lshl_add_u32 {v(24)}, {v(26)}, 7, {v(24)}")
    A(f"v_lshlrev_b32 {v(24)}, 2, {v(24)}")
    A(f"v_add_u32 {v(vMQR0)}, {L_MQK}, {v(24)}")
    A(f"v_xor_b32 {v(vMQR1)}, 32, {v(vMQR0)}")
    A(f"v_lshrrev_b32 {v(24)}, 2, {v(20)}")
    A(f"v_and_b32 {v(25)}, 1, {v(20)}")
    A(f"v_lshl_add_u32 {v(24)}, {v(24)}, 1, {v(25)}")
    A(f"v_mul_u32_u24 {v(24)}, 272, {v(24)}")
    A(f"v_lshl_add_u32 {v(24)}, {v(21)}, 3, {v(24)}")
    A(f"s_lshl_b32 {s(sT0)}, {s(sWAVE)}, 6")
    A(f"s_add_u32 {s(sT0)}, {s(sT0)}, {L_OB}")
    A(f"v_add_u32 {v(24)}, {s(sT0)}, {v(24)}")
    A(f"v_lshlrev_b32 {v(25)}, 3, {v(lane)}")
    A(f"v_add_u32 {v(25)}, {L_MQK}, {v(25)}")
    A(f"v_and_b32 {v(26)}, 2, {v(20)}")
    A(f"v_cmp_eq_u32 vcc, 2, {v(26)}")
    A(f"v_cndmask_b32 {v(vOW)}, {v(25)}, {v(24)}, vcc")
    A(f"v_lshrrev_b32 {v(24)}, 2, {v(20)}")
    A(f"v_and_b32 {v(25)}, 1, {v(20)}")
    A(f"v_lshl_add_u32 {v(24)}, {v(24)}, 1, {v(25)}")
    A(f"v_mul_u32_u24 {v(24)}, 272, {v(24)}")
    A(f"v_lshl_add_u32 {v(24)}, {v(21)}, 5, {v(24)}")
    A(f"v_bfe_u32 {v(25)}, {v(20)}, 1, 1")
    A(f"v_lshl_add_u32 {v(24)}, {v(25)}, 4, {v(24)}")
    A(f"v_add_u32 {v(vOR)}, {L_OB}, {v(24)}")
    A(f"s_lshl_b32 {s(sT0)}, {s(sWAVE)}, 13")
    A(f"v_add_u32 {v(vWO0)}, {s(sT0)}, {v(vL16)}")
    A(f"v_add_u32 {v(vWO1)}, 65536, {v(vWO0)}")
    A(f"v_mov_b32 {v(vZ)}, 0")
    A(f"v_mov_b32 {v(vPM)}, 0")
    A(f"s_lshl_b32 {s(sRL2)}, {s(sRANK)}, 8")
    A(f"s_add_u32 {s(sRLO)}, {s(sRL2)}, {L_MEMB}")
    A(f"s_mov_b32 {s(sMASK)}, 0")
    A(f"s_mov_b32 {s(sMASK+1)}, -1")
    A(f"s_mov_b32 {s(sSC)}, {f2u(SCALE_LOG2E):#x}")
    A(f"s_mov_b32 {s(sSC+1)}, {f2u(-SCALE_LOG2E):#x}")

def gen_init_comm(A, lane, st):
    A(f"s_add_u32 {s(sMEMc)}, {s(sWS)}, {WS_MEM}")
    A(f"s_addc_u32 {s(sMEMc+1)}, {s(sWS+1)}, 0")
    A(f"s_add_u32 {s(sPc)}, {s(sWS)}, {WS_P}")
    A(f"s_addc_u32 {s(sPc+1)}, {s(sWS+1)}, 0")
    A(f"s_add_u32 {s(sPc2)}, {s(sPc)}, 32768")
    A(f"s_addc_u32 {s(sPc2+1)}, {s(sPc+1)}, 0")
    for r in range(4): A(f"v_mov_b32 {v(32+r)}, -1")
    A(f"s_lshl_b32 {s(sT0)}, {s(sRANK)}, 13")
    A(f"v_add_u32 {v(24)}, {s(sT0)}, {v(vW16)}")
    A(f"global_store_dwordx4 {v(24)}, {v(32,4)}, {s(sPc,2)} {st}")
    A(f"global_store_dwordx4 {v(24)}, {v(32,4)}, {s(sPc,2)} offset:1024 {st}")
    for r in (96,97,98): A(f"v_mov_b32 {v(r)}, 0")
    skip = A.label("L_nomem0")
    A(f"s_cmp_lg_u32 {s(sWAVE)}, 0")
    A(f"s_cbranch_scc1 {skip}")
    A(f"v_lshrrev_b32 {v(24)}, 2, {v(lane)}")
    A(f"v_and_b32 {v(25)}, 3, {v(lane)}")
    A(f"v_lshrrev_b32 {v(26)}, 2, {v(24)}")
    A(f"v_and_b32 {v(27)}, 1, {v(24)}")
    A(f"v_lshl_add_u32 {v(26)}, {v(26)}, 1, {v(27)}")
    A(f"v_bfe_u32 {v(27)}, {v(24)}, 1, 1")
    A(f"v_lshlrev_b32 {v(27)}, 3, {v(27)}")
    A(f"v_lshl_add_u32 {v(27)}, {v(25)}, 1, {v(27)}")
    A(f"s_lshr_b32 {s(sT0)}, {s(sRANK)}, 2")
    A(f"s_lshl_b32 {s(sT0)}, {s(sT0)}, 6")
    A(f"s_and_b32 {s(sT0+1)}, {s(sRANK)}, 3")
    A(f"s_lshl_b32 {s(sT0+1)}, {s(sT0+1)}, 2")
    A(f"s_add_u32 {s(sT0)}, {s(sT0)}, {s(sT0+1)}")
    A(f"v_and_b32 {v(28)}, 3, {v(27)}")
    A(f"v_lshlrev_b32 {v(28)}, 4, {v(28)}")
    A(f"v_lshrrev_b32 {v(29)}, 2, {v(27)}")
    A(f"v_add_u32 {v(28)}, {v(28)}, {v(29)}")
    A(f"v_add_u32 {v(28)}, {s(sT0)}, {v(28)}")
    A(f"v_lshl_add_u32 {v(28)}, {v(26)}, 9, {v(28)}")
    A(f"v_lshlrev_b32 {v(28)}, 1, {v(28)}")
    A(f"global_load_ushort {v(96)}, {v(28)}, {s(60,2)}")
    A(f"global_load_ushort {v(97)}, {v(28)}, {s(60,2)} offset:32")
    A(f"v_lshlrev_b32 {v(98)}, 2, {v(lane)}")
    A(f"s_lshl_b32 {s(sT0)}, {s(sRANK)}, 8")
    A(f"v_add_u32 {v(98)}, {s(sT0)}, {v(98)}")
    A(f"v_add_u32 {v(24)}, 8192, {v(98)}")
    A(f"global_store_dword {v(24)}, {v(32)}, {s(sMEMc,2)} {st}")
    A(f"s_mov_b64 exec, 1")
    A(f"s_getreg_b32 {s(sT0)}, hwreg(HW_REG_XCC_ID, 0, 4)")
    A(f"s_lshl_b32 {s(sT0)}, 1, {s(sT0)}")
    A(f"v_mov_b32 {v(24)}, {DBG_XMASK}")
    A(f"v_mov_b32 {v(25)}, {s(sT0)}")
    A(f"global_atomic_or {v(24)}, {v(25)}, {s(sDBG,2)}")
    A(f"s_mov_b64 exec, -1")
    A(f"{skip}:")

def gen_weights(A, lane, st):
    A(f"v_and_b32 {v(20)}, 15, {v(lane)}")
    A(f"v_lshrrev_b32 {v(21)}, 4, {v(lane)}")
    A(f"v_lshlrev_b32 {v(24)}, 1, {v(21)}")
    A(f"v_xor_b32 {v(24)}, {v(24)}, {v(20)}")
    A(f"v_lshlrev_b32 {v(24)}, 4, {v(24)}")
    A(f"s_lshl_b32 {s(sT0)}, {s(sWAVE)}, 5")
    A(f"v_add_u32 {v(25)}, {s(sT0)}, {v(21)}")
    A(f"v_lshlrev_b32 {v(25)}, 13, {v(25)}")
    A(f"v_mov_b32 {v(30)}, {v(21)}")
    A(f"v_add_u32 {v(22)}, {v(25)}, {v(24)}")
    A(f"v_xor_b32 {v(23)}, 128, {v(22)}")
    A(f"s_and_b32 {s(sT0)}, {s(sWAVE)}, 1")
    A(f"s_lshl_b32 {s(sT0)}, {s(sT0)}, 7")
    A(f"v_xor_b32 {v(24)}, {s(sT0)}, {v(vL16)}")
    A(f"v_bfe_u32 {v(32)}, {v(lane)}, 2, 2")
    A(f"v_and_b32 {v(33)}, 3, {v(lane)}")
    A(f"v_and_b32 {v(34)}, 1, {v(32)}")
    A(f"v_lshrrev_b32 {v(35)}, 1, {v(32)}")
    A(f"v_and_b32 {v(36)}, 1, {v(30)}")
    A(f"v_lshrrev_b32 {v(37)}, 1, {v(30)}")
    A(f"v_lshlrev_b32 {v(38)}, 4, {v(34)}")
    A(f"v_lshl_add_u32 {v(38)}, {v(35)}, 1, {v(38)}")
    A(f"v_lshl_add_u32 {v(38)}, {v(37)}, 2, {v(38)}")
    A(f"v_add_u32 {v(38)}, {v(38)}, {v(36)}")
    A(f"v_lshlrev_b32 {v(39)}, 2, {v(34)}")
    A(f"v_lshl_add_u32 {v(39)}, {v(35)}, 1, {v(39)}")
    A(f"v_add_u32 {v(39)}, {v(39)}, {v(36)}")
    A(f"v_lshlrev_b32 {v(39)}, 1, {v(39)}")
    A(f"v_lshrrev_b32 {v(40)}, 1, {v(33)}")
    A(f"s_lshl_b32 {s(sT0)}, {s(sWAVE)}, 2")
    A(f"v_add_u32 {v(40)}, {s(sT0)}, {v(40)}")
    A(f"v_xor_b32 {v(40)}, {v(40)}, {v(39)}")
    A(f"v_lshlrev_b32 {v(40)}, 4, {v(40)}")
    A(f"v_lshl_add_u32 {v(40)}, {v(38)}, 8, {v(40)}")
    A(f"v_and_b32 {v(41)}, 1, {v(33)}")
    A(f"v_lshl_add_u32 {v(26)}, {v(41)}, 3, {v(40)}")
    A(f"v_xor_b32 {v(27)}, 32, {v(26)}")
    A(f"v_lshlrev_b32 {v(38)}, 4, {v(37)}")
    A(f"v_lshl_add_u32 {v(38)}, {v(35)}, 3, {v(38)}")
    A(f"v_lshl_add_u32 {v(38)}, {v(36)}, 2, {v(38)}")
    A(f"v_add_u32 {v(38)}, {v(38)}, {v(34)}")
    A(f"v_lshlrev_b32 {v(39)}, 3, {v(35)}")
    A(f"v_lshl_add_u32 {v(39)}, {v(36)}, 2, {v(39)}")
    A(f"v_lshl_add_u32 {v(39)}, {v(34)}, 1, {v(39)}")
    A(f"v_lshrrev_b32 {v(40)}, 1, {v(33)}")
    A(f"s_lshl_b32 {s(sT0)}, {s(sWAVE)}, 4")
    A(f"v_add_u32 {v(40)}, {s(sT0)}, {v(40)}")
    A(f"v_xor_b32 {v(40)}, {v(40)}, {v(39)}")
    A(f"v_lshlrev_b32 {v(40)}, 4, {v(40)}")
    A(f"v_lshl_add_u32 {v(40)}, {v(38)}, 10, {v(40)}")
    A(f"v_lshl_add_u32 {v(28)}, {v(41)}, 3, {v(40)}")
    A(f"s_lshl_b32 {s(sT0+1)}, {s(sWAVE)}, 13")
    done = A.label("L_wdone")
    labs = [A.label("L_wv") for _ in range(4)]
    for w in range(1,4):
        A(f"s_cmp_eq_u32 {s(sWAVE)}, {w}")
        A(f"s_cbranch_scc1 {labs[w]}")
    for w in range(4):
        A(f"{labs[w]}:")
        gen_startup(A, w, st)
        A(f"s_branch {done}")
    A(f"{done}:")

def delay(A, n):
    if n > 0: A.raw("  ; poll back-off: the other workgroups' data is still in flight; staggers the overlapping polls")
    while n > 0:
        k = min(n, 16); A(f"s_nop {k-1}"); n -= k

sFL1=58; sFL2=54; sFMASK=56; sMODE=57

def chain_flag_wait_blocking(A, ptr_s):
    lab = A.label("L_cfw"); ok = A.label("L_cfwok")
    A(f"v_lshrrev_b32 {v(24)}, 2, {v(vL16)}")
    A(f"{lab}:")
    A(f"global_load_dword {v(25)}, {v(24)}, {s(ptr_s,2)} sc1")
    A(f"s_add_u32 {s(sSPIN)}, {s(sSPIN)}, 1")
    A(f"s_cmp_gt_u32 {s(sSPIN)}, 0x40000")
    A(f"s_cbranch_scc1 L_chain_abort")
    A("s_waitcnt vmcnt(0)")
    A(f"v_cmp_ne_u32 vcc, 0, {v(25)}")
    A(f"s_and_b32 {s(sT0)}, vcc_lo, {s(sFMASK)}")
    A(f"s_cmp_eq_u32 {s(sT0)}, {s(sFMASK)}")
    A(f"s_cbranch_scc1 {ok}")
    A("s_sleep 2")
    A(f"s_branch {lab}")
    A(f"{ok}:")

def gen_chain(A, nsteps=64, stamp=0, smode="", D1=10, D2=10, flags=False, force_slow=False, X=0, VA=4, DS=25, DP=35, D3=120, B0=1):
    st = "sc1" if flags else smode
    lane = 31
    if stamp == 1: A(f"s_memrealtime {s(80,2)}")
    gen_persistent(A, lane)
    gen_init_comm(A, lane, st)
    EARLY_FLAGS[0] = flags
    A(f"s_lshr_b32 {s(sFL2)}, {s(sRANK)}, 1")
    A(f"s_lshl_b32 {s(sFL2)}, {s(sFL2)}, 7")
    A(f"s_add_u32 {s(sFL1)}, {s(sWS)}, {WS_FLAGS}")
    A(f"s_addc_u32 {s(sFL1+1)}, {s(sWS+1)}, 0")
    gen_weights(A, lane, st)
    if stamp == 1: A(f"s_memrealtime {s(82,2)}")
    A(f"s_lshl_b32 {s(sT0)}, {s(sRANK)}, 13")
    A(f"s_add_u32 {s(sKX)}, {s(sWS)}, {s(sT0)}")
    A(f"s_addc_u32 {s(sKX+1)}, {s(sWS+1)}, 0")
    A(f"s_add_u32 {s(sVX)}, {s(sKX)}, {WS_VX}")
    A(f"s_addc_u32 {s(sVX+1)}, {s(sKX+1)}, 0")
    A(f"s_and_b32 {s(sT0)}, {s(sWAVE)}, 1")
    A(f"s_lshl_b32 {s(sT0)}, {s(sT0)}, 24")
    A(f"s_add_u32 {s(sPFK)}, {s(sKX)}, {s(sT0)}")
    A(f"s_addc_u32 {s(sPFK+1)}, {s(sKX+1)}, 0")
    A(f"s_add_u32 {s(sPFK)}, {s(sPFK)}, {32*8192}")
    A(f"s_addc_u32 {s(sPFK+1)}, {s(sPFK+1)}, 0")
    A(f"s_add_u32 {s(sKM)}, {s(sWS)}, {WS_MEMP}")
    A(f"s_addc_u32 {s(sKM+1)}, {s(sWS+1)}, 0")
    def kv_dma():
        return [f"s_add_u32 m0, {s(sOFF)}, {L_KXB}",
                f"global_load_lds_dwordx4 {v(vW16)}, {s(sKX,2)} sc1",
                f"global_load_lds_dwordx4 {v(vW16)}, {s(sKX,2)} offset:1024 sc1",
                f"s_add_u32 m0, {s(sOFF)}, {L_VXB}",
                f"global_load_lds_dwordx4 {v(vW16)}, {s(sVX,2)} sc1",
                f"global_load_lds_dwordx4 {v(vW16)}, {s(sVX,2)} offset:1024 sc1"]
    def kv_adv():
        A(f"s_add_u32 {s(sKX)}, {s(sKX)}, {32*8192}")
        A(f"s_addc_u32 {s(sKX+1)}, {s(sKX+1)}, 0")
        A(f"s_add_u32 {s(sVX)}, {s(sVX)}, {32*8192}")
        A(f"s_addc_u32 {s(sVX+1)}, {s(sVX+1)}, 0")
    A(f"s_mov_b32 {s(sSPIN)}, 0")
    A(f"s_mov_b32 {s(sFMK2)}, 0")
    if not flags:
        A(f"s_mov_b32 {s(sFMASK)}, 0")
        A(f"s_add_u32 {s(sPFK)}, {s(sPFK)}, {32*8192}")
        A(f"s_addc_u32 {s(sPFK+1)}, {s(sPFK+1)}, 0")
    if flags:
        A(f"s_mov_b32 {s(sFMASK)}, -1")
        lfi = A.label("L_cfi"); lfo = A.label("L_cfo")
        A(f"v_cmp_gt_u32 vcc, 256, {v(99)}")
        A(f"s_cbranch_vccz {lfo}")
        A("s_waitcnt vmcnt(0)")
        A(f"v_mov_b32 {v(101)}, 0")
        A(f"v_mov_b32 {v(24)}, {DBG_FINIT}")
        A(f"{lfi}:")
        A(f"global_load_dword {v(25)}, {v(24)}, {s(sDBG,2)} sc1")
        A(f"s_add_u32 {s(sSPIN)}, {s(sSPIN)}, 1")
        A(f"s_cmp_gt_u32 {s(sSPIN)}, 0x40000")
        A(f"s_cbranch_scc1 L_chain_abort")
        A("s_waitcnt vmcnt(0)")
        A(f"v_cmp_gt_u32 vcc, 256, {v(25)}")
        A(f"s_cbranch_vccnz {lfi}")
        A(f"{lfo}:")
    lw = A.label("L_winit"); lchk = A.label("L_wchk")
    A("s_waitcnt vmcnt(0)")
    A(f"s_branch {lchk}")
    A(f"{lw}:")
    A(f"global_load_dword {v(100)}, {v(104)}, {s(sDBG,2)} sc1")
    if flags:
        A(f"global_load_dword {v(101)}, {v(103)}, {s(sFL1,2)} sc1")
        A(f"global_load_dword {v(102)}, {v(105)}, {s(sFL1,2)} sc1")
        A(f"global_load_dword {v(vPF)}, {v(106)}, {s(sFL1,2)} sc1")
    A(f"s_add_u32 {s(sSPIN)}, {s(sSPIN)}, 1")
    A(f"s_cmp_gt_u32 {s(sSPIN)}, 0x40000")
    A(f"s_cbranch_scc1 L_chain_abort")
    A(f"s_waitcnt vmcnt(0)")
    A(f"{lchk}:")
    A(f"v_readlane_b32 {s(sT0)}, {v(100)}, 1")
    A(f"v_readlane_b32 {s(sMODE)}, {v(100)}, 3")
    A(f"s_cmp_lt_u32 {s(sT0)}, 32")
    A(f"s_cbranch_scc1 {lw}")
    if flags:
        A(f"v_cmp_ne_u32 vcc, 0, {v(101)}")
        A(f"s_and_b32 {s(sT0)}, vcc_lo, {s(sFMASK)}")
        A(f"v_cmp_ne_u32 vcc, 0, {v(102)}")
        A(f"s_and_b32 {s(sT0)}, {s(sT0)}, vcc_lo")
        A(f"s_cmp_eq_u32 {s(sT0)}, {s(sFMASK)}")
        A(f"s_cbranch_scc0 {lw}")
        A(f"s_add_u32 {s(sFL1)}, {s(sFL1)}, {3*16384}")
        A(f"s_addc_u32 {s(sFL1+1)}, {s(sFL1+1)}, 0")
        A(f"s_mov_b32 {s(sFMK2)}, {s(sFMASK)}")
        A(f"s_add_u32 {s(sPFK)}, {s(sPFK)}, {32*8192}")
        A(f"s_addc_u32 {s(sPFK+1)}, {s(sPFK+1)}, 0")
        A(f"s_bcnt1_i32_b32 {s(sMODE)}, {s(sMODE)}")
        if force_slow: A(f"s_mov_b32 {s(sMODE)}, 2")
    for x in kv_dma(): A(x)
    kv_adv()
    if flags:
        cw = A.label("L_cw")
        A(f"s_cmp_lg_u32 {s(sWAVE)}, 0")
        A(f"s_cbranch_scc1 {cw}")
        A(f"v_mov_b32 {v(24)}, {DBG_CW}")
        A(f"v_mov_b32 {v(25)}, 1")
        A("s_mov_b64 exec, 1")
        A(f"global_atomic_add {v(24)}, {v(25)}, {s(sDBG,2)}")
        A("s_mov_b64 exec, -1")
        A(f"{cw}:")
    A(f"s_mov_b32 {s(sSTEP)}, 0")
    A(f"s_mov_b32 {s(sSPIN)}, 0")
    if stamp:
        A(f"s_memtime {s(sTS,2)}")
        A("s_waitcnt lgkmcnt(0)")
        if stamp == 1: A(f"s_memrealtime {s(84,2)}"); A("s_waitcnt lgkmcnt(0)")
        else:
            for k in range(26): A(f"s_mov_b32 {s(76+k)}, 0")
        A(f"s_mov_b32 {s(sTS+4)}, 0")
        A(f"s_mov_b32 {s(sTS+5)}, 0")
    def ts(k):
        if stamp == 2 and k < 13: A(f"s_memtime {s(76+2*k,2)}")
    def dump_stamps():
        if stamp == 2:
            lab = A.label("L_nodump")
            A(f"s_cmp_lg_u32 {s(sSTEP)}, 41")
            A(f"s_cbranch_scc1 {lab}")
            A("s_waitcnt lgkmcnt(0)")
            A(f"s_lshl_b32 {s(sT0)}, {s(sRANK)}, 2")
            A(f"s_add_u32 {s(sT0)}, {s(sT0)}, {s(sWAVE)}")
            A(f"s_lshl_b32 {s(sT0)}, {s(sT0)}, 6")
            A(f"s_add_u32 {s(sT0)}, {s(sT0)}, {WS_END_CHAIN + 0x4000}")
            A(f"v_mov_b32 {v(T0)}, {s(sT0)}")
            for k in range(13):
                A(f"v_mov_b32 {v(T0+1)}, {s(76+2*k)}")
                A(f"global_store_dword {v(T0)}, {v(T0+1)}, {s(sWS,2)} offset:{4*k}")
            A(f"{lab}:")

    K0,Q0,K1,Q1 = AQK, AQK+4, AQK+8, AQK+12
    V0,V1 = AV, AV+4
    QK = AQK
    PA = KXR
    def step_scalars():
        A(f"s_and_b32 {s(sPH)}, {s(sSTEP)}, 1")
        A(f"s_lshl_b32 {s(sT0+1)}, {s(sPH)}, 13")
        A(f"s_add_u32 {s(sT0+1)}, {s(sT0+1)}, {WS_MEM}")
        A(f"s_add_u32 {s(sMEMc)}, {s(sWS)}, {s(sT0+1)}")
        A(f"s_addc_u32 {s(sMEMc+1)}, {s(sWS+1)}, 0")
        A(f"s_xor_b32 {s(sT0+1)}, {s(sT0+1)}, 8192")
        A(f"s_add_u32 {s(sMEMn)}, {s(sWS)}, {s(sT0+1)}")
        A(f"s_addc_u32 {s(sMEMn+1)}, {s(sWS+1)}, 0")
    def zero_acc():
        A(f"v_mfma_f32_32x32x8_bf16 {v(AQK,16)}, {v(vZP,2)}, {v(vZP,2)}, 0")
        for r in range(AV, AV+8, 2): A(f"v_pk_mov_b32 {v(r,2)}, 0, 0")
        for p in range(4): A(f"v_add_u32 {v(S0+p)}, {s(sOFF+p)}, {v(vLH)}")

    FARN = {0:0, 2:3, 3:2}
    def step_body(st, sfx, far, slowpaths):
        L = lambda x: f"{x}{sfx}"
        if ALIGN is not None:
            A.raw(f"  s_branch {L('L_step')}")
            A.raw("  .p2align 6")
            for _ in range(ALIGN): A.raw("  s_nop 0")
        A(f"{L('L_step')}:")
        ts(12)
        delay(A, D2)
        MR = S0
        MB = KXR
        def chk(base):
            A(f"v_max3_u32 {v(T0)}, {v(base)}, {v(base+1)}, {v(base+2)}")
            A(f"v_max3_u32 {v(T0+1)}, {v(base+3)}, {v(base+4)}, {v(base+5)}")
            A(f"v_max3_u32 {v(T0)}, {v(T0)}, {v(base+6)}, {v(base+7)}")
            A(f"v_max_u32 {v(T0)}, {v(T0)}, {v(T0+1)}")
            A(f"v_cmp_eq_u32 vcc, -1, {v(T0)}")
        def ldm(base):
            A(f"global_load_dwordx4 {v(base,4)}, {v(vW16)}, {s(sMEMc,2)} sc1")
            A(f"global_load_dwordx4 {v(base+4,4)}, {v(vW16)}, {s(sMEMc,2)} offset:1024 sc1")
        ldm(MA)
        delay(A, DS)
        A(f"{L('L_pollm')}:")
        ldm(MB)
        A("s_waitcnt vmcnt(2)")
        chk(MA)
        A(f"s_cbranch_vccz {L('L_gotm')}")
        ldm(MA)
        A(f"s_add_u32 {s(sSPIN)}, {s(sSPIN)}, 1")
        A(f"s_cmp_gt_u32 {s(sSPIN)}, 0x40000")
        A(f"s_cbranch_scc1 L_chain_abort")
        A("s_waitcnt vmcnt(2)")
        chk(MB)
        A(f"s_cbranch_vccnz {L('L_pollm2')}")
        for r in range(0,8,2): A(f"v_pk_mov_b32 {v(MA+r,2)}, {v(MB+r,2)}, {v(MB+r,2)} op_sel:[0,1]")
        A(f"s_branch {L('L_gotm2')}")
        A(f"{L('L_pollm2')}:")
        A(f"s_branch {L('L_pollm')}")
        A(f"{L('L_gotm')}:")
        A(f"{L('L_gotm2')}:")
        ts(0)
        A(f"ds_write_b128 {v(MR)}, {ma(0)}")
        A(smf(K0, ma(0), WK(0,0)))
        A(f"ds_write_b128 {v(MR)}, {ma(1)} offset:1024")
        A(smf(Q0, ma(0), WQ(0,0)))
        if far:
            fok = A.label("L_fok"); fs_ = f"L_fslow{sfx}"
            if flags:
                A(f"v_cmp_ne_u32 vcc, 0, {v(vPF)}")
                A(f"s_and_b32 {s(sT0)}, vcc_lo, {s(sFMK2)}")
                A(f"s_cmp_eq_u32 {s(sT0)}, {s(sFMK2)}")
                A(f"s_cbranch_scc0 {fs_}")
                A(f"{fok}:")
                slowpaths.append((fs_, fok))
            A(f"v_lshlrev_b32 {v(vPF)}, 3, {v(vL16)}")
            A(f"global_load_dword {v(vPF)}, {v(vPF)}, {s(sPFK,2)}")
        A(smf(K1, ma(0), WK(1,0)))
        if far:
            A(f"v_bfe_u32 {v(X0)}, {v(vL16)}, 4, 1")
            A(f"v_lshl_add_u32 {v(X0)}, {v(X0)}, 11, {s(sFL2)}")
            A(f"global_load_dword {v(vPF)}, {v(X0)}, {s(sFL1,2)} sc1")
        A(smf(Q1, ma(0), WQ(1,0)))
        A(smf(V0, ma(0), WVf(0,0)))
        A(smf(V1, ma(0), WVf(1,0)))
        A("s_waitcnt lgkmcnt(0)")
        A("s_barrier")
        rds = []
        for p in range(3):
            rds.append(f"ds_read_b128 {ma(2*p+2)}, {v(MR+1+p)}")
            rds.append(f"ds_read_b128 {ma(2*p+3)}, {v(MR+1+p)} offset:1024")
        A(rds[0]); A(rds[1])
        own = [(K0,ma(1),WK(0,1)),(Q0,ma(1),WQ(0,1)),(K1,ma(1),WK(1,1)),(Q1,ma(1),WQ(1,1))]
        for i in range(4):
            A(smf(*own[i])); A(rds[i+2])
        A(smf(V0, ma(1), WVf(0,1)))
        A(smf(V1, ma(1), WVf(1,1)))
        kxq = [(t,ks) for ks in range(4) for t in range(2)]
        kxr = [f"ds_read_b128 {v(KXR+(t*4+ks)*4,4)}, {v(vLH)} offset:{L_KXB-L_MEMB+(t*4+ks)*1024}" for (t,ks) in kxq]
        kxr[0] = [f"s_waitcnt vmcnt({2 if far else 0})", kxr[0]]
        fill = [[],[],[],[],[],[],[],[]]
        if far == 2:
            fill.append([f"v_and_b32 {v(X0)}, 0xf0, {v(vL16)}"])
            fill.append([f"v_add_u32 {v(X0+1)}, {s(sRLO)}, {v(X0)}"])
            fill.append([f"ds_read_b128 {v(S1,4)}, {v(X0+1)}"])
            fill.append([f"v_add_u32 {v(X0+1)}, {s(sRL2)}, {v(X0)}"])
        if far == 2:
            pub = fill[8:]; fill = fill[:8]
            fill += [(x if isinstance(x,list) else [x]) for x in kxr] + pub
        else:
            fill += [(x if isinstance(x,list) else [x]) for x in kxr]
        A("s_waitcnt lgkmcnt(4)")
        g = 0
        for b in range(2,8):
            if b == 4:
                nrel = 0
                if far:
                    nrel = sum(1 for f in fill_done for x in f if x.startswith("ds_read"))
                A(f"s_waitcnt lgkmcnt({nrel})")
            order = ((K0,WK(0,b)),(Q0,WQ(0,b)),(K1,WK(1,b)),(Q1,WQ(1,b)))
            for n,(acc,W) in enumerate(order):
                if b == 2 and n == 0: fill_done = []
                A(smf(acc, ma(b), W))
                if fill:
                    f = fill.pop(0); fill_done.append(f)
                    for x in f: A(x)
        assert not fill, len(fill)
        ts(1)
        vq = [(t,b) for b in range(2,8) for t in range(2)]
        vi = [0]
        def vph(n=1):
            for _ in range(n):
                if vi[0] < len(vq):
                    t,b = vq[vi[0]]; vi[0] += 1
                    A(smf(V0+4*t, ma(b), WVf(t,b)))
        X_ = T0
        FB = [MA, MA+8, MA+16, MA+24, AV, AQK, AQK+8, 120]
        frags = [(j,b) for j in range(8) for b in range(2)]
        def wo_rd(fi, buf):
            j,b = frags[fi]; out = []
            for hx in range(2):
                q = 2*b + hx
                off = q*32768 + j*1024
                reg = vWO0 if off < 65536 else vWO1
                if off >= 65536: off -= 65536
                out.append(f"ds_read_b128 {v(FB[buf]+4*hx,4)}, {v(reg)} offset:{off}")
            return out
        vph(2)
        A(f"v_pk_add_f32 {v(K0,2)}, {v(K0,2)}, {v(K0+2,2)}")
        A(f"v_pk_add_f32 {v(Q0,2)}, {v(Q0,2)}, {v(Q0+2,2)}")
        A(f"v_pk_add_f32 {v(K1,2)}, {v(K1,2)}, {v(K1+2,2)}")
        A(f"v_cvt_pk_bf16_f32 {v(X_)}, {v(K0)}, {v(K0+1)}")
        A(f"v_cvt_pk_bf16_f32 {v(X_+1)}, {v(Q0)}, {v(Q0+1)}")
        A(f"v_pk_add_f32 {v(Q1,2)}, {v(Q1,2)}, {v(Q1+2,2)}")
        A(f"ds_write_b64 {v(vMQW)}, {v(X_,2)}")
        A(f"v_cvt_pk_bf16_f32 {v(X_+2)}, {v(K1)}, {v(K1+1)}")
        A(f"v_cvt_pk_bf16_f32 {v(X_+3)}, {v(Q1)}, {v(Q1+1)}")
        A(f"ds_write_b64 {v(vMQW)}, {v(X_+2,2)} offset:512")
        vph(VA)
        A("s_waitcnt lgkmcnt(0)")
        if far == 2:
            A("s_mov_b64 exec, 0xffff")
            A(f"global_store_dwordx4 {v(X0+1)}, {v(S1,4)}, {s(sKM,2)} sc1")
            A("s_mov_b64 exec, -1")
        A("s_barrier")
        for ks in range(4):
            A(f"ds_read_b64_tr_b16 {v(QK+4*ks,2)}, {v(vMQR0)} offset:{ks*1024}")
            A(f"ds_read_b64_tr_b16 {v(QK+4*ks+2,2)}, {v(vMQR1)} offset:{ks*1024}")
        vph(16)
        ts(2)
        VXO = KXR; B1 = KXR+8
        VMa = X0
        ONE = T0+2
        wr = wo_rd(0,0) + wo_rd(1,1) + wo_rd(2,2) + wo_rd(3,3)
        sf = {1: [wr[0]], 2: [wr[1]], 3: [wr[2]], 4: [wr[3]],
              5: [f"v_pk_add_f32 {v(V0,2)}, {v(V0,2)}, {v(V0+2,2)}"],
              6: [f"v_pk_add_f32 {v(V1,2)}, {v(V1,2)}, {v(V1+2,2)}", f"ds_read_b128 {v(KXR,4)}, {v(vVXA)}"],
              7: [f"v_cvt_pk_bf16_f32 {v(VMa)}, {v(V0)}, {v(V0+1)}", f"ds_read_b128 {v(KXR+4,4)}, {v(vVXA)} offset:1024"],
              8: [f"v_cvt_pk_bf16_f32 {v(VMa+1)}, {v(V1)}, {v(V1+1)}"],
              9: [f"v_cvt_pk_bf16_f32 {v(VMa+2)}, {v(V1)}, {v(V1+1)}"],
              10: [f"v_cvt_pk_bf16_f32 {v(VMa+3)}, {v(V0)}, {v(V0+1)}"],
              11: [wr[4]],
              0: [f"v_mov_b32 {v(ONE)}, 0x3f803f80"]}
        sf[8].append(f"v_mov_b32 {v(ONE+1)}, 0x3f803f80")
        g = 0
        for ks in range(4):
            if ks == 0: A(f"s_waitcnt lgkmcnt(4)")
            if ks == 2: A(f"s_waitcnt lgkmcnt(4)")
            c0 = "0" if ks == 0 else v(S0,4); c1 = "0" if ks == 0 else v(S1,4); cm = "0" if ks == 0 else v(SM,4)
            for mf in (f"v_mfma_f32_16x16x32_bf16 {v(S0,4)}, {v(KXR+ks*4,4)}, {v(QK+4*ks,4)}, {c0}",
                       f"v_mfma_f32_16x16x32_bf16 {v(S1,4)}, {v(KXR+16+ks*4,4)}, {v(QK+4*ks,4)}, {c1}",
                       f"v_mfma_f32_16x16x32_bf16 {v(SM,4)}, {v(QK+4*ks,4)}, {v(QK+4*ks,4)}, {cm}"):
                A(mf)
                for x in sf.get(g, []): A(x)
                g += 1
        ts(3)
        m1,m2 = T0, T0+1
        A(f"s_cmp_eq_u32 {s(sSTEP)}, {nsteps-1}")
        A(f"s_cbranch_scc1 L_chain_done")
        A(wr[5])
        A(f"v_max3_f32 {v(m1)}, {v(S0)}, {v(S0+1)}, {v(S0+2)}")
        A(f"v_max3_f32 {v(m2)}, {v(S0+3)}, {v(S1)}, {v(S1+1)}")
        A(f"v_max3_f32 {v(m1)}, {v(m1)}, {v(S1+2)}, {v(S1+3)}")
        A(f"v_max3_f32 {v(m2)}, {v(m2)}, {v(SM)}, {v(SM+1)}")
        A(f"v_max_f32 {v(m1)}, {v(m1)}, {v(m2)}")
        A(f"v_max_f32 {v(m2)}, {v(m1)}, {v(m2)}")
        A(wr[6])
        A(f"v_permlane16_swap_b32 {v(m1)}, {v(m2)}")
        A(f"v_max_f32 {v(m1)}, {v(m1)}, {v(m2)}")
        A(f"v_mov_b32 {v(m2)}, {v(m1)}")
        A(wr[7])
        A(f"v_permlane32_swap_b32 {v(m1)}, {v(m2)}")
        A(f"v_max_f32 {v(m1)}, {v(m1)}, {v(m2)}")
        A(f"v_mul_f32 {v(m1)}, {s(sSC+1)}, {v(m1)}")
        for r in (S0,S0+2,S1,S1+2,SM):
            A(f"v_pk_fma_f32 {v(r,2)}, {v(r,2)}, {s(sSC,2)}, {v(m1,2)} op_sel_hi:[1,0,0]")
        for r in (S0,S0+1,S0+2,S0+3): A(f"v_exp_f32 {v(r)}, {v(r)}")
        for r in (S1,S1+1): A(f"v_exp_f32 {v(r)}, {v(r)}")
        A(f"v_cvt_pk_bf16_f32 {v(B1)}, {v(S0)}, {v(S0+1)}")
        for r in (S1+2,S1+3): A(f"v_exp_f32 {v(r)}, {v(r)}")
        A(f"v_cvt_pk_bf16_f32 {v(B1+1)}, {v(S0+2)}, {v(S0+3)}")
        A(f"v_cvt_pk_bf16_f32 {v(B1+2)}, {v(S1)}, {v(S1+1)}")
        A(f"v_exp_f32 {v(SM)}, {v(SM)}")
        A(f"v_cvt_pk_bf16_f32 {v(B1+3)}, {v(S1+2)}, {v(S1+3)}")
        A(f"v_exp_f32 {v(SM+1)}, {v(SM+1)}")
        O0, O1 = KXR+16, KXR+20
        LS = SM
        A(f"v_cvt_pk_bf16_f32 {v(vPM)}, {v(SM)}, {v(SM+1)}")
        A("s_waitcnt lgkmcnt(4)")
        A(f"v_mfma_f32_16x16x16_bf16 {v(LS,4)}, {v(ONE,2)}, {v(B1,2)}, 0")
        A(f"v_mfma_f32_16x16x16_bf16 {v(LS,4)}, {v(ONE,2)}, {v(B1+2,2)}, {v(LS,4)}")
        A(f"v_mfma_f32_16x16x16_bf16 {v(LS,4)}, {v(ONE,2)}, {v(vPM,2)}, {v(LS,4)}")
        w4 = wo_rd(4,4)
        A(f"v_mfma_f32_16x16x32_bf16 {v(O0,4)}, {v(VXO,4)}, {v(B1,4)}, 0")
        A(w4[0])
        A(f"v_mfma_f32_16x16x32_bf16 {v(O1,4)}, {v(VXO+4,4)}, {v(B1,4)}, 0")
        A(w4[1])
        A(f"v_mfma_f32_16x16x16_bf16 {v(O0,4)}, {v(VMa,2)}, {v(vPM,2)}, {v(O0,4)}")
        A(f"v_rcp_f32 {v(m1)}, {v(LS)}")
        A(f"v_mfma_f32_16x16x16_bf16 {v(O1,4)}, {v(VMa+2,2)}, {v(vPM,2)}, {v(O1,4)}")
        for r in (O0,O0+2,O1,O1+2):
            A(f"v_pk_mul_f32 {v(r,2)}, {v(r,2)}, {v(m1,2)} op_sel_hi:[1,0]")
        OP = S0
        A(f"v_cvt_pk_bf16_f32 {v(OP)}, {v(O0)}, {v(O0+1)}")
        A(f"v_cvt_pk_bf16_f32 {v(OP+1)}, {v(O0+2)}, {v(O0+3)}")
        A(f"v_cvt_pk_bf16_f32 {v(OP+2)}, {v(O1)}, {v(O1+1)}")
        A(f"v_cvt_pk_bf16_f32 {v(OP+3)}, {v(O1+2)}, {v(O1+3)}")
        A(f"ds_write2_b64 {v(vOW)}, {v(OP,2)}, {v(OP+2,2)} offset0:0 offset1:4")
        ts(4)
        A(f"v_mfma_f32_32x32x8_bf16 {v(PA,16)}, {v(vZP,2)}, {v(vZP,2)}, 0")
        w5 = wo_rd(5,5) + wo_rd(6,6)
        A(w5[0]); A(w5[1])
        A(f"v_mfma_f32_32x32x8_bf16 {v(PA+16,16)}, {v(vZP,2)}, {v(vZP,2)}, 0")
        A(w5[2]); A(w5[3])
        A("s_waitcnt lgkmcnt(4)")
        A("s_barrier")
        OA = S0
        A(f"ds_read_b128 {v(OA,4)}, {v(vOR)}")
        A(f"ds_read_b128 {v(OA+4,4)}, {v(vOR)} offset:128")
        w7 = wo_rd(7,7)
        for x in w7: A(x)
        for x in kv_dma(): A(x)
        ts(5)
        A("s_waitcnt lgkmcnt(2)")
        issued = [7]; nxt = 8
        PK0 = X0
        for fi in range(16):
            j,b = frags[fi]
            buf = fi % 8
            if fi >= 7 and fi % 2 == 1:
                tgt = min(fi+1, 15)
                later = len(issued) - 1 - issued.index(tgt)
                A(f"s_waitcnt lgkmcnt({min(15,2*later)})")
            A(f"v_smfmac_f32_16x16x64_bf16 {v(PA+4*j,4)}, {v(OA+4*b,4)}, {v(FB[buf],8)}, {v(vIDX)}")
            if nxt < 16:
                for x in wo_rd(nxt, nxt % 8): A(x)
                issued.append(nxt); nxt += 1
            if b == 1 and j >= 1:
                jj = j-1
                dst = (PK0 + jj) if jj < 4 else (PA + jj - 4)
                A(f"v_pk_add_f32 {v(PA+4*jj,2)}, {v(PA+4*jj,2)}, {v(PA+4*jj+2,2)}")
                A(f"v_cvt_pk_bf16_f32 {v(dst)}, {v(PA+4*jj)}, {v(PA+4*jj+1)}")
                if jj == 3:
                    A(f"v_bfi_b32 {v(PK0)}, 1, {s(sPH)}, {v(PK0)}")
                    A(f"global_store_dwordx4 {v(vPP)}, {v(PK0,4)}, {s(sPc,2)} {st}")
        A(f"v_bfi_b32 {v(PA)}, 1, {s(sPH)}, {v(PA)}")
        A(f"v_pk_add_f32 {v(PA+28,2)}, {v(PA+28,2)}, {v(PA+30,2)}")
        A(f"v_cvt_pk_bf16_f32 {v(PA+3)}, {v(PA+28)}, {v(PA+29)}")
        A(f"global_store_dwordx4 {v(vPP)}, {v(PA,4)}, {s(sPc2,2)} {st}")
        ts(6)
        kv_adv()
        A(f"s_add_u32 {s(sSTEP)}, {s(sSTEP)}, 1")
        zero_acc()
        if not far:
            RS = MA
            A(f"v_bfe_u32 {v(MA+4)}, {v(vL16)}, 4, 3")
            A(f"v_mov_b32 {v(MA+5)}, 0x3f80")
            A(f"v_mov_b32 {v(MA+6)}, 0x3f800000")
            for d in range(4):
                A(f"v_cmp_eq_u32 vcc, {2*d}, {v(MA+4)}")
                A(f"v_cndmask_b32 {v(RS+d)}, 0, {v(MA+5)}, vcc")
                A(f"v_cmp_eq_u32 vcc, {2*d+1}, {v(MA+4)}")
                A(f"v_cndmask_b32 {v(RS+d)}, {v(RS+d)}, {v(MA+6)}, vcc")
            delay(A, D1)
            G = KXR+4
            RA = KXR+20
            GB = MA+8
            def ldp(base):
                for t in range(4):
                    A(f"global_load_dwordx4 {v(base+4*t,4)}, {v(vPG)}, {s(sPc,2)} offset:{t*1024} sc1")
            def chkp(base):
                A(f"v_bitop3_b32 {v(T0)}, {v(base)}, {v(base+4)}, {s(sPH)} bitop3:0x7e")
                A(f"v_bitop3_b32 {v(T0+1)}, {v(base+8)}, {v(base+12)}, {s(sPH)} bitop3:0x7e")
                A(f"v_bitop3_b32 {v(T0)}, {v(T0)}, {v(T0+1)}, 1 bitop3:0xa8")
                A(f"v_cmp_ne_u32 vcc, 0, {v(T0)}")
            def summ(base):
                for t in range(4):
                    c = "0" if t == 0 else v(RA,4)
                    A(f"v_mfma_f32_16x16x32_bf16 {v(RA,4)}, {v(RS,4)}, {v(base+4*t,4)}, {c}")
            ldp(G)
            delay(A, DP)
            A(f"{L('L_pollp')}:")
            ldp(GB)
            A("s_waitcnt vmcnt(4)")
            summ(G)
            chkp(G)
            A(f"s_cbranch_vccz {L('L_gotp')}")
            ldp(G)
            A(f"s_add_u32 {s(sSPIN)}, {s(sSPIN)}, 1")
            A(f"s_cmp_gt_u32 {s(sSPIN)}, 0x40000")
            A(f"s_cbranch_scc1 L_chain_abort")
            A("s_waitcnt vmcnt(4)")
            summ(GB)
            chkp(GB)
            A(f"s_cbranch_vccnz {L('L_pollp')}")
            A(f"{L('L_gotp')}:")
            ts(7)
            for r in range(4):
                A(f"v_add_f32_dpp {v(RA+r)}, {v(RA+r)}, {v(RA+r)} row_ror:8 row_mask:0xf bank_mask:0xf")
            A(f"v_cvt_pk_bf16_f32 {v(T0)}, {v(RA)}, {v(RA+2)}")
            A(f"v_cvt_pk_bf16_f32 {v(T0+1)}, {v(RA+1)}, {v(RA+3)}")
            A(f"v_cndmask_b32 {v(T0)}, {v(T0)}, {v(T0+1)}, {s(sMASK,2)}")
            A(f"global_store_dword {v(vMP)}, {v(T0)}, {s(sMEMn,2)} {st}")
            A(f"v_mov_b32 {v(T0+2)}, -1")
            A(f"global_store_dword {v(vMP)}, {v(T0+2)}, {s(sMEMc,2)} {st}")
            ts(8)
        if far:
            A(f"s_add_u32 {s(sKM)}, {s(sKM)}, 8192")
            A(f"s_addc_u32 {s(sKM+1)}, {s(sKM+1)}, 0")
            A(f"s_cmp_lt_u32 {s(sSTEP)}, {nsteps-2}")
            A(f"s_cselect_b32 {s(sT0)}, {32*8192}, 0")
            A(f"s_cselect_b32 {s(sT0+1)}, 16384, 0")
            A(f"s_cselect_b32 {s(sFMK2)}, {s(sFMASK)}, 0")
            A(f"s_add_u32 {s(sPFK)}, {s(sPFK)}, {s(sT0)}")
            A(f"s_addc_u32 {s(sPFK+1)}, {s(sPFK+1)}, 0")
            A(f"s_add_u32 {s(sFL1)}, {s(sFL1)}, {s(sT0+1)}")
            A(f"s_addc_u32 {s(sFL1+1)}, {s(sFL1+1)}, 0")
            A("s_waitcnt vmcnt(0)")
        dump_stamps()
        if stamp == 4 and far == 2:
            lab = A.label("L_nclk")
            A(f"s_cmp_lg_u32 {s(sRANK)}, 0"); A(f"s_cbranch_scc1 {lab}")
            A(f"s_memtime {s(76,2)}"); A(f"s_memrealtime {s(78,2)}"); A("s_waitcnt lgkmcnt(0)")
            A(f"s_lshl_b32 {s(sT0)}, {s(sSTEP)}, 3"); A(f"s_add_u32 {s(sT0)}, {s(sT0)}, {WS_END_CHAIN + 0x10000}")
            A(f"v_mov_b32 {v(T0)}, {s(sT0)}"); A(f"v_mov_b32 {v(T0+2)}, {s(76)}"); A(f"v_mov_b32 {v(T0+3)}, {s(78)}")
            A(f"global_store_dwordx2 {v(T0)}, {v(T0+2,2)}, {s(sWS,2)}")
            A(f"{lab}:")
        A(f"s_mov_b64 {s(sT0+2,2)}, {s(sMEMc,2)}")
        A(f"s_mov_b64 {s(sMEMc,2)}, {s(sMEMn,2)}")
        A(f"s_mov_b64 {s(sMEMn,2)}, {s(sT0+2,2)}")
        A(f"s_xor_b32 {s(sPH)}, {s(sPH)}, 1")
        if B0: A("s_barrier")
        elif far: delay(A, D3)
        A(f"s_branch {L('L_step')}")
    def slow_code(slowpaths):
        for (fs_, fok) in slowpaths:
            A(f"{fs_}:")
            A(f"v_bfe_u32 {v(X0)}, {v(vL16)}, 4, 1")
            A(f"v_lshl_add_u32 {v(X0)}, {v(X0)}, 11, {s(sFL2)}")
            A(f"s_sub_u32 {s(sT0+2)}, {s(sFL1)}, 16384")
            A(f"s_subb_u32 {s(sT0+3)}, {s(sFL1+1)}, 0")
            A(f"global_load_dword {v(vPF)}, {v(X0)}, {s(sT0+2,2)} sc1")
            A(f"s_add_u32 {s(sSPIN)}, {s(sSPIN)}, 1")
            A(f"s_cmp_gt_u32 {s(sSPIN)}, 0x40000")
            A(f"s_cbranch_scc1 L_chain_abort")
            A("s_waitcnt vmcnt(0)")
            A(f"v_cmp_ne_u32 vcc, 0, {v(vPF)}")
            A(f"s_and_b32 {s(sT0)}, vcc_lo, {s(sFMK2)}")
            A(f"s_cmp_eq_u32 {s(sT0)}, {s(sFMK2)}")
            A(f"s_cbranch_scc1 {fok}")
            A("s_sleep 1")
            A(f"s_branch {fs_}")
    def main_loop(st, sfx):
        sp = []
        A(f"s_cmp_eq_u32 {s(sWAVE)}, 2")
        A(f"s_cbranch_scc1 L_step{sfx}_f2")
        A(f"s_cmp_eq_u32 {s(sWAVE)}, 3")
        A(f"s_cbranch_scc1 L_step{sfx}_f3")
        step_body(st, sfx+"_n", 0, sp)
        A.hist = []
        step_body(st, sfx+"_f2", 2, sp)
        A.hist = []
        step_body(st, sfx+"_f3", 3, sp)
        slow_code(sp)
    step_scalars(); zero_acc()
    A("s_barrier")
    if flags:
        A(f"s_cmp_lg_u32 {s(sMODE)}, 1")
        A("s_cbranch_scc1 L_main_slow")
        main_loop("", "_fast")
        A.hist = []
        A("L_main_slow:")
        main_loop("sc1", "_slow")
    else:
        main_loop(smode, "")
    A("L_chain_abort:")
    A(f"s_mov_b32 {s(sSTEP)}, 0xdead")
    A("s_branch L_chain_end")
    A("L_chain_done:")
    if flags:
        A(f"s_lshl_b32 {s(sT0)}, {s(sRANK)}, 12")
        A(f"s_add_u32 {s(sT0)}, {s(sT0)}, {63*32*4096}")
        A(f"s_add_u32 {s(sT0+2)}, {s(sWS)}, {s(sT0)}")
        A(f"s_addc_u32 {s(sT0+3)}, {s(sWS+1)}, 0")
        A(f"s_add_u32 {s(sT0+4)}, {s(sT0+2)}, {WS_VM}")
        A(f"s_addc_u32 {s(sT0+5)}, {s(sT0+3)}, 0")
        A(f"s_add_u32 {s(sT0+2)}, {s(sT0+2)}, {WS_KM}")
        A(f"s_addc_u32 {s(sT0+3)}, {s(sT0+3)}, 0")
        kl = [A.label("L_lk") for _ in range(5)]
        for w in range(1,4):
            A(f"s_cmp_eq_u32 {s(sWAVE)}, {w}")
            A(f"s_cbranch_scc1 {kl[w]}")
        for w in range(4):
            A(f"{kl[w]}:")
            A(f"global_store_dwordx4 {v(vL16)}, {v(AQK+4*w,4)}, {s(sT0+2,2)} offset:{w*1024} sc1")
            A(f"v_lshrrev_b32 {v(T0)}, 1, {v(vL16)}")
            A(f"global_store_dwordx2 {v(T0)}, {v(X0,2)}, {s(sT0+4,2)} offset:{w*512} sc1")
            A(f"s_branch {kl[4]}")
        A(f"{kl[4]}:")
        A("s_waitcnt vmcnt(0)")
        A("s_barrier")
        fin = A.label("L_cfin")
        A(f"s_cmp_lg_u32 {s(sWAVE)}, 0")
        A(f"s_cbranch_scc1 {fin}")
        A(f"s_lshl_b32 {s(sT0)}, {s(sRANK)}, 7")
        A(f"s_add_u32 {s(sT0)}, {s(sT0)}, {WS_FLAGS + 63*16384 + 8192}")
        A(f"v_mov_b32 {v(T0)}, {s(sT0)}")
        A("s_mov_b64 exec, 1")
        A(f"global_store_dword {v(T0)}, {v(vIDX)}, {s(sWS,2)} sc1")
        A("s_mov_b64 exec, -1")
        A(f"{fin}:")
    A("L_chain_end:")
    if STARTUP_STAMPS:
        A("s_waitcnt lgkmcnt(0)")
        A(f"s_lshl_b32 {s(sT0)}, {s(sRANK)}, 2")
        A(f"s_add_u32 {s(sT0)}, {s(sT0)}, {s(sWAVE)}")
        A(f"s_lshl_b32 {s(sT0)}, {s(sT0)}, 6")
        A(f"s_add_u32 {s(sT0)}, {s(sT0)}, {WS_END_CHAIN + 0x4000}")
        A(f"v_mov_b32 {v(24)}, {s(sT0)}")
        for k in range(8):
            A(f"v_mov_b32 {v(25)}, {s(76+2*k)}")
            A(f"global_store_dword {v(24)}, {v(25)}, {s(sWS,2)} offset:{4*k}")
        A(f"s_getreg_b32 {s(sT0+1)}, hwreg(HW_REG_HW_ID)")
        A(f"v_mov_b32 {v(25)}, {s(sT0+1)}")
        A(f"global_store_dword {v(24)}, {v(25)}, {s(sWS,2)} offset:32")
    if stamp:
        A(f"s_lshl_b32 {s(sT0)}, {s(sRANK)}, 2")
        A(f"s_add_u32 {s(sT0)}, {s(sT0)}, {s(sWAVE)}")
        A(f"s_lshl_b32 {s(sT0)}, {s(sT0)}, 6")
        A(f"s_add_u32 {s(sT0)}, {s(sT0)}, {WS_END_CHAIN}")
        A(f"v_mov_b32 {v(24)}, {s(sT0)}")
        A(f"s_memtime {s(sTS+2,2)}")
        A("s_waitcnt lgkmcnt(0)")
        A(f"s_sub_u32 {s(sTS+2)}, {s(sTS+2)}, {s(sTS)}")
        A(f"v_mov_b32 {v(25)}, {s(sTS+2)}")
        A(f"global_store_dword {v(24)}, {v(25)}, {s(sWS,2)} offset:40")
        A(f"v_mov_b32 {v(25)}, {s(sSTEP)}")
        A(f"global_store_dword {v(24)}, {v(25)}, {s(sWS,2)} offset:44")
        A(f"v_mov_b32 {v(25)}, {s(sSPIN)}")
        A(f"global_store_dword {v(24)}, {v(25)}, {s(sWS,2)} offset:48")
        if stamp == 1:
            A(f"s_memrealtime {s(86,2)}"); A("s_waitcnt lgkmcnt(0)")
            for k in range(4):
                A(f"v_mov_b32 {v(25)}, {s(80+2*k)}")
                A(f"global_store_dword {v(24)}, {v(25)}, {s(sWS,2)} offset:{4*k}")
    A("s_waitcnt vmcnt(0)")

def gen_entry(A):
    A(f"s_load_dwordx2 {s(60,2)}, s[0:1], {KA_MEM0}")
    A(f"s_load_dwordx2 {s(62,2)}, s[0:1], {KA_WQ}")
    A(f"s_load_dwordx2 {s(64,2)}, s[0:1], {KA_WK}")
    A(f"s_load_dwordx2 {s(66,2)}, s[0:1], {KA_WV}")
    A(f"s_load_dwordx2 {s(68,2)}, s[0:1], {KA_WO}")
    A(f"s_load_dwordx2 {s(sDBG,2)}, s[0:1], {KA_DBG}")
    A(f"s_load_dwordx2 {s(sWS,2)}, s[0:1], {KA_WS}")
    A(f"s_getreg_b32 {s(sT0)}, hwreg(HW_REG_XCC_ID, 0, 4)")
    A("v_lshrrev_b32 v1, 6, v0")
    A(f"v_readfirstlane_b32 {s(sWAVE)}, v1")
    A("v_and_b32 v31, 63, v0")
    A("s_waitcnt lgkmcnt(0)")

def gen_standalone(stamp=0, **kw):
    A = Asm()
    name = "chain_kernel"
    A.raw("; @launch kernel=chain_kernel grid=(256,1,1) block=(256,1,1) lds=163840")
    A.raw('.amdgcn_target "amdgcn-amd-amdhsa--gfx950"')
    A.raw(kstart(name))
    gen_entry(A)
    A(f"s_cmp_lg_u32 {s(sT0)}, 0")
    A("s_cbranch_scc1 L_exit")
    A("s_cmp_ge_u32 s2, 256")
    A("s_cbranch_scc1 L_exit")
    A("v_mov_b32 v2, 0")
    A("v_mov_b32 v3, 1")
    A(f"v_mov_b32 v5, {L_MISC}")
    tk = "L_tk"
    A(f"s_cmp_lg_u32 {s(sWAVE)}, 0")
    A(f"s_cbranch_scc1 {tk}")
    A("s_mov_b64 exec, 1")
    A(f"global_atomic_add v4, v2, v3, {s(sDBG,2)} sc0")
    A("s_waitcnt vmcnt(0)")
    A("ds_write_b32 v5, v4")
    A("s_waitcnt lgkmcnt(0)")
    A("s_mov_b64 exec, -1")
    A(f"{tk}:")
    A("s_barrier")
    A("ds_read_b32 v4, v5")
    A("s_waitcnt lgkmcnt(0)")
    A(f"v_readfirstlane_b32 {s(sRANK)}, v4")
    A(f"s_cmp_ge_u32 {s(sRANK)}, 32")
    A("s_cbranch_scc1 L_exit")
    gen_chain(A, 64, stamp, **kw)
    A("L_exit:")
    A("s_endpgm")
    A.raw(kd(name))
    return A

if __name__ == "__main__":
    import sys
    kw = {}
    for x in sys.argv[3:]:
        k,val = x.split("=")
        if k == "AL": ALIGN = int(val)
        else: kw[k] = int(val)
    A = gen_standalone(stamp=int(sys.argv[2]) if len(sys.argv)>2 else 0, **kw)
    open(sys.argv[1], "w").write(A.text())
    print("nops inserted:", A.nops, "lines", len(A.out))
```
